```python
import torch

def _softmax(x, axis=-1):
    return torch.softmax(x, dim=axis)
def _gelu(x):
    return torch.nn.functional.gelu(x, approximate="tanh")
def _silu(x):
    return torch.nn.functional.silu(x)
def _sigmoid(x):
    return torch.sigmoid(x)
def _layernorm(x, axis=-1, eps=1e-5):
    m = x.mean(dim=axis, keepdim=True)
    v = x.var(dim=axis, keepdim=True, unbiased=False)
    return (x - m) / torch.sqrt(v + eps)
def _scatter_add(tgt, idx, src, axis=0):
    return tgt.clone().index_add_(axis, idx, src)
def _segment_sum(src, seg, n):
    out = torch.zeros((n,) + src.shape[1:], dtype=src.dtype)
    return out.index_add_(0, seg, src)
def _pad(x, pw):
    flat = tuple(v for pair in reversed(pw) for v in pair)
    return torch.nn.functional.pad(x, flat)

kernel_name = 'standalone__gqa_softmax__near_ridge'

def setup_inputs():

    _w = (lambda a: (lambda t: t.to(torch.bfloat16) if t.is_floating_point() else t)(torch.as_tensor(a)))
    B, Hq, Hkv, Sq, Sk, D = 32, 32, 8, 192, 512, 128
    return {
        "q": _w((lambda *s: torch.randn(*s, dtype=torch.bfloat16) * 0.8)(B, Hq, Sq, D)),
        "k": _w((lambda *s: torch.randn(*s, dtype=torch.bfloat16) * 0.8)(B, Hkv, Sk, D)),
        "v": _w((lambda *s: torch.randn(*s, dtype=torch.bfloat16) * 0.05)(B, Hkv, Sk, D)),
    }

def reference(q, k, v):
    B, Hq, Sq, D = q.shape
    Hkv = k.shape[1]
    rep = Hq // Hkv
    k = (lambda x, n, axis: torch.repeat_interleave(x, n, dim=axis))(k, rep, axis=1)
    v = (lambda x, n, axis: torch.repeat_interleave(x, n, dim=axis))(v, rep, axis=1)
    scale = D ** -0.5
    scores = torch.einsum("bhqd,bhkd->bhqk", q, k) * scale
    p = _softmax(scores, axis=-1)
    return torch.einsum("bhqk,bhkd->bhqd", p, v)
```

```python
import re
from collections import defaultdict

COST = dict(mfma=8, valu=4, trans=8, perm=8, pk=4, dsr=4, dsw=12, dma=9, gld=9, gst=16, salu=0, bar=0, wait=0, nop=0)
VALU_KINDS = ('valu','trans','perm','pk')
MEM_KINDS = ('dsr','dsw','dma','gld','gst')
SC_KINDS = ('salu','bar','wait','nop')

def R(p, lo, n=1):
    return [f"{p}{i}" for i in range(lo, lo+n)]
def rng(p, lo, n):
    return f"{p}{lo}" if n==1 else f"{p}[{lo}:{lo+n-1}]"

class Op:
    __slots__=('text','kind','reads','writes','cread','release','deadline','margin','preds','succs','idx','bb','pos','lat','prio','cost','tag','late','nws')
    def __init__(s, text, kind, reads=(), writes=(), cread=(), release=None, deadline=None, margin=0, tag=None, cost=None, late=False):
        s.text=text; s.kind=kind; s.reads=list(reads); s.writes=list(writes); s.cread=list(cread)
        s.release=release; s.deadline=deadline; s.margin=margin
        s.preds=[]; s.succs=[]; s.bb=None; s.pos=None; s.tag=tag; s.late=late
        s.cost = COST[kind] if cost is None else cost
        s.nws = 1
    def __repr__(s): return f"<{s.text}>"

def hazard_dist(a, b):
    d=0
    aw=set(a.writes); br=set(b.reads); bw=set(b.writes)
    vec = lambda S: {x for x in S if x[0] in 'va' and x[1:].isdigit()}
    if a.kind=='mfma':
        D=vec(aw)
        if b.kind=='mfma':
            ab = vec(br)-set(b.cread)
            if D & ab: d=max(d,8)
            c=set(b.cread)
            if D & c and c!=D: d=max(d,6)
        elif b.kind in VALU_KINDS:
            if D & (br|bw): d=max(d,8)
            if set(a.cread) & bw: d=max(d,3)
        elif b.kind in MEM_KINDS:
            if D & (br|bw): d=max(d,8)
    elif a.kind in VALU_KINDS:
        W=vec(aw)
        if b.kind=='mfma' and W & br: d=max(d,2)
        if b.kind=='perm' and W & br: d=max(d,2)
        if a.kind=='trans' and b.kind in ('valu','perm','pk') and W & br: d=max(d,1)
        sw={x for x in aw if x[0]=='s' or x=='vcc'}
        if sw & br:
            if b.kind in VALU_KINDS: d=max(d,2)
            elif b.kind in MEM_KINDS: d=max(d,5)
            else: d=max(d,2)
    elif a.kind=='salu':
        if 'm0' in aw and b.kind=='dma': d=max(d,1)
    elif a.kind=='gst':
        if vec(set(a.reads)) & bw: d=max(d,2)
    return d

class Program:
    def __init__(s):
        s.ops=[]
    def add(s, op):
        op.idx=len(s.ops); s.ops.append(op); return op
    def build_deps(s):
        lastw={}; readers=defaultdict(list)
        for o in s.ops:
            P=set()
            for r in o.reads:
                if r in lastw: P.add(lastw[r])
            for w in o.writes:
                if w in lastw: P.add(lastw[w])
                for x in readers[w]: P.add(x)
            P.discard(o)
            for p in P:
                o.preds.append(p); p.succs.append(o)
            for r in o.reads: readers[r].append(o)
            for w in o.writes:
                lastw[w]=o; readers[w]=[]
    def schedule(s, budget=8, verbose=False):
        s.build_deps()
        bbs=[o for o in s.ops if o.kind=='mfma']
        for i,o in enumerate(bbs): o.bb=i
        N=len(bbs)
        for o in reversed(s.ops):
            if o.kind=='mfma': continue
            lat = N-1
            if o.deadline is not None: lat=min(lat,o.deadline)
            pr = lat
            wr={w for w in o.writes if ':' not in w}
            for x in o.succs:
                mg = o.margin if wr & set(x.reads) else 0
                if x.kind=='mfma':
                    lat=min(lat,x.bb-1); pr=min(pr,x.bb-1-mg)
                else:
                    lat=min(lat,x.lat); pr=min(pr,x.prio-mg)
            o.lat=lat; o.prio=pr
        out=[]
        npred={o:len(o.preds) for o in s.ops}
        ready=[o for o in s.ops if o.kind!='mfma' and not o.preds]
        def dist_ok(o):
            need=0
            k=0
            for p in reversed(out[-10:]):
                d=hazard_dist(p,o)
                if d>k: need=max(need,d-k)
                k+=p.nws
            return need
        def emit(o):
            n=dist_ok(o)
            if n>0:
                nop=Op(f"s_nop {n-1}",'nop'); nop.nws=n; nop.cost=4*n; nop.pos=len(out); out.append(nop)
            o.pos=len(out); out.append(o)
            for x in o.succs:
                npred[x]-=1
                if npred[x]==0 and x.kind!='mfma': ready.append(x)
            if o in ready: ready.remove(o)
            return o.cost+(4*n)
        def fill(g):
            used=0; shadow=(g>=0); memok=True
            while True:
                cands=[o for o in ready if (o.release is None or o.release<=g)]
                if not cands: break
                if g<0:
                    cands=[o for o in cands if o.prio<=g]
                    if not cands: break
                    cands.sort(key=lambda o:o.idx); emit(cands[0]); continue
                cands.sort(key=lambda o:(o.prio,o.idx))
                pick=None
                sc=[o for o in cands if o.kind in SC_KINDS and (not o.late or o.prio<=g)]
                if shadow and sc:
                    pick=sc[0]; shadow=False; emit(pick); continue
                shadow=False
                urgent=[o for o in cands if o.prio<=g]
                rem=budget-used
                if memok:
                    m=[o for o in cands if o.kind in MEM_KINDS and (o.prio<=g or (o.cost<=rem+1 and not o.late)) and dist_ok(o)==0]
                    if m and not (m[0].prio>g and s.mem_defer(m[0],cands,g,rem)):
                        used+=emit(m[0]); continue
                v=[o for o in cands if o.kind in VALU_KINDS and dist_ok(o)==0 and (o.cost<=rem or o.prio<=g)]
                if v:
                    pick=v[0]
                    memok=False
                    used+=emit(pick); continue
                must=[o for o in cands if o.lat<=g or (o.prio<=g and o.kind in SC_KINDS)]
                if must:
                    o=must[0]
                    c=emit(o)
                    if o.kind in SC_KINDS: c+=4
                    if o.kind in MEM_KINDS and not memok: c+=8
                    if o.kind in VALU_KINDS: memok=False
                    used+=c; continue
                break
            return used
        fill(-1)
        for g,m in enumerate(bbs):
            assert npred[m]==0, (g,m,[p for p in m.preds if p.pos is None])
            emit(m)
            fill(g)
        left=[o for o in s.ops if o.pos is None]
        assert not left, left[:5]
        s.out=out
        return out
    def mem_defer(s,o,cands,g,rem):
        return False

def insert_waits(out):
    res=[]
    lg=[]; vm=[]
    def need(lst,o):
        k=-1
        rs={x for x in set(o.reads)|set(o.writes) if not x.startswith('O:')}
        for i,p in enumerate(lst):
            if set(p.writes)&rs:
                shared=set(p.writes)&rs
                if p.kind in('dsr','dsw') and o.kind in ('dsr','dsw'):
                    shared={x for x in shared if not x.startswith('L:')}
                    if p.kind=='dsr' and o.kind=='dsr':
                        shared={x for x in shared if x in o.reads}
                    if not shared: continue
                if p.kind in ('dma','gld','gst') and o.kind in('dma','gld','gst'):
                    shared={x for x in shared if x in o.reads and not x.startswith('O:')}
                    if not shared: continue
                k=i
        return k
    for o in out:
        kl=need(lg,o); kv=need(vm,o)
        if kl>=0 or kv>=0:
            pl = lg[kl] if kl>=0 else None
            pv = vm[kv] if kv>=0 else None
            lastprod=max(res.index(p) for p in (pl,pv) if p is not None)
            pos=len(res)
            j=len(res)-1; tries=0; found=None
            while j>lastprod and tries<2:
                if res[j].kind=='mfma':
                    tries+=1
                    nxt = res[j+1] if j+1<len(res) else o
                    if nxt.kind=='wait' or nxt.kind not in SC_KINDS:
                        found=j+1; break
                j-=1
            if found is not None: pos=found
            cnt=lambda p,kinds: sum(1 for x in res[res.index(p)+1:pos] if x.kind in kinds)
            nl = min(15,cnt(pl,('dsr','dsw'))) if pl else None
            nv = min(63,cnt(pv,('dma','gld','gst'))) if pv else None
            if pos<len(res) and res[pos].kind=='wait':
                w=res[pos]
                if nl is not None: w.tag['l']=min(nl,w.tag.get('l',99))
                if nv is not None: w.tag['v']=min(nv,w.tag.get('v',99))
            else:
                w=Op('','wait',tag={})
                if nl is not None: w.tag['l']=nl
                if nv is not None: w.tag['v']=nv
                res.insert(pos,w)
            w.text='s_waitcnt '+' '.join(([f"vmcnt({w.tag['v']})"] if 'v' in w.tag else [])+([f"lgkmcnt({w.tag['l']})"] if 'l' in w.tag else []))
            if kl>=0: lg=lg[kl+1:]
            if kv>=0: vm=vm[kv+1:]
        res.append(o)
        if o.kind in('dsr','dsw'): lg.append(o)
        if o.kind in('dma','gld','gst'): vm.append(o)
        assert len(vm)<=63, "vmcnt overflow"
    return res

def check_hazards(out):
    for i,o in enumerate(out):
        k=0
        for p in reversed(out[max(0,i-10):i]):
            d=hazard_dist(p,o)
            assert d<=k, (p,o,d,k)
            k+=p.nws

def estimate(out):
    t=0; lastm=-100; prev=None; vend=-100
    for o in out:
        k=o.kind
        if k=='mfma':
            t=max(t,lastm+16); lastm=t; t+=8
        elif k in SC_KINDS:
            c = 4*o.nws
            if prev is not None and prev.kind=='mfma': c-=4
            t+=c
        else:
            if k=='pk': t=max(t,lastm+28)
            if k in MEM_KINDS: t=max(t,vend+8)
            t+=o.cost
            if k in VALU_KINDS: vend=t
        prev=o
    return t
```

```python
import sys, math, struct
from sched import *

NAME="standalone__gqa_softmax__near_ridge"
CSC = math.log2(math.e)/math.sqrt(128.0)
def f2u(x): return struct.unpack('<I',struct.pack('<f',x))[0]

vKa=[4,5]; vVa=[6,7,8,9]; vQa=[10,11]; vDMA=12; vOst=13
vT=16
vS=[32,40]; vP=[48,52]; vMC=56
vO=lambda slot,t: 64+32*slot+4*t
aQ=lambda b: 16*b
aK=lambda f: 160+4*f
aV=lambda t: 192+4*t
aSum=lambda slot: 224+4*slot
aOne=248
sQ=8; sK=12; sV=16; sO=20
sC=24; sTH=25; sWL=26 ; sWQ=27; sWS=28; sOffKV=29; sOffQ=30; sOffO=31; sW=32
sFlag=40
KRING=0; VRING=65536; STG=131072

class Gen:
    def __init__(s, cfg):
        s.cfg=cfg; s.P=Program(); s.nbb=0; s.bars=[]; s.vis=set()
        s.R=cfg.get('ring',8)
        s.lastread={}
        s.dmadone={}
        s.ldpol=cfg.get('ldpol','nt'); s.stpol=cfg.get('stpol','sc0 sc1 nt')
    def add(s,*a,**k):
        o=Op(*a,**k); s.P.add(o)
        if o.kind=='mfma': s.nbb+=1
        return o
    def now(s): return s.nbb-1
    def barrier(s):
        g=s.now()
        b=s.add("s_barrier",'bar',reads=[],writes=['barorder'],release=g,deadline=g)
        s.bars.append(b); return b
    def visible(s,part,g):
        if (part,g) in s.vis: return
        b=s.bars[-1]
        assert s.dmadone[(part,g)]<b.idx, ("dma after barrier",part,g)
        b.reads.append(f"L:{part}{g}"); b.writes.append(f"vis{part}{g}"); s.vis.add((part,g))
    def dma_kv(s,part,g,rel,step):
        slot=g%s.R
        rd=[]
        if g>=s.R:
            b=s.bars[-1]; old=g-s.R
            assert s.allread[(part,old)]==0 and s.lastread[(part,old)]<b.idx, ("slot not free",part,g)
            b.reads.append(f"L:rd{part}{old}"); b.writes.append(f"free{part}{old}"); rd=[f"free{part}{old}"]
        base=(KRING if part=='K' else VRING)+slot*8192
        if s.curoff!=g:
            s.add(f"s_mov_b32 s{sOffKV}, {g*8192}",'salu',writes=[f"s{sOffKV}"]); s.curoff=g
        s.add(f"s_add_u32 m0, s{sWL}, {base}",'salu',writes=['m0'])
        srd=sK if part=='K' else sV
        for i in range(2):
            o=s.add(f"buffer_load_dwordx4 v{vDMA}, s[{srd}:{srd+3}], s{sOffKV} offen offset:{2048*i} {s.ldpol} lds",'dma',
                  reads=['m0',f"s{sOffKV}"]+rd,writes=[f"L:{part}{g}",'O:vm'],release=rel+i*step,deadline=(rel+i*step+s.cfg.get('dmawin',6) if rel>=0 else -1))
        s.dmadone[(part,g)]=o.idx
    def dma_q(s,T,rel,step):
        buf=T%2; it,j=divmod(T,6)
        s.add(f"s_add_u32 s{sOffQ}, s{sWQ}, {(it*768+16*j)*256}",'salu',writes=[f"s{sOffQ}"])
        k=0
        for half in range(2):
            s.add(f"s_add_u32 m0, s{sWS}, {STG+buf*4096+half*896}",'salu',writes=['m0'])
            for oc in range(2):
                s.add(f"buffer_load_dwordx4 v{vDMA}, s[{sQ}:{sQ+3}], s{sOffQ} offen offset:{2048*oc+128*half} {s.ldpol} lds",'dma',
                      reads=['m0',f"s{sOffQ}",f"L:qrd{buf}"],writes=[f"L:Q{T}",'O:vm'],release=rel+k*step,deadline=(rel+k*step+s.cfg.get('dmawin',6) if rel>=0 else -1))
                k+=1
    def read_q(s,T,rel):
        buf=T%2; qb=s.qbuf[T]
        for st in range(4):
            s.add(f"ds_read_b128 {rng('a',aQ(qb)+4*st,4)}, v{vQa[st%2]} offset:{buf*4096+(st//2)*1024}",'dsr',
                  reads=[f"L:Q{T}"]+(['O:vm'] if st==0 else []),writes=R('a',aQ(qb)+4*st,4)+[f"L:qrd{buf}"],release=rel,margin=8,deadline=(rel+12 if rel>=0 else -1))
    def read_k(s,g,order):
        s.visible('K',g); slot=g%s.R
        for f in order:
            kt,st=divmod(f,4)
            o=s.add(f"ds_read_b128 {rng('a',aK(f),4)}, v{vKa[st%2]} offset:{slot*8192+kt*4096+(st//2)*1024}",'dsr',
                  reads=[f"visK{g}"],writes=R('a',aK(f),4)+[f"L:rdK{g}"],margin=s.cfg.get('dsmargin',12))
        s.lastread[('K',g)]=o.idx; s.allread[('K',g)]-=1
    def read_v(s,g):
        s.visible('V',g); slot=g%s.R
        for t in range(8):
            for kt in range(2):
                o=s.add(f"ds_read_b64_tr_b16 {rng('a',aV(t)+2*kt,2)}, v{vVa[t%4]} offset:{slot*8192+kt*4096+(t//4)*1024}",'dsr',
                      reads=[f"visV{g}"],writes=R('a',aV(t)+2*kt,2)+[f"L:rdV{g}"],margin=s.cfg.get('dsmargin',12))
        s.lastread[('V',g)]=o.idx; s.allread[('V',g)]-=1
    KORD=[0,1,2,3,7,6,5,4]
    def qk(s,n,T):
        b=n%2; qb=s.qbuf[T]
        for i,f in enumerate(s.KORD):
            kt,st=divmod(f,4)
            d=vS[b]+4*kt; first=(i%4==0)
            c = "0" if first else rng('v',d,4)
            s.add(f"v_mfma_f32_16x16x32_bf16 {rng('v',d,4)}, {rng('a',aK(f),4)}, {rng('a',aQ(qb)+4*st,4)}, {c}",'mfma',
                  reads=R('a',aK(f),4)+R('a',aQ(qb)+4*st,4)+([] if first else R('v',d,4)),writes=R('v',d,4),cread=([] if first else R('v',d,4)))
    def pv(s,n,T,first):
        b=n%2; slot=s.slot[T]; p=vP[b]
        for t in range(8):
            d=vO(slot,t); c="0" if first else rng('v',d,4)
            s.add(f"v_mfma_f32_16x16x32_bf16 {rng('v',d,4)}, {rng('a',aV(t),4)}, {rng('v',p,4)}, {c}",'mfma',
                  reads=R('a',aV(t),4)+R('v',p,4)+([] if first else R('v',d,4)),writes=R('v',d,4),cread=([] if first else R('v',d,4)))
        d=aSum(slot); c="0" if first else rng('a',d,4)
        s.add(f"v_mfma_f32_16x16x32_bf16 {rng('a',d,4)}, {rng('a',aOne,4)}, {rng('v',p,4)}, {c}",'mfma',
              reads=R('a',aOne,4)+R('v',p,4)+([] if first else R('a',d,4)),writes=R('a',d,4),cread=([] if first else R('a',d,4)))
    def sm(s,n,T,first):
        b=n%2; S=vS[b]; p=vP[b]; mc=vMC+s.slot[T]
        if first:
            t0,t1=vT,vT+1
            V=lambda txt,rd,wr,k='valu': s.add(txt,k,reads=[f"v{x}" for x in rd],writes=[f"v{x}" for x in wr],margin=1)
            V(f"v_max3_f32 v{t0}, v{S}, v{S+1}, v{S+2}",[S,S+1,S+2],[t0])
            V(f"v_max_f32 v{t0}, v{t0}, v{S+3}",[t0,S+3],[t0])
            V(f"v_mov_b32 v{t1}, v{t0}",[t0],[t1])
            V(f"v_permlane16_swap_b32 v{t0}, v{t1}",[t0,t1],[t0,t1],'perm')
            V(f"v_max_f32 v{t0}, v{t0}, v{t1}",[t0,t1],[t0])
            V(f"v_mov_b32 v{t1}, v{t0}",[t0],[t1])
            V(f"v_permlane32_swap_b32 v{t0}, v{t1}",[t0,t1],[t0,t1],'perm')
            V(f"v_max_f32 v{t0}, v{t0}, v{t1}",[t0,t1],[t0])
            V(f"v_mul_f32 v{mc}, 0x{f2u(-CSC):08x}, v{t0}",[t0],[mc])
        for k in range(4):
            for i in (2*k,2*k+1):
                s.add(f"v_fma_f32 v{S+i}, v{S+i}, s{sC}, v{mc}",'valu',reads=[f"v{S+i}",f"v{mc}"],writes=[f"v{S+i}"],margin=1)
            for i in (2*k,2*k+1):
                s.add(f"v_exp_f32 v{S+i}, v{S+i}",'trans',reads=[f"v{S+i}"],writes=[f"v{S+i}"],margin=1+(i%2==0))
            s.add(f"v_cvt_pk_bf16_f32 v{p+k}, v{S+2*k}, v{S+2*k+1}",'valu',reads=[f"v{S+2*k}",f"v{S+2*k+1}"],writes=[f"v{p+k}"],margin=1+4*(3-k))
    def epilogue(s,T):
        slot=s.slot[T]; it,j=divmod(T,6); g0=s.now()
        l=vT+2+(T%2); W=s.cfg.get('epiw',16)
        s.add(f"v_accvgpr_read_b32 v{l}, a{aSum(slot)}",'valu',reads=[f"a{aSum(slot)}"],writes=[f"v{l}"],deadline=g0+4)
        s.add(f"v_cmp_ngt_f32_e64 s[{sFlag+2*T}:{sFlag+2*T+1}], s{sTH}, v{l}",'valu',reads=[f"v{l}"],writes=[f"s{sFlag+2*T}"],deadline=g0+4)
        s.add(f"v_rcp_f32 v{l}, v{l}",'trans',reads=[f"v{l}"],writes=[f"v{l}"],deadline=g0+5)
        s.add(f"s_mov_b32 s{sOffO}, {(it*768+16*j)*256}",'salu',writes=[f"s{sOffO}"],release=g0)
        for m in range(4):
            o=vO(slot,2*m); dl=g0+6+(W*m)//4
            for i in range(8):
                s.add(f"v_mul_f32 v{o+i}, v{o+i}, v{l}",'valu',reads=[f"v{o+i}",f"v{l}"],writes=[f"v{o+i}"],deadline=dl+(i*W)//48)
            for i in range(4):
                s.add(f"v_cvt_pk_bf16_f32 v{o+i}, v{o+2*i}, v{o+2*i+1}",'valu',reads=[f"v{o+2*i}",f"v{o+2*i+1}"],writes=[f"v{o+i}"],deadline=dl+W//6+1)
            for i in range(2):
                s.add(f"v_permlane16_swap_b32 v{o+i}, v{o+i+2}",'perm',reads=[f"v{o+i}",f"v{o+i+2}"],writes=[f"v{o+i}",f"v{o+i+2}"],deadline=dl+W//6+2)
            s.add(f"buffer_store_dwordx4 {rng('v',o,4)}, v{vOst}, s[{sO}:{sO+3}], s{sOffO} offen offset:{64*m} {s.stpol}",'gst',
                  reads=R('v',o,4)+[f"s{sOffO}"],writes=['O:vm'],deadline=dl+W//6+3)
    def build(s):
        cfg=s.cfg
        visits=cfg['visits']
        s.slot={T:T%6 for T in range(12)}
        s.qbuf=cfg.get('qbuf',{**{T:T for T in range(10)},10:0,11:1})
        s.allread=defaultdict(int)
        for g,ts in visits:
            s.allread[('K',g)]+=1; s.allread[('V',g)]+=1
        ms=[]
        for vi,(g,ts) in enumerate(visits):
            for k,T in enumerate(ts): ms.append((vi,g,T,k==0,k==len(ts)-1))
        cnt=defaultdict(int)
        for m in ms: cnt[m[2]]+=1
        assert all(cnt[T]==16 for T in range(12)) and len({(m[1],m[2]) for m in ms})==192
        assert all(m[1]//16==m[2]//6 for m in ms)
        plan=defaultdict(list)
        for n,u in cfg['plan']: plan[n].append(u)
        s.curoff=None
        def doplan(n):
            rel=s.now(); us=plan.get(n,[])
            nd=sum({'B':4,'K':2,'V':2,'Q':4}.get(u[0],0) for u in us)
            step = 0 if n<0 else max(1,cfg.get('span',16)//max(nd,1))
            for u in us:
                if u[0]=='B':
                    s.dma_kv('K',u[1],rel,step); s.dma_kv('V',u[1],rel+2*step,step); rel+=4*step
                elif u[0] in 'KV':
                    s.dma_kv(u[0],u[1],rel,step); rel+=2*step
                elif u[0]=='Q':
                    s.dma_q(u[1],rel,step); rel+=4*step
                elif u[0]=='q':
                    s.read_q(u[1],s.now())
                elif u[0]=='bar':
                    s.barrier()
        seen=defaultdict(int); seenpv=defaultdict(int)
        barset=cfg.get('barvisits')
        doplan(-1)
        s.barrier(); s.read_k(ms[0][1],s.KORD)
        N=len(ms)
        for n in range(N+1):
            if n<N:
                vi,g,T,fi,la=ms[n]
                if la and n+1<N and (barset is None or vi+1 in barset): s.barrier()
                doplan(n)
                s.qk(n,T)
            if n>0:
                vi1,g1,T1,fi1,la1=ms[n-1]
                s.pv(n-1,T1,seenpv[T1]==0); seenpv[T1]+=1
                if seenpv[T1]==16: s.epilogue(T1)
            if n<N:
                s.sm(n,T,seen[T]==0); seen[T]+=1
                if fi: s.read_v(g)
                if la and n+1<N: s.read_k(ms[n+1][1],s.KORD)
        s.P.ops=[o for o in s.P.ops if not (o.kind=='bar' and not o.reads)]
        for i,o in enumerate(s.P.ops): o.idx=i
        out=s.P.schedule()
        out=insert_waits(out)
        check_hazards(out)
        return out

PRO = f"""
    s_cmp_ge_u32 s2, 256
    s_cbranch_scc1 L_end
    s_load_dwordx4 s[64:67], s[0:1], 0
    s_load_dwordx4 s[68:71], s[0:1], 16
    v_lshrrev_b32 v1, 6, v0
    v_and_b32 v0, 63, v0
    s_and_b32 s72, s2, 7
    v_readfirstlane_b32 s{sW}, v1
    s_lshr_b32 s73, s2, 3
    s_lshr_b32 s74, s73, 1
    s_and_b32 s75, s73, 1
    s_lshl_b32 s72, s72, 4
    s_add_u32 s72, s72, s74
    s_lshl_b32 s76, s72, 18
    s_mul_i32 s77, s72, {2*768*256}
    s_mul_i32 s78, s75, {384*256}
    s_add_u32 s77, s77, s78
    s_and_b32 s79, s{sW}, 1
    s_lshr_b32 s80, s{sW}, 1
    s_lshl_b32 s81, s79, 10
    s_lshl_b32 s82, s80, 12
    s_add_u32 s{sWL}, s81, s82       ; LDS: (w&1)*1024 + (w>>1)*4096
    s_lshl_b32 s81, s79, 7
    s_add_u32 s81, s81, s82          ; global: (w&1)*128 + (w>>1)*4096
    s_mul_i32 s83, s{sW}, 24576
    s_sub_u32 s{sWQ}, s83, s81
    s_lshl_b32 s{sWS}, s{sW}, 13
    v_lshrrev_b32 v1, 3, v0
    v_and_b32 v2, 6, v1
    v_and_b32 v3, 7, v0
    v_xor_b32 v2, v2, v3
    v_lshlrev_b32 v2, 4, v2
    v_lshl_add_u32 v2, v1, 8, v2
    v_add_u32 v{vDMA}, s81, v2
    s_mov_b32 s{sQ+2}, {1152*256}
    s_mov_b32 s{sQ+3}, 0x20000
    s_mov_b32 s{sK+2}, 0x40000
    s_mov_b32 s{sK+3}, 0x20000
    s_mov_b32 s{sV+2}, 0x40000
    s_mov_b32 s{sV+3}, 0x20000
    s_mov_b32 s{sO+2}, {1152*256}
    s_mov_b32 s{sO+3}, 0x20000
    s_waitcnt lgkmcnt(0)
    s_add_u32 s{sQ}, s64, s77
    s_addc_u32 s{sQ+1}, s65, 0
    s_add_u32 s{sK}, s66, s76
    s_addc_u32 s{sK+1}, s67, 0
    s_add_u32 s{sV}, s68, s76
    s_addc_u32 s{sV+1}, s69, 0
    s_add_u32 s{sO}, s70, s77
    s_addc_u32 s{sO+1}, s71, 0
"""
PRO2 = f"""
    s_mov_b32 s{sC}, 0x{f2u(CSC):08x}
    s_mov_b32 s{sTH}, 0x5f800000
    v_and_b32 v1, 15, v0
    v_lshrrev_b32 v2, 4, v0
    v_and_b32 v3, 6, v1
    v_xor_b32 v3, v3, v2
    v_lshlrev_b32 v3, 4, v3
    v_and_b32 v14, 7, v1
    v_lshl_add_u32 v3, v14, 7, v3
    v_lshrrev_b32 v14, 3, v1
    v_lshl_add_u32 v{vKa[0]}, v14, 11, v3
    v_xor_b32 v{vKa[1]}, 64, v{vKa[0]}
    s_add_u32 s84, s{sWS}, {STG}
    v_add_u32 v{vQa[0]}, s84, v{vKa[0]}
    v_add_u32 v{vQa[1]}, s84, v{vKa[1]}
    v_and_b32 v3, 1, v2
    v_lshlrev_b32 v3, 1, v3
    v_lshrrev_b32 v14, 1, v2
    v_or_b32 v3, v3, v14
    v_lshlrev_b32 v3, 4, v3
    v_lshl_add_u32 v3, v1, 8, v3
    v_add_u32 v{vOst}, s83, v3
    v_lshrrev_b32 v1, 2, v0
    v_and_b32 v2, 6, v1
    v_bfe_u32 v3, v0, 1, 1
    v_xor_b32 v2, v2, v3
    v_lshlrev_b32 v2, 4, v2
    v_and_b32 v3, 1, v0
    v_lshl_add_u32 v2, v3, 3, v2
    v_and_b32 v3, 7, v1
    v_lshl_add_u32 v2, v3, 7, v2
    v_lshrrev_b32 v3, 3, v1
    v_lshl_add_u32 v2, v3, 11, v2
    v_add_u32 v{vVa[0]}, {VRING}, v2
    v_xor_b32 v{vVa[1]}, 32, v{vVa[0]}
    v_xor_b32 v{vVa[2]}, 64, v{vVa[0]}
    v_xor_b32 v{vVa[3]}, 0x60, v{vVa[0]}
    v_mov_b32 v1, 0x3f803f80
    v_accvgpr_write_b32 a{aOne}, v1
    v_accvgpr_write_b32 a{aOne+1}, v1
    v_accvgpr_write_b32 a{aOne+2}, v1
    v_accvgpr_write_b32 a{aOne+3}, v1
"""

def slow_path(stpol):
    L=[]
    A=L.append
    A("    s_or_b64 s[64:65], s[40:41], s[42:43]")
    for T in range(2,12): A(f"    s_or_b64 s[64:65], s[64:65], s[{sFlag+2*T}:{sFlag+2*T+1}]")
    A("    s_cbranch_scc0 L_end")
    A("    s_mov_b32 s66, 0")
    for T in range(12):
        A(f"    s_cmp_lg_u64 s[{sFlag+2*T}:{sFlag+2*T+1}], 0")
        A(f"    s_cselect_b32 s67, {1<<T}, 0")
        A("    s_or_b32 s66, s66, s67")
    A("    s_waitcnt vmcnt(0) lgkmcnt(0)")
    A("    v_and_b32 v1, 15, v0")
    A("    v_lshrrev_b32 v2, 4, v0")
    A("    v_lshlrev_b32 v2, 4, v2")
    A("    v_lshl_add_u32 v14, v1, 8, v2")
    A("    v_add_u32 v15, s83, v14")
    A(f"    v_subrev_u32 v16, s81, v{vDMA}")
    A(f"    s_add_u32 s68, s{sWS}, {STG-VRING}")
    for i in range(4): A(f"    v_add_u32 v{20+i}, s68, v{vVa[i]}")
    for i in range(4): A(f"    v_mov_b32 v{196+i}, 0x3f803f80")
    A("    s_mov_b32 s69, 0")
    A("L_slow_tile:")
    A("    s_bitcmp1_b32 s66, s69")
    A("    s_cbranch_scc0 L_slow_next")
    A("    s_cmp_ge_u32 s69, 6")
    A("    s_cselect_b32 s70, 0x20000, 0")
    A(f"    s_cselect_b32 s71, {(768-96)*256}, 0")
    A("    s_lshl_b32 s72, s69, 12")
    A("    s_add_u32 s71, s71, s72                ; q/o offset")
    for st in range(4): A(f"    buffer_load_dwordx4 v[{64+4*st}:{67+4*st}], v15, s[{sQ}:{sQ+3}], s71 offen offset:{64*st}")
    A("    v_mov_b32 v17, 0xff800000")
    A("    s_mov_b32 s72, s70")
    A("    s_add_u32 s73, s70, 0x20000")
    A("L_slow_max:")
    for st in range(4): A(f"    buffer_load_dwordx4 v[{80+4*st}:{83+4*st}], v14, s[{sK}:{sK+3}], s72 offen offset:{64*st}")
    A("    s_waitcnt vmcnt(0)")
    for st in range(4): A(f"    v_mfma_f32_16x16x32_bf16 v[32:35], v[{80+4*st}:{83+4*st}], v[{64+4*st}:{67+4*st}], {'0' if st==0 else 'v[32:35]'}")
    A("    s_nop 15")
    A("    v_max3_f32 v17, v17, v32, v33")
    A("    v_max3_f32 v17, v17, v34, v35")
    A("    s_add_u32 s72, s72, 4096")
    A("    s_cmp_lt_u32 s72, s73")
    A("    s_cbranch_scc1 L_slow_max")
    for sw in ("16","32"):
        A("    v_mov_b32 v18, v17"); A("    s_nop 1")
        A(f"    v_permlane{sw}_swap_b32 v17, v18"); A("    s_nop 1")
        A("    v_max_f32 v17, v17, v18")
    A(f"    v_mul_f32 v17, 0x{f2u(-CSC):08x}, v17")
    for r in range(160,196): A(f"    v_mov_b32 v{r}, 0")
    A("    s_mov_b32 s72, s70")
    A("L_slow_blk:")
    A("    s_add_u32 s74, s72, 4096")
    for f in range(8):
        kt,st=divmod(f,4)
        A(f"    buffer_load_dwordx4 v[{80+4*f}:{83+4*f}], v14, s[{sK}:{sK+3}], {'s72' if kt==0 else 's74'} offen offset:{64*st}")
    for kt in range(2):
        for half in range(2):
            A(f"    s_add_u32 m0, s{sWS}, {STG+kt*4096+half*896}")
            A("    s_nop 0")
            for oc in range(2):
                A(f"    buffer_load_dwordx4 v16, s[{sV}:{sV+3}], {'s72' if kt==0 else 's74'} offen offset:{2048*oc+128*half} lds")
    A("    s_waitcnt vmcnt(0)")
    for t in range(8):
        for kt in range(2):
            A(f"    ds_read_b64_tr_b16 v[{112+4*t+2*kt}:{113+4*t+2*kt}], v{20+t%4} offset:{kt*4096+(t//4)*1024}")
    for f in range(8):
        kt,st=divmod(f,4); d=32+4*kt
        A(f"    v_mfma_f32_16x16x32_bf16 v[{d}:{d+3}], v[{80+4*f}:{83+4*f}], v[{64+4*st}:{67+4*st}], {'0' if st==0 else f'v[{d}:{d+3}]'}")
    A("    s_nop 15")
    for i in range(8): A(f"    v_fma_f32 v{32+i}, v{32+i}, s{sC}, v17")
    for i in range(8): A(f"    v_exp_f32 v{32+i}, v{32+i}")
    A("    s_nop 1")
    for k in range(4): A(f"    v_cvt_pk_bf16_f32 v{48+k}, v{32+2*k}, v{33+2*k}")
    A("    s_waitcnt lgkmcnt(0)")
    A("    s_nop 1")
    for t in range(8): A(f"    v_mfma_f32_16x16x32_bf16 v[{160+4*t}:{163+4*t}], v[{112+4*t}:{115+4*t}], v[48:51], v[{160+4*t}:{163+4*t}]")
    A("    v_mfma_f32_16x16x32_bf16 v[192:195], v[196:199], v[48:51], v[192:195]")
    A("    s_add_u32 s72, s72, 8192")
    A("    s_cmp_lt_u32 s72, s73")
    A("    s_cbranch_scc1 L_slow_blk")
    A("    s_nop 15")
    A("    v_rcp_f32 v18, v192")
    A("    s_nop 1")
    for r in range(160,192): A(f"    v_mul_f32 v{r}, v{r}, v18")
    for m in range(4):
        o=160+8*m
        for i in range(4): A(f"    v_cvt_pk_bf16_f32 v{o+i}, v{o+2*i}, v{o+2*i+1}")
        A("    s_nop 1")
        for i in range(2): A(f"    v_permlane16_swap_b32 v{o+i}, v{o+i+2}")
        A(f"    buffer_store_dwordx4 v[{o}:{o+3}], v{vOst}, s[{sO}:{sO+3}], s71 offen offset:{64*m} {stpol}")
    A("    s_waitcnt vmcnt(0)")
    A("L_slow_next:")
    A("    s_add_u32 s69, s69, 1")
    A("    s_cmp_lt_u32 s69, 12")
    A("    s_cbranch_scc1 L_slow_tile")
    return "\n".join(L)+"\n"

HEAD = open('cdna_kernels/'+NAME+'.s.ref').read().split('; Override')[0]
def emit(cfg, path):
    g=Gen(cfg); out=g.build()
    est=estimate(out)
    txt=HEAD+"; @launch grid=(256,1,1) block=(256,1,1) lds=163840\n"
    txt+=f'.amdgcn_target "amdgcn-amd-amdhsa--gfx950"\n.text\n.globl {NAME}_kernel\n.p2align 8\n.type {NAME}_kernel,@function\n{NAME}_kernel:\n'
    txt+=PRO
    done2=False
    body=[]
    for o in out:
        if not done2 and o.kind not in('dma','salu','nop'):
            body.append(PRO2); done2=True
        body.append(" "+o.text+"\n")
    txt+="".join(body)
    txt+=" s_nop 1\n"+slow_path(g.stpol)
    txt+=f"""L_end:
    s_endpgm
.section .rodata,"a"
.p2align 6
.amdhsa_kernel {NAME}_kernel
  .amdhsa_next_free_vgpr 512
  .amdhsa_next_free_sgpr 96
  .amdhsa_accum_offset 256
  .amdhsa_group_segment_fixed_size 0
  .amdhsa_kernarg_size 48
  .amdhsa_user_sgpr_count 2
  .amdhsa_user_sgpr_kernarg_segment_ptr 1
  .amdhsa_system_sgpr_workgroup_id_x 1
.end_amdhsa_kernel
"""
    open(path,'w').write(txt)
    from collections import Counter
    print(path, "ops",len(out),"est cycles",est, dict(Counter(o.kind for o in out)), "bytes",len(txt))
    return out

def cfg_simple():
    visits=[(g,[6*(g//16)+j for j in range(6)]) for g in range(32)]
    plan=[(-1,('Q',0)),(-1,('K',0)),(-1,('Q',1)),(-1,('V',0)),(-1,('q',0)),(-1,('Q',2)),(-1,('q',1)),(-1,('Q',3)),(-1,('q',2)),(-1,('Q',4)),
          (-1,('q',3)),(-1,('Q',5)),(-1,('B',1)),(-1,('q',4)),(-1,('q',5))]
    nxt=2
    for v in range(32):
        k = 2 if v<3 else 1
        for i in range(k):
            if nxt<32:
                plan.append((6*v+1+2*i,('B',nxt))); nxt+=1
    for i,T in enumerate(range(6,12)):
        v=4+2*i
        plan.append((6*v+3,('Q',T)))
        if T<10: plan.append((6*(v+1)+4,('q',T)))
    plan.append((6*15+1,('q',10))); plan.append((6*15+2,('q',11)))
    return dict(visits=visits,plan=plan)

if __name__=="__main__":
    emit(cfg_simple(), sys.argv[1] if len(sys.argv)>1 else 'cdna_kernels/'+NAME+'.s')
```

```python
import sys, math, struct
from sched import *

NAME="standalone__gqa_softmax__near_ridge"
CSC = math.log2(math.e)/math.sqrt(128.0)
def f2u(x): return struct.unpack('<I',struct.pack('<f',x))[0]

vS=[0,8,16]; vP=[24,28,32]; vMC=36
vKa=[42,43]; vVa=[44,45,46,47]; vQa=[48,49]; vOw=[50,51,52,53]; vDMA=54; vOst=55; vOr=56
vT0,vT1=57,59; vL=[58,60]
vO=lambda slot,t: 64+32*slot+4*t
aQ=lambda b: 16*b
aK=lambda f: 160+4*f
aV=lambda t: 192+4*t
aSum=lambda slot: 224+4*slot
aOne=248
sQ=8; sK=12; sV=16; sO=20
sC=24; sTH=25; sWL=26 ; sWQ=27; sWS=28; sOffKV=29; sOffQ=30; sOffO=31; sW=32
sFlag=40
KRING=0; VRING=65536; STG=131072

class Gen:
    def __init__(s, cfg):
        s.cfg=cfg; s.P=Program(); s.nbb=0; s.bars=[]; s.vis=set()
        s.R=cfg.get('ring',8); s.LAG=cfg.get('lag',2); s.NB=s.LAG+1
        s.lastread={}; s.dmadone={}
        s.ldpol=cfg.get('ldpol','nt'); s.stpol=cfg.get('stpol','nt')
        s.win=cfg.get('dmawin',12)
    def add(s,*a,**k):
        o=Op(*a,**k); s.P.add(o)
        if o.kind=='mfma': s.nbb+=1
        return o
    def now(s): return s.nbb-1
    def barrier(s):
        g=s.now()
        b=s.add("s_barrier",'bar',reads=[],writes=['barorder'],release=g,deadline=g)
        s.bars.append(b); return b
    def visible(s,part,g):
        if (part,g) in s.vis: return
        b=s.bars[-1]
        assert s.dmadone[(part,g)]<b.idx, ("dma after barrier",part,g)
        b.reads.append(f"L:{part}{g}"); b.writes.append(f"vis{part}{g}"); s.vis.add((part,g))
    def dl(s,rel): return rel+s.win if rel>=0 else -1
    def dma_kv(s,part,g,rel,step):
        slot=g%s.R
        rd=[]
        if g>=s.R:
            b=s.bars[-1]; old=g-s.R
            assert s.allread[(part,old)]==0 and s.lastread[(part,old)]<b.idx, ("slot not free",part,g)
            b.reads.append(f"L:rd{part}{old}"); b.writes.append(f"free{part}{old}"); rd=[f"free{part}{old}"]
        base=(KRING if part=='K' else VRING)+slot*8192
        s.add(f"s_add_u32 m0, s{sWL}, {base}",'salu',writes=['m0'],margin=1)
        if s.curoff!=g:
            s.add(f"s_mov_b32 s{sOffKV}, {g*8192}",'salu',writes=[f"s{sOffKV}"],margin=1); s.curoff=g
        srd=sK if part=='K' else sV
        for i in range(2):
            o=s.add(f"buffer_load_dwordx4 v{vDMA}, s[{srd}:{srd+3}], s{sOffKV} offen offset:{2048*i} {s.ldpol} lds",'dma',
                  reads=['m0',f"s{sOffKV}"]+rd,writes=[f"L:{part}{g}",'O:vm'],release=rel+i*step,deadline=s.dl(rel+i*step))
        s.dmadone[(part,g)]=o.idx
    def dma_q(s,T,rel,step):
        buf=T%2; it,j=divmod(T,6)
        assert s.stgown[buf] is None, ("stg busy",T,s.stgown); s.stgown[buf]=('Q',T)
        k=0
        for half in range(2):
            s.add(f"s_add_u32 m0, s{sWS}, {STG+buf*4096+half*896}",'salu',writes=['m0'],margin=1)
            if half==0: s.add(f"s_add_u32 s{sOffQ}, s{sWQ}, {(it*768+16*j)*256}",'salu',writes=[f"s{sOffQ}"],margin=1)
            for oc in range(2):
                s.add(f"buffer_load_dwordx4 v{vDMA}, s[{sQ}:{sQ+3}], s{sOffQ} offen offset:{2048*oc+128*half} {s.ldpol} lds",'dma',
                      reads=['m0',f"s{sOffQ}",f"L:stg{buf}"],writes=[f"L:Q{T}",'O:vm'],release=rel+k*step,deadline=s.dl(rel+k*step))
                k+=1
    def read_q(s,T,rel):
        buf=T%2; qb=s.qbuf[T]; s.qread.add(T)
        assert all(s.seen[x]==16 for x in range(T) if s.qbuf[x]==qb), ("qbuf busy",T)
        assert s.stgown[buf]==('Q',T); s.stgown[buf]=None
        for st in range(4):
            s.add(f"ds_read_b128 {rng('a',aQ(qb)+4*st,4)}, v{vQa[st%2]} offset:{buf*4096+(st//2)*1024}",'dsr',
                  reads=[f"L:Q{T}"]+(['O:vm'] if st==0 else []),writes=R('a',aQ(qb)+4*st,4)+[f"L:stg{buf}"],release=rel,margin=8,deadline=s.dl(rel),hole=True)
    def read_k(s,g,order):
        s.visible('K',g); slot=g%s.R
        for f in order:
            kt,st=divmod(f,4)
            o=s.add(f"ds_read_b128 {rng('a',aK(f),4)}, v{vKa[st%2]} offset:{slot*8192+kt*4096+(st//2)*1024}",'dsr',
                  reads=[f"visK{g}"],writes=R('a',aK(f),4)+[f"L:rdK{g}"],margin=s.cfg.get('dsmargin',10))
        s.lastread[('K',g)]=o.idx; s.allread[('K',g)]-=1
    def read_v(s,g):
        s.visible('V',g); slot=g%s.R
        for t in range(8):
            for kt in range(2):
                o=s.add(f"ds_read_b64_tr_b16 {rng('a',aV(t)+2*kt,2)}, v{vVa[t%4]} offset:{slot*8192+kt*4096+(t//4)*1024}",'dsr',
                      reads=[f"visV{g}"],writes=R('a',aV(t)+2*kt,2)+[f"L:rdV{g}"],margin=s.cfg.get('dsmargin',10))
        s.lastread[('V',g)]=o.idx; s.allread[('V',g)]-=1
    KORD=[0,1,2,3,7,6,5,4]
    def qk(s,n,T):
        b=n%s.NB; qb=s.qbuf[T]
        for i,f in enumerate(s.KORD):
            kt,st=divmod(f,4)
            d=vS[b]+4*kt; first=(i%4==0)
            c = "0" if first else rng('v',d,4)
            s.add(f"v_mfma_f32_16x16x32_bf16 {rng('v',d,4)}, {rng('a',aK(f),4)}, {rng('a',aQ(qb)+4*st,4)}, {c}",'mfma',
                  reads=R('a',aK(f),4)+R('a',aQ(qb)+4*st,4)+([] if first else R('v',d,4)),writes=R('v',d,4),cread=([] if first else R('v',d,4)))
    def pv(s,n,T,first):
        b=n%s.NB; slot=s.slot[T]; p=vP[b]
        d=aSum(slot); c="0" if first else rng('a',d,4)
        s.add(f"v_mfma_f32_16x16x32_bf16 {rng('a',d,4)}, {rng('a',aOne,4)}, {rng('v',p,4)}, {c}",'mfma',
              reads=R('a',aOne,4)+R('v',p,4)+([] if first else R('a',d,4)),writes=R('a',d,4),cread=([] if first else R('a',d,4)))
        for t in range(8):
            d=vO(slot,t); c="0" if first else rng('v',d,4)
            s.add(f"v_mfma_f32_16x16x32_bf16 {rng('v',d,4)}, {rng('a',aV(t),4)}, {rng('v',p,4)}, {c}",'mfma',
                  reads=R('a',aV(t),4)+R('v',p,4)+([] if first else R('v',d,4)),writes=R('v',d,4),cread=([] if first else R('v',d,4)))
    def sm(s,n,T,first):
        b=n%s.NB; S=vS[b]; p=vP[b]; mc=vMC+s.slot[T]
        if first:
            t0,t1=vT0,vT1
            V=lambda txt,rd,wr,k='valu': s.add(txt,k,reads=[f"v{x}" for x in rd],writes=[f"v{x}" for x in wr],margin=1)
            V(f"v_max3_f32 v{t0}, v{S}, v{S+1}, v{S+2}",[S,S+1,S+2],[t0])
            V(f"v_max_f32 v{t0}, v{t0}, v{S+3}",[t0,S+3],[t0])
            V(f"v_mov_b32 v{t1}, v{t0}",[t0],[t1])
            V(f"v_permlane16_swap_b32 v{t0}, v{t1}",[t0,t1],[t0,t1],'perm')
            V(f"v_max_f32 v{t0}, v{t0}, v{t1}",[t0,t1],[t0])
            V(f"v_mov_b32 v{t1}, v{t0}",[t0],[t1])
            V(f"v_permlane32_swap_b32 v{t0}, v{t1}",[t0,t1],[t0,t1],'perm')
            V(f"v_max_f32 v{t0}, v{t0}, v{t1}",[t0,t1],[t0])
            V(f"v_mul_f32 v{mc}, 0x{f2u(-CSC):08x}, v{t0}",[t0],[mc])
        sp=s.cfg.get('smsp',3)
        for k in range(4):
            for i in (2*k,2*k+1):
                s.add(f"v_fma_f32 v{S+i}, v{S+i}, s{sC}, v{mc}",'valu',reads=[f"v{S+i}",f"v{mc}"],writes=[f"v{S+i}"],margin=1)
            for i in (2*k,2*k+1):
                s.add(f"v_exp_f32 v{S+i}, v{S+i}",'trans',reads=[f"v{S+i}"],writes=[f"v{S+i}"],margin=1+(i%2==0))
            s.add(f"v_cvt_pk_bf16_f32 v{p+k}, v{S+2*k}, v{S+2*k+1}",'valu',reads=[f"v{S+2*k}",f"v{S+2*k+1}"],writes=[f"v{p+k}"],margin=1+sp*(3-k))
    def epilogue(s,T):
        slot=s.slot[T]; g0=s.now(); l=vL[T%2]; buf=s.obuf[T]
        assert s.stgown[buf] is None, ("stg busy O",T,s.stgown); s.stgown[buf]=('O',T)
        s.add(f"v_accvgpr_read_b32 v{l}, a{aSum(slot)}",'valu',reads=[f"a{aSum(slot)}"],writes=[f"v{l}"],deadline=g0-1)
        s.add(f"v_cmp_ngt_f32_e64 s[{sFlag+2*T}:{sFlag+2*T+1}], s{sTH}, v{l}",'valu',reads=[f"v{l}"],writes=[f"s{sFlag+2*T}"],deadline=g0)
        s.add(f"v_rcp_f32 v{l}, v{l}",'trans',reads=[f"v{l}"],writes=[f"v{l}"],deadline=g0+1)
        G=g0+3
        for t in range(8):
            o=vO(slot,t)
            for i in (0,2):
                s.add(f"v_pk_mul_f32 v[{o+i}:{o+i+1}], v[{o+i}:{o+i+1}], v[{l}:{l+1}] op_sel_hi:[1,0]",'pk',reads=[f"v{o+i}",f"v{o+i+1}",f"v{l}"],writes=[f"v{o+i}",f"v{o+i+1}"],release=G,deadline=G)
        W=s.cfg.get('epiw',12)
        for t in range(8):
            o=vO(slot,t); d=G+(W*t)//8
            for i in range(2):
                s.add(f"v_cvt_pk_bf16_f32 v{o+i}, v{o+2*i}, v{o+2*i+1}",'valu',reads=[f"v{o+2*i}",f"v{o+2*i+1}"],writes=[f"v{o+i}"],deadline=d)
            s.add(f"ds_write_b64 v{vOw[t%4]}, v[{o}:{o+1}] offset:{buf*4096+(t//4)*1024}",'dsw',reads=[f"v{o}",f"v{o+1}"],writes=[f"L:stg{buf}"],deadline=d+1)
        return G+W+2
    def read_o(s,T,park,rel):
        buf=s.obuf[T]; s.park[T]=park
        assert all(s.seen[x] in (0,16) and not (s.seen[x]==0 and x in s.qread) for x in range(12) if s.qbuf[x]==park), ("park busy",T,park)
        assert s.stgown[buf]==('O',T); s.stgown[buf]=None
        assert s.parkown.get(park) is None, ("park has unstored data",T,park); s.parkown[park]=[T,4]
        for j in range(4):
            s.add(f"ds_read_b128 {rng('a',aQ(park)+4*j,4)}, v{vOr} offset:{buf*4096+1024*j}",'dsr',
                  reads=[],writes=R('a',aQ(park)+4*j,4)+[f"L:stg{buf}"],release=rel,deadline=rel+4,hole=True)
    def store_o(s,T,rel,step,js=range(4)):
        it,j=divmod(T,6); park=s.park[T]
        if s.curO!=T:
            s.add(f"s_mov_b32 s{sOffO}, {(it*768+16*j)*256}",'salu',writes=[f"s{sOffO}"],margin=1); s.curO=T
        s.parkown[park][1]-=len(js); s.nst+=len(js)
        if s.parkown[park][1]==0: s.parkown[park]=None
        for k,j in enumerate(js):
            s.add(f"buffer_store_dwordx4 {rng('a',aQ(park)+4*j,4)}, v{vOst}, s[{sO}:{sO+3}], s{sOffO} offen offset:{(j//2)*2048+(j%2)*128} {s.stpol}",'gst',
                  reads=R('a',aQ(park)+4*j,4)+[f"s{sOffO}"],writes=['O:st'],release=rel+k*step,deadline=rel+k*step+2)
    def build(s):
        cfg=s.cfg; LAG=s.LAG
        visits=cfg['visits']
        s.slot={T:T%6 for T in range(12)}
        s.qbuf=cfg.get('qbuf',{**{T:T for T in range(10)},10:0,11:1})
        s.obuf={T:T%2 for T in range(12)}; s.park={}; s.curO=None
        imm=cfg.get('oimm',{})
        s.allread=defaultdict(int)
        for g,ts in visits:
            s.allread[('K',g)]+=1; s.allread[('V',g)]+=1
        ms=[]
        for vi,(g,ts) in enumerate(visits):
            for k,T in enumerate(ts): ms.append((vi,g,T,k==0,k==len(ts)-1))
        cnt=defaultdict(int)
        for m in ms: cnt[m[2]]+=1
        assert all(cnt[T]==16 for T in range(12)) and len({(m[1],m[2]) for m in ms})==192
        assert all(m[1]//16==m[2]//6 for m in ms)
        plan=defaultdict(list)
        for n,u in cfg['plan']: plan[n].append(u)
        s.curoff=None
        def doplan(n):
            rel=s.now(); us=plan.get(n,[])
            nd=sum({'B':4,'K':2,'V':2,'Q':4}.get(u[0],0) for u in us)
            step = 0 if n<0 else max(1,cfg.get('span',16)//max(nd,1))
            for u in us:
                st = u[2] if len(u)>2 and u[0] in 'BKVQ' else step
                if u[0]=='B':
                    s.dma_kv('K',u[1],rel,st); s.dma_kv('V',u[1],rel+2*st,st); rel+=4*st
                elif u[0] in 'KV':
                    s.dma_kv(u[0],u[1],rel,st); rel+=2*st
                elif u[0]=='Q':
                    s.dma_q(u[1],rel,st); rel+=4*st
                elif u[0]=='q': s.read_q(u[1],s.now())
                elif u[0]=='o': s.read_o(u[1],u[2],s.now())
                elif u[0]=='s': s.store_o(u[1],s.now(),u[2],*u[3:])
                elif u[0]=='bar': s.barrier()
        seen=defaultdict(int); seenpv=defaultdict(int); s.seen=defaultdict(int); s.qread=set(); s.stgown=[None,None]; s.parkown={}; s.nst=0
        barset=cfg.get('barvisits')
        doplan(-1)
        s.barrier(); s.read_k(ms[0][1],s.KORD)
        N=len(ms)
        for n in range(N+LAG):
            if n<N:
                vi,g,T,fi,la=ms[n]
                if la and n+1<N and (barset is None or vi+1 in barset): s.barrier()
                doplan(n)
                assert T in s.qread, ('Q not loaded',T)
                s.qk(n,T); s.seen[T]+=1
            m=n-LAG
            if m>=0:
                T1=ms[m][2]
                s.pv(m,T1,seenpv[T1]==0); seenpv[T1]+=1
                if seenpv[T1]==16:
                    e=s.epilogue(T1)
                    if T1 in imm:
                        s.read_o(T1,imm[T1][0],e)
                        if imm[T1][1] is not None: s.store_o(T1,e+10,imm[T1][1])
            if n<N:
                s.sm(n,T,seen[T]==0); seen[T]+=1
                if la and n+1<N: s.read_k(ms[n+1][1],s.KORD)
            if m+1>=0 and m+1<N and ms[m+1][3]: s.read_v(ms[m+1][1])
        assert s.nst==48
        s.P.ops=[o for o in s.P.ops if not (o.kind=='bar' and not o.reads)]
        for i,o in enumerate(s.P.ops): o.idx=i
        out=s.P.schedule()
        out=insert_waits(out,cfg.get('merge',9))
        verify_waits(out)
        check_hazards(out)
        return out

def PRO(npages): return f"""
    s_cmp_ge_u32 s2, 256
    s_cbranch_scc1 L_end
    s_load_dwordx4 s[64:67], s[0:1], 0
    s_load_dwordx4 s[68:71], s[0:1], 16
    v_lshrrev_b32 v1, 6, v0
    s_lshr_b32 s73, s2, 3
    s_getpc_b64 s[86:87]
L_pc:
    v_and_b32 v2, 31, v0
    v_lshlrev_b32 v2, 12, v2
    s_lshl_b32 s88, s73, 7
    v_add_u32 v2, s88, v2
    v_min_u32 v2, L_end-L_main, v2
    s_add_u32 s86, s86, L_main-L_pc
    s_addc_u32 s87, s87, 0
    v_readfirstlane_b32 s{sW}, v1
    v_and_b32 v0, 63, v0
    global_load_dword v4, v2, s[86:87]
    s_and_b32 s72, s2, 7
    s_lshr_b32 s74, s73, 1
    s_and_b32 s75, s73, 1
    s_lshl_b32 s72, s72, 4
    s_add_u32 s72, s72, s74
    s_lshl_b32 s76, s72, 18
    s_mul_i32 s77, s72, {2*768*256}
    s_mul_i32 s78, s75, {384*256}
    s_add_u32 s77, s77, s78
    s_and_b32 s79, s{sW}, 1
    s_lshr_b32 s80, s{sW}, 1
    s_lshl_b32 s81, s79, 10
    s_lshl_b32 s82, s80, 12
    s_add_u32 s{sWL}, s81, s82       ; LDS: (w&1)*1024 + (w>>1)*4096
    s_lshl_b32 s81, s79, 7
    s_add_u32 s81, s81, s82          ; global: (w&1)*128 + (w>>1)*4096
    s_mul_i32 s83, s{sW}, 24576
    s_sub_u32 s{sWQ}, s83, s81
    s_lshl_b32 s{sWS}, s{sW}, 13
    v_lshrrev_b32 v1, 3, v0
    v_and_b32 v2, 6, v1
    v_and_b32 v3, 7, v0
    v_xor_b32 v2, v2, v3
    v_lshlrev_b32 v2, 4, v2
    v_lshl_add_u32 v2, v1, 8, v2
    v_add_u32 v{vDMA}, s81, v2
    s_mov_b32 s{sQ+2}, {1152*256}
    s_mov_b32 s{sQ+3}, 0x20000
    s_mov_b32 s{sK+2}, 0x40000
    s_mov_b32 s{sK+3}, 0x20000
    s_mov_b32 s{sV+2}, 0x40000
    s_mov_b32 s{sV+3}, 0x20000
    s_mov_b32 s{sO+2}, {1152*256}
    s_mov_b32 s{sO+3}, 0x20000
    s_waitcnt lgkmcnt(0)
    s_add_u32 s{sQ}, s64, s77
    s_addc_u32 s{sQ+1}, s65, 0
    s_add_u32 s{sK}, s66, s76
    s_addc_u32 s{sK+1}, s67, 0
    s_add_u32 s{sV}, s68, s76
    s_addc_u32 s{sV+1}, s69, 0
    s_add_u32 s{sO}, s70, s77
    s_addc_u32 s{sO+1}, s71, 0
"""
PRO2 = f"""
    s_mov_b32 s{sC}, 0x{f2u(CSC):08x}
    s_mov_b32 s{sTH}, 0x5f800000
    s_add_u32 s84, s{sWS}, {STG}
    v_xor_b32 v2, v1, v3
    v_lshlrev_b32 v2, 4, v2
    v_lshl_add_u32 v2, v1, 8, v2
    v_add_u32 v{vOst}, s83, v2
    v_lshl_add_u32 v{vOr}, v0, 4, s84
    v_and_b32 v1, 15, v0
    v_lshrrev_b32 v2, 4, v0
    v_and_b32 v5, 7, v1
    v_lshlrev_b32 v6, 7, v5
    v_lshrrev_b32 v7, 3, v1
    v_lshl_add_u32 v6, v7, 11, v6
    v_and_b32 v3, 6, v1
    v_xor_b32 v3, v3, v2
    v_lshl_add_u32 v{vKa[0]}, v3, 4, v6
    v_xor_b32 v{vKa[1]}, 64, v{vKa[0]}
    v_add_u32 v{vQa[0]}, s84, v{vKa[0]}
    v_add_u32 v{vQa[1]}, s84, v{vKa[1]}
    v_lshrrev_b32 v3, 1, v2
    v_xor_b32 v3, v3, v5
    v_lshl_add_u32 v3, v3, 4, v6
    v_and_b32 v2, 1, v2
    v_lshl_add_u32 v3, v2, 3, v3
    v_add_u32 v{vOw[0]}, s84, v3
    v_xor_b32 v{vOw[1]}, 32, v{vOw[0]}
    v_xor_b32 v{vOw[2]}, 64, v{vOw[0]}
    v_xor_b32 v{vOw[3]}, 0x60, v{vOw[0]}
    v_lshrrev_b32 v1, 2, v0
    v_and_b32 v2, 6, v1
    v_bfe_u32 v3, v0, 1, 1
    v_xor_b32 v2, v2, v3
    v_lshlrev_b32 v2, 4, v2
    v_and_b32 v3, 1, v0
    v_lshl_add_u32 v2, v3, 3, v2
    v_and_b32 v3, 7, v1
    v_lshl_add_u32 v2, v3, 7, v2
    v_lshrrev_b32 v3, 3, v1
    v_lshl_add_u32 v2, v3, 11, v2
    v_add_u32 v{vVa[0]}, {VRING}, v2
    v_xor_b32 v{vVa[1]}, 32, v{vVa[0]}
    v_xor_b32 v{vVa[2]}, 64, v{vVa[0]}
    v_xor_b32 v{vVa[3]}, 0x60, v{vVa[0]}
    v_mov_b32 v1, 0x3f803f80
    v_accvgpr_write_b32 a{aOne}, v1
    v_accvgpr_write_b32 a{aOne+1}, v1
    v_accvgpr_write_b32 a{aOne+2}, v1
    v_accvgpr_write_b32 a{aOne+3}, v1
"""

def slow_path():
    L=[]
    A=L.append
    A("    s_or_b64 s[64:65], s[40:41], s[42:43]")
    for T in range(2,12): A(f"    s_or_b64 s[64:65], s[64:65], s[{sFlag+2*T}:{sFlag+2*T+1}]")
    A("    s_cbranch_scc0 L_end")
    A("    s_mov_b32 s66, 0")
    for T in range(12):
        A(f"    s_cmp_lg_u64 s[{sFlag+2*T}:{sFlag+2*T+1}], 0")
        A(f"    s_cselect_b32 s67, {1<<T}, 0")
        A("    s_or_b32 s66, s66, s67")
    A("    s_waitcnt vmcnt(0) lgkmcnt(0)")
    A("    v_mbcnt_lo_u32_b32 v8, -1, 0")
    A("    v_mbcnt_hi_u32_b32 v8, -1, v8")
    A("    v_and_b32 v9, 15, v8")
    A("    v_lshrrev_b32 v10, 4, v8")
    A("    v_lshlrev_b32 v11, 4, v10")
    A("    v_lshl_add_u32 v14, v9, 8, v11")
    A("    v_add_u32 v15, s83, v14")
    A("    v_and_b32 v11, 1, v10")
    A("    v_lshlrev_b32 v11, 1, v11")
    A("    v_lshrrev_b32 v12, 1, v10")
    A("    v_or_b32 v11, v11, v12")
    A("    v_lshlrev_b32 v11, 4, v11")
    A("    v_lshl_add_u32 v11, v9, 8, v11")
    A("    v_add_u32 v13, s83, v11")
    A(f"    v_subrev_u32 v16, s81, v{vDMA}")
    A(f"    s_add_u32 s68, s{sWS}, {STG-VRING}")
    for i in range(4): A(f"    v_add_u32 v{20+i}, s68, v{vVa[i]}")
    for i in range(4): A(f"    v_mov_b32 v{196+i}, 0x3f803f80")
    A("    s_mov_b32 s69, 0")
    A("L_slow_tile:")
    A("    s_bitcmp1_b32 s66, s69")
    A("    s_cbranch_scc0 L_slow_next")
    A("    s_cmp_ge_u32 s69, 6")
    A("    s_cselect_b32 s70, 0x20000, 0")
    A(f"    s_cselect_b32 s71, {(768-96)*256}, 0")
    A("    s_lshl_b32 s72, s69, 12")
    A("    s_add_u32 s71, s71, s72                ; q/o offset")
    for st in range(4): A(f"    buffer_load_dwordx4 v[{64+4*st}:{67+4*st}], v15, s[{sQ}:{sQ+3}], s71 offen offset:{64*st}")
    A("    v_mov_b32 v17, 0xff800000")
    A("    s_mov_b32 s72, s70")
    A("    s_add_u32 s73, s70, 0x20000")
    A("L_slow_max:")
    for st in range(4): A(f"    buffer_load_dwordx4 v[{80+4*st}:{83+4*st}], v14, s[{sK}:{sK+3}], s72 offen offset:{64*st}")
    A("    s_waitcnt vmcnt(0)")
    for st in range(4): A(f"    v_mfma_f32_16x16x32_bf16 v[0:3], v[{80+4*st}:{83+4*st}], v[{64+4*st}:{67+4*st}], {'0' if st==0 else 'v[0:3]'}")
    A("    s_nop 15")
    A("    v_max3_f32 v17, v17, v0, v1")
    A("    v_max3_f32 v17, v17, v2, v3")
    A("    s_add_u32 s72, s72, 4096")
    A("    s_cmp_lt_u32 s72, s73")
    A("    s_cbranch_scc1 L_slow_max")
    for sw in ("16","32"):
        A("    v_mov_b32 v18, v17"); A("    s_nop 1")
        A(f"    v_permlane{sw}_swap_b32 v17, v18"); A("    s_nop 1")
        A("    v_max_f32 v17, v17, v18")
    A(f"    v_mul_f32 v17, 0x{f2u(-CSC):08x}, v17")
    for r in range(160,196): A(f"    v_mov_b32 v{r}, 0")
    A("    s_mov_b32 s72, s70")
    A("L_slow_blk:")
    A("    s_add_u32 s74, s72, 4096")
    for f in range(8):
        kt,st=divmod(f,4)
        A(f"    buffer_load_dwordx4 v[{80+4*f}:{83+4*f}], v14, s[{sK}:{sK+3}], {'s72' if kt==0 else 's74'} offen offset:{64*st}")
    for kt in range(2):
        for half in range(2):
            A(f"    s_add_u32 m0, s{sWS}, {STG+kt*4096+half*896}")
            A("    s_nop 0")
            for oc in range(2):
                A(f"    buffer_load_dwordx4 v16, s[{sV}:{sV+3}], {'s72' if kt==0 else 's74'} offen offset:{2048*oc+128*half} lds")
    A("    s_waitcnt vmcnt(0)")
    for t in range(8):
        for kt in range(2):
            A(f"    ds_read_b64_tr_b16 v[{112+4*t+2*kt}:{113+4*t+2*kt}], v{20+t%4} offset:{kt*4096+(t//4)*1024}")
    for f in range(8):
        kt,st=divmod(f,4); d=4*kt
        A(f"    v_mfma_f32_16x16x32_bf16 v[{d}:{d+3}], v[{80+4*f}:{83+4*f}], v[{64+4*st}:{67+4*st}], {'0' if st==0 else f'v[{d}:{d+3}]'}")
    A("    s_nop 15")
    for i in range(8): A(f"    v_fma_f32 v{i}, v{i}, s{sC}, v17")
    for i in range(8): A(f"    v_exp_f32 v{i}, v{i}")
    A("    s_nop 1")
    for k in range(4): A(f"    v_cvt_pk_bf16_f32 v{24+k}, v{2*k}, v{1+2*k}")
    A("    s_waitcnt lgkmcnt(0)")
    A("    s_nop 1")
    for t in range(8): A(f"    v_mfma_f32_16x16x32_bf16 v[{160+4*t}:{163+4*t}], v[{112+4*t}:{115+4*t}], v[24:27], v[{160+4*t}:{163+4*t}]")
    A("    v_mfma_f32_16x16x32_bf16 v[192:195], v[196:199], v[24:27], v[192:195]")
    A("    s_add_u32 s72, s72, 8192")
    A("    s_cmp_lt_u32 s72, s73")
    A("    s_cbranch_scc1 L_slow_blk")
    A("    s_nop 15")
    A("    v_rcp_f32 v18, v192")
    A("    s_nop 1")
    for r in range(160,192): A(f"    v_mul_f32 v{r}, v{r}, v18")
    for m in range(4):
        o=160+8*m
        for i in range(4): A(f"    v_cvt_pk_bf16_f32 v{o+i}, v{o+2*i}, v{o+2*i+1}")
        A("    s_nop 1")
        for i in range(2): A(f"    v_permlane16_swap_b32 v{o+i}, v{o+i+2}")
        A(f"    buffer_store_dwordx4 v[{o}:{o+3}], v13, s[{sO}:{sO+3}], s71 offen offset:{64*m}")
    A("    s_waitcnt vmcnt(0)")
    A("L_slow_next:")
    A("    s_add_u32 s69, s69, 1")
    A("    s_cmp_lt_u32 s69, 12")
    A("    s_cbranch_scc1 L_slow_tile")
    return "\n".join(L)+"\n"

def isize(t):
    t=t.strip(); op=t.split()[0]
    if op.startswith(('v_mfma','ds_','buffer_','global_','v_fma_f32','v_cvt_pk','v_max3','v_pk_','v_accvgpr','v_writelane','s_mem')) or op.endswith('_e64'): return 8
    if op in('s_waitcnt','s_barrier','s_nop') or op.startswith('s_cbranch'): return 4
    for a in t.split(None,1)[1].replace(',',' ').split():
        try: v=int(a,0)
        except ValueError: continue
        if not -16<=v<=64: return 8
    return 4

HEAD = open('cdna_kernels/'+NAME+'.s.ref').read().split('; Override')[0]
def emit(cfg, path):
    g=Gen(cfg); out=g.build()
    abl=cfg.get('ablate')
    if abl:
        nb=0; o2=[]
        for o in out:
            if o.kind=='bar': nb+=1
            if nb>=3 and any((a==o.kind) or (a in o.text) for a in abl): continue
            o2.append(o)
        out=o2
    marks=[]; est=estimate(out,marks)
    stamp=cfg.get('stamp'); warm=cfg.get('warm',True)
    ns=[0]
    def st(reg, real=False):
        return [f"s_mem{'real' if real else ''}time s[90:91]","s_waitcnt lgkmcnt(0)",f"v_writelane_b32 v{reg}, s90, {ns[0]}"]
    k0=0
    while out[k0].kind in('dma','salu','nop'): k0+=1
    first=[o.text for o in out[:k0]]; nfirst=sum(1 for o in out[:k0] if o.kind=='dma')
    lines=[]; nbar=0
    for k in range(k0,len(out)):
        o=out[k]
        if stamp is True and o.kind=='wait' and 'v' in o.tag and any(x.kind=='bar' for x in out[k+1:k+12]):
            ns[0]+=1; lines+=[(x,'x') for x in st(62)]; ns[0]-=1
        lines.append((o.text,o.kind))
        if o.kind=='bar': nbar+=1
        if stamp and o.kind=='bar' and (stamp is True or nbar in stamp):
            ns[0]+=1; lines+=[(x,'x') for x in st(61)+st(63,True)]
    body=[]; addr=0; page=0; stubs=0
    tot=sum(isize(t) for t,_ in lines); npages=(tot+200)//4096+1
    for i,(t,kd) in enumerate(lines):
        if warm and addr>=page*4096 and page<npages:
            prevm = i>0 and lines[i-1][1]=='mfma'
            if (prevm and kd not in SC_KINDS) or addr+isize(t)>page*4096+56 or page==0:
                nxt=page+4
                body.append(f"L_stub{page}:\n s_cbranch_vccnz {'L_stub%d'%nxt if nxt<npages else 'L_back'}\n")
                body.append(f".if ((L_stub{page}-L_main)>>6) != {page*64}\n.error \"stub misplaced\"\n.endif\n")
                addr+=4; page+=1
        body.append(" "+t+"\n"); addr+=isize(t)
    while warm and page<npages:
        body.append(f"L_stub{page}:\n s_cbranch_vccnz L_back\n"); page+=1
    txt=HEAD+"; @launch grid=(256,1,1) block=(256,1,1) lds=163840\n"
    txt+=f'.amdgcn_target "amdgcn-amd-amdhsa--gfx950"\n.text\n.globl {NAME}_kernel\n.p2align 8\n.type {NAME}_kernel,@function\n{NAME}_kernel:\n'
    txt+=PRO(npages)
    txt+="".join(" "+t+"\n" for t in first)
    if stamp:
        n=ns[0]; ns[0]=0
        txt+=" v_mov_b32 v61, 0\n v_mov_b32 v62, 0\n v_mov_b32 v63, 0\n"+"".join(" "+x+"\n" for x in st(61)+st(63,True)); ns[0]=n
    txt+=PRO2
    txt+=f"    s_waitcnt vmcnt({nfirst})\n"
    if warm:
        txt+="    ; touch the first line of every 4 KB code page (instruction-cache warm-up while the first loads are in flight)\n    s_mov_b64 vcc, -1\n"
        for w in range(3): txt+=f"    s_cmp_eq_u32 s{sW}, {w}\n    s_cbranch_scc1 L_stub{w}\n"
        txt+="    s_branch L_stub3\n"
        txt+="L_back:\n    s_mov_b64 vcc, 0\n"
    txt+="    s_branch L_main\n.p2align 12\nL_main:\n"
    txt+="".join(body)
    if stamp:
        ns[0]+=1; txt+="".join(" "+x+"\n" for x in st(61)+st(63,True)); ns[0]+=1
        txt+=" s_waitcnt vmcnt(0)\n"+"".join(" "+x+"\n" for x in st(61)+st(63,True))
        txt+=f""" s_load_dwordx2 s[92:93], s[0:1], 40
 s_lshl_b32 s90, s2, 2
 s_add_u32 s90, s90, s{sW}
 s_mul_i32 s90, s90, 768
 v_mbcnt_lo_u32_b32 v1, -1, 0
 v_mbcnt_hi_u32_b32 v1, -1, v1
 v_lshlrev_b32 v1, 2, v1
 v_add_u32 v1, s90, v1
 s_waitcnt lgkmcnt(0)
 global_store_dword v1, v61, s[92:93]
 global_store_dword v1, v62, s[92:93] offset:256
 global_store_dword v1, v63, s[92:93] offset:512
"""
    txt+=" s_nop 1\n"+slow_path()
    txt+=f"""L_end:
    s_endpgm
.section .rodata,"a"
.p2align 6
.amdhsa_kernel {NAME}_kernel
  .amdhsa_next_free_vgpr 512
  .amdhsa_next_free_sgpr 96
  .amdhsa_accum_offset 256
  .amdhsa_group_segment_fixed_size 0
  .amdhsa_kernarg_size 48
  .amdhsa_user_sgpr_count 2
  .amdhsa_user_sgpr_kernarg_segment_ptr 1
  .amdhsa_system_sgpr_workgroup_id_x 1
.end_amdhsa_kernel
"""
    open(path,'w').write(txt)
    from collections import Counter
    print(path, "ops",len(out),"est",est, dict(Counter(o.kind for o in out)), "code",addr)
    if cfg.get('verbose'): print(' segs',[b-a for a,b in zip(marks,marks[1:]+[est])])
    from asm import asm
    asm(path)
    return out
```

```python
import re
from collections import defaultdict

COST = dict(mfma=8, valu=4, trans=8, perm=8, pk=4, dsr=4, dsw=12, dma=12, gld=12, gst=8, salu=0, bar=0, wait=0, nop=0)
VALU_KINDS = ('valu','trans','perm','pk')
MEM_KINDS = ('dsr','dsw','dma','gld','gst')
SC_KINDS = ('salu','bar','wait','nop')
DS=('dsr','dsw'); VM=('dma','gld','gst')

def R(p, lo, n=1):
    return [f"{p}{i}" for i in range(lo, lo+n)]
def rng(p, lo, n):
    return f"{p}{lo}" if n==1 else f"{p}[{lo}:{lo+n-1}]"

class Op:
    __slots__=('text','kind','reads','writes','cread','release','deadline','margin','preds','succs','idx','bb','pos','lat','prio','cost','tag','hole','nws','gap')
    def __init__(s, text, kind, reads=(), writes=(), cread=(), release=None, deadline=None, margin=0, tag=None, cost=None, hole=False):
        s.text=text; s.kind=kind; s.reads=list(reads); s.writes=list(writes); s.cread=list(cread)
        s.release=release; s.deadline=deadline; s.margin=margin
        s.preds=[]; s.succs=[]; s.bb=None; s.pos=None; s.tag=tag; s.hole=hole
        s.cost = COST[kind] if cost is None else cost
        s.nws = 1; s.gap=None
    def __repr__(s): return f"<{s.text}>"

def vec(S): return {x for x in S if x[0] in 'va' and x[1:].isdigit()}
def hazard_dist(a, b):
    d=0
    aw=set(a.writes); br=set(b.reads); bw=set(b.writes)
    if a.kind=='mfma':
        D=vec(aw)
        if b.kind=='mfma':
            ab = vec(br)-set(b.cread)
            if D & ab: d=max(d,8)
            c=set(b.cread)
            if D & c and c!=D: d=max(d,6)
        elif b.kind in VALU_KINDS:
            if D & (br|bw): d=max(d,8)
            if set(a.cread) & bw: d=max(d,3)
        elif b.kind in MEM_KINDS:
            if D & (br|bw): d=max(d,8)
    elif a.kind in VALU_KINDS:
        W=vec(aw)
        if b.kind=='mfma' and W & br: d=max(d,2)
        if b.kind=='perm' and W & br: d=max(d,2)
        if a.kind=='trans' and b.kind in ('valu','perm','pk') and W & br: d=max(d,1)
        sw={x for x in aw if x[0]=='s' or x=='vcc'}
        if sw & br:
            if b.kind in VALU_KINDS: d=max(d,2)
            elif b.kind in MEM_KINDS: d=max(d,5)
            else: d=max(d,2)
    elif a.kind=='salu':
        if 'm0' in aw and b.kind=='dma': d=max(d,1)
    elif a.kind=='gst':
        if vec(set(a.reads)) & bw: d=max(d,2)
    return d

class Program:
    def __init__(s):
        s.ops=[]
    def add(s, op):
        op.idx=len(s.ops); s.ops.append(op); return op
    def build_deps(s):
        lastw={}; readers=defaultdict(list)
        for o in s.ops:
            P=set()
            for r in o.reads:
                if r in lastw: P.add(lastw[r])
            for w in o.writes:
                if w in lastw: P.add(lastw[w])
                for x in readers[w]: P.add(x)
            P.discard(o)
            for p in P:
                o.preds.append(p); p.succs.append(o)
            for r in o.reads: readers[r].append(o)
            for w in o.writes:
                lastw[w]=o; readers[w]=[]
    def schedule(s, budget=8):
        s.build_deps()
        bbs=[o for o in s.ops if o.kind=='mfma']
        for i,o in enumerate(bbs): o.bb=i
        N=len(bbs)
        for o in reversed(s.ops):
            if o.kind=='mfma': continue
            lat = N-1
            pr = lat
            if o.deadline is not None: pr=min(pr,o.deadline)
            wr={w for w in o.writes if ':' not in w}
            for x in o.succs:
                mg = o.margin if wr & set(x.reads) else 0
                if x.kind=='mfma':
                    lat=min(lat,x.bb-1); pr=min(pr,x.bb-1-mg)
                else:
                    lat=min(lat,x.lat); pr=min(pr,x.prio-mg)
            o.lat=lat; o.prio=pr
            if o.release is not None and o.release>lat: o.release=lat
        out=[]
        npred={o:len(o.preds) for o in s.ops}
        ready=[o for o in s.ops if o.kind!='mfma' and not o.preds]
        cur=[-1]
        def dist(o):
            need=0; k=0
            for p in reversed(out[-10:]):
                d=hazard_dist(p,o)
                if d>k: need=max(need,d-k)
                k+=p.nws
            return need
        def emit(o):
            n=dist(o)
            if n>0:
                nop=Op(f"s_nop {n-1}",'nop'); nop.nws=n; nop.cost=4*n; nop.pos=len(out); nop.gap=cur[0]; out.append(nop)
            o.pos=len(out); o.gap=cur[0]; out.append(o)
            for x in o.succs:
                npred[x]-=1
                if npred[x]==0 and x.kind!='mfma': ready.append(x)
            if o in ready: ready.remove(o)
            return o.cost+(4*n)
        lastds=[-9]
        def fill(g):
            cur[0]=g
            used=0; shadow=(g>=0); memok=True; bud=budget
            last=(g==N-1)
            while True:
                cands=[o for o in ready if (o.release is None or o.release<=g)]
                if not cands: break
                if g<0:
                    cands=[o for o in cands if o.prio<=g]
                    if not cands: break
                    cands.sort(key=lambda o:o.idx); emit(cands[0]); continue
                cands.sort(key=lambda o:(o.prio,o.idx))
                sc=[o for o in cands if o.kind in SC_KINDS]
                if shadow and sc:
                    shadow=False; emit(sc[0]); continue
                shadow=False
                pk=[o for o in cands if o.kind=='pk' and o.prio<=g]
                if pk: bud=max(bud,20)
                rem=bud-used
                v=[o for o in cands if o.kind in('valu','trans','perm') and dist(o)==0]
                if memok:
                    pick=None
                    for o in cands:
                        if o.kind not in MEM_KINDS or dist(o): continue
                        if o.kind in('dma','gld') and lastds[0]>=g-1 and o.lat>g and o.prio>g-4: continue
                        due = o.prio<=g
                        if o.kind=='dsr':
                            ok = (o.cost<=rem and not o.hole) or (due and used<12) or (o.hole and o.cost<=rem and sum(x.cost for x in v)<rem)
                        else:
                            ok = used==0 and (due or not v)
                        if ok: pick=o; break
                    if pick:
                        used+=emit(pick)
                        if pick.kind in DS: lastds[0]=g
                        if pick.kind=='gst': bud=max(bud,22)
                        continue
                fit=[o for o in v if o.cost<=rem]
                due=[o for o in v if o.prio<=g]
                pick=None
                if fit:
                    pick=fit[0]
                    if rem%8==0 and pick.cost==4:
                        n4=[o for o in fit if o.cost==4]; n8=[o for o in fit if o.cost==8]
                        if len(n4)<2 and n8: pick=n8[0]
                    if due and due[0] not in fit: pick=due[0]
                elif due: pick=due[0]
                if pick:
                    memok=False; used+=emit(pick); continue
                if pk and dist(pk[0])==0 or (pk and pk[0].lat<=g):
                    memok=False; used=max(used,20); used+=emit(pk[0]); continue
                must=[o for o in cands if o.lat<=g or (o.prio<=g and o.kind in SC_KINDS)]
                if must:
                    o=must[0]
                    c=emit(o)
                    if o.kind in SC_KINDS: c+=4
                    if o.kind in MEM_KINDS and not memok: c+=8
                    if o.kind in VALU_KINDS: memok=False
                    used+=c; continue
                break
            return used
        fill(-1)
        for g,m in enumerate(bbs):
            assert npred[m]==0, (g,m,[p for p in m.preds if p.pos is None])
            cur[0]=g
            emit(m)
            fill(g)
        left=[o for o in s.ops if o.pos is None]
        assert not left, left[:5]
        s.out=out
        return out

def insert_waits(out, merge=9):
    res=[]
    lg=[]; vm=[]
    def need(lst,o):
        k=-1
        rs={x for x in set(o.reads)|set(o.writes) if not x.startswith('O:')}
        for i,p in enumerate(lst):
            shared=set(p.writes)&rs
            if not shared: continue
            if p.kind in DS and o.kind in DS:
                shared={x for x in shared if not x.startswith('L:')}
                if p.kind=='dsr' and o.kind=='dsr':
                    shared={x for x in shared if x in o.reads}
                if not shared: continue
            if p.kind in VM and o.kind in VM:
                shared={x for x in shared if x in o.reads}
                if not shared: continue
            k=i
        return k
    def ridx(p):
        j=len(res)-1
        while res[j] is not p: j-=1
        return j
    for o in out:
        kl=need(lg,o); kv=need(vm,o)
        if kl>=0:
            while kl+1<len(lg) and lg[kl+1].gap<=o.gap-merge: kl+=1
        if kl>=0 or kv>=0:
            pl = lg[kl] if kl>=0 else None
            pv = vm[kv] if kv>=0 else None
            lastprod=max(ridx(p) for p in (pl,pv) if p is not None)
            pos=len(res)
            j=len(res)-1; tries=0; found=None
            while j>lastprod and tries<3:
                if res[j].kind=='mfma':
                    tries+=1
                    nxt = res[j+1] if j+1<len(res) else o
                    if nxt.kind=='wait' or nxt.kind not in SC_KINDS:
                        found=j+1; break
                j-=1
            if found is not None: pos=found
            cnt=lambda p,kinds: sum(1 for x in res[ridx(p)+1:pos] if x.kind in kinds)
            nl = min(15,cnt(pl,DS)) if pl else None
            nv = min(63,cnt(pv,VM)) if pv else None
            if pos<len(res) and res[pos].kind=='wait':
                w=res[pos]
                if nl is not None: w.tag['l']=min(nl,w.tag.get('l',99))
                if nv is not None: w.tag['v']=min(nv,w.tag.get('v',99))
            else:
                w=Op('','wait',tag={}); w.gap=o.gap
                if nl is not None: w.tag['l']=nl
                if nv is not None: w.tag['v']=nv
                res.insert(pos,w)
            w.text='s_waitcnt '+' '.join(([f"vmcnt({w.tag['v']})"] if 'v' in w.tag else [])+([f"lgkmcnt({w.tag['l']})"] if 'l' in w.tag else []))
            if kl>=0: lg=lg[kl+1:]
            if kv>=0: vm=vm[kv+1:]
        res.append(o)
        if o.kind in DS: lg.append(o)
        if o.kind in VM: vm.append(o)
        assert len(vm)<=63, "vmcnt overflow"
    return res

def verify_waits(out):
    lg=[]; vm=[]
    for o in out:
        if o.kind=='wait':
            if 'l' in o.tag: lg=lg[max(0,len(lg)-o.tag['l']):] if o.tag['l'] else []
            if 'v' in o.tag: vm=vm[max(0,len(vm)-o.tag['v']):] if o.tag['v'] else []
            continue
        rs={x for x in set(o.reads)|set(o.writes) if not x.startswith('O:')}
        for p in lg:
            sh=set(p.writes)&rs
            if o.kind in DS:
                sh={x for x in sh if not x.startswith('L:')}
                if p.kind=='dsr' and o.kind=='dsr': sh={x for x in sh if x in o.reads}
            assert not sh,(p,o,sh)
        for p in vm:
            sh=set(p.writes)&rs
            if o.kind in VM: sh={x for x in sh if x in o.reads}
            assert not sh,(p,o,sh)
        if o.kind in DS: lg.append(o)
        if o.kind in VM: vm.append(o)

def check_hazards(out):
    for i,o in enumerate(out):
        k=0
        for p in reversed(out[max(0,i-10):i]):
            d=hazard_dist(p,o)
            assert d<=k, (p,o,d,k)
            k+=p.nws

def estimate(out, marks=None):
    t=0; lastm=-100; prev=None; vend=-100; blk=-100; dsend=-100
    for o in out:
        k=o.kind
        if k=='mfma':
            t=max(t,lastm+16,blk); lastm=t; t+=8
        elif k in SC_KINDS:
            c = 4*o.nws
            if prev is not None and prev.kind=='mfma': c-=4
            if k=='bar':
                c+=24
                if marks is not None: marks.append(t)
            t+=c
        else:
            if k=='pk': t=max(t,lastm+28)
            if k in MEM_KINDS: t=max(t,vend+8)
            if k=='dma' and prev.kind=='dsr': t+=16
            if k=='gst': blk=t+22
            t+=o.cost
            if k in VALU_KINDS: vend=t
        prev=o
    return t
```

```python
import sys
from gen import *
def mk(head='tri', tail=4, D=5, bar2=True, ststep=50, **kw):
    A=list(range(6)); B=list(range(6,12))
    plan=[]
    if head=='simple':
        visits=[(0,A)]
        plan+=[(-1,('Q',0)),(-1,('K',0)),(-1,('Q',1)),(-1,('V',0)),(-1,('q',0)),(-1,('Q',2)),(-1,('q',1)),(-1,('Q',3)),(-1,('q',2)),(-1,('Q',4)),
          (-1,('q',3)),(-1,('Q',5)),(-1,('B',1)),(-1,('q',4)),(-1,('q',5)),(0,('B',2,12)),(3,('B',3,12))]
        g0=1; nxt=4
    elif head=='tri':
        hv=[(0,'01'),(1,'01'),(0,'2'),(1,'2'),(2,'012'),(3,'012'),(0,'3'),(1,'3'),(4,'0123'),(5,'0123'),(6,'01234'),(2,'345'),(3,'345'),(0,'45'),(1,'45'),(4,'45'),(5,'45'),(6,'5')]
        visits=[(g,[int(c) for c in t]) for g,t in hv]
        plan+=[(-1,('Q',0)),(-1,('K',0)),(-1,('Q',1)),(-1,('V',0)),(-1,('q',0)),(-1,('B',1)),
               (0,('q',1)),(0,('Q',2,1)),(0,('B',2,1)),(1,('B',3,1)),(3,('q',2)),(3,('Q',3,1)),(5,('B',4,1)),(8,('B',5,1)),(11,('q',3)),(11,('Q',4,1)),
               (13,('B',6,1)),(17,('Q',5,1)),(21,('q',4)),(21,('B',7,1)),(28,('q',5)),(38,('B',8,4)),(40,('B',9,4))]
        g0=7; nxt=10
    nh=len(visits)
    for g in range(g0,32-tail): visits.append((g,A if g<16 else B))
    if tail:
        for grp in ([6,7],[8,9],[10,11]):
            for g in range(32-tail,32): visits.append((g,grp))
    for g in range(g0,32-tail):
        n0=6*g
        k = 2 if nxt-g<D else 1
        for i in range(k):
            if nxt<32 and nxt-g<=D:
                plan.append((n0+3*i,('B',nxt,12 if k==2 else 20))); nxt+=1
    assert nxt==32
    v=max(g0+1,4);
    sp = 2 if v<=4 else 1
    for i,T in enumerate(range(6,12)):
        vv=v+sp*i
        plan.append((6*vv+5,('Q',T,4)))
        if T<10: plan.append((6*(vv+1)+4+(6 if sp==1 else 0),('q',T)))
    plan.append((6*15+1,('q',10))); plan.append((6*15+2,('q',11)))
    oimm={0:(2,None),1:(3,None),2:(4,None),3:(5,None)}
    for T in range(6,12): oimm[T]=({6:6,7:7,8:8,9:9,10:0,11:1}[T],kw.get('tailst',4))
    n=6*17
    for T in range(6):
        if T>=4: plan.append((n-3,('o',T,T-2)))
        plan.append((n,('s',T,ststep)))
        n+= (4*ststep+16)//17
    c=dict(visits=visits,plan=plan,oimm=oimm,verbose=True)
    if bar2:
        bs=set(range(nh+3))
        for vi in range(nh+3,len(visits)):
            if (vi-nh)%2==0: bs.add(vi)
        c['barvisits']=bs
    c.update(kw)
    return c
if __name__=="__main__":
    emit(mk('simple',0,4,False),'v3a.s')
    emit(mk('simple',4,5,False,40),'v3b.s')
    emit(mk('tri',4,5,False,40),'v3c.s')
    emit(mk('tri',4,5,True,40),'v3d.s')
    emit(mk('tri',4,5,True,40,stamp=True),'v3d_st.s')
```

```python
import sys, math, struct
from sched import *

NAME="standalone__gqa_softmax__near_ridge"
CSC = math.log2(math.e)/math.sqrt(128.0)
def f2u(x): return struct.unpack('<I',struct.pack('<f',x))[0]

vS=[0,8,16]; vP=[24,28,32]; vMC=36
vKa=[42,43]; vVa=[44,45,46,47]; vQa=[48,49]; vOw=[50,51,52,53]; vDMA=54; vOst=55; vOr=56
vT0,vT1=57,59; vL=[58,60]
vO=lambda slot,t: 64+32*slot+4*t
aQ=lambda b: 16*b
aK=lambda f: 160+4*f
aV=lambda t: 192+4*t
aSum=lambda slot: 224+4*slot
aOne=248
sQ=8; sK=12; sV=16; sO=20
sC=24; sTH=25; sWL=26 ; sWQ=27; sWS=28; sOffKV=29; sOffQ=30; sOffO=31; sW=32
sFlag=40
KRING=0; VRING=65536; STG=131072

class Gen:
    def __init__(s, cfg):
        s.cfg=cfg; s.P=Program(); s.nbb=0; s.bars=[]; s.vis=set()
        s.R=cfg.get('ring',8); s.LAG=cfg.get('lag',2); s.NB=s.LAG+1
        s.lastread={}; s.dmadone={}
        s.ldpol=cfg.get('ldpol','nt'); s.stpol=cfg.get('stpol','nt')
        s.win=cfg.get('dmawin',12)
    def add(s,*a,**k):
        o=Op(*a,**k); s.P.add(o)
        if o.kind=='mfma': s.nbb+=1
        return o
    def now(s): return s.nbb-1
    def barrier(s):
        g=s.now()
        b=s.add("s_barrier",'bar',reads=[],writes=['barorder'],release=g,deadline=g)
        s.bars.append(b); return b
    def visible(s,part,g):
        if (part,g) in s.vis: return
        b=s.bars[-1]
        assert s.dmadone[(part,g)]<b.idx, ("dma after barrier",part,g)
        b.reads.append(f"L:{part}{g}"); b.writes.append(f"vis{part}{g}"); s.vis.add((part,g))
    def dl(s,rel): return rel+s.win if rel>=0 else -1
    def dma_kv(s,part,g,rel,step):
        slot=g%s.R
        rd=[]
        if g>=s.R:
            b=s.bars[-1]; old=g-s.R
            assert s.allread[(part,old)]==0 and s.lastread[(part,old)]<b.idx, ("slot not free",part,g)
            b.reads.append(f"L:rd{part}{old}"); b.writes.append(f"free{part}{old}"); rd=[f"free{part}{old}"]
        base=(KRING if part=='K' else VRING)+slot*8192
        s.add(f"s_add_u32 m0, s{sWL}, {base}",'salu',writes=['m0'],margin=1)
        if s.curoff!=g:
            s.add(f"s_mov_b32 s{sOffKV}, {g*8192}",'salu',writes=[f"s{sOffKV}"],margin=1); s.curoff=g
        srd=sK if part=='K' else sV
        for i in range(2):
            o=s.add(f"buffer_load_dwordx4 v{vDMA}, s[{srd}:{srd+3}], s{sOffKV} offen offset:{2048*i} {s.ldpol} lds",'dma',
                  reads=['m0',f"s{sOffKV}"]+rd,writes=[f"L:{part}{g}",'O:vm'],release=rel+i*step,deadline=s.dl(rel+i*step))
        s.dmadone[(part,g)]=o.idx
    def dma_q(s,T,rel,step):
        buf=T%2; it,j=divmod(T,6)
        assert s.stgown[buf] is None, ("stg busy",T,s.stgown); s.stgown[buf]=('Q',T)
        k=0
        for half in range(2):
            s.add(f"s_add_u32 m0, s{sWS}, {STG+buf*4096+half*896}",'salu',writes=['m0'],margin=1)
            if half==0: s.add(f"s_add_u32 s{sOffQ}, s{sWQ}, {(it*768+16*j)*256}",'salu',writes=[f"s{sOffQ}"],margin=1)
            for oc in range(2):
                s.add(f"buffer_load_dwordx4 v{vDMA}, s[{sQ}:{sQ+3}], s{sOffQ} offen offset:{2048*oc+128*half} {s.ldpol} lds",'dma',
                      reads=['m0',f"s{sOffQ}",f"L:stg{buf}"],writes=[f"L:Q{T}",'O:vm'],release=rel+k*step,deadline=s.dl(rel+k*step))
                k+=1
    def read_q(s,T,rel):
        buf=T%2; qb=s.qbuf[T]; s.qread.add(T)
        assert all(s.seen[x]==16 for x in range(T) if s.qbuf[x]==qb), ("qbuf busy",T)
        assert s.stgown[buf]==('Q',T); s.stgown[buf]=None
        for st in range(4):
            s.add(f"ds_read_b128 {rng('a',aQ(qb)+4*st,4)}, v{vQa[st%2]} offset:{buf*4096+(st//2)*1024}",'dsr',
                  reads=[f"L:Q{T}"]+(['O:vm'] if st==0 else []),writes=R('a',aQ(qb)+4*st,4)+[f"L:stg{buf}"],release=rel,margin=8,deadline=s.dl(rel),hole=True)
    def read_k(s,g,order):
        s.visible('K',g); slot=g%s.R
        for f in order:
            kt,st=divmod(f,4)
            o=s.add(f"ds_read_b128 {rng('a',aK(f),4)}, v{vKa[st%2]} offset:{slot*8192+kt*4096+(st//2)*1024}",'dsr',
                  reads=[f"visK{g}"],writes=R('a',aK(f),4)+[f"L:rdK{g}"],margin=s.cfg.get('dsmargin',10))
        s.lastread[('K',g)]=o.idx; s.allread[('K',g)]-=1
    def read_v(s,g):
        s.visible('V',g); slot=g%s.R
        for t in range(8):
            for kt in range(2):
                o=s.add(f"ds_read_b64_tr_b16 {rng('a',aV(t)+2*kt,2)}, v{vVa[t%4]} offset:{slot*8192+kt*4096+(t//4)*1024}",'dsr',
                      reads=[f"visV{g}"],writes=R('a',aV(t)+2*kt,2)+[f"L:rdV{g}"],margin=s.cfg.get('dsmargin',10))
        s.lastread[('V',g)]=o.idx; s.allread[('V',g)]-=1
    KORD=[0,1,2,3,7,6,5,4]
    def qk(s,n,T):
        b=n%s.NB; qb=s.qbuf[T]
        for i,f in enumerate(s.KORD):
            kt,st=divmod(f,4)
            d=vS[b]+4*kt; first=(i%4==0)
            c = "0" if first else rng('v',d,4)
            s.add(f"v_mfma_f32_16x16x32_bf16 {rng('v',d,4)}, {rng('a',aK(f),4)}, {rng('a',aQ(qb)+4*st,4)}, {c}",'mfma',
                  reads=R('a',aK(f),4)+R('a',aQ(qb)+4*st,4)+([] if first else R('v',d,4)),writes=R('v',d,4),cread=([] if first else R('v',d,4)))
    def pv(s,n,T,first):
        b=n%s.NB; slot=s.slot[T]; p=vP[b]
        d=aSum(slot); c="0" if first else rng('a',d,4)
        s.add(f"v_mfma_f32_16x16x32_bf16 {rng('a',d,4)}, {rng('a',aOne,4)}, {rng('v',p,4)}, {c}",'mfma',
              reads=R('a',aOne,4)+R('v',p,4)+([] if first else R('a',d,4)),writes=R('a',d,4),cread=([] if first else R('a',d,4)))
        for t in range(8):
            d=vO(slot,t); c="0" if first else rng('v',d,4)
            s.add(f"v_mfma_f32_16x16x32_bf16 {rng('v',d,4)}, {rng('a',aV(t),4)}, {rng('v',p,4)}, {c}",'mfma',
                  reads=R('a',aV(t),4)+R('v',p,4)+([] if first else R('v',d,4)),writes=R('v',d,4),cread=([] if first else R('v',d,4)))
    def sm(s,n,T,first):
        b=n%s.NB; S=vS[b]; p=vP[b]; mc=vMC+s.slot[T]
        if first:
            t0,t1=vT0,vT1
            V=lambda txt,rd,wr,k='valu': s.add(txt,k,reads=[f"v{x}" for x in rd],writes=[f"v{x}" for x in wr],margin=1)
            V(f"v_max3_f32 v{t0}, v{S}, v{S+1}, v{S+2}",[S,S+1,S+2],[t0])
            V(f"v_max_f32 v{t0}, v{t0}, v{S+3}",[t0,S+3],[t0])
            V(f"v_mov_b32 v{t1}, v{t0}",[t0],[t1])
            V(f"v_permlane16_swap_b32 v{t0}, v{t1}",[t0,t1],[t0,t1],'perm')
            V(f"v_max_f32 v{t0}, v{t0}, v{t1}",[t0,t1],[t0])
            V(f"v_mov_b32 v{t1}, v{t0}",[t0],[t1])
            V(f"v_permlane32_swap_b32 v{t0}, v{t1}",[t0,t1],[t0,t1],'perm')
            V(f"v_max_f32 v{t0}, v{t0}, v{t1}",[t0,t1],[t0])
            V(f"v_mul_f32 v{mc}, 0x{f2u(-CSC):08x}, v{t0}",[t0],[mc])
        sp=s.cfg.get('smsp',3)
        for k in range(4):
            for i in (2*k,2*k+1):
                s.add(f"v_fma_f32 v{S+i}, v{S+i}, s{sC}, v{mc}",'valu',reads=[f"v{S+i}",f"v{mc}"],writes=[f"v{S+i}"],margin=1)
            for i in (2*k,2*k+1):
                s.add(f"v_exp_f32 v{S+i}, v{S+i}",'trans',reads=[f"v{S+i}"],writes=[f"v{S+i}"],margin=1+(i%2==0))
            s.add(f"v_cvt_pk_bf16_f32 v{p+k}, v{S+2*k}, v{S+2*k+1}",'valu',reads=[f"v{S+2*k}",f"v{S+2*k+1}"],writes=[f"v{p+k}"],margin=1+sp*(3-k))
    def epilogue(s,T):
        slot=s.slot[T]; g0=s.now(); l=vL[T%2]; buf=s.obuf[T]
        assert s.stgown[buf] is None, ("stg busy O",T,s.stgown); s.stgown[buf]=('O',T)
        s.add(f"v_accvgpr_read_b32 v{l}, a{aSum(slot)}",'valu',reads=[f"a{aSum(slot)}"],writes=[f"v{l}"],deadline=g0-1)
        s.add(f"v_cmp_ngt_f32_e64 s[{sFlag+2*T}:{sFlag+2*T+1}], s{sTH}, v{l}",'valu',reads=[f"v{l}"],writes=[f"s{sFlag+2*T}"],deadline=g0)
        s.add(f"v_rcp_f32 v{l}, v{l}",'trans',reads=[f"v{l}"],writes=[f"v{l}"],deadline=g0+1)
        G=g0+3
        for t in range(8):
            o=vO(slot,t)
            for i in (0,2):
                s.add(f"v_pk_mul_f32 v[{o+i}:{o+i+1}], v[{o+i}:{o+i+1}], v[{l}:{l+1}] op_sel_hi:[1,0]",'pk',reads=[f"v{o+i}",f"v{o+i+1}",f"v{l}"],writes=[f"v{o+i}",f"v{o+i+1}"],release=G,deadline=G)
        W=s.cfg.get('epiw',12)
        for t in range(8):
            o=vO(slot,t); d=G+(W*t)//8
            for i in range(2):
                s.add(f"v_cvt_pk_bf16_f32 v{o+i}, v{o+2*i}, v{o+2*i+1}",'valu',reads=[f"v{o+2*i}",f"v{o+2*i+1}"],writes=[f"v{o+i}"],deadline=d)
            s.add(f"ds_write_b64 v{vOw[t%4]}, v[{o}:{o+1}] offset:{buf*4096+(t//4)*1024}",'dsw',reads=[f"v{o}",f"v{o+1}"],writes=[f"L:stg{buf}"],deadline=d+1)
        return G+W+2
    def read_o(s,T,park,rel):
        buf=s.obuf[T]; s.park[T]=park
        assert all(s.seen[x] in (0,16) and not (s.seen[x]==0 and x in s.qread) for x in range(12) if s.qbuf[x]==park), ("park busy",T,park)
        assert s.stgown[buf]==('O',T); s.stgown[buf]=None
        assert s.parkown.get(park) is None, ("park has unstored data",T,park); s.parkown[park]=[T,4]
        for j in range(4):
            s.add(f"ds_read_b128 {rng('a',aQ(park)+4*j,4)}, v{vOr} offset:{buf*4096+1024*j}",'dsr',
                  reads=[],writes=R('a',aQ(park)+4*j,4)+[f"L:stg{buf}"],release=rel,deadline=rel+4,hole=True)
    def store_o(s,T,rel,step,js=range(4)):
        it,j=divmod(T,6); park=s.park[T]
        if s.curO!=T:
            s.add(f"s_mov_b32 s{sOffO}, {(it*768+16*j)*256}",'salu',writes=[f"s{sOffO}"],margin=1); s.curO=T
        s.parkown[park][1]-=len(js); s.nst+=len(js)
        if s.parkown[park][1]==0: s.parkown[park]=None
        for k,j in enumerate(js):
            s.add(f"buffer_store_dwordx4 {rng('a',aQ(park)+4*j,4)}, v{vOst}, s[{sO}:{sO+3}], s{sOffO} offen offset:{(j//2)*2048+(j%2)*128} {s.stpol}",'gst',
                  reads=R('a',aQ(park)+4*j,4)+[f"s{sOffO}"],writes=['O:st'],release=rel+k*step,deadline=rel+k*step+2)
    def build(s):
        cfg=s.cfg; LAG=s.LAG
        visits=cfg['visits']
        s.slot={T:T%6 for T in range(12)}
        s.qbuf=cfg.get('qbuf',{**{T:T for T in range(10)},10:0,11:1})
        s.obuf={T:T%2 for T in range(12)}; s.park={}; s.curO=None
        imm=cfg.get('oimm',{})
        s.allread=defaultdict(int)
        for g,ts in visits:
            s.allread[('K',g)]+=1; s.allread[('V',g)]+=1
        ms=[]
        for vi,(g,ts) in enumerate(visits):
            for k,T in enumerate(ts): ms.append((vi,g,T,k==0,k==len(ts)-1))
        cnt=defaultdict(int)
        for m in ms: cnt[m[2]]+=1
        assert all(cnt[T]==16 for T in range(12)) and len({(m[1],m[2]) for m in ms})==192
        assert all(m[1]//16==m[2]//6 for m in ms)
        plan=defaultdict(list)
        for n,u in cfg['plan']: plan[n].append(u)
        s.curoff=None
        def doplan(n):
            rel=s.now(); us=plan.get(n,[])
            nd=sum({'B':4,'K':2,'V':2,'Q':4}.get(u[0],0) for u in us)
            step = 0 if n<0 else max(1,cfg.get('span',16)//max(nd,1))
            for u in us:
                st = u[2] if len(u)>2 and u[0] in 'BKVQ' else step
                if u[0]=='B':
                    s.dma_kv('K',u[1],rel,st); s.dma_kv('V',u[1],rel+2*st,st); rel+=4*st
                elif u[0] in 'KV':
                    s.dma_kv(u[0],u[1],rel,st); rel+=2*st
                elif u[0]=='Q':
                    s.dma_q(u[1],rel,st); rel+=4*st
                elif u[0]=='q': s.read_q(u[1],s.now())
                elif u[0]=='o': s.read_o(u[1],u[2],s.now())
                elif u[0]=='s': s.store_o(u[1],s.now(),u[2],*u[3:])
                elif u[0]=='bar': s.barrier()
        seen=defaultdict(int); seenpv=defaultdict(int); s.seen=defaultdict(int); s.qread=set(); s.stgown=[None,None]; s.parkown={}; s.nst=0
        barset=cfg.get('barvisits')
        doplan(-1)
        s.barrier(); s.read_k(ms[0][1],s.KORD)
        N=len(ms)
        for n in range(N+LAG):
            if n<N:
                vi,g,T,fi,la=ms[n]
                if la and n+1<N and (barset is None or vi+1 in barset): s.barrier()
                doplan(n)
                assert T in s.qread, ('Q not loaded',T)
                s.qk(n,T); s.seen[T]+=1
            m=n-LAG
            if m>=0:
                T1=ms[m][2]
                s.pv(m,T1,seenpv[T1]==0); seenpv[T1]+=1
                if seenpv[T1]==16:
                    e=s.epilogue(T1)
                    if T1 in imm:
                        s.read_o(T1,imm[T1][0],e)
                        if imm[T1][1] is not None: s.store_o(T1,e+10,imm[T1][1])
            if n<N:
                s.sm(n,T,seen[T]==0); seen[T]+=1
                if la and n+1<N: s.read_k(ms[n+1][1],s.KORD)
            if m+1>=0 and m+1<N and ms[m+1][3]: s.read_v(ms[m+1][1])
        assert s.nst==48
        s.P.ops=[o for o in s.P.ops if not (o.kind=='bar' and not o.reads)]
        for i,o in enumerate(s.P.ops): o.idx=i
        out=s.P.schedule()
        out=insert_waits(out,cfg.get('merge',9))
        verify_waits(out)
        check_hazards(out)
        return out

def PRO(cfg):
  t=f"""
    s_cmp_ge_u32 s2, 256
    s_cbranch_scc1 L_end
    s_load_dwordx4 s[64:67], s[0:1], 0
    s_load_dwordx4 s[68:71], s[0:1], 16
    v_lshrrev_b32 v1, 6, v0
    s_lshr_b32 s73, s2, 3
    s_getpc_b64 s[86:87]
L_pc:
    v_and_b32 v2, 31, v0
    v_lshlrev_b32 v2, 12, v2
    s_lshl_b32 s88, s73, 7
    v_add_u32 v2, s88, v2
    v_min_u32 v2, L_end-L_main, v2
    s_add_u32 s86, s86, L_main-L_pc
    s_addc_u32 s87, s87, 0
    v_readfirstlane_b32 s{sW}, v1
    v_and_b32 v0, 63, v0
    global_load_dword v4, v2, s[86:87]
    s_and_b32 s72, s2, 7
    s_lshr_b32 s74, s73, 1
    s_and_b32 s75, s73, 1
    s_lshl_b32 s72, s72, 4
    s_add_u32 s72, s72, s74
    s_lshl_b32 s76, s72, 18
    s_mul_i32 s77, s72, {2*768*256}
    s_mul_i32 s78, s75, {384*256}
    s_add_u32 s77, s77, s78
    s_and_b32 s79, s{sW}, 1
    s_lshr_b32 s80, s{sW}, 1
    s_lshl_b32 s81, s79, 10
    s_lshl_b32 s82, s80, 12
    s_add_u32 s{sWL}, s81, s82       ; LDS: (w&1)*1024 + (w>>1)*4096
    s_lshl_b32 s81, s79, 7
    s_add_u32 s81, s81, s82          ; global: (w&1)*128 + (w>>1)*4096
    s_mul_i32 s83, s{sW}, 24576
    s_sub_u32 s{sWQ}, s83, s81
    s_lshl_b32 s{sWS}, s{sW}, 13
    v_lshrrev_b32 v1, 3, v0
    v_and_b32 v2, 6, v1
    v_and_b32 v3, 7, v0
    v_xor_b32 v2, v2, v3
    v_lshlrev_b32 v2, 4, v2
    v_lshl_add_u32 v2, v1, 8, v2
    v_add_u32 v{vDMA}, s81, v2
    s_mov_b32 s{sQ+2}, {1152*256}
    s_mov_b32 s{sQ+3}, 0x20000
    s_mov_b32 s{sK+2}, 0x40000
    s_mov_b32 s{sK+3}, 0x20000
    s_mov_b32 s{sV+2}, 0x40000
    s_mov_b32 s{sV+3}, 0x20000
    s_mov_b32 s{sO+2}, {1152*256}
    s_mov_b32 s{sO+3}, 0x20000
    s_waitcnt lgkmcnt(0)
    s_add_u32 s{sQ}, s64, s77
    s_addc_u32 s{sQ+1}, s65, 0
    s_add_u32 s{sK}, s66, s76
    s_addc_u32 s{sK+1}, s67, 0
    s_add_u32 s{sV}, s68, s76
    s_addc_u32 s{sV+1}, s69, 0
    s_add_u32 s{sO}, s70, s77
    s_addc_u32 s{sO+1}, s71, 0
"""
  if cfg.get('adj'):
    t=t.replace("    s_add_u32 s72, s72, s74          ; pair index 0..127\n","    s_lshr_b32 s72, s2, 1\n    s_and_b32 s75, s2, 1\n")
  return t
PRO2 = f"""
    s_mov_b32 s{sC}, 0x{f2u(CSC):08x}
    s_mov_b32 s{sTH}, 0x5f800000
    s_add_u32 s84, s{sWS}, {STG}
    v_xor_b32 v2, v1, v3
    v_lshlrev_b32 v2, 4, v2
    v_lshl_add_u32 v2, v1, 8, v2
    v_add_u32 v{vOst}, s83, v2
    v_lshl_add_u32 v{vOr}, v0, 4, s84
    v_and_b32 v1, 15, v0
    v_lshrrev_b32 v2, 4, v0
    v_and_b32 v5, 7, v1
    v_lshlrev_b32 v6, 7, v5
    v_lshrrev_b32 v7, 3, v1
    v_lshl_add_u32 v6, v7, 11, v6
    v_and_b32 v3, 6, v1
    v_xor_b32 v3, v3, v2
    v_lshl_add_u32 v{vKa[0]}, v3, 4, v6
    v_xor_b32 v{vKa[1]}, 64, v{vKa[0]}
    v_add_u32 v{vQa[0]}, s84, v{vKa[0]}
    v_add_u32 v{vQa[1]}, s84, v{vKa[1]}
    v_lshrrev_b32 v3, 1, v2
    v_xor_b32 v3, v3, v5
    v_lshl_add_u32 v3, v3, 4, v6
    v_and_b32 v2, 1, v2
    v_lshl_add_u32 v3, v2, 3, v3
    v_add_u32 v{vOw[0]}, s84, v3
    v_xor_b32 v{vOw[1]}, 32, v{vOw[0]}
    v_xor_b32 v{vOw[2]}, 64, v{vOw[0]}
    v_xor_b32 v{vOw[3]}, 0x60, v{vOw[0]}
    v_lshrrev_b32 v1, 2, v0
    v_and_b32 v2, 6, v1
    v_bfe_u32 v3, v0, 1, 1
    v_xor_b32 v2, v2, v3
    v_lshlrev_b32 v2, 4, v2
    v_and_b32 v3, 1, v0
    v_lshl_add_u32 v2, v3, 3, v2
    v_and_b32 v3, 7, v1
    v_lshl_add_u32 v2, v3, 7, v2
    v_lshrrev_b32 v3, 3, v1
    v_lshl_add_u32 v2, v3, 11, v2
    v_add_u32 v{vVa[0]}, {VRING}, v2
    v_xor_b32 v{vVa[1]}, 32, v{vVa[0]}
    v_xor_b32 v{vVa[2]}, 64, v{vVa[0]}
    v_xor_b32 v{vVa[3]}, 0x60, v{vVa[0]}
    v_mov_b32 v1, 0x3f803f80
    v_accvgpr_write_b32 a{aOne}, v1
    v_accvgpr_write_b32 a{aOne+1}, v1
    v_accvgpr_write_b32 a{aOne+2}, v1
    v_accvgpr_write_b32 a{aOne+3}, v1
"""

def slow_path():
    L=[]
    A=L.append
    A("    s_or_b64 s[64:65], s[40:41], s[42:43]")
    for T in range(2,12): A(f"    s_or_b64 s[64:65], s[64:65], s[{sFlag+2*T}:{sFlag+2*T+1}]")
    A("    s_cbranch_scc0 L_end")
    A("    s_mov_b32 s66, 0")
    for T in range(12):
        A(f"    s_cmp_lg_u64 s[{sFlag+2*T}:{sFlag+2*T+1}], 0")
        A(f"    s_cselect_b32 s67, {1<<T}, 0")
        A("    s_or_b32 s66, s66, s67")
    A("    s_waitcnt vmcnt(0) lgkmcnt(0)")
    A("    v_mbcnt_lo_u32_b32 v8, -1, 0")
    A("    v_mbcnt_hi_u32_b32 v8, -1, v8")
    A("    v_and_b32 v9, 15, v8")
    A("    v_lshrrev_b32 v10, 4, v8")
    A("    v_lshlrev_b32 v11, 4, v10")
    A("    v_lshl_add_u32 v14, v9, 8, v11")
    A("    v_add_u32 v15, s83, v14")
    A("    v_and_b32 v11, 1, v10")
    A("    v_lshlrev_b32 v11, 1, v11")
    A("    v_lshrrev_b32 v12, 1, v10")
    A("    v_or_b32 v11, v11, v12")
    A("    v_lshlrev_b32 v11, 4, v11")
    A("    v_lshl_add_u32 v11, v9, 8, v11")
    A("    v_add_u32 v13, s83, v11")
    A(f"    v_subrev_u32 v16, s81, v{vDMA}")
    A(f"    s_add_u32 s68, s{sWS}, {STG-VRING}")
    for i in range(4): A(f"    v_add_u32 v{20+i}, s68, v{vVa[i]}")
    for i in range(4): A(f"    v_mov_b32 v{196+i}, 0x3f803f80")
    A("    s_mov_b32 s69, 0")
    A("L_slow_tile:")
    A("    s_bitcmp1_b32 s66, s69")
    A("    s_cbranch_scc0 L_slow_next")
    A("    s_cmp_ge_u32 s69, 6")
    A("    s_cselect_b32 s70, 0x20000, 0")
    A(f"    s_cselect_b32 s71, {(768-96)*256}, 0")
    A("    s_lshl_b32 s72, s69, 12")
    A("    s_add_u32 s71, s71, s72                ; q/o offset")
    for st in range(4): A(f"    buffer_load_dwordx4 v[{64+4*st}:{67+4*st}], v15, s[{sQ}:{sQ+3}], s71 offen offset:{64*st}")
    A("    v_mov_b32 v17, 0xff800000")
    A("    s_mov_b32 s72, s70")
    A("    s_add_u32 s73, s70, 0x20000")
    A("L_slow_max:")
    for st in range(4): A(f"    buffer_load_dwordx4 v[{80+4*st}:{83+4*st}], v14, s[{sK}:{sK+3}], s72 offen offset:{64*st}")
    A("    s_waitcnt vmcnt(0)")
    for st in range(4): A(f"    v_mfma_f32_16x16x32_bf16 v[0:3], v[{80+4*st}:{83+4*st}], v[{64+4*st}:{67+4*st}], {'0' if st==0 else 'v[0:3]'}")
    A("    s_nop 15")
    A("    v_max3_f32 v17, v17, v0, v1")
    A("    v_max3_f32 v17, v17, v2, v3")
    A("    s_add_u32 s72, s72, 4096")
    A("    s_cmp_lt_u32 s72, s73")
    A("    s_cbranch_scc1 L_slow_max")
    for sw in ("16","32"):
        A("    v_mov_b32 v18, v17"); A("    s_nop 1")
        A(f"    v_permlane{sw}_swap_b32 v17, v18"); A("    s_nop 1")
        A("    v_max_f32 v17, v17, v18")
    A(f"    v_mul_f32 v17, 0x{f2u(-CSC):08x}, v17")
    for r in range(160,196): A(f"    v_mov_b32 v{r}, 0")
    A("    s_mov_b32 s72, s70")
    A("L_slow_blk:")
    A("    s_add_u32 s74, s72, 4096")
    for f in range(8):
        kt,st=divmod(f,4)
        A(f"    buffer_load_dwordx4 v[{80+4*f}:{83+4*f}], v14, s[{sK}:{sK+3}], {'s72' if kt==0 else 's74'} offen offset:{64*st}")
    for kt in range(2):
        for half in range(2):
            A(f"    s_add_u32 m0, s{sWS}, {STG+kt*4096+half*896}")
            A("    s_nop 0")
            for oc in range(2):
                A(f"    buffer_load_dwordx4 v16, s[{sV}:{sV+3}], {'s72' if kt==0 else 's74'} offen offset:{2048*oc+128*half} lds")
    A("    s_waitcnt vmcnt(0)")
    for t in range(8):
        for kt in range(2):
            A(f"    ds_read_b64_tr_b16 v[{112+4*t+2*kt}:{113+4*t+2*kt}], v{20+t%4} offset:{kt*4096+(t//4)*1024}")
    for f in range(8):
        kt,st=divmod(f,4); d=4*kt
        A(f"    v_mfma_f32_16x16x32_bf16 v[{d}:{d+3}], v[{80+4*f}:{83+4*f}], v[{64+4*st}:{67+4*st}], {'0' if st==0 else f'v[{d}:{d+3}]'}")
    A("    s_nop 15")
    for i in range(8): A(f"    v_fma_f32 v{i}, v{i}, s{sC}, v17")
    for i in range(8): A(f"    v_exp_f32 v{i}, v{i}")
    A("    s_nop 1")
    for k in range(4): A(f"    v_cvt_pk_bf16_f32 v{24+k}, v{2*k}, v{1+2*k}")
    A("    s_waitcnt lgkmcnt(0)")
    A("    s_nop 1")
    for t in range(8): A(f"    v_mfma_f32_16x16x32_bf16 v[{160+4*t}:{163+4*t}], v[{112+4*t}:{115+4*t}], v[24:27], v[{160+4*t}:{163+4*t}]")
    A("    v_mfma_f32_16x16x32_bf16 v[192:195], v[196:199], v[24:27], v[192:195]")
    A("    s_add_u32 s72, s72, 8192")
    A("    s_cmp_lt_u32 s72, s73")
    A("    s_cbranch_scc1 L_slow_blk")
    A("    s_nop 15")
    A("    v_rcp_f32 v18, v192")
    A("    s_nop 1")
    for r in range(160,192): A(f"    v_mul_f32 v{r}, v{r}, v18")
    for m in range(4):
        o=160+8*m
        for i in range(4): A(f"    v_cvt_pk_bf16_f32 v{o+i}, v{o+2*i}, v{o+2*i+1}")
        A("    s_nop 1")
        for i in range(2): A(f"    v_permlane16_swap_b32 v{o+i}, v{o+i+2}")
        A(f"    buffer_store_dwordx4 v[{o}:{o+3}], v13, s[{sO}:{sO+3}], s71 offen offset:{64*m}")
    A("    s_waitcnt vmcnt(0)")
    A("L_slow_next:")
    A("    s_add_u32 s69, s69, 1")
    A("    s_cmp_lt_u32 s69, 12")
    A("    s_cbranch_scc1 L_slow_tile")
    return "\n".join(L)+"\n"

def isize(t):
    t=t.strip(); op=t.split()[0]
    if op.startswith(('v_mfma','ds_','buffer_','global_','v_fma_f32','v_cvt_pk','v_max3','v_pk_','v_accvgpr','v_writelane','s_mem')) or op.endswith('_e64'): return 8
    if op in('s_waitcnt','s_barrier','s_nop') or op.startswith('s_cbranch'): return 4
    for a in t.split(None,1)[1].replace(',',' ').split():
        try: v=int(a,0)
        except ValueError: continue
        if not -16<=v<=64: return 8
    return 4

HEAD = open('cdna_kernels/'+NAME+'.s.ref').read().split('; Override')[0]
def emit(cfg, path):
    g=Gen(cfg); out=g.build()
    abl=cfg.get('ablate')
    if abl:
        nb=0; o2=[]
        for o in out:
            if o.kind=='bar': nb+=1
            if nb>=3 and any((a==o.kind) or (a in o.text) for a in abl): continue
            o2.append(o)
        out=o2
    marks=[]; est=estimate(out,marks)
    stamp=cfg.get('stamp'); warm=cfg.get('warm',True)
    ns=[0]
    def st(reg, real=False):
        return [f"s_mem{'real' if real else ''}time s[90:91]","s_waitcnt lgkmcnt(0)",f"v_writelane_b32 v{reg}, s90, {ns[0]}"]
    k0=0
    while out[k0].kind in('dma','salu','nop'): k0+=1
    first=[o.text for o in out[:k0]]; nfirst=sum(1 for o in out[:k0] if o.kind=='dma')
    lines=[]; nbar=0
    for k in range(k0,len(out)):
        o=out[k]
        if stamp is True and o.kind=='wait' and 'v' in o.tag and any(x.kind=='bar' for x in out[k+1:k+12]):
            ns[0]+=1; lines+=[(x,'x') for x in st(62)]; ns[0]-=1
        lines.append((o.text,o.kind))
        if o.kind=='bar': nbar+=1
        if stamp and o.kind=='bar' and (stamp is True or nbar in stamp):
            ns[0]+=1; lines+=[(x,'x') for x in st(61)+st(63,True)]
    body=[]; addr=0; page=0; stubs=0
    tot=sum(isize(t) for t,_ in lines); npages=(tot+200)//4096+1
    for i,(t,kd) in enumerate(lines):
        if warm and addr>=page*4096 and page<npages:
            prevm = i>0 and lines[i-1][1]=='mfma'
            if (prevm and kd not in SC_KINDS) or addr+isize(t)>page*4096+56 or page==0:
                nxt=page+4
                body.append(f"L_stub{page}:\n s_cbranch_vccnz {'L_stub%d'%nxt if nxt<npages else 'L_back'}\n")
                body.append(f".if ((L_stub{page}-L_main)>>6) != {page*64}\n.error \"stub misplaced\"\n.endif\n")
                addr+=4; page+=1
        body.append(" "+t+"\n"); addr+=isize(t)
    while warm and page<npages:
        body.append(f"L_stub{page}:\n s_cbranch_vccnz L_back\n"); page+=1
    txt=HEAD+"; @launch grid=(256,1,1) block=(256,1,1) lds=163840\n"
    txt+=f'.amdgcn_target "amdgcn-amd-amdhsa--gfx950"\n.text\n.globl {NAME}_kernel\n.p2align 8\n.type {NAME}_kernel,@function\n{NAME}_kernel:\n'
    txt+=PRO(cfg)
    txt+="".join(" "+t+"\n" for t in first)
    if stamp:
        n=ns[0]; ns[0]=0
        txt+=" v_mov_b32 v61, 0\n v_mov_b32 v62, 0\n v_mov_b32 v63, 0\n"+"".join(" "+x+"\n" for x in st(61)+st(63,True)); ns[0]=n
    txt+=PRO2
    txt+=f"    s_waitcnt vmcnt({nfirst})\n"
    if warm:
        txt+="    ; touch the first line of every 4 KB code page (instruction-cache warm-up while the first loads are in flight)\n    s_mov_b64 vcc, -1\n"
        for w in range(3): txt+=f"    s_cmp_eq_u32 s{sW}, {w}\n    s_cbranch_scc1 L_stub{w}\n"
        txt+="    s_branch L_stub3\n"
        txt+="L_back:\n    s_mov_b64 vcc, 0\n"
    txt+="    s_branch L_main\n.p2align 12\nL_main:\n"
    txt+="".join(body)
    if stamp:
        ns[0]+=1; txt+="".join(" "+x+"\n" for x in st(61)+st(63,True)); ns[0]+=1
        txt+=" s_waitcnt vmcnt(0)\n"+"".join(" "+x+"\n" for x in st(61)+st(63,True))
        txt+=f""" s_load_dwordx2 s[92:93], s[0:1], 40
 s_lshl_b32 s90, s2, 2
 s_add_u32 s90, s90, s{sW}
 s_mul_i32 s90, s90, 768
 v_mbcnt_lo_u32_b32 v1, -1, 0
 v_mbcnt_hi_u32_b32 v1, -1, v1
 v_lshlrev_b32 v1, 2, v1
 v_add_u32 v1, s90, v1
 s_waitcnt lgkmcnt(0)
 global_store_dword v1, v61, s[92:93]
 global_store_dword v1, v62, s[92:93] offset:256
 global_store_dword v1, v63, s[92:93] offset:512
"""
    if cfg.get('extra_mfma'):
        txt+=f" s_mov_b32 s64, {cfg['extra_mfma']}\nL_xm:\n"
        for j in range(6):
            for i,f in enumerate(Gen.KORD):
                kt,st=divmod(f,4); d=8*(j%2)+4*kt
                txt+=f" v_mfma_f32_16x16x32_bf16 v[{d}:{d+3}], a[{160+4*f}:{163+4*f}], a[{192+16*(j%2)+4*st}:{195+16*(j%2)+4*st}], {'0' if i%4==0 else f'v[{d}:{d+3}]'}\n"
            for t in range(8):
                d=64+32*j+4*t
                txt+=f" v_mfma_f32_16x16x32_bf16 v[{d}:{d+3}], a[{192+4*t}:{195+4*t}], v[{24+4*(j%3)}:{27+4*(j%3)}], v[{d}:{d+3}]\n"
        txt+=" s_sub_u32 s64, s64, 1\n s_cmp_lg_u32 s64, 0\n s_cbranch_scc1 L_xm\n s_nop 15\n"
    if cfg.get('extra_nop'):
        txt+=f" s_mov_b32 s64, {cfg['extra_nop']}\nL_xn:\n"+" s_nop 15\n"*16+" s_sub_u32 s64, s64, 1\n s_cmp_lg_u32 s64, 0\n s_cbranch_scc1 L_xn\n"
    txt+=" s_nop 1\n"+slow_path()
    txt+=f"""L_end:
    s_endpgm
.section .rodata,"a"
.p2align 6
.amdhsa_kernel {NAME}_kernel
  .amdhsa_next_free_vgpr 512
  .amdhsa_next_free_sgpr 96
  .amdhsa_accum_offset 256
  .amdhsa_group_segment_fixed_size 0
  .amdhsa_kernarg_size 48
  .amdhsa_user_sgpr_count 2
  .amdhsa_user_sgpr_kernarg_segment_ptr 1
  .amdhsa_system_sgpr_workgroup_id_x 1
.end_amdhsa_kernel
"""
    open(path,'w').write(txt)
    from collections import Counter
    print(path, "ops",len(out),"est",est, dict(Counter(o.kind for o in out)), "code",addr)
    if cfg.get('verbose'): print(' segs',[b-a for a,b in zip(marks,marks[1:]+[est])])
    from asm import asm
    asm(path)
    return out
```

```python
from cfgs import *
b=dict(verbose=False)
emit(mk('tri',4,5,True,40,ldpol='',**b),'e_lddef.s')
emit(mk('tri',4,5,True,40,adj=True,**b),'e_adj.s')
emit(mk('tri',4,5,True,40,stpol='',**b),'e_stdef.s')
emit(mk('tri',4,5,True,40,warm=False,**b),'e_nowarm.s')
emit(mk('tri',4,5,True,40,extra_mfma=32,**b),'e_xm.s')
emit(mk('tri',4,5,True,40,extra_nop=40,**b),'e_xn.s')
```

```python
import sys, math, struct
from sched import *

NAME="standalone__gqa_softmax__near_ridge"
CSC = math.log2(math.e)/math.sqrt(128.0)
def f2u(x): return struct.unpack('<I',struct.pack('<f',x))[0]

vS=[0,8,16]; vP=[24,28,32]; vMC=36
vKa=[42,43]; vVa=[44,45,46,47]; vQa=[48,49]; vOw=[50,51,52,53]; vDMA=54; vOst=55; vOr=56
vT0,vT1=57,59; vL=[58,60]
vO=lambda slot,t: 64+32*slot+4*t
aQ=lambda b: 16*b
aK=lambda f: 160+4*f
aV=lambda t: 192+4*t
aSum=lambda slot: 224+4*slot
aOne=248
sQ=8; sK=12; sV=16; sO=20
sC=24; sTH=25; sWL=26 ; sWQ=27; sWS=28; sOffKV=29; sOffQ=30; sOffO=31; sW=32
sFlag=40
KRING=0; VRING=65536; STG=131072

class Gen:
    def __init__(s, cfg):
        s.cfg=cfg; s.P=Program(); s.nbb=0; s.bars=[]; s.vis=set()
        s.R=cfg.get('ring',8); s.LAG=cfg.get('lag',2); s.NB=s.LAG+1
        s.lastread={}; s.dmadone={}
        s.ldpol=cfg.get('ldpol','nt'); s.stpol=cfg.get('stpol','nt')
        s.win=cfg.get('dmawin',12)
    def add(s,*a,**k):
        o=Op(*a,**k); s.P.add(o)
        if o.kind=='mfma': s.nbb+=1
        return o
    def now(s): return s.nbb-1
    def barrier(s):
        g=s.now()
        b=s.add("s_barrier",'bar',reads=[],writes=['barorder'],release=g,deadline=g)
        s.bars.append(b); return b
    def visible(s,part,g):
        if (part,g) in s.vis: return
        b=s.bars[-1]
        assert s.dmadone[(part,g)]<b.idx, ("dma after barrier",part,g)
        b.reads.append(f"L:{part}{g}"); b.writes.append(f"vis{part}{g}"); s.vis.add((part,g))
    def dl(s,rel): return rel+s.win if rel>=0 else -1
    def dma_kv(s,part,g,rel,step):
        slot=g%s.R
        rd=[]
        if g>=s.R:
            b=s.bars[-1]; old=g-s.R
            assert s.allread[(part,old)]==0 and s.lastread[(part,old)]<b.idx, ("slot not free",part,g)
            b.reads.append(f"L:rd{part}{old}"); b.writes.append(f"free{part}{old}"); rd=[f"free{part}{old}"]
        base=(KRING if part=='K' else VRING)+slot*8192
        s.add(f"s_add_u32 m0, s{sWL}, {base}",'salu',writes=['m0'],margin=1)
        if s.curoff!=g:
            s.add(f"s_mov_b32 s{sOffKV}, {g*8192}",'salu',writes=[f"s{sOffKV}"],margin=1); s.curoff=g
        srd=sK if part=='K' else sV
        for i in range(2):
            o=s.add(f"buffer_load_dwordx4 v{vDMA}, s[{srd}:{srd+3}], s{sOffKV} offen offset:{2048*i} {s.ldpol} lds",'dma',
                  reads=['m0',f"s{sOffKV}"]+rd,writes=[f"L:{part}{g}",'O:vm'],release=rel+i*step,deadline=s.dl(rel+i*step))
        s.dmadone[(part,g)]=o.idx
    def dma_q(s,T,rel,step):
        buf=T%2; it,j=divmod(T,6)
        assert s.stgown[buf] is None, ("stg busy",T,s.stgown); s.stgown[buf]=('Q',T)
        k=0
        for half in range(2):
            s.add(f"s_add_u32 m0, s{sWS}, {STG+buf*4096+half*896}",'salu',writes=['m0'],margin=1)
            if half==0: s.add(f"s_add_u32 s{sOffQ}, s{sWQ}, {(it*768+16*j)*256}",'salu',writes=[f"s{sOffQ}"],margin=1)
            for oc in range(2):
                s.add(f"buffer_load_dwordx4 v{vDMA}, s[{sQ}:{sQ+3}], s{sOffQ} offen offset:{2048*oc+128*half} {s.ldpol} lds",'dma',
                      reads=['m0',f"s{sOffQ}",f"L:stg{buf}"],writes=[f"L:Q{T}",'O:vm'],release=rel+k*step,deadline=s.dl(rel+k*step))
                k+=1
    def read_q(s,T,rel):
        buf=T%2; qb=s.qbuf[T]; s.qread.add(T)
        assert all(s.seen[x]==16 for x in range(T) if s.qbuf[x]==qb), ("qbuf busy",T)
        assert s.stgown[buf]==('Q',T); s.stgown[buf]=None
        for st in range(4):
            s.add(f"ds_read_b128 {rng('a',aQ(qb)+4*st,4)}, v{vQa[st%2]} offset:{buf*4096+(st//2)*1024}",'dsr',
                  reads=[f"L:Q{T}"]+(['O:vm'] if st==0 else []),writes=R('a',aQ(qb)+4*st,4)+[f"L:stg{buf}"],release=rel,margin=8,deadline=s.dl(rel),hole=True)
    def read_k(s,g,order):
        s.visible('K',g); slot=g%s.R
        for f in order:
            kt,st=divmod(f,4)
            o=s.add(f"ds_read_b128 {rng('a',aK(f),4)}, v{vKa[st%2]} offset:{slot*8192+kt*4096+(st//2)*1024}",'dsr',
                  reads=[f"visK{g}"],writes=R('a',aK(f),4)+[f"L:rdK{g}"],margin=s.cfg.get('dsmargin',10))
        s.lastread[('K',g)]=o.idx; s.allread[('K',g)]-=1
    def read_v(s,g):
        s.visible('V',g); slot=g%s.R
        for t in range(8):
            for kt in range(2):
                o=s.add(f"ds_read_b64_tr_b16 {rng('a',aV(t)+2*kt,2)}, v{vVa[t%4]} offset:{slot*8192+kt*4096+(t//4)*1024}",'dsr',
                      reads=[f"visV{g}"],writes=R('a',aV(t)+2*kt,2)+[f"L:rdV{g}"],margin=s.cfg.get('dsmargin',10))
        s.lastread[('V',g)]=o.idx; s.allread[('V',g)]-=1
    KORD=[0,1,2,3,7,6,5,4]
    def qk(s,n,T):
        b=n%s.NB; qb=s.qbuf[T]
        for i,f in enumerate(s.KORD):
            kt,st=divmod(f,4)
            d=vS[b]+4*kt; first=(i%4==0)
            c = "0" if first else rng('v',d,4)
            s.add(f"v_mfma_f32_16x16x32_bf16 {rng('v',d,4)}, {rng('a',aK(f),4)}, {rng('a',aQ(qb)+4*st,4)}, {c}",'mfma',
                  reads=R('a',aK(f),4)+R('a',aQ(qb)+4*st,4)+([] if first else R('v',d,4)),writes=R('v',d,4),cread=([] if first else R('v',d,4)))
    def pv(s,n,T,first):
        b=n%s.NB; slot=s.slot[T]; p=vP[b]
        d=aSum(slot); c="0" if first else rng('a',d,4)
        s.add(f"v_mfma_f32_16x16x32_bf16 {rng('a',d,4)}, {rng('a',aOne,4)}, {rng('v',p,4)}, {c}",'mfma',
              reads=R('a',aOne,4)+R('v',p,4)+([] if first else R('a',d,4)),writes=R('a',d,4),cread=([] if first else R('a',d,4)))
        for t in range(8):
            d=vO(slot,t); c="0" if first else rng('v',d,4)
            s.add(f"v_mfma_f32_16x16x32_bf16 {rng('v',d,4)}, {rng('a',aV(t),4)}, {rng('v',p,4)}, {c}",'mfma',
                  reads=R('a',aV(t),4)+R('v',p,4)+([] if first else R('v',d,4)),writes=R('v',d,4),cread=([] if first else R('v',d,4)))
    def sm(s,n,T,first):
        b=n%s.NB; S=vS[b]; p=vP[b]; mc=vMC+s.slot[T]
        if first:
            t0,t1=vT0,vT1
            V=lambda txt,rd,wr,k='valu': s.add(txt,k,reads=[f"v{x}" for x in rd],writes=[f"v{x}" for x in wr],margin=1)
            V(f"v_max3_f32 v{t0}, v{S}, v{S+1}, v{S+2}",[S,S+1,S+2],[t0])
            V(f"v_max_f32 v{t0}, v{t0}, v{S+3}",[t0,S+3],[t0])
            V(f"v_mov_b32 v{t1}, v{t0}",[t0],[t1])
            V(f"v_permlane16_swap_b32 v{t0}, v{t1}",[t0,t1],[t0,t1],'perm')
            V(f"v_max_f32 v{t0}, v{t0}, v{t1}",[t0,t1],[t0])
            V(f"v_mov_b32 v{t1}, v{t0}",[t0],[t1])
            V(f"v_permlane32_swap_b32 v{t0}, v{t1}",[t0,t1],[t0,t1],'perm')
            V(f"v_max_f32 v{t0}, v{t0}, v{t1}",[t0,t1],[t0])
            V(f"v_mul_f32 v{mc}, 0x{f2u(-CSC):08x}, v{t0}",[t0],[mc])
        sp=s.cfg.get('smsp',3)
        for k in range(4):
            for i in (2*k,2*k+1):
                s.add(f"v_fma_f32 v{S+i}, v{S+i}, s{sC}, v{mc}",'valu',reads=[f"v{S+i}",f"v{mc}"],writes=[f"v{S+i}"],margin=1)
            for i in (2*k,2*k+1):
                s.add(f"v_exp_f32 v{S+i}, v{S+i}",'trans',reads=[f"v{S+i}"],writes=[f"v{S+i}"],margin=1+(i%2==0))
            s.add(f"v_cvt_pk_bf16_f32 v{p+k}, v{S+2*k}, v{S+2*k+1}",'valu',reads=[f"v{S+2*k}",f"v{S+2*k+1}"],writes=[f"v{p+k}"],margin=1+sp*(3-k))
    def epilogue(s,T):
        slot=s.slot[T]; g0=s.now(); l=vL[T%2]; buf=s.obuf[T]
        assert s.stgown[buf] is None, ("stg busy O",T,s.stgown); s.stgown[buf]=('O',T)
        s.add(f"v_accvgpr_read_b32 v{l}, a{aSum(slot)}",'valu',reads=[f"a{aSum(slot)}"],writes=[f"v{l}"],deadline=g0-1)
        s.add(f"v_cmp_ngt_f32_e64 s[{sFlag+2*T}:{sFlag+2*T+1}], s{sTH}, v{l}",'valu',reads=[f"v{l}"],writes=[f"s{sFlag+2*T}"],deadline=g0)
        s.add(f"v_rcp_f32 v{l}, v{l}",'trans',reads=[f"v{l}"],writes=[f"v{l}"],deadline=g0+1)
        G=g0+3
        for t in range(8):
            o=vO(slot,t)
            for i in (0,2):
                s.add(f"v_pk_mul_f32 v[{o+i}:{o+i+1}], v[{o+i}:{o+i+1}], v[{l}:{l+1}] op_sel_hi:[1,0]",'pk',reads=[f"v{o+i}",f"v{o+i+1}",f"v{l}"],writes=[f"v{o+i}",f"v{o+i+1}"],release=G,deadline=G)
        W=s.cfg.get('epiw',12)
        for t in range(8):
            o=vO(slot,t); d=G+(W*t)//8
            for i in range(2):
                s.add(f"v_cvt_pk_bf16_f32 v{o+i}, v{o+2*i}, v{o+2*i+1}",'valu',reads=[f"v{o+2*i}",f"v{o+2*i+1}"],writes=[f"v{o+i}"],deadline=d)
            s.add(f"ds_write_b64 v{vOw[t%4]}, v[{o}:{o+1}] offset:{buf*4096+(t//4)*1024}",'dsw',reads=[f"v{o}",f"v{o+1}"],writes=[f"L:stg{buf}"],deadline=d+1)
        return G+W+2
    def read_o(s,T,park,rel):
        buf=s.obuf[T]; s.park[T]=park
        assert all(s.seen[x] in (0,16) and not (s.seen[x]==0 and x in s.qread) for x in range(12) if s.qbuf[x]==park), ("park busy",T,park)
        assert s.stgown[buf]==('O',T); s.stgown[buf]=None
        assert s.parkown.get(park) is None, ("park has unstored data",T,park); s.parkown[park]=[T,4]
        for j in range(4):
            s.add(f"ds_read_b128 {rng('a',aQ(park)+4*j,4)}, v{vOr} offset:{buf*4096+1024*j}",'dsr',
                  reads=[],writes=R('a',aQ(park)+4*j,4)+[f"L:stg{buf}"],release=rel,deadline=rel+4,hole=True)
    def store_o(s,T,rel,step,js=range(4)):
        it,j=divmod(T,6); park=s.park[T]
        if s.curO!=T:
            s.add(f"s_mov_b32 s{sOffO}, {(it*768+16*j)*256}",'salu',writes=[f"s{sOffO}"],margin=1); s.curO=T
        s.parkown[park][1]-=len(js); s.nst+=len(js)
        if s.parkown[park][1]==0: s.parkown[park]=None
        for k,j in enumerate(js):
            s.add(f"buffer_store_dwordx4 {rng('a',aQ(park)+4*j,4)}, v{vOst}, s[{sO}:{sO+3}], s{sOffO} offen offset:{(j//2)*2048+(j%2)*128} {s.stpol}",'gst',
                  reads=R('a',aQ(park)+4*j,4)+[f"s{sOffO}"],writes=['O:st'],release=rel+k*step,deadline=rel+k*step+2)
    def build(s):
        cfg=s.cfg; LAG=s.LAG
        visits=cfg['visits']
        s.slot={T:T%6 for T in range(12)}
        s.qbuf=cfg.get('qbuf',{**{T:T for T in range(10)},10:0,11:1})
        s.obuf={T:T%2 for T in range(12)}; s.park={}; s.curO=None
        imm=cfg.get('oimm',{})
        s.allread=defaultdict(int)
        for g,ts in visits:
            s.allread[('K',g)]+=1; s.allread[('V',g)]+=1
        ms=[]
        for vi,(g,ts) in enumerate(visits):
            for k,T in enumerate(ts): ms.append((vi,g,T,k==0,k==len(ts)-1))
        cnt=defaultdict(int)
        for m in ms: cnt[m[2]]+=1
        assert all(cnt[T]==16 for T in range(12)) and len({(m[1],m[2]) for m in ms})==192
        assert all(m[1]//16==m[2]//6 for m in ms)
        plan=defaultdict(list)
        for n,u in cfg['plan']: plan[n].append(u)
        s.curoff=None
        def doplan(n):
            rel=s.now(); us=plan.get(n,[])
            nd=sum({'B':4,'K':2,'V':2,'Q':4}.get(u[0],0) for u in us)
            step = 0 if n<0 else max(1,cfg.get('span',16)//max(nd,1))
            for u in us:
                st = u[2] if len(u)>2 and u[0] in 'BKVQ' else step
                if u[0]=='B':
                    s.dma_kv('K',u[1],rel,st); s.dma_kv('V',u[1],rel+2*st,st); rel+=4*st
                elif u[0] in 'KV':
                    s.dma_kv(u[0],u[1],rel,st); rel+=2*st
                elif u[0]=='Q':
                    s.dma_q(u[1],rel,st); rel+=4*st
                elif u[0]=='q': s.read_q(u[1],s.now())
                elif u[0]=='o': s.read_o(u[1],u[2],s.now())
                elif u[0]=='s': s.store_o(u[1],s.now(),u[2],*u[3:])
                elif u[0]=='bar': s.barrier()
        seen=defaultdict(int); seenpv=defaultdict(int); s.seen=defaultdict(int); s.qread=set(); s.stgown=[None,None]; s.parkown={}; s.nst=0
        barset=cfg.get('barvisits')
        doplan(-1)
        s.barrier(); s.read_k(ms[0][1],s.KORD)
        N=len(ms)
        for n in range(N+LAG):
            if n<N:
                vi,g,T,fi,la=ms[n]
                if la and n+1<N and (barset is None or vi+1 in barset): s.barrier()
                doplan(n)
                assert T in s.qread, ('Q not loaded',T)
                s.qk(n,T); s.seen[T]+=1
            m=n-LAG
            if m>=0:
                T1=ms[m][2]
                s.pv(m,T1,seenpv[T1]==0); seenpv[T1]+=1
                if seenpv[T1]==16:
                    e=s.epilogue(T1)
                    if T1 in imm:
                        s.read_o(T1,imm[T1][0],e)
                        if imm[T1][1] is not None: s.store_o(T1,e+10,imm[T1][1])
            if n<N:
                s.sm(n,T,seen[T]==0); seen[T]+=1
                if la and n+1<N: s.read_k(ms[n+1][1],s.KORD)
            if m+1>=0 and m+1<N and ms[m+1][3]: s.read_v(ms[m+1][1])
        assert s.nst==48
        s.P.ops=[o for o in s.P.ops if not (o.kind=='bar' and not o.reads)]
        for i,o in enumerate(s.P.ops): o.idx=i
        out=s.P.schedule()
        out=insert_waits(out,cfg.get('merge',9))
        verify_waits(out)
        check_hazards(out)
        return out

def PRO(cfg):
  t=f"""
    s_cmp_ge_u32 s2, 256
    s_cbranch_scc1 L_end
    s_load_dwordx4 s[64:67], s[0:1], 0
    s_load_dwordx4 s[68:71], s[0:1], 16
    v_lshrrev_b32 v1, 6, v0
    s_lshr_b32 s73, s2, 3
    s_getpc_b64 s[86:87]
L_pc:
    v_and_b32 v2, 31, v0
    v_lshlrev_b32 v2, 12, v2
    s_lshl_b32 s88, s73, 7
    v_add_u32 v2, s88, v2
    v_min_u32 v2, L_end-L_main, v2
    s_add_u32 s86, s86, L_main-L_pc
    s_addc_u32 s87, s87, 0
    v_readfirstlane_b32 s{sW}, v1
    v_and_b32 v0, 63, v0
    global_load_dword v4, v2, s[86:87]
    s_and_b32 s72, s2, 7
    s_lshr_b32 s74, s73, 1
    s_and_b32 s75, s73, 1
    s_lshl_b32 s72, s72, 4
    s_add_u32 s72, s72, s74
    s_lshl_b32 s76, s72, 18
    s_mul_i32 s77, s72, {2*768*256}
    s_mul_i32 s78, s75, {384*256}
    s_add_u32 s77, s77, s78
    s_and_b32 s79, s{sW}, 1
    s_lshr_b32 s80, s{sW}, 1
    s_lshl_b32 s81, s79, 10
    s_lshl_b32 s82, s80, 12
    s_add_u32 s{sWL}, s81, s82       ; LDS: (w&1)*1024 + (w>>1)*4096
    s_lshl_b32 s81, s79, 7
    s_add_u32 s81, s81, s82          ; global: (w&1)*128 + (w>>1)*4096
    s_mul_i32 s83, s{sW}, 24576
    s_sub_u32 s{sWQ}, s83, s81
    s_lshl_b32 s{sWS}, s{sW}, 13
    ; DMA voffset: (i>>3)*256 + ((i&7)^((i>>3)&6))*16 + wave part
    v_lshrrev_b32 v1, 3, v0
    v_and_b32 v2, 6, v1
    v_and_b32 v3, 7, v0
    v_xor_b32 v2, v2, v3
    v_lshlrev_b32 v2, 4, v2
    v_lshl_add_u32 v2, v1, 8, v2
    v_add_u32 v{vDMA}, s81, v2
    s_mov_b32 s{sQ+2}, {1152*256}
    s_mov_b32 s{sQ+3}, 0x20000
    s_mov_b32 s{sK+2}, 0x40000
    s_mov_b32 s{sK+3}, 0x20000
    s_mov_b32 s{sV+2}, 0x40000
    s_mov_b32 s{sV+3}, 0x20000
    s_mov_b32 s{sO+2}, {1152*256}
    s_mov_b32 s{sO+3}, 0x20000
    s_waitcnt lgkmcnt(0)
    s_add_u32 s{sQ}, s64, s77
    s_addc_u32 s{sQ+1}, s65, 0
    s_add_u32 s{sK}, s66, s76
    s_addc_u32 s{sK+1}, s67, 0
    s_add_u32 s{sV}, s68, s76
    s_addc_u32 s{sV+1}, s69, 0
    s_add_u32 s{sO}, s70, s77
    s_addc_u32 s{sO+1}, s71, 0
"""
  if cfg.get('adj'):
    t=t.replace("    s_add_u32 s72, s72, s74          ; pair index 0..127\n","    s_lshr_b32 s72, s2, 1\n    s_and_b32 s75, s2, 1\n")
  return t
PRO2 = f"""
    s_mov_b32 s{sC}, 0x{f2u(CSC):08x}
    s_mov_b32 s{sTH}, 0x5f800000
    s_add_u32 s84, s{sWS}, {STG}
    v_xor_b32 v2, v1, v3
    v_lshlrev_b32 v2, 4, v2
    v_lshl_add_u32 v2, v1, 8, v2
    v_add_u32 v{vOst}, s83, v2
    v_lshl_add_u32 v{vOr}, v0, 4, s84
    v_and_b32 v1, 15, v0
    v_lshrrev_b32 v2, 4, v0
    v_and_b32 v5, 7, v1
    v_lshlrev_b32 v6, 7, v5
    v_lshrrev_b32 v7, 3, v1
    v_lshl_add_u32 v6, v7, 11, v6
    v_and_b32 v3, 6, v1
    v_xor_b32 v3, v3, v2
    v_lshl_add_u32 v{vKa[0]}, v3, 4, v6
    v_xor_b32 v{vKa[1]}, 64, v{vKa[0]}
    v_add_u32 v{vQa[0]}, s84, v{vKa[0]}
    v_add_u32 v{vQa[1]}, s84, v{vKa[1]}
    v_lshrrev_b32 v3, 1, v2
    v_xor_b32 v3, v3, v5
    v_lshl_add_u32 v3, v3, 4, v6
    v_and_b32 v2, 1, v2
    v_lshl_add_u32 v3, v2, 3, v3
    v_add_u32 v{vOw[0]}, s84, v3
    v_xor_b32 v{vOw[1]}, 32, v{vOw[0]}
    v_xor_b32 v{vOw[2]}, 64, v{vOw[0]}
    v_xor_b32 v{vOw[3]}, 0x60, v{vOw[0]}
    v_lshrrev_b32 v1, 2, v0
    v_and_b32 v2, 6, v1
    v_bfe_u32 v3, v0, 1, 1
    v_xor_b32 v2, v2, v3
    v_lshlrev_b32 v2, 4, v2
    v_and_b32 v3, 1, v0
    v_lshl_add_u32 v2, v3, 3, v2
    v_and_b32 v3, 7, v1
    v_lshl_add_u32 v2, v3, 7, v2
    v_lshrrev_b32 v3, 3, v1
    v_lshl_add_u32 v2, v3, 11, v2
    v_add_u32 v{vVa[0]}, {VRING}, v2
    v_xor_b32 v{vVa[1]}, 32, v{vVa[0]}
    v_xor_b32 v{vVa[2]}, 64, v{vVa[0]}
    v_xor_b32 v{vVa[3]}, 0x60, v{vVa[0]}
    v_mov_b32 v1, 0x3f803f80
    v_accvgpr_write_b32 a{aOne}, v1
    v_accvgpr_write_b32 a{aOne+1}, v1
    v_accvgpr_write_b32 a{aOne+2}, v1
    v_accvgpr_write_b32 a{aOne+3}, v1
"""

def slow_path():
    L=[]
    A=L.append
    A("    s_or_b64 s[64:65], s[40:41], s[42:43]")
    for T in range(2,12): A(f"    s_or_b64 s[64:65], s[64:65], s[{sFlag+2*T}:{sFlag+2*T+1}]")
    A("    s_cbranch_scc0 L_end")
    A("    s_mov_b32 s66, 0")
    for T in range(12):
        A(f"    s_cmp_lg_u64 s[{sFlag+2*T}:{sFlag+2*T+1}], 0")
        A(f"    s_cselect_b32 s67, {1<<T}, 0")
        A("    s_or_b32 s66, s66, s67")
    A("    s_waitcnt vmcnt(0) lgkmcnt(0)")
    A("    v_mbcnt_lo_u32_b32 v8, -1, 0")
    A("    v_mbcnt_hi_u32_b32 v8, -1, v8")
    A("    v_and_b32 v9, 15, v8")
    A("    v_lshrrev_b32 v10, 4, v8")
    A("    v_lshlrev_b32 v11, 4, v10")
    A("    v_lshl_add_u32 v14, v9, 8, v11")
    A("    v_add_u32 v15, s83, v14")
    A("    v_and_b32 v11, 1, v10")
    A("    v_lshlrev_b32 v11, 1, v11")
    A("    v_lshrrev_b32 v12, 1, v10")
    A("    v_or_b32 v11, v11, v12")
    A("    v_lshlrev_b32 v11, 4, v11")
    A("    v_lshl_add_u32 v11, v9, 8, v11")
    A("    v_add_u32 v13, s83, v11")
    A(f"    v_subrev_u32 v16, s81, v{vDMA}")
    A(f"    s_add_u32 s68, s{sWS}, {STG-VRING}")
    for i in range(4): A(f"    v_add_u32 v{20+i}, s68, v{vVa[i]}")
    for i in range(4): A(f"    v_mov_b32 v{196+i}, 0x3f803f80")
    A("    s_mov_b32 s69, 0")
    A("L_slow_tile:")
    A("    s_bitcmp1_b32 s66, s69")
    A("    s_cbranch_scc0 L_slow_next")
    A("    s_cmp_ge_u32 s69, 6")
    A("    s_cselect_b32 s70, 0x20000, 0")
    A(f"    s_cselect_b32 s71, {(768-96)*256}, 0")
    A("    s_lshl_b32 s72, s69, 12")
    A("    s_add_u32 s71, s71, s72                ; q/o offset")
    for st in range(4): A(f"    buffer_load_dwordx4 v[{64+4*st}:{67+4*st}], v15, s[{sQ}:{sQ+3}], s71 offen offset:{64*st}")
    A("    v_mov_b32 v17, 0xff800000")
    A("    s_mov_b32 s72, s70")
    A("    s_add_u32 s73, s70, 0x20000")
    A("L_slow_max:")
    for st in range(4): A(f"    buffer_load_dwordx4 v[{80+4*st}:{83+4*st}], v14, s[{sK}:{sK+3}], s72 offen offset:{64*st}")
    A("    s_waitcnt vmcnt(0)")
    for st in range(4): A(f"    v_mfma_f32_16x16x32_bf16 v[0:3], v[{80+4*st}:{83+4*st}], v[{64+4*st}:{67+4*st}], {'0' if st==0 else 'v[0:3]'}")
    A("    s_nop 15")
    A("    v_max3_f32 v17, v17, v0, v1")
    A("    v_max3_f32 v17, v17, v2, v3")
    A("    s_add_u32 s72, s72, 4096")
    A("    s_cmp_lt_u32 s72, s73")
    A("    s_cbranch_scc1 L_slow_max")
    for sw in ("16","32"):
        A("    v_mov_b32 v18, v17"); A("    s_nop 1")
        A(f"    v_permlane{sw}_swap_b32 v17, v18"); A("    s_nop 1")
        A("    v_max_f32 v17, v17, v18")
    A(f"    v_mul_f32 v17, 0x{f2u(-CSC):08x}, v17")
    for r in range(160,196): A(f"    v_mov_b32 v{r}, 0")
    A("    s_mov_b32 s72, s70")
    A("L_slow_blk:")
    A("    s_add_u32 s74, s72, 4096")
    for f in range(8):
        kt,st=divmod(f,4)
        A(f"    buffer_load_dwordx4 v[{80+4*f}:{83+4*f}], v14, s[{sK}:{sK+3}], {'s72' if kt==0 else 's74'} offen offset:{64*st}")
    for kt in range(2):
        for half in range(2):
            A(f"    s_add_u32 m0, s{sWS}, {STG+kt*4096+half*896}")
            A("    s_nop 0")
            for oc in range(2):
                A(f"    buffer_load_dwordx4 v16, s[{sV}:{sV+3}], {'s72' if kt==0 else 's74'} offen offset:{2048*oc+128*half} lds")
    A("    s_waitcnt vmcnt(0)")
    for t in range(8):
        for kt in range(2):
            A(f"    ds_read_b64_tr_b16 v[{112+4*t+2*kt}:{113+4*t+2*kt}], v{20+t%4} offset:{kt*4096+(t//4)*1024}")
    for f in range(8):
        kt,st=divmod(f,4); d=4*kt
        A(f"    v_mfma_f32_16x16x32_bf16 v[{d}:{d+3}], v[{80+4*f}:{83+4*f}], v[{64+4*st}:{67+4*st}], {'0' if st==0 else f'v[{d}:{d+3}]'}")
    A("    s_nop 15")
    for i in range(8): A(f"    v_fma_f32 v{i}, v{i}, s{sC}, v17")
    for i in range(8): A(f"    v_exp_f32 v{i}, v{i}")
    A("    s_nop 1")
    for k in range(4): A(f"    v_cvt_pk_bf16_f32 v{24+k}, v{2*k}, v{1+2*k}")
    A("    s_waitcnt lgkmcnt(0)")
    A("    s_nop 1")
    for t in range(8): A(f"    v_mfma_f32_16x16x32_bf16 v[{160+4*t}:{163+4*t}], v[{112+4*t}:{115+4*t}], v[24:27], v[{160+4*t}:{163+4*t}]")
    A("    v_mfma_f32_16x16x32_bf16 v[192:195], v[196:199], v[24:27], v[192:195]")
    A("    s_add_u32 s72, s72, 8192")
    A("    s_cmp_lt_u32 s72, s73")
    A("    s_cbranch_scc1 L_slow_blk")
    A("    s_nop 15")
    A("    v_rcp_f32 v18, v192")
    A("    s_nop 1")
    for r in range(160,192): A(f"    v_mul_f32 v{r}, v{r}, v18")
    for m in range(4):
        o=160+8*m
        for i in range(4): A(f"    v_cvt_pk_bf16_f32 v{o+i}, v{o+2*i}, v{o+2*i+1}")
        A("    s_nop 1")
        for i in range(2): A(f"    v_permlane16_swap_b32 v{o+i}, v{o+i+2}")
        A(f"    buffer_store_dwordx4 v[{o}:{o+3}], v13, s[{sO}:{sO+3}], s71 offen offset:{64*m}")
    A("    s_waitcnt vmcnt(0)")
    A("L_slow_next:")
    A("    s_add_u32 s69, s69, 1")
    A("    s_cmp_lt_u32 s69, 12")
    A("    s_cbranch_scc1 L_slow_tile")
    return "\n".join(L)+"\n"

def isize(t):
    t=t.strip(); op=t.split()[0]
    if op.startswith(('v_mfma','ds_','buffer_','global_','v_fma_f32','v_cvt_pk','v_max3','v_pk_','v_accvgpr','v_writelane','s_mem')) or op.endswith('_e64'): return 8
    if op in('s_waitcnt','s_barrier','s_nop') or op.startswith('s_cbranch'): return 4
    for a in t.split(None,1)[1].replace(',',' ').split():
        try: v=int(a,0)
        except ValueError: continue
        if not -16<=v<=64: return 8
    return 4

HEAD = open('cdna_kernels/'+NAME+'.s.ref').read().split('; Override')[0]
def emit(cfg, path):
    g=Gen(cfg); out=g.build()
    abl=cfg.get('ablate')
    if abl:
        nb=0; o2=[]
        for o in out:
            if o.kind=='bar': nb+=1
            if nb>=3 and any((a==o.kind) or (a in o.text) for a in abl): continue
            o2.append(o)
        out=o2
    marks=[]; est=estimate(out,marks)
    stamp=cfg.get('stamp'); warm=cfg.get('warm',True)
    ns=[0]
    def st(reg, real=False):
        return [f"s_mem{'real' if real else ''}time s[90:91]","s_waitcnt lgkmcnt(0)",f"v_writelane_b32 v{reg}, s90, {ns[0]}"]
    k0=0
    while out[k0].kind in('dma','salu','nop'): k0+=1
    first=[o.text for o in out[:k0]]; nfirst=sum(1 for o in out[:k0] if o.kind=='dma')
    lines=[]; nbar=0; probe=cfg.get('probe')
    for k in range(k0,len(out)):
        o=out[k]
        if stamp is True and o.kind=='wait' and 'v' in o.tag and any(x.kind=='bar' for x in out[k+1:k+12]):
            ns[0]+=1; lines+=[(x,'x') for x in st(62)]; ns[0]-=1
        lines.append((o.text,o.kind))
        if o.kind=='bar': nbar+=1
        if probe and o.kind=='bar' and nbar in probe[:2]:
            r = 92 if nbar==probe[0] else 94
            lines+=[(f"s_mem{'real' if probe[2]=='rt' else ''}time s[{r}:{r+1}]",'x'),("s_waitcnt lgkmcnt(0)",'x')]
        if stamp and o.kind=='bar' and (stamp is True or nbar in stamp):
            ns[0]+=1; lines+=[(x,'x') for x in st(61)+st(63,True)]
    body=[]; addr=0; page=0; stubs=0
    tot=sum(isize(t) for t,_ in lines); npages=(tot+200)//4096+1
    for i,(t,kd) in enumerate(lines):
        if warm and addr>=page*4096 and page<npages:
            prevm = i>0 and lines[i-1][1]=='mfma'
            if (prevm and kd not in SC_KINDS) or addr+isize(t)>page*4096+56 or page==0:
                nxt=page+4
                body.append(f"L_stub{page}:\n s_cbranch_vccnz {'L_stub%d'%nxt if nxt<npages else 'L_back'}\n")
                body.append(f".if ((L_stub{page}-L_main)>>6) != {page*64}\n.error \"stub misplaced\"\n.endif\n")
                addr+=4; page+=1
        body.append(" "+t+"\n"); addr+=isize(t)
    while warm and page<npages:
        body.append(f"L_stub{page}:\n s_cbranch_vccnz L_back\n"); page+=1
    txt=HEAD+"; @launch grid=(256,1,1) block=(256,1,1) lds=163840\n"
    txt+=f'.amdgcn_target "amdgcn-amd-amdhsa--gfx950"\n.text\n.globl {NAME}_kernel\n.p2align 8\n.type {NAME}_kernel,@function\n{NAME}_kernel:\n'
    if probe:
        txt+=" s_memrealtime s[90:91]\n"
        if probe[0]==0: txt+=f" s_mem{'real' if probe[2]=='rt' else ''}time s[92:93]\n"
        txt+=" s_waitcnt lgkmcnt(0)\n"
    if cfg.get('pre_nop'):
        txt+=f" s_mov_b32 s64, {cfg['pre_nop']}\nL_pn:\n"+" s_nop 15\n"*16+" s_sub_u32 s64, s64, 1\n s_cmp_lg_u32 s64, 0\n s_cbranch_scc1 L_pn\n"
    txt+=PRO(cfg)
    txt+="".join(" "+t+"\n" for t in first)
    if stamp:
        n=ns[0]; ns[0]=0
        txt+=" v_mov_b32 v61, 0\n v_mov_b32 v62, 0\n v_mov_b32 v63, 0\n"+"".join(" "+x+"\n" for x in st(61)+st(63,True)); ns[0]=n
    txt+=PRO2
    txt+=f"    s_waitcnt vmcnt({nfirst})\n"
    if warm:
        txt+="    ; touch the first line of every 4 KB code page (instruction-cache warm-up while the first loads are in flight)\n    s_mov_b64 vcc, -1\n"
        for w in range(3): txt+=f"    s_cmp_eq_u32 s{sW}, {w}\n    s_cbranch_scc1 L_stub{w}\n"
        txt+="    s_branch L_stub3\n"
        txt+="L_back:\n    s_mov_b64 vcc, 0\n"
    txt+="    s_branch L_main\n.p2align 12\nL_main:\n"
    txt+="".join(body)
    if stamp:
        ns[0]+=1; txt+="".join(" "+x+"\n" for x in st(61)+st(63,True)); ns[0]+=1
        txt+=" s_waitcnt vmcnt(0)\n"+"".join(" "+x+"\n" for x in st(61)+st(63,True))
        txt+=f""" s_load_dwordx2 s[92:93], s[0:1], 40
 s_lshl_b32 s90, s2, 2
 s_add_u32 s90, s90, s{sW}
 s_mul_i32 s90, s90, 768
 v_mbcnt_lo_u32_b32 v1, -1, 0
 v_mbcnt_hi_u32_b32 v1, -1, v1
 v_lshlrev_b32 v1, 2, v1
 v_add_u32 v1, s90, v1
 s_waitcnt lgkmcnt(0)
 global_store_dword v1, v61, s[92:93]
 global_store_dword v1, v62, s[92:93] offset:256
 global_store_dword v1, v63, s[92:93] offset:512
"""
    if probe:
        if probe[1]==99: txt+=f" s_mem{'real' if probe[2]=='rt' else ''}time s[94:95]\n s_waitcnt lgkmcnt(0)\n"
        if probe[1]==100: txt+=f" s_waitcnt vmcnt(0)\n s_mem{'real' if probe[2]=='rt' else ''}time s[94:95]\n s_waitcnt lgkmcnt(0)\n"
        if probe[1]<0: txt+=" s_mov_b32 s94, s92\n"
        txt+=" s_sub_u32 s94, s94, s92\n"
        if probe[2]=='cyc': txt+=" s_lshr_b32 s94, s94, 4\n"
        txt+=" s_add_u32 s94, s94, 10000\nL_spin:\n s_memrealtime s[92:93]\n s_waitcnt lgkmcnt(0)\n s_sub_u32 s92, s92, s90\n s_cmp_lt_u32 s92, s94\n s_cbranch_scc1 L_spin\n"
    if cfg.get('extra_mfma'):
        txt+=f" s_mov_b32 s64, {cfg['extra_mfma']}\nL_xm:\n"
        for j in range(6):
            for i,f in enumerate(Gen.KORD):
                kt,st=divmod(f,4); d=8*(j%2)+4*kt
                txt+=f" v_mfma_f32_16x16x32_bf16 v[{d}:{d+3}], a[{160+4*f}:{163+4*f}], a[{192+16*(j%2)+4*st}:{195+16*(j%2)+4*st}], {'0' if i%4==0 else f'v[{d}:{d+3}]'}\n"
            for t in range(8):
                d=64+32*j+4*t
                txt+=f" v_mfma_f32_16x16x32_bf16 v[{d}:{d+3}], a[{192+4*t}:{195+4*t}], v[{24+4*(j%3)}:{27+4*(j%3)}], v[{d}:{d+3}]\n"
        txt+=" s_sub_u32 s64, s64, 1\n s_cmp_lg_u32 s64, 0\n s_cbranch_scc1 L_xm\n s_nop 15\n"
    if cfg.get('extra_nop'):
        txt+=f" s_mov_b32 s64, {cfg['extra_nop']}\nL_xn:\n"+" s_nop 15\n"*16+" s_sub_u32 s64, s64, 1\n s_cmp_lg_u32 s64, 0\n s_cbranch_scc1 L_xn\n"
    txt+=" s_nop 1\n"+slow_path()
    txt+=f"""L_end:
    s_endpgm
.section .rodata,"a"
.p2align 6
.amdhsa_kernel {NAME}_kernel
  .amdhsa_next_free_vgpr 512
  .amdhsa_next_free_sgpr 96
  .amdhsa_accum_offset 256
  .amdhsa_group_segment_fixed_size 0
  .amdhsa_kernarg_size 48
  .amdhsa_user_sgpr_count 2
  .amdhsa_user_sgpr_kernarg_segment_ptr 1
  .amdhsa_system_sgpr_workgroup_id_x 1
.end_amdhsa_kernel
"""
    open(path,'w').write(txt)
    from collections import Counter
    print(path, "ops",len(out),"est",est, dict(Counter(o.kind for o in out)), "code",addr)
    if cfg.get('verbose'): print(' segs',[b-a for a,b in zip(marks,marks[1:]+[est])])
    from asm import asm
    asm(path)
    return out
```

```python
from cfgs import *
b=dict(verbose=False)
M=lambda **k: mk('simple',0,4,False,50,**b,**k)
emit(M(probe=(0,-1,'rt')),'p_ovh.s')
emit(M(probe=(0,100,'rt')),'p_tot.s')
emit(M(probe=(0,1,'rt')),'p_head.s')
emit(M(probe=(4,14,'rt')),'p_s1.s')
emit(M(probe=(20,30,'rt')),'p_s2.s')
emit(M(probe=(4,14,'cyc')),'p_s1c.s')
```

```python
import sys, math, struct
from sched import *

NAME="standalone__gqa_softmax__near_ridge"
CSC = math.log2(math.e)/math.sqrt(128.0)
def f2u(x): return struct.unpack('<I',struct.pack('<f',x))[0]

vS=[0,8,16]; vP=[24,28,32]; vMC=36
vKa=[42,43]; vVa=[44,45,46,47]; vQa=[48,49]; vOw=[50,51,52,53]; vDMA=54; vOst=55; vOr=56
vT0,vT1=57,59; vL=[58,60]
vO=lambda slot,t: 64+32*slot+4*t
aQ=lambda b: 16*b
aK=lambda f: 160+4*f
aV=lambda t: 192+4*t
aSum=lambda slot: 224+4*slot
aOne=248
sQ=8; sK=12; sV=16; sO=20
sC=24; sTH=25; sWL=26 ; sWQ=27; sWS=28; sOffKV=29; sOffQ=30; sOffO=31; sW=32
sFlag=40
KRING=0; VRING=65536; STG=131072

class Gen:
    def __init__(s, cfg):
        s.cfg=cfg; s.P=Program(); s.nbb=0; s.bars=[]; s.vis=set()
        s.R=cfg.get('ring',8); s.LAG=cfg.get('lag',2); s.NB=s.LAG+1
        s.lastread={}; s.dmadone={}
        s.ldpol=cfg.get('ldpol','nt'); s.stpol=cfg.get('stpol','nt')
        s.win=cfg.get('dmawin',12)
    def add(s,*a,**k):
        o=Op(*a,**k); s.P.add(o)
        if o.kind=='mfma': s.nbb+=1
        return o
    def now(s): return s.nbb-1
    def barrier(s):
        g=s.now()
        b=s.add("s_barrier",'bar',reads=[],writes=['barorder'],release=g,deadline=g)
        s.bars.append(b); return b
    def visible(s,part,g):
        if (part,g) in s.vis: return
        b=s.bars[-1]
        assert s.dmadone[(part,g)]<b.idx, ("dma after barrier",part,g)
        b.reads.append(f"L:{part}{g}"); b.writes.append(f"vis{part}{g}"); s.vis.add((part,g))
    def dl(s,rel): return rel+s.win if rel>=0 else -1
    def dma_kv(s,part,g,rel,step):
        slot=g%s.R
        rd=[]
        if g>=s.R:
            b=s.bars[-1]; old=g-s.R
            assert s.allread[(part,old)]==0 and s.lastread[(part,old)]<b.idx, ("slot not free",part,g)
            b.reads.append(f"L:rd{part}{old}"); b.writes.append(f"free{part}{old}"); rd=[f"free{part}{old}"]
        base=(KRING if part=='K' else VRING)+slot*8192
        s.add(f"s_add_u32 m0, s{sWL}, {base}",'salu',writes=['m0'],margin=1)
        if s.curoff!=g:
            s.add(f"s_mov_b32 s{sOffKV}, {g*8192}",'salu',writes=[f"s{sOffKV}"],margin=1); s.curoff=g
        srd=sK if part=='K' else sV
        for i in range(2):
            o=s.add(f"buffer_load_dwordx4 v{vDMA}, s[{srd}:{srd+3}], s{sOffKV} offen offset:{2048*i} {s.ldpol} lds",'dma',
                  reads=['m0',f"s{sOffKV}"]+rd,writes=[f"L:{part}{g}",'O:vm'],release=rel+i*step,deadline=s.dl(rel+i*step))
        s.dmadone[(part,g)]=o.idx
    def dma_q(s,T,rel,step):
        buf=T%2; it,j=divmod(T,6)
        assert s.stgown[buf] is None, ("stg busy",T,s.stgown); s.stgown[buf]=('Q',T)
        k=0
        for half in range(2):
            s.add(f"s_add_u32 m0, s{sWS}, {STG+buf*4096+half*896}",'salu',writes=['m0'],margin=1)
            if half==0: s.add(f"s_add_u32 s{sOffQ}, s{sWQ}, {(it*768+16*j)*256}",'salu',writes=[f"s{sOffQ}"],margin=1)
            for oc in range(2):
                s.add(f"buffer_load_dwordx4 v{vDMA}, s[{sQ}:{sQ+3}], s{sOffQ} offen offset:{2048*oc+128*half} {s.ldpol} lds",'dma',
                      reads=['m0',f"s{sOffQ}",f"L:stg{buf}"],writes=[f"L:Q{T}",'O:vm'],release=rel+k*step,deadline=s.dl(rel+k*step))
                k+=1
    def read_q(s,T,rel):
        buf=T%2; qb=s.qbuf[T]; s.qread.add(T)
        assert all(s.seen[x]==16 for x in range(T) if s.qbuf[x]==qb), ("qbuf busy",T)
        assert s.stgown[buf]==('Q',T); s.stgown[buf]=None
        for st in range(4):
            s.add(f"ds_read_b128 {rng('a',aQ(qb)+4*st,4)}, v{vQa[st%2]} offset:{buf*4096+(st//2)*1024}",'dsr',
                  reads=[f"L:Q{T}"]+(['O:vm'] if st==0 else []),writes=R('a',aQ(qb)+4*st,4)+[f"L:stg{buf}"],release=rel,margin=8,deadline=s.dl(rel),hole=True)
    def read_k(s,g,order):
        s.visible('K',g); slot=g%s.R
        for f in order:
            kt,st=divmod(f,4)
            o=s.add(f"ds_read_b128 {rng('a',aK(f),4)}, v{vKa[st%2]} offset:{slot*8192+kt*4096+(st//2)*1024}",'dsr',
                  reads=[f"visK{g}"],writes=R('a',aK(f),4)+[f"L:rdK{g}"],margin=s.cfg.get('dsmargin',10))
        s.lastread[('K',g)]=o.idx; s.allread[('K',g)]-=1
    def read_v(s,g):
        s.visible('V',g); slot=g%s.R
        for t in range(8):
            for kt in range(2):
                o=s.add(f"ds_read_b64_tr_b16 {rng('a',aV(t)+2*kt,2)}, v{vVa[t%4]} offset:{slot*8192+kt*4096+(t//4)*1024}",'dsr',
                      reads=[f"visV{g}"],writes=R('a',aV(t)+2*kt,2)+[f"L:rdV{g}"],margin=s.cfg.get('dsmargin',10))
        s.lastread[('V',g)]=o.idx; s.allread[('V',g)]-=1
    KORD=[0,1,2,3,7,6,5,4]
    def qk(s,n,T):
        b=n%s.NB; qb=s.qbuf[T]
        for i,f in enumerate(s.KORD):
            kt,st=divmod(f,4)
            d=vS[b]+4*kt; first=(i%4==0)
            c = "0" if first else rng('v',d,4)
            s.add(f"v_mfma_f32_16x16x32_bf16 {rng('v',d,4)}, {rng('a',aK(f),4)}, {rng('a',aQ(qb)+4*st,4)}, {c}",'mfma',
                  reads=R('a',aK(f),4)+R('a',aQ(qb)+4*st,4)+([] if first else R('v',d,4)),writes=R('v',d,4),cread=([] if first else R('v',d,4)))
    def pv(s,n,T,first):
        b=n%s.NB; slot=s.slot[T]; p=vP[b]
        d=aSum(slot); c="0" if first else rng('a',d,4)
        s.add(f"v_mfma_f32_16x16x32_bf16 {rng('a',d,4)}, {rng('a',aOne,4)}, {rng('v',p,4)}, {c}",'mfma',
              reads=R('a',aOne,4)+R('v',p,4)+([] if first else R('a',d,4)),writes=R('a',d,4),cread=([] if first else R('a',d,4)))
        for t in range(8):
            d=vO(slot,t); c="0" if first else rng('v',d,4)
            s.add(f"v_mfma_f32_16x16x32_bf16 {rng('v',d,4)}, {rng('a',aV(t),4)}, {rng('v',p,4)}, {c}",'mfma',
                  reads=R('a',aV(t),4)+R('v',p,4)+([] if first else R('v',d,4)),writes=R('v',d,4),cread=([] if first else R('v',d,4)))
    def sm(s,n,T,first):
        b=n%s.NB; S=vS[b]; p=vP[b]; mc=vMC+s.slot[T]
        if first:
            t0,t1=vT0,vT1
            V=lambda txt,rd,wr,k='valu': s.add(txt,k,reads=[f"v{x}" for x in rd],writes=[f"v{x}" for x in wr],margin=1)
            V(f"v_max3_f32 v{t0}, v{S}, v{S+1}, v{S+2}",[S,S+1,S+2],[t0])
            V(f"v_max_f32 v{t0}, v{t0}, v{S+3}",[t0,S+3],[t0])
            V(f"v_mov_b32 v{t1}, v{t0}",[t0],[t1])
            V(f"v_permlane16_swap_b32 v{t0}, v{t1}",[t0,t1],[t0,t1],'perm')
            V(f"v_max_f32 v{t0}, v{t0}, v{t1}",[t0,t1],[t0])
            V(f"v_mov_b32 v{t1}, v{t0}",[t0],[t1])
            V(f"v_permlane32_swap_b32 v{t0}, v{t1}",[t0,t1],[t0,t1],'perm')
            V(f"v_max_f32 v{t0}, v{t0}, v{t1}",[t0,t1],[t0])
            V(f"v_mul_f32 v{mc}, 0x{f2u(-CSC):08x}, v{t0}",[t0],[mc])
        sp=s.cfg.get('smsp',3)
        for k in range(4):
            for i in (2*k,2*k+1):
                s.add(f"v_fma_f32 v{S+i}, v{S+i}, s{sC}, v{mc}",'valu',reads=[f"v{S+i}",f"v{mc}"],writes=[f"v{S+i}"],margin=1)
            for i in (2*k,2*k+1):
                s.add(f"v_exp_f32 v{S+i}, v{S+i}",'trans',reads=[f"v{S+i}"],writes=[f"v{S+i}"],margin=1+(i%2==0))
            s.add(f"v_cvt_pk_bf16_f32 v{p+k}, v{S+2*k}, v{S+2*k+1}",'valu',reads=[f"v{S+2*k}",f"v{S+2*k+1}"],writes=[f"v{p+k}"],margin=1+sp*(3-k))
    def epilogue(s,T):
        slot=s.slot[T]; g0=s.now(); l=vL[T%2]; buf=s.obuf[T]
        assert s.stgown[buf] is None, ("stg busy O",T,s.stgown); s.stgown[buf]=('O',T)
        s.add(f"v_accvgpr_read_b32 v{l}, a{aSum(slot)}",'valu',reads=[f"a{aSum(slot)}"],writes=[f"v{l}"],deadline=g0-1)
        s.add(f"v_cmp_ngt_f32_e64 s[{sFlag+2*T}:{sFlag+2*T+1}], s{sTH}, v{l}",'valu',reads=[f"v{l}"],writes=[f"s{sFlag+2*T}"],deadline=g0)
        s.add(f"v_rcp_f32 v{l}, v{l}",'trans',reads=[f"v{l}"],writes=[f"v{l}"],deadline=g0+1)
        G=g0+3
        for t in range(8):
            o=vO(slot,t)
            for i in (0,2):
                s.add(f"v_pk_mul_f32 v[{o+i}:{o+i+1}], v[{o+i}:{o+i+1}], v[{l}:{l+1}] op_sel_hi:[1,0]",'pk',reads=[f"v{o+i}",f"v{o+i+1}",f"v{l}"],writes=[f"v{o+i}",f"v{o+i+1}"],release=G,deadline=G)
        W=s.cfg.get('epiw',12)
        for t in range(8):
            o=vO(slot,t); d=G+(W*t)//8
            for i in range(2):
                s.add(f"v_cvt_pk_bf16_f32 v{o+i}, v{o+2*i}, v{o+2*i+1}",'valu',reads=[f"v{o+2*i}",f"v{o+2*i+1}"],writes=[f"v{o+i}"],deadline=d)
            s.add(f"ds_write_b64 v{vOw[t%4]}, v[{o}:{o+1}] offset:{buf*4096+(t//4)*1024}",'dsw',reads=[f"v{o}",f"v{o+1}"],writes=[f"L:stg{buf}"],deadline=d+1)
        return G+W+2
    def read_o(s,T,park,rel):
        buf=s.obuf[T]; s.park[T]=park
        assert all(s.seen[x] in (0,16) and not (s.seen[x]==0 and x in s.qread) for x in range(12) if s.qbuf[x]==park), ("park busy",T,park)
        assert s.stgown[buf]==('O',T); s.stgown[buf]=None
        assert s.parkown.get(park) is None, ("park has unstored data",T,park); s.parkown[park]=[T,4]
        for j in range(4):
            s.add(f"ds_read_b128 {rng('a',aQ(park)+4*j,4)}, v{vOr} offset:{buf*4096+1024*j}",'dsr',
                  reads=[],writes=R('a',aQ(park)+4*j,4)+[f"L:stg{buf}"],release=rel,deadline=rel+4,hole=True)
    def store_o(s,T,rel,step,js=range(4)):
        it,j=divmod(T,6); park=s.park[T]
        if s.curO!=T:
            s.add(f"s_mov_b32 s{sOffO}, {(it*768+16*j)*256}",'salu',writes=[f"s{sOffO}"],margin=1); s.curO=T
        s.parkown[park][1]-=len(js); s.nst+=len(js)
        if s.parkown[park][1]==0: s.parkown[park]=None
        for k,j in enumerate(js):
            s.add(f"buffer_store_dwordx4 {rng('a',aQ(park)+4*j,4)}, v{vOst}, s[{sO}:{sO+3}], s{sOffO} offen offset:{(j//2)*2048+(j%2)*128} {s.stpol}",'gst',
                  reads=R('a',aQ(park)+4*j,4)+[f"s{sOffO}"],writes=['O:st'],release=rel+k*step,deadline=rel+k*step+2)
    def build(s):
        cfg=s.cfg; LAG=s.LAG
        visits=cfg['visits']
        s.slot={T:T%6 for T in range(12)}
        s.qbuf=cfg.get('qbuf',{**{T:T for T in range(10)},10:0,11:1})
        s.obuf={T:T%2 for T in range(12)}; s.park={}; s.curO=None
        imm=cfg.get('oimm',{})
        s.allread=defaultdict(int)
        for g,ts in visits:
            s.allread[('K',g)]+=1; s.allread[('V',g)]+=1
        ms=[]
        for vi,(g,ts) in enumerate(visits):
            for k,T in enumerate(ts): ms.append((vi,g,T,k==0,k==len(ts)-1))
        cnt=defaultdict(int)
        for m in ms: cnt[m[2]]+=1
        assert all(cnt[T]==16 for T in range(12)) and len({(m[1],m[2]) for m in ms})==192
        assert all(m[1]//16==m[2]//6 for m in ms)
        plan=defaultdict(list)
        for n,u in cfg['plan']: plan[n].append(u)
        s.curoff=None
        def doplan(n):
            rel=s.now(); us=plan.get(n,[])
            nd=sum({'B':4,'K':2,'V':2,'Q':4}.get(u[0],0) for u in us)
            step = 0 if n<0 else max(1,cfg.get('span',16)//max(nd,1))
            for u in us:
                st = u[2] if len(u)>2 and u[0] in 'BKVQ' else step
                if u[0]=='B':
                    s.dma_kv('K',u[1],rel,st); s.dma_kv('V',u[1],rel+2*st,st); rel+=4*st
                elif u[0] in 'KV':
                    s.dma_kv(u[0],u[1],rel,st); rel+=2*st
                elif u[0]=='Q':
                    s.dma_q(u[1],rel,st); rel+=4*st
                elif u[0]=='q': s.read_q(u[1],s.now())
                elif u[0]=='o': s.read_o(u[1],u[2],s.now())
                elif u[0]=='s': s.store_o(u[1],s.now(),u[2],*u[3:])
                elif u[0]=='bar': s.barrier()
        seen=defaultdict(int); seenpv=defaultdict(int); s.seen=defaultdict(int); s.qread=set(); s.stgown=[None,None]; s.parkown={}; s.nst=0
        barset=cfg.get('barvisits')
        doplan(-1)
        s.barrier(); s.read_k(ms[0][1],s.KORD)
        N=len(ms)
        for n in range(N+LAG):
            if n<N:
                vi,g,T,fi,la=ms[n]
                if la and n+1<N and (barset is None or vi+1 in barset): s.barrier()
                doplan(n)
                assert T in s.qread, ('Q not loaded',T)
                s.qk(n,T); s.seen[T]+=1
            m=n-LAG
            if m>=0:
                T1=ms[m][2]
                s.pv(m,T1,seenpv[T1]==0); seenpv[T1]+=1
                if seenpv[T1]==16:
                    e=s.epilogue(T1)
                    if T1 in imm:
                        s.read_o(T1,imm[T1][0],e)
                        if imm[T1][1] is not None: s.store_o(T1,e+10,imm[T1][1])
            if n<N:
                s.sm(n,T,seen[T]==0); seen[T]+=1
                if la and n+1<N: s.read_k(ms[n+1][1],s.KORD)
            if m+1>=0 and m+1<N and ms[m+1][3]: s.read_v(ms[m+1][1])
        assert s.nst==48
        s.P.ops=[o for o in s.P.ops if not (o.kind=='bar' and not o.reads)]
        for i,o in enumerate(s.P.ops): o.idx=i
        out=s.P.schedule()
        out=insert_waits(out,cfg.get('merge',9))
        verify_waits(out)
        check_hazards(out)
        return out

def PRO(cfg):
  t=f"""
    s_cmp_ge_u32 s2, 256
    s_cbranch_scc1 L_end
    s_load_dwordx4 s[64:67], s[0:1], 0
    s_load_dwordx4 s[68:71], s[0:1], 16
    v_lshrrev_b32 v1, 6, v0
    s_lshr_b32 s73, s2, 3
    s_getpc_b64 s[86:87]
L_pc:
    v_and_b32 v2, 31, v0
    v_lshlrev_b32 v2, 12, v2
    s_lshl_b32 s88, s73, 7
    v_add_u32 v2, s88, v2
    v_min_u32 v2, L_end-L_main, v2
    s_add_u32 s86, s86, L_main-L_pc
    s_addc_u32 s87, s87, 0
    v_readfirstlane_b32 s{sW}, v1
    v_and_b32 v0, 63, v0
    global_load_dword v4, v2, s[86:87]
    s_and_b32 s72, s2, 7
    s_lshr_b32 s74, s73, 1
    s_and_b32 s75, s73, 1
    s_lshl_b32 s72, s72, 4
    s_add_u32 s72, s72, s74
    s_lshl_b32 s76, s72, 18
    s_mul_i32 s77, s72, {2*768*256}
    s_mul_i32 s78, s75, {384*256}
    s_add_u32 s77, s77, s78
    s_and_b32 s79, s{sW}, 1
    s_lshr_b32 s80, s{sW}, 1
    s_lshl_b32 s81, s79, 10
    s_lshl_b32 s82, s80, 12
    s_add_u32 s{sWL}, s81, s82       ; LDS: (w&1)*1024 + (w>>1)*4096
    s_lshl_b32 s81, s79, 7
    s_add_u32 s81, s81, s82          ; global: (w&1)*128 + (w>>1)*4096
    s_mul_i32 s83, s{sW}, 24576
    s_sub_u32 s{sWQ}, s83, s81
    s_lshl_b32 s{sWS}, s{sW}, 13
    ; DMA voffset: (i>>3)*256 + ((i&7)^((i>>3)&6))*16 + wave part
    v_lshrrev_b32 v1, 3, v0
    v_and_b32 v2, 6, v1
    v_and_b32 v3, 7, v0
    v_xor_b32 v2, v2, v3
    v_lshlrev_b32 v2, 4, v2
    v_lshl_add_u32 v2, v1, 8, v2
    v_add_u32 v{vDMA}, s81, v2
    s_mov_b32 s{sQ+2}, {1152*256}
    s_mov_b32 s{sQ+3}, 0x20000
    s_mov_b32 s{sK+2}, 0x40000
    s_mov_b32 s{sK+3}, 0x20000
    s_mov_b32 s{sV+2}, 0x40000
    s_mov_b32 s{sV+3}, 0x20000
    s_mov_b32 s{sO+2}, {1152*256}
    s_mov_b32 s{sO+3}, 0x20000
    s_waitcnt lgkmcnt(0)
    s_add_u32 s{sQ}, s64, s77
    s_addc_u32 s{sQ+1}, s65, 0
    s_add_u32 s{sK}, s66, s76
    s_addc_u32 s{sK+1}, s67, 0
    s_add_u32 s{sV}, s68, s76
    s_addc_u32 s{sV+1}, s69, 0
    s_add_u32 s{sO}, s70, s77
    s_addc_u32 s{sO+1}, s71, 0
"""
  if cfg.get('adj'):
    t=t.replace("    s_add_u32 s72, s72, s74          ; pair index 0..127\n","    s_lshr_b32 s72, s2, 1\n    s_and_b32 s75, s2, 1\n")
  return t
PRO2 = f"""
    s_mov_b32 s{sC}, 0x{f2u(CSC):08x}
    s_mov_b32 s{sTH}, 0x5f800000
    s_add_u32 s84, s{sWS}, {STG}
    v_xor_b32 v2, v1, v3
    v_lshlrev_b32 v2, 4, v2
    v_lshl_add_u32 v2, v1, 8, v2
    v_add_u32 v{vOst}, s83, v2
    v_lshl_add_u32 v{vOr}, v0, 4, s84
    v_and_b32 v1, 15, v0
    v_lshrrev_b32 v2, 4, v0
    v_and_b32 v5, 7, v1
    v_lshlrev_b32 v6, 7, v5
    v_lshrrev_b32 v7, 3, v1
    v_lshl_add_u32 v6, v7, 11, v6
    v_and_b32 v3, 6, v1
    v_xor_b32 v3, v3, v2
    v_lshl_add_u32 v{vKa[0]}, v3, 4, v6
    v_xor_b32 v{vKa[1]}, 64, v{vKa[0]}
    v_add_u32 v{vQa[0]}, s84, v{vKa[0]}
    v_add_u32 v{vQa[1]}, s84, v{vKa[1]}
    v_lshrrev_b32 v3, 1, v2
    v_xor_b32 v3, v3, v5
    v_lshl_add_u32 v3, v3, 4, v6
    v_and_b32 v2, 1, v2
    v_lshl_add_u32 v3, v2, 3, v3
    v_add_u32 v{vOw[0]}, s84, v3
    v_xor_b32 v{vOw[1]}, 32, v{vOw[0]}
    v_xor_b32 v{vOw[2]}, 64, v{vOw[0]}
    v_xor_b32 v{vOw[3]}, 0x60, v{vOw[0]}
    v_lshrrev_b32 v1, 2, v0
    v_and_b32 v2, 6, v1
    v_bfe_u32 v3, v0, 1, 1
    v_xor_b32 v2, v2, v3
    v_lshlrev_b32 v2, 4, v2
    v_and_b32 v3, 1, v0
    v_lshl_add_u32 v2, v3, 3, v2
    v_and_b32 v3, 7, v1
    v_lshl_add_u32 v2, v3, 7, v2
    v_lshrrev_b32 v3, 3, v1
    v_lshl_add_u32 v2, v3, 11, v2
    v_add_u32 v{vVa[0]}, {VRING}, v2
    v_xor_b32 v{vVa[1]}, 32, v{vVa[0]}
    v_xor_b32 v{vVa[2]}, 64, v{vVa[0]}
    v_xor_b32 v{vVa[3]}, 0x60, v{vVa[0]}
    v_mov_b32 v1, 0x3f803f80
    v_accvgpr_write_b32 a{aOne}, v1
    v_accvgpr_write_b32 a{aOne+1}, v1
    v_accvgpr_write_b32 a{aOne+2}, v1
    v_accvgpr_write_b32 a{aOne+3}, v1
"""

def slow_path():
    L=[]
    A=L.append
    A("    s_or_b64 s[64:65], s[40:41], s[42:43]")
    for T in range(2,12): A(f"    s_or_b64 s[64:65], s[64:65], s[{sFlag+2*T}:{sFlag+2*T+1}]")
    A("    s_cbranch_scc0 L_end")
    A("    s_mov_b32 s66, 0")
    for T in range(12):
        A(f"    s_cmp_lg_u64 s[{sFlag+2*T}:{sFlag+2*T+1}], 0")
        A(f"    s_cselect_b32 s67, {1<<T}, 0")
        A("    s_or_b32 s66, s66, s67")
    A("    s_waitcnt vmcnt(0) lgkmcnt(0)")
    A("    v_mbcnt_lo_u32_b32 v8, -1, 0")
    A("    v_mbcnt_hi_u32_b32 v8, -1, v8")
    A("    v_and_b32 v9, 15, v8")
    A("    v_lshrrev_b32 v10, 4, v8")
    A("    v_lshlrev_b32 v11, 4, v10")
    A("    v_lshl_add_u32 v14, v9, 8, v11")
    A("    v_add_u32 v15, s83, v14")
    A("    v_and_b32 v11, 1, v10")
    A("    v_lshlrev_b32 v11, 1, v11")
    A("    v_lshrrev_b32 v12, 1, v10")
    A("    v_or_b32 v11, v11, v12")
    A("    v_lshlrev_b32 v11, 4, v11")
    A("    v_lshl_add_u32 v11, v9, 8, v11")
    A("    v_add_u32 v13, s83, v11")
    A(f"    v_subrev_u32 v16, s81, v{vDMA}")
    A(f"    s_add_u32 s68, s{sWS}, {STG-VRING}")
    for i in range(4): A(f"    v_add_u32 v{20+i}, s68, v{vVa[i]}")
    for i in range(4): A(f"    v_mov_b32 v{196+i}, 0x3f803f80")
    A("    s_mov_b32 s69, 0")
    A("L_slow_tile:")
    A("    s_bitcmp1_b32 s66, s69")
    A("    s_cbranch_scc0 L_slow_next")
    A("    s_cmp_ge_u32 s69, 6")
    A("    s_cselect_b32 s70, 0x20000, 0")
    A(f"    s_cselect_b32 s71, {(768-96)*256}, 0")
    A("    s_lshl_b32 s72, s69, 12")
    A("    s_add_u32 s71, s71, s72                ; q/o offset")
    for st in range(4): A(f"    buffer_load_dwordx4 v[{64+4*st}:{67+4*st}], v15, s[{sQ}:{sQ+3}], s71 offen offset:{64*st}")
    A("    v_mov_b32 v17, 0xff800000")
    A("    s_mov_b32 s72, s70")
    A("    s_add_u32 s73, s70, 0x20000")
    A("L_slow_max:")
    for st in range(4): A(f"    buffer_load_dwordx4 v[{80+4*st}:{83+4*st}], v14, s[{sK}:{sK+3}], s72 offen offset:{64*st}")
    A("    s_waitcnt vmcnt(0)")
    for st in range(4): A(f"    v_mfma_f32_16x16x32_bf16 v[0:3], v[{80+4*st}:{83+4*st}], v[{64+4*st}:{67+4*st}], {'0' if st==0 else 'v[0:3]'}")
    A("    s_nop 15")
    A("    v_max3_f32 v17, v17, v0, v1")
    A("    v_max3_f32 v17, v17, v2, v3")
    A("    s_add_u32 s72, s72, 4096")
    A("    s_cmp_lt_u32 s72, s73")
    A("    s_cbranch_scc1 L_slow_max")
    for sw in ("16","32"):
        A("    v_mov_b32 v18, v17"); A("    s_nop 1")
        A(f"    v_permlane{sw}_swap_b32 v17, v18"); A("    s_nop 1")
        A("    v_max_f32 v17, v17, v18")
    A(f"    v_mul_f32 v17, 0x{f2u(-CSC):08x}, v17")
    for r in range(160,196): A(f"    v_mov_b32 v{r}, 0")
    A("    s_mov_b32 s72, s70")
    A("L_slow_blk:")
    A("    s_add_u32 s74, s72, 4096")
    for f in range(8):
        kt,st=divmod(f,4)
        A(f"    buffer_load_dwordx4 v[{80+4*f}:{83+4*f}], v14, s[{sK}:{sK+3}], {'s72' if kt==0 else 's74'} offen offset:{64*st}")
    for kt in range(2):
        for half in range(2):
            A(f"    s_add_u32 m0, s{sWS}, {STG+kt*4096+half*896}")
            A("    s_nop 0")
            for oc in range(2):
                A(f"    buffer_load_dwordx4 v16, s[{sV}:{sV+3}], {'s72' if kt==0 else 's74'} offen offset:{2048*oc+128*half} lds")
    A("    s_waitcnt vmcnt(0)")
    for t in range(8):
        for kt in range(2):
            A(f"    ds_read_b64_tr_b16 v[{112+4*t+2*kt}:{113+4*t+2*kt}], v{20+t%4} offset:{kt*4096+(t//4)*1024}")
    for f in range(8):
        kt,st=divmod(f,4); d=4*kt
        A(f"    v_mfma_f32_16x16x32_bf16 v[{d}:{d+3}], v[{80+4*f}:{83+4*f}], v[{64+4*st}:{67+4*st}], {'0' if st==0 else f'v[{d}:{d+3}]'}")
    A("    s_nop 15")
    for i in range(8): A(f"    v_fma_f32 v{i}, v{i}, s{sC}, v17")
    for i in range(8): A(f"    v_exp_f32 v{i}, v{i}")
    A("    s_nop 1")
    for k in range(4): A(f"    v_cvt_pk_bf16_f32 v{24+k}, v{2*k}, v{1+2*k}")
    A("    s_waitcnt lgkmcnt(0)")
    A("    s_nop 1")
    for t in range(8): A(f"    v_mfma_f32_16x16x32_bf16 v[{160+4*t}:{163+4*t}], v[{112+4*t}:{115+4*t}], v[24:27], v[{160+4*t}:{163+4*t}]")
    A("    v_mfma_f32_16x16x32_bf16 v[192:195], v[196:199], v[24:27], v[192:195]")
    A("    s_add_u32 s72, s72, 8192")
    A("    s_cmp_lt_u32 s72, s73")
    A("    s_cbranch_scc1 L_slow_blk")
    A("    s_nop 15")
    A("    v_rcp_f32 v18, v192")
    A("    s_nop 1")
    for r in range(160,192): A(f"    v_mul_f32 v{r}, v{r}, v18")
    for m in range(4):
        o=160+8*m
        for i in range(4): A(f"    v_cvt_pk_bf16_f32 v{o+i}, v{o+2*i}, v{o+2*i+1}")
        A("    s_nop 1")
        for i in range(2): A(f"    v_permlane16_swap_b32 v{o+i}, v{o+i+2}")
        A(f"    buffer_store_dwordx4 v[{o}:{o+3}], v13, s[{sO}:{sO+3}], s71 offen offset:{64*m}")
    A("    s_waitcnt vmcnt(0)")
    A("L_slow_next:")
    A("    s_add_u32 s69, s69, 1")
    A("    s_cmp_lt_u32 s69, 12")
    A("    s_cbranch_scc1 L_slow_tile")
    return "\n".join(L)+"\n"

def isize(t):
    t=t.strip(); op=t.split()[0]
    if op.startswith(('v_mfma','ds_','buffer_','global_','v_fma_f32','v_cvt_pk','v_max3','v_pk_','v_accvgpr','v_writelane','s_mem')) or op.endswith('_e64'): return 8
    if op in('s_waitcnt','s_barrier','s_nop') or op.startswith('s_cbranch'): return 4
    for a in t.split(None,1)[1].replace(',',' ').split():
        try: v=int(a,0)
        except ValueError: continue
        if not -16<=v<=64: return 8
    return 4

HEAD = open('cdna_kernels/'+NAME+'.s.ref').read().split('; Override')[0]
def emit(cfg, path):
    g=Gen(cfg); out=g.build()
    abl=cfg.get('ablate')
    if abl:
        nb=0; o2=[]
        for o in out:
            if o.kind=='bar': nb+=1
            if nb>=3 and any((a==o.kind) or (a in o.text) for a in abl): continue
            o2.append(o)
        out=o2
    marks=[]; est=estimate(out,marks)
    stamp=cfg.get('stamp'); warm=cfg.get('warm',True)
    ns=[0]
    def st(reg, real=False):
        return [f"s_mem{'real' if real else ''}time s[90:91]","s_waitcnt lgkmcnt(0)",f"v_writelane_b32 v{reg}, s90, {ns[0]}"]
    k0=0
    while out[k0].kind in('dma','salu','nop'): k0+=1
    first=[o.text for o in out[:k0]]; nfirst=sum(1 for o in out[:k0] if o.kind=='dma')
    lines=[]; nbar=0; probe=cfg.get('probe')
    for k in range(k0,len(out)):
        o=out[k]
        if stamp is True and o.kind=='wait' and 'v' in o.tag and any(x.kind=='bar' for x in out[k+1:k+12]):
            ns[0]+=1; lines+=[(x,'x') for x in st(62)]; ns[0]-=1
        lines.append((o.text,o.kind))
        if o.kind=='bar': nbar+=1
        if probe and o.kind=='bar' and nbar in probe[:2]:
            r = 92 if nbar==probe[0] else 94
            lines+=[(f"s_mem{'real' if probe[2]=='rt' else ''}time s[{r}:{r+1}]",'x'),("s_waitcnt lgkmcnt(0)",'x')]
        if stamp and o.kind=='bar' and (stamp is True or nbar in stamp):
            ns[0]+=1; lines+=[(x,'x') for x in st(61)+st(63,True)]
    body=[]; addr=0; page=0; stubs=0
    tot=sum(isize(t) for t,_ in lines); npages=(tot+200)//4096+1
    for i,(t,kd) in enumerate(lines):
        if warm and addr>=page*4096 and page<npages:
            prevm = i>0 and lines[i-1][1]=='mfma'
            if (prevm and kd not in SC_KINDS) or addr+isize(t)>page*4096+56 or page==0:
                nxt=page+4
                body.append(f"L_stub{page}:\n s_cbranch_vccnz {'L_stub%d'%nxt if nxt<npages else 'L_back'}\n")
                body.append(f".if ((L_stub{page}-L_main)>>6) != {page*64}\n.error \"stub misplaced\"\n.endif\n")
                addr+=4; page+=1
        body.append(" "+t+"\n"); addr+=isize(t)
    while warm and page<npages:
        body.append(f"L_stub{page}:\n s_cbranch_vccnz L_back\n"); page+=1
    txt=HEAD+"; @launch grid=(256,1,1) block=(256,1,1) lds=163840\n"
    txt+=f'.amdgcn_target "amdgcn-amd-amdhsa--gfx950"\n.text\n.globl {NAME}_kernel\n.p2align 8\n.type {NAME}_kernel,@function\n{NAME}_kernel:\n'
    if probe:
        txt+=" s_memrealtime s[90:91]\n"
        if probe[0]==0: txt+=f" s_mem{'real' if probe[2]=='rt' else ''}time s[92:93]\n"
        txt+=" s_waitcnt lgkmcnt(0)\n"
        if cfg.get('gstart'):
            txt+=" s_load_dwordx2 s[34:35], s[0:1], 32\n s_not_b32 s36, s90\n v_mov_b32 v10, s36\n v_mov_b32 v11, 0\n s_waitcnt lgkmcnt(0)\n v_cmp_eq_u32 vcc, 0, v0\n s_and_saveexec_b64 s[36:37], vcc\n s_cbranch_execz L_gs\n global_atomic_umax v11, v10, s[34:35]\nL_gs:\n s_mov_b64 exec, s[36:37]\n"
    if cfg.get('pre_nop'):
        txt+=f" s_mov_b32 s64, {cfg['pre_nop']}\nL_pn:\n"+" s_nop 15\n"*16+" s_sub_u32 s64, s64, 1\n s_cmp_lg_u32 s64, 0\n s_cbranch_scc1 L_pn\n"
    txt+=PRO(cfg)
    txt+="".join(" "+t+"\n" for t in first)
    if stamp:
        n=ns[0]; ns[0]=0
        txt+=" v_mov_b32 v61, 0\n v_mov_b32 v62, 0\n v_mov_b32 v63, 0\n"+"".join(" "+x+"\n" for x in st(61)+st(63,True)); ns[0]=n
    txt+=PRO2
    txt+=f"    s_waitcnt vmcnt({nfirst})\n"
    if warm:
        txt+="    ; touch the first line of every 4 KB code page (instruction-cache warm-up while the first loads are in flight)\n    s_mov_b64 vcc, -1\n"
        for w in range(3): txt+=f"    s_cmp_eq_u32 s{sW}, {w}\n    s_cbranch_scc1 L_stub{w}\n"
        txt+="    s_branch L_stub3\n"
        txt+="L_back:\n    s_mov_b64 vcc, 0\n"
    txt+="    s_branch L_main\n.p2align 12\nL_main:\n"
    txt+="".join(body)
    if stamp:
        ns[0]+=1; txt+="".join(" "+x+"\n" for x in st(61)+st(63,True)); ns[0]+=1
        txt+=" s_waitcnt vmcnt(0)\n"+"".join(" "+x+"\n" for x in st(61)+st(63,True))
        txt+=f""" s_load_dwordx2 s[92:93], s[0:1], 40
 s_lshl_b32 s90, s2, 2
 s_add_u32 s90, s90, s{sW}
 s_mul_i32 s90, s90, 768
 v_mbcnt_lo_u32_b32 v1, -1, 0
 v_mbcnt_hi_u32_b32 v1, -1, v1
 v_lshlrev_b32 v1, 2, v1
 v_add_u32 v1, s90, v1
 s_waitcnt lgkmcnt(0)
 global_store_dword v1, v61, s[92:93]
 global_store_dword v1, v62, s[92:93] offset:256
 global_store_dword v1, v63, s[92:93] offset:512
"""
    if probe:
        if probe[1]==99: txt+=f" s_mem{'real' if probe[2]=='rt' else ''}time s[94:95]\n s_waitcnt lgkmcnt(0)\n"
        if probe[1]==100: txt+=f" s_waitcnt vmcnt(0)\n s_mem{'real' if probe[2]=='rt' else ''}time s[94:95]\n s_waitcnt lgkmcnt(0)\n"
        if probe[1]<0: txt+=" s_mov_b32 s94, s92\n"
        if cfg.get('gstart'):
            txt+=" v_mov_b32 v11, 0\n global_load_dword v10, v11, s[34:35] sc0 sc1\n s_waitcnt vmcnt(0)\n v_readfirstlane_b32 s90, v10\n s_nop 3\n s_not_b32 s90, s90\n"
            if cfg['gstart']==2: txt+=" s_mov_b32 s92, s90\n"
        txt+=" s_sub_u32 s94, s94, s92\n"
        if probe[2]=='cyc': txt+=" s_lshr_b32 s94, s94, 4\n"
        txt+=" s_add_u32 s94, s94, 10000\nL_spin:\n s_memrealtime s[92:93]\n s_waitcnt lgkmcnt(0)\n s_sub_u32 s92, s92, s90\n s_cmp_lt_u32 s92, s94\n s_cbranch_scc1 L_spin\n"
    if cfg.get('extra_mfma'):
        txt+=f" s_mov_b32 s64, {cfg['extra_mfma']}\nL_xm:\n"
        for j in range(6):
            for i,f in enumerate(Gen.KORD):
                kt,st=divmod(f,4); d=8*(j%2)+4*kt
                txt+=f" v_mfma_f32_16x16x32_bf16 v[{d}:{d+3}], a[{160+4*f}:{163+4*f}], a[{192+16*(j%2)+4*st}:{195+16*(j%2)+4*st}], {'0' if i%4==0 else f'v[{d}:{d+3}]'}\n"
            for t in range(8):
                d=64+32*j+4*t
                txt+=f" v_mfma_f32_16x16x32_bf16 v[{d}:{d+3}], a[{192+4*t}:{195+4*t}], v[{24+4*(j%3)}:{27+4*(j%3)}], v[{d}:{d+3}]\n"
        txt+=" s_sub_u32 s64, s64, 1\n s_cmp_lg_u32 s64, 0\n s_cbranch_scc1 L_xm\n s_nop 15\n"
    if cfg.get('extra_nop'):
        txt+=f" s_mov_b32 s64, {cfg['extra_nop']}\nL_xn:\n"+" s_nop 15\n"*16+" s_sub_u32 s64, s64, 1\n s_cmp_lg_u32 s64, 0\n s_cbranch_scc1 L_xn\n"
    txt+=" s_nop 1\n"+slow_path()
    txt+=f"""L_end:
    s_endpgm
.section .rodata,"a"
.p2align 6
.amdhsa_kernel {NAME}_kernel
  .amdhsa_next_free_vgpr 512
  .amdhsa_next_free_sgpr 96
  .amdhsa_accum_offset 256
  .amdhsa_group_segment_fixed_size 0
  .amdhsa_kernarg_size 48
  .amdhsa_user_sgpr_count 2
  .amdhsa_user_sgpr_kernarg_segment_ptr 1
  .amdhsa_system_sgpr_workgroup_id_x 1
.end_amdhsa_kernel
"""
    open(path,'w').write(txt)
    from collections import Counter
    print(path, "ops",len(out),"est",est, dict(Counter(o.kind for o in out)), "code",addr)
    if cfg.get('verbose'): print(' segs',[b-a for a,b in zip(marks,marks[1:]+[est])])
    from asm import asm
    asm(path)
    return out
```

```python
from cfgs import *
b=dict(verbose=False)
M=lambda **k: mk('simple',0,4,False,50,**b,**k)
T=lambda **k: mk('tri',4,5,True,40,**b,**k)
emit(M(probe=(0,-1,'rt'),gstart=1),'p_govh.s')
emit(M(probe=(0,100,'rt'),gstart=2),'p_gtot.s')
emit(T(probe=(0,100,'rt'),gstart=2),'p_gtot_tri.s')
emit(T(probe=(0,100,'rt')),'p_tot_tri.s')
emit(T(probe=(0,12,'rt')),'p_head_tri.s')
emit(M(probe=(0,9,'rt')),'p_head9.s')
```

```python
import sys, math, struct
from sched import *

NAME="standalone__gqa_softmax__near_ridge"
CSC = math.log2(math.e)/math.sqrt(128.0)
def f2u(x): return struct.unpack('<I',struct.pack('<f',x))[0]

vS=[0,8,16]; vP=[24,28,32]; vMC=36
vKa=[42,43]; vVa=[44,45,46,47]; vQa=[48,49]; vOw=[50,51,52,53]; vDMA=54; vOst=55; vOr=56
vT0,vT1=57,59; vL=[58,60]
vO=lambda slot,t: 64+32*slot+4*t
aQ=lambda b: 16*b
aK=lambda f: 160+4*f
aV=lambda t: 192+4*t
aSum=lambda slot: 224+4*slot
aOne=248
sQ=8; sK=12; sV=16; sO=20
sC=24; sTH=25; sWL=26 ; sWQ=27; sWS=28; sOffKV=29; sOffQ=30; sOffO=31; sW=32
sFlag=40
KRING=0; VRING=65536; STG=131072

class Gen:
    def __init__(s, cfg):
        s.cfg=cfg; s.P=Program(); s.nbb=0; s.bars=[]; s.vis=set()
        s.R=cfg.get('ring',8); s.LAG=cfg.get('lag',2); s.NB=s.LAG+1
        s.lastread={}; s.dmadone={}
        s.ldpol=cfg.get('ldpol','nt'); s.stpol=cfg.get('stpol','nt')
        s.win=cfg.get('dmawin',12)
    def add(s,*a,**k):
        o=Op(*a,**k); s.P.add(o)
        if o.kind=='mfma': s.nbb+=1
        return o
    def now(s): return s.nbb-1
    def barrier(s):
        g=s.now()
        b=s.add("s_barrier",'bar',reads=[],writes=['barorder'],release=g,deadline=g)
        s.bars.append(b); return b
    def visible(s,part,g):
        if (part,g) in s.vis: return
        b=s.bars[-1]
        assert s.dmadone[(part,g)]<b.idx, ("dma after barrier",part,g)
        b.reads.append(f"L:{part}{g}"); b.writes.append(f"vis{part}{g}"); s.vis.add((part,g))
    def dl(s,rel): return rel+s.win if rel>=0 else -1
    def dma_kv(s,part,g,rel,step):
        slot=g%s.R
        rd=[]
        if g>=s.R:
            b=s.bars[-1]; old=g-s.R
            assert s.allread[(part,old)]==0 and s.lastread[(part,old)]<b.idx, ("slot not free",part,g)
            b.reads.append(f"L:rd{part}{old}"); b.writes.append(f"free{part}{old}"); rd=[f"free{part}{old}"]
        base=(KRING if part=='K' else VRING)+slot*8192
        s.add(f"s_add_u32 m0, s{sWL}, {base}",'salu',writes=['m0'],margin=1)
        if s.curoff!=g:
            s.add(f"s_mov_b32 s{sOffKV}, {g*8192}",'salu',writes=[f"s{sOffKV}"],margin=1); s.curoff=g
        srd=sK if part=='K' else sV
        for i in range(2):
            o=s.add(f"buffer_load_dwordx4 v{vDMA}, s[{srd}:{srd+3}], s{sOffKV} offen offset:{2048*i} {s.ldpol} lds",'dma',
                  reads=['m0',f"s{sOffKV}"]+rd,writes=[f"L:{part}{g}",'O:vm'],release=rel+i*step,deadline=s.dl(rel+i*step))
        s.dmadone[(part,g)]=o.idx
    def dma_q(s,T,rel,step):
        buf=T%2; it,j=divmod(T,6)
        assert s.stgown[buf] is None, ("stg busy",T,s.stgown); s.stgown[buf]=('Q',T)
        k=0
        for half in range(2):
            s.add(f"s_add_u32 m0, s{sWS}, {STG+buf*4096+half*896}",'salu',writes=['m0'],margin=1)
            if half==0: s.add(f"s_add_u32 s{sOffQ}, s{sWQ}, {(it*768+16*j)*256}",'salu',writes=[f"s{sOffQ}"],margin=1)
            for oc in range(2):
                s.add(f"buffer_load_dwordx4 v{vDMA}, s[{sQ}:{sQ+3}], s{sOffQ} offen offset:{2048*oc+128*half} {s.ldpol} lds",'dma',
                      reads=['m0',f"s{sOffQ}",f"L:stg{buf}"],writes=[f"L:Q{T}",'O:vm'],release=rel+k*step,deadline=s.dl(rel+k*step))
                k+=1
    def read_q(s,T,rel):
        buf=T%2; qb=s.qbuf[T]; s.qread.add(T)
        assert all(s.seen[x]==16 for x in range(T) if s.qbuf[x]==qb), ("qbuf busy",T)
        assert s.stgown[buf]==('Q',T); s.stgown[buf]=None
        for st in range(4):
            s.add(f"ds_read_b128 {rng('a',aQ(qb)+4*st,4)}, v{vQa[st%2]} offset:{buf*4096+(st//2)*1024}",'dsr',
                  reads=[f"L:Q{T}"]+(['O:vm'] if st==0 else []),writes=R('a',aQ(qb)+4*st,4)+[f"L:stg{buf}"],release=rel,margin=8,deadline=s.dl(rel),hole=True)
    def read_k(s,g,order):
        s.visible('K',g); slot=g%s.R
        for f in order:
            kt,st=divmod(f,4)
            o=s.add(f"ds_read_b128 {rng('a',aK(f),4)}, v{vKa[st%2]} offset:{slot*8192+kt*4096+(st//2)*1024}",'dsr',
                  reads=[f"visK{g}"],writes=R('a',aK(f),4)+[f"L:rdK{g}"],margin=s.cfg.get('dsmargin',10))
        s.lastread[('K',g)]=o.idx; s.allread[('K',g)]-=1
    def read_v(s,g):
        s.visible('V',g); slot=g%s.R
        for t in range(8):
            for kt in range(2):
                o=s.add(f"ds_read_b64_tr_b16 {rng('a',aV(t)+2*kt,2)}, v{vVa[t%4]} offset:{slot*8192+kt*4096+(t//4)*1024}",'dsr',
                      reads=[f"visV{g}"],writes=R('a',aV(t)+2*kt,2)+[f"L:rdV{g}"],margin=s.cfg.get('dsmargin',10))
        s.lastread[('V',g)]=o.idx; s.allread[('V',g)]-=1
    KORD=[0,1,2,3,7,6,5,4]
    def qk(s,n,T):
        b=n%s.NB; qb=s.qbuf[T]
        for i,f in enumerate(s.KORD):
            kt,st=divmod(f,4)
            d=vS[b]+4*kt; first=(i%4==0)
            c = "0" if first else rng('v',d,4)
            s.add(f"v_mfma_f32_16x16x32_bf16 {rng('v',d,4)}, {rng('a',aK(f),4)}, {rng('a',aQ(qb)+4*st,4)}, {c}",'mfma',
                  reads=R('a',aK(f),4)+R('a',aQ(qb)+4*st,4)+([] if first else R('v',d,4)),writes=R('v',d,4),cread=([] if first else R('v',d,4)))
    def pv(s,n,T,first):
        b=n%s.NB; slot=s.slot[T]; p=vP[b]
        d=aSum(slot); c="0" if first else rng('a',d,4)
        s.add(f"v_mfma_f32_16x16x32_bf16 {rng('a',d,4)}, {rng('a',aOne,4)}, {rng('v',p,4)}, {c}",'mfma',
              reads=R('a',aOne,4)+R('v',p,4)+([] if first else R('a',d,4)),writes=R('a',d,4),cread=([] if first else R('a',d,4)))
        for t in range(8):
            d=vO(slot,t); c="0" if first else rng('v',d,4)
            s.add(f"v_mfma_f32_16x16x32_bf16 {rng('v',d,4)}, {rng('a',aV(t),4)}, {rng('v',p,4)}, {c}",'mfma',
                  reads=R('a',aV(t),4)+R('v',p,4)+([] if first else R('v',d,4)),writes=R('v',d,4),cread=([] if first else R('v',d,4)))
    def sm(s,n,T,first):
        b=n%s.NB; S=vS[b]; p=vP[b]; mc=vMC+s.slot[T]
        if first:
            t0,t1=vT0,vT1
            V=lambda txt,rd,wr,k='valu': s.add(txt,k,reads=[f"v{x}" for x in rd],writes=[f"v{x}" for x in wr],margin=1)
            V(f"v_max3_f32 v{t0}, v{S}, v{S+1}, v{S+2}",[S,S+1,S+2],[t0])
            V(f"v_max_f32 v{t0}, v{t0}, v{S+3}",[t0,S+3],[t0])
            V(f"v_mov_b32 v{t1}, v{t0}",[t0],[t1])
            V(f"v_permlane16_swap_b32 v{t0}, v{t1}",[t0,t1],[t0,t1],'perm')
            V(f"v_max_f32 v{t0}, v{t0}, v{t1}",[t0,t1],[t0])
            V(f"v_mov_b32 v{t1}, v{t0}",[t0],[t1])
            V(f"v_permlane32_swap_b32 v{t0}, v{t1}",[t0,t1],[t0,t1],'perm')
            V(f"v_max_f32 v{t0}, v{t0}, v{t1}",[t0,t1],[t0])
            V(f"v_mul_f32 v{mc}, 0x{f2u(-CSC):08x}, v{t0}",[t0],[mc])
        sp=s.cfg.get('smsp',3)
        for k in range(4):
            for i in (2*k,2*k+1):
                s.add(f"v_fma_f32 v{S+i}, v{S+i}, s{sC}, v{mc}",'valu',reads=[f"v{S+i}",f"v{mc}"],writes=[f"v{S+i}"],margin=1)
            for i in (2*k,2*k+1):
                s.add(f"v_exp_f32 v{S+i}, v{S+i}",'trans',reads=[f"v{S+i}"],writes=[f"v{S+i}"],margin=1+(i%2==0))
            s.add(f"v_cvt_pk_bf16_f32 v{p+k}, v{S+2*k}, v{S+2*k+1}",'valu',reads=[f"v{S+2*k}",f"v{S+2*k+1}"],writes=[f"v{p+k}"],margin=1+sp*(3-k))
    def epilogue(s,T):
        slot=s.slot[T]; g0=s.now(); l=vL[T%2]; buf=s.obuf[T]
        assert s.stgown[buf] is None, ("stg busy O",T,s.stgown); s.stgown[buf]=('O',T)
        s.add(f"v_accvgpr_read_b32 v{l}, a{aSum(slot)}",'valu',reads=[f"a{aSum(slot)}"],writes=[f"v{l}"],deadline=g0-1)
        s.add(f"v_cmp_ngt_f32_e64 s[{sFlag+2*T}:{sFlag+2*T+1}], s{sTH}, v{l}",'valu',reads=[f"v{l}"],writes=[f"s{sFlag+2*T}"],deadline=g0)
        s.add(f"v_rcp_f32 v{l}, v{l}",'trans',reads=[f"v{l}"],writes=[f"v{l}"],deadline=g0+1)
        G=g0+3
        for t in range(8):
            o=vO(slot,t)
            for i in (0,2):
                s.add(f"v_pk_mul_f32 v[{o+i}:{o+i+1}], v[{o+i}:{o+i+1}], v[{l}:{l+1}] op_sel_hi:[1,0]",'pk',reads=[f"v{o+i}",f"v{o+i+1}",f"v{l}"],writes=[f"v{o+i}",f"v{o+i+1}"],release=G,deadline=G)
        W=s.cfg.get('epiw',12)
        for t in range(8):
            o=vO(slot,t); d=G+(W*t)//8
            for i in range(2):
                s.add(f"v_cvt_pk_bf16_f32 v{o+i}, v{o+2*i}, v{o+2*i+1}",'valu',reads=[f"v{o+2*i}",f"v{o+2*i+1}"],writes=[f"v{o+i}"],deadline=d)
            s.add(f"ds_write_b64 v{vOw[t%4]}, v[{o}:{o+1}] offset:{buf*4096+(t//4)*1024}",'dsw',reads=[f"v{o}",f"v{o+1}"],writes=[f"L:stg{buf}"],deadline=d+1)
        return G+W+2
    def read_o(s,T,park,rel):
        buf=s.obuf[T]; s.park[T]=park
        assert all(s.seen[x] in (0,16) and not (s.seen[x]==0 and x in s.qread) for x in range(12) if s.qbuf[x]==park), ("park busy",T,park)
        assert s.stgown[buf]==('O',T); s.stgown[buf]=None
        assert s.parkown.get(park) is None, ("park has unstored data",T,park); s.parkown[park]=[T,4]
        for j in range(4):
            s.add(f"ds_read_b128 {rng('a',aQ(park)+4*j,4)}, v{vOr} offset:{buf*4096+1024*j}",'dsr',
                  reads=[],writes=R('a',aQ(park)+4*j,4)+[f"L:stg{buf}"],release=rel,deadline=rel+4,hole=True)
    def store_o(s,T,rel,step,js=range(4)):
        it,j=divmod(T,6); park=s.park[T]
        if s.curO!=T:
            s.add(f"s_mov_b32 s{sOffO}, {(it*768+16*j)*256}",'salu',writes=[f"s{sOffO}"],margin=1); s.curO=T
        s.parkown[park][1]-=len(js); s.nst+=len(js)
        if s.parkown[park][1]==0: s.parkown[park]=None
        for k,j in enumerate(js):
            s.add(f"buffer_store_dwordx4 {rng('a',aQ(park)+4*j,4)}, v{vOst}, s[{sO}:{sO+3}], s{sOffO} offen offset:{(j//2)*2048+(j%2)*128} {s.stpol}",'gst',
                  reads=R('a',aQ(park)+4*j,4)+[f"s{sOffO}"],writes=['O:st'],release=rel+k*step,deadline=rel+k*step+2)
    def build(s):
        cfg=s.cfg; LAG=s.LAG
        visits=cfg['visits']
        s.slot={T:T%6 for T in range(12)}
        s.qbuf=cfg.get('qbuf',{**{T:T for T in range(10)},10:0,11:1})
        s.obuf={T:T%2 for T in range(12)}; s.park={}; s.curO=None
        imm=cfg.get('oimm',{})
        s.allread=defaultdict(int)
        for g,ts in visits:
            s.allread[('K',g)]+=1; s.allread[('V',g)]+=1
        ms=[]
        for vi,(g,ts) in enumerate(visits):
            for k,T in enumerate(ts): ms.append((vi,g,T,k==0,k==len(ts)-1))
        cnt=defaultdict(int)
        for m in ms: cnt[m[2]]+=1
        assert all(cnt[T]==16 for T in range(12)) and len({(m[1],m[2]) for m in ms})==192
        assert all(m[1]//16==m[2]//6 for m in ms)
        plan=defaultdict(list)
        for n,u in cfg['plan']: plan[n].append(u)
        s.curoff=None
        def doplan(n):
            rel=s.now(); us=plan.get(n,[])
            nd=sum({'B':4,'K':2,'V':2,'Q':4}.get(u[0],0) for u in us)
            step = 0 if n<0 else max(1,cfg.get('span',16)//max(nd,1))
            for u in us:
                st = u[2] if len(u)>2 and u[0] in 'BKVQ' else step
                if u[0]=='B':
                    s.dma_kv('K',u[1],rel,st); s.dma_kv('V',u[1],rel+2*st,st); rel+=4*st
                elif u[0] in 'KV':
                    s.dma_kv(u[0],u[1],rel,st); rel+=2*st
                elif u[0]=='Q':
                    s.dma_q(u[1],rel,st); rel+=4*st
                elif u[0]=='q': s.read_q(u[1],s.now())
                elif u[0]=='o': s.read_o(u[1],u[2],s.now())
                elif u[0]=='s': s.store_o(u[1],s.now(),u[2],*u[3:])
                elif u[0]=='bar': s.barrier()
        seen=defaultdict(int); seenpv=defaultdict(int); s.seen=defaultdict(int); s.qread=set(); s.stgown=[None,None]; s.parkown={}; s.nst=0
        barset=cfg.get('barvisits')
        doplan(-1)
        s.barrier(); s.read_k(ms[0][1],s.KORD)
        N=len(ms)
        for n in range(N+LAG):
            if n<N:
                vi,g,T,fi,la=ms[n]
                if la and n+1<N and (barset is None or vi+1 in barset): s.barrier()
                doplan(n)
                assert T in s.qread, ('Q not loaded',T)
                s.qk(n,T); s.seen[T]+=1
            m=n-LAG
            if m>=0:
                T1=ms[m][2]
                s.pv(m,T1,seenpv[T1]==0); seenpv[T1]+=1
                if seenpv[T1]==16:
                    e=s.epilogue(T1)
                    if T1 in imm:
                        s.read_o(T1,imm[T1][0],e)
                        if imm[T1][1] is not None: s.store_o(T1,e+10,imm[T1][1])
            if n<N:
                s.sm(n,T,seen[T]==0); seen[T]+=1
                if la and n+1<N: s.read_k(ms[n+1][1],s.KORD)
            if m+1>=0 and m+1<N and ms[m+1][3]: s.read_v(ms[m+1][1])
        assert s.nst==48
        s.P.ops=[o for o in s.P.ops if not (o.kind=='bar' and not o.reads)]
        for i,o in enumerate(s.P.ops): o.idx=i
        out=s.P.schedule()
        out=insert_waits(out,cfg.get('merge',9))
        verify_waits(out)
        check_hazards(out)
        return out

def PRO(cfg):
  t=f"""
    s_cmp_ge_u32 s2, 256
    s_cbranch_scc1 L_end
    s_load_dwordx4 s[64:67], s[0:1], 0
    s_load_dwordx4 s[68:71], s[0:1], 16
    v_lshrrev_b32 v1, 6, v0
    s_lshr_b32 s73, s2, 3
    s_getpc_b64 s[86:87]
L_pc:
    v_and_b32 v2, 31, v0
    v_lshlrev_b32 v2, 12, v2
    s_lshl_b32 s88, s73, 7
    v_add_u32 v2, s88, v2
    v_min_u32 v2, L_end-L_main, v2
    s_add_u32 s86, s86, L_main-L_pc
    s_addc_u32 s87, s87, 0
    v_readfirstlane_b32 s{sW}, v1
    v_and_b32 v0, 63, v0
    global_load_dword v4, v2, s[86:87]
    s_and_b32 s72, s2, 7
    s_lshr_b32 s74, s73, 1
    s_and_b32 s75, s73, 1
    s_lshl_b32 s72, s72, 4
    s_add_u32 s72, s72, s74
    s_lshl_b32 s76, s72, 18
    s_mul_i32 s77, s72, {2*768*256}
    s_mul_i32 s78, s75, {384*256}
    s_add_u32 s77, s77, s78
    s_and_b32 s79, s{sW}, 1
    s_lshr_b32 s80, s{sW}, 1
    s_lshl_b32 s81, s79, 10
    s_lshl_b32 s82, s80, 12
    s_add_u32 s{sWL}, s81, s82       ; LDS: (w&1)*1024 + (w>>1)*4096
    s_lshl_b32 s81, s79, 7
    s_add_u32 s81, s81, s82          ; global: (w&1)*128 + (w>>1)*4096
    s_mul_i32 s83, s{sW}, 24576
    s_sub_u32 s{sWQ}, s83, s81
    s_lshl_b32 s{sWS}, s{sW}, 13
    ; DMA voffset: (i>>3)*256 + ((i&7)^((i>>3)&6))*16 + wave part
    v_lshrrev_b32 v1, 3, v0
    v_and_b32 v2, 6, v1
    v_and_b32 v3, 7, v0
    v_xor_b32 v2, v2, v3
    v_lshlrev_b32 v2, 4, v2
    v_lshl_add_u32 v2, v1, 8, v2
    v_add_u32 v{vDMA}, s81, v2
    s_mov_b32 s{sQ+2}, {1152*256}
    s_mov_b32 s{sQ+3}, 0x20000
    s_mov_b32 s{sK+2}, 0x40000
    s_mov_b32 s{sK+3}, 0x20000
    s_mov_b32 s{sV+2}, 0x40000
    s_mov_b32 s{sV+3}, 0x20000
    s_mov_b32 s{sO+2}, {1152*256}
    s_mov_b32 s{sO+3}, 0x20000
    s_waitcnt lgkmcnt(0)
    s_add_u32 s{sQ}, s64, s77
    s_addc_u32 s{sQ+1}, s65, 0
    s_add_u32 s{sK}, s66, s76
    s_addc_u32 s{sK+1}, s67, 0
    s_add_u32 s{sV}, s68, s76
    s_addc_u32 s{sV+1}, s69, 0
    s_add_u32 s{sO}, s70, s77
    s_addc_u32 s{sO+1}, s71, 0
"""
  if cfg.get('adj'):
    t=t.replace("    s_add_u32 s72, s72, s74          ; pair index 0..127\n","    s_lshr_b32 s72, s2, 1\n    s_and_b32 s75, s2, 1\n")
  return t
PRO2 = f"""
    s_mov_b32 s{sC}, 0x{f2u(CSC):08x}
    s_mov_b32 s{sTH}, 0x5f800000
    s_add_u32 s84, s{sWS}, {STG}
    v_xor_b32 v2, v1, v3
    v_lshlrev_b32 v2, 4, v2
    v_lshl_add_u32 v2, v1, 8, v2
    v_add_u32 v{vOst}, s83, v2
    v_lshl_add_u32 v{vOr}, v0, 4, s84
    v_and_b32 v1, 15, v0
    v_lshrrev_b32 v2, 4, v0
    v_and_b32 v5, 7, v1
    v_lshlrev_b32 v6, 7, v5
    v_lshrrev_b32 v7, 3, v1
    v_lshl_add_u32 v6, v7, 11, v6
    v_and_b32 v3, 6, v1
    v_xor_b32 v3, v3, v2
    v_lshl_add_u32 v{vKa[0]}, v3, 4, v6
    v_xor_b32 v{vKa[1]}, 64, v{vKa[0]}
    v_add_u32 v{vQa[0]}, s84, v{vKa[0]}
    v_add_u32 v{vQa[1]}, s84, v{vKa[1]}
    v_lshrrev_b32 v3, 1, v2
    v_xor_b32 v3, v3, v5
    v_lshl_add_u32 v3, v3, 4, v6
    v_and_b32 v2, 1, v2
    v_lshl_add_u32 v3, v2, 3, v3
    v_add_u32 v{vOw[0]}, s84, v3
    v_xor_b32 v{vOw[1]}, 32, v{vOw[0]}
    v_xor_b32 v{vOw[2]}, 64, v{vOw[0]}
    v_xor_b32 v{vOw[3]}, 0x60, v{vOw[0]}
    v_lshrrev_b32 v1, 2, v0
    v_and_b32 v2, 6, v1
    v_bfe_u32 v3, v0, 1, 1
    v_xor_b32 v2, v2, v3
    v_lshlrev_b32 v2, 4, v2
    v_and_b32 v3, 1, v0
    v_lshl_add_u32 v2, v3, 3, v2
    v_and_b32 v3, 7, v1
    v_lshl_add_u32 v2, v3, 7, v2
    v_lshrrev_b32 v3, 3, v1
    v_lshl_add_u32 v2, v3, 11, v2
    v_add_u32 v{vVa[0]}, {VRING}, v2
    v_xor_b32 v{vVa[1]}, 32, v{vVa[0]}
    v_xor_b32 v{vVa[2]}, 64, v{vVa[0]}
    v_xor_b32 v{vVa[3]}, 0x60, v{vVa[0]}
    v_mov_b32 v1, 0x3f803f80
    v_accvgpr_write_b32 a{aOne}, v1
    v_accvgpr_write_b32 a{aOne+1}, v1
    v_accvgpr_write_b32 a{aOne+2}, v1
    v_accvgpr_write_b32 a{aOne+3}, v1
"""

def slow_path():
    L=[]
    A=L.append
    A("    s_or_b64 s[64:65], s[40:41], s[42:43]")
    for T in range(2,12): A(f"    s_or_b64 s[64:65], s[64:65], s[{sFlag+2*T}:{sFlag+2*T+1}]")
    A("    s_cbranch_scc0 L_end")
    A("    s_mov_b32 s66, 0")
    for T in range(12):
        A(f"    s_cmp_lg_u64 s[{sFlag+2*T}:{sFlag+2*T+1}], 0")
        A(f"    s_cselect_b32 s67, {1<<T}, 0")
        A("    s_or_b32 s66, s66, s67")
    A("    s_waitcnt vmcnt(0) lgkmcnt(0)")
    A("    v_mbcnt_lo_u32_b32 v8, -1, 0")
    A("    v_mbcnt_hi_u32_b32 v8, -1, v8")
    A("    v_and_b32 v9, 15, v8")
    A("    v_lshrrev_b32 v10, 4, v8")
    A("    v_lshlrev_b32 v11, 4, v10")
    A("    v_lshl_add_u32 v14, v9, 8, v11")
    A("    v_add_u32 v15, s83, v14")
    A("    v_and_b32 v11, 1, v10")
    A("    v_lshlrev_b32 v11, 1, v11")
    A("    v_lshrrev_b32 v12, 1, v10")
    A("    v_or_b32 v11, v11, v12")
    A("    v_lshlrev_b32 v11, 4, v11")
    A("    v_lshl_add_u32 v11, v9, 8, v11")
    A("    v_add_u32 v13, s83, v11")
    A(f"    v_subrev_u32 v16, s81, v{vDMA}")
    A(f"    s_add_u32 s68, s{sWS}, {STG-VRING}")
    for i in range(4): A(f"    v_add_u32 v{20+i}, s68, v{vVa[i]}")
    for i in range(4): A(f"    v_mov_b32 v{196+i}, 0x3f803f80")
    A("    s_mov_b32 s69, 0")
    A("L_slow_tile:")
    A("    s_bitcmp1_b32 s66, s69")
    A("    s_cbranch_scc0 L_slow_next")
    A("    s_cmp_ge_u32 s69, 6")
    A("    s_cselect_b32 s70, 0x20000, 0")
    A(f"    s_cselect_b32 s71, {(768-96)*256}, 0")
    A("    s_lshl_b32 s72, s69, 12")
    A("    s_add_u32 s71, s71, s72                ; q/o offset")
    for st in range(4): A(f"    buffer_load_dwordx4 v[{64+4*st}:{67+4*st}], v15, s[{sQ}:{sQ+3}], s71 offen offset:{64*st}")
    A("    v_mov_b32 v17, 0xff800000")
    A("    s_mov_b32 s72, s70")
    A("    s_add_u32 s73, s70, 0x20000")
    A("L_slow_max:")
    for st in range(4): A(f"    buffer_load_dwordx4 v[{80+4*st}:{83+4*st}], v14, s[{sK}:{sK+3}], s72 offen offset:{64*st}")
    A("    s_waitcnt vmcnt(0)")
    for st in range(4): A(f"    v_mfma_f32_16x16x32_bf16 v[0:3], v[{80+4*st}:{83+4*st}], v[{64+4*st}:{67+4*st}], {'0' if st==0 else 'v[0:3]'}")
    A("    s_nop 15")
    A("    v_max3_f32 v17, v17, v0, v1")
    A("    v_max3_f32 v17, v17, v2, v3")
    A("    s_add_u32 s72, s72, 4096")
    A("    s_cmp_lt_u32 s72, s73")
    A("    s_cbranch_scc1 L_slow_max")
    for sw in ("16","32"):
        A("    v_mov_b32 v18, v17"); A("    s_nop 1")
        A(f"    v_permlane{sw}_swap_b32 v17, v18"); A("    s_nop 1")
        A("    v_max_f32 v17, v17, v18")
    A(f"    v_mul_f32 v17, 0x{f2u(-CSC):08x}, v17")
    for r in range(160,196): A(f"    v_mov_b32 v{r}, 0")
    A("    s_mov_b32 s72, s70")
    A("L_slow_blk:")
    A("    s_add_u32 s74, s72, 4096")
    for f in range(8):
        kt,st=divmod(f,4)
        A(f"    buffer_load_dwordx4 v[{80+4*f}:{83+4*f}], v14, s[{sK}:{sK+3}], {'s72' if kt==0 else 's74'} offen offset:{64*st}")
    for kt in range(2):
        for half in range(2):
            A(f"    s_add_u32 m0, s{sWS}, {STG+kt*4096+half*896}")
            A("    s_nop 0")
            for oc in range(2):
                A(f"    buffer_load_dwordx4 v16, s[{sV}:{sV+3}], {'s72' if kt==0 else 's74'} offen offset:{2048*oc+128*half} lds")
    A("    s_waitcnt vmcnt(0)")
    for t in range(8):
        for kt in range(2):
            A(f"    ds_read_b64_tr_b16 v[{112+4*t+2*kt}:{113+4*t+2*kt}], v{20+t%4} offset:{kt*4096+(t//4)*1024}")
    for f in range(8):
        kt,st=divmod(f,4); d=4*kt
        A(f"    v_mfma_f32_16x16x32_bf16 v[{d}:{d+3}], v[{80+4*f}:{83+4*f}], v[{64+4*st}:{67+4*st}], {'0' if st==0 else f'v[{d}:{d+3}]'}")
    A("    s_nop 15")
    for i in range(8): A(f"    v_fma_f32 v{i}, v{i}, s{sC}, v17")
    for i in range(8): A(f"    v_exp_f32 v{i}, v{i}")
    A("    s_nop 1")
    for k in range(4): A(f"    v_cvt_pk_bf16_f32 v{24+k}, v{2*k}, v{1+2*k}")
    A("    s_waitcnt lgkmcnt(0)")
    A("    s_nop 1")
    for t in range(8): A(f"    v_mfma_f32_16x16x32_bf16 v[{160+4*t}:{163+4*t}], v[{112+4*t}:{115+4*t}], v[24:27], v[{160+4*t}:{163+4*t}]")
    A("    v_mfma_f32_16x16x32_bf16 v[192:195], v[196:199], v[24:27], v[192:195]")
    A("    s_add_u32 s72, s72, 8192")
    A("    s_cmp_lt_u32 s72, s73")
    A("    s_cbranch_scc1 L_slow_blk")
    A("    s_nop 15")
    A("    v_rcp_f32 v18, v192")
    A("    s_nop 1")
    for r in range(160,192): A(f"    v_mul_f32 v{r}, v{r}, v18")
    for m in range(4):
        o=160+8*m
        for i in range(4): A(f"    v_cvt_pk_bf16_f32 v{o+i}, v{o+2*i}, v{o+2*i+1}")
        A("    s_nop 1")
        for i in range(2): A(f"    v_permlane16_swap_b32 v{o+i}, v{o+i+2}")
        A(f"    buffer_store_dwordx4 v[{o}:{o+3}], v13, s[{sO}:{sO+3}], s71 offen offset:{64*m}")
    A("    s_waitcnt vmcnt(0)")
    A("L_slow_next:")
    A("    s_add_u32 s69, s69, 1")
    A("    s_cmp_lt_u32 s69, 12")
    A("    s_cbranch_scc1 L_slow_tile")
    return "\n".join(L)+"\n"

def isize(t):
    t=t.strip(); op=t.split()[0]
    if op.startswith(('v_mfma','ds_','buffer_','global_','v_fma_f32','v_cvt_pk','v_max3','v_pk_','v_accvgpr','v_writelane','s_mem')) or op.endswith('_e64'): return 8
    if op in('s_waitcnt','s_barrier','s_nop') or op.startswith('s_cbranch'): return 4
    for a in t.split(None,1)[1].replace(',',' ').split():
        try: v=int(a,0)
        except ValueError: continue
        if not -16<=v<=64: return 8
    return 4

HEAD = open('cdna_kernels/'+NAME+'.s.ref').read().split('; Override')[0]
def emit(cfg, path):
    g=Gen(cfg); out=g.build()
    abl=cfg.get('ablate')
    if abl:
        nb=0; o2=[]
        for o in out:
            if o.kind=='bar': nb+=1
            if nb>=3 and any((a==o.kind) or (a in o.text) for a in abl): continue
            o2.append(o)
        out=o2
    marks=[]; est=estimate(out,marks)
    stamp=cfg.get('stamp'); warm=cfg.get('warm',True)
    ns=[0]
    def st(reg, real=False):
        return [f"s_mem{'real' if real else ''}time s[90:91]","s_waitcnt lgkmcnt(0)",f"v_writelane_b32 v{reg}, s90, {ns[0]}"]
    k0=0
    while out[k0].kind in('dma','salu','nop'): k0+=1
    first=[o.text for o in out[:k0]]; nfirst=sum(1 for o in out[:k0] if o.kind=='dma')
    lines=[]; nbar=0; probe=cfg.get('probe')
    for k in range(k0,len(out)):
        o=out[k]
        if stamp is True and o.kind=='wait' and 'v' in o.tag and any(x.kind=='bar' for x in out[k+1:k+12]):
            ns[0]+=1; lines+=[(x,'x') for x in st(62)]; ns[0]-=1
        lines.append((o.text,o.kind))
        if o.kind=='bar': nbar+=1
        if probe and o.kind=='bar' and nbar in probe[:2]:
            r = 92 if nbar==probe[0] else 94
            lines+=[(f"s_mem{'real' if probe[2]=='rt' else ''}time s[{r}:{r+1}]",'x'),("s_waitcnt lgkmcnt(0)",'x')]
        if stamp and o.kind=='bar' and (stamp is True or nbar in stamp):
            ns[0]+=1; lines+=[(x,'x') for x in st(61)+st(63,True)]
    body=[]; addr=0; page=0; stubs=0
    tot=sum(isize(t) for t,_ in lines); npages=(tot+200)//4096+1
    for i,(t,kd) in enumerate(lines):
        if warm and addr>=page*4096 and page<npages:
            prevm = i>0 and lines[i-1][1]=='mfma'
            if (prevm and kd not in SC_KINDS) or addr+isize(t)>page*4096+56 or page==0:
                nxt=page+4
                body.append(f"L_stub{page}:\n s_cbranch_vccnz {'L_stub%d'%nxt if nxt<npages else 'L_back'}\n")
                body.append(f".if ((L_stub{page}-L_main)>>6) != {page*64}\n.error \"stub misplaced\"\n.endif\n")
                addr+=4; page+=1
        body.append(" "+t+"\n"); addr+=isize(t)
    while warm and page<npages:
        body.append(f"L_stub{page}:\n s_cbranch_vccnz L_back\n"); page+=1
    txt=HEAD+"; @launch grid=(256,1,1) block=(256,1,1) lds=163840\n"
    txt+=f'.amdgcn_target "amdgcn-amd-amdhsa--gfx950"\n.text\n.globl {NAME}_kernel\n.p2align 8\n.type {NAME}_kernel,@function\n{NAME}_kernel:\n'
    if probe:
        txt+=" s_memrealtime s[90:91]\n"
        if probe[0]==0: txt+=f" s_mem{'real' if probe[2]=='rt' else ''}time s[92:93]\n"
        txt+=" s_waitcnt lgkmcnt(0)\n"
        if cfg.get('gstart'):
            txt+=" s_load_dwordx2 s[34:35], s[0:1], 32\n s_not_b32 s36, s90\n v_mov_b32 v10, s36\n v_mov_b32 v11, 0\n s_waitcnt lgkmcnt(0)\n v_cmp_eq_u32 vcc, 0, v0\n s_and_saveexec_b64 s[36:37], vcc\n s_cbranch_execz L_gs\n global_atomic_umax v11, v10, s[34:35]\nL_gs:\n s_mov_b64 exec, s[36:37]\n"
    if cfg.get('pre_nop'):
        txt+=f" s_mov_b32 s64, {cfg['pre_nop']}\nL_pn:\n"+" s_nop 15\n"*16+" s_sub_u32 s64, s64, 1\n s_cmp_lg_u32 s64, 0\n s_cbranch_scc1 L_pn\n"
    txt+=PRO(cfg)
    txt+="".join(" "+t+"\n" for t in first)
    if stamp:
        n=ns[0]; ns[0]=0
        txt+=" v_mov_b32 v61, 0\n v_mov_b32 v62, 0\n v_mov_b32 v63, 0\n"+"".join(" "+x+"\n" for x in st(61)+st(63,True)); ns[0]=n
    txt+=PRO2
    txt+=f"    s_waitcnt vmcnt({nfirst})\n"
    if warm:
        txt+="    ; touch the first line of every 4 KB code page (instruction-cache warm-up while the first loads are in flight)\n    s_mov_b64 vcc, -1\n"
        for w in range(3): txt+=f"    s_cmp_eq_u32 s{sW}, {w}\n    s_cbranch_scc1 L_stub{w}\n"
        txt+="    s_branch L_stub3\n"
        txt+="L_back:\n    s_mov_b64 vcc, 0\n"
    txt+="    s_branch L_main\n.p2align 12\nL_main:\n"
    txt+="".join(body)
    if stamp:
        ns[0]+=1; txt+="".join(" "+x+"\n" for x in st(61)+st(63,True)); ns[0]+=1
        txt+=" s_waitcnt vmcnt(0)\n"+"".join(" "+x+"\n" for x in st(61)+st(63,True))
        txt+=f""" s_load_dwordx2 s[92:93], s[0:1], 40
 s_lshl_b32 s90, s2, 2
 s_add_u32 s90, s90, s{sW}
 s_mul_i32 s90, s90, 768
 v_mbcnt_lo_u32_b32 v1, -1, 0
 v_mbcnt_hi_u32_b32 v1, -1, v1
 v_lshlrev_b32 v1, 2, v1
 v_add_u32 v1, s90, v1
 s_waitcnt lgkmcnt(0)
 global_store_dword v1, v61, s[92:93]
 global_store_dword v1, v62, s[92:93] offset:256
 global_store_dword v1, v63, s[92:93] offset:512
"""
    if probe:
        if probe[1]==99: txt+=f" s_mem{'real' if probe[2]=='rt' else ''}time s[94:95]\n s_waitcnt lgkmcnt(0)\n"
        if probe[1]==100: txt+=f" s_waitcnt vmcnt(0)\n s_mem{'real' if probe[2]=='rt' else ''}time s[94:95]\n s_waitcnt lgkmcnt(0)\n"
        if probe[1]<0: txt+=" s_mov_b32 s94, s92\n"
        if cfg.get('gstart'):
            txt+=" v_mov_b32 v11, 0\n global_load_dword v10, v11, s[34:35] sc0 sc1\n s_waitcnt vmcnt(0)\n v_readfirstlane_b32 s90, v10\n s_nop 3\n s_not_b32 s90, s90\n"
            if cfg['gstart']==2: txt+=" s_mov_b32 s92, s90\n"
        txt+=" s_sub_u32 s94, s94, s92\n"
        if probe[2]=='cyc': txt+=" s_lshr_b32 s94, s94, 4\n"
        txt+=" s_add_u32 s94, s94, 10000\nL_spin:\n s_memrealtime s[92:93]\n s_waitcnt lgkmcnt(0)\n s_sub_u32 s92, s92, s90\n s_cmp_lt_u32 s92, s94\n s_cbranch_scc1 L_spin\n"
    if cfg.get('extra_mfma'):
        n,kind=cfg['extra_mfma']
        txt+=f" s_waitcnt vmcnt(0)\n s_mov_b32 s64, {n}\nL_xm:\n"
        L=[]
        if kind.startswith('m16'):
            for j in range(6):
                for i,f in enumerate(Gen.KORD):
                    kt,st=divmod(f,4); d=8*(j%2)+4*kt
                    L.append(f" v_mfma_f32_16x16x32_bf16 v[{d}:{d+3}], a[{160+4*f}:{163+4*f}], a[{192+16*(j%2)+4*st}:{195+16*(j%2)+4*st}], {'0' if i%4==0 else f'v[{d}:{d+3}]'}\n")
                for t in range(8):
                    d=64+32*j+4*t
                    L.append(f" v_mfma_f32_16x16x32_bf16 v[{d}:{d+3}], a[{192+4*t}:{195+4*t}], v[{24+4*(j%3)}:{27+4*(j%3)}], v[{d}:{d+3}]\n")
            if kind=='m16nop': L=[x+(" s_nop 0\n s_nop 0\n s_nop 0\n s_nop 0\n s_nop 0\n" if k%2 else "") for k,x in enumerate(L)]
            if kind=='m16v': L=[x+(f" v_exp_f32 v{40+k%8}, v{24+k%12}\n" if k%2 else f" v_fma_f32 v{48+k%8}, v{24+k%12}, s24, v{25+k%10}\n v_cvt_pk_bf16_f32 v{49+k%8}, v{24+k%12}, v{25+k%10}\n") for k,x in enumerate(L)]
        else:
            for j in range(3):
                for st in range(8):
                    L.append(f" v_mfma_f32_32x32x16_bf16 v[0:15], a[{160+4*st}:{163+4*st}], a[{192+4*((st+j)%8)}:{195+4*((st+j)%8)}], {'0' if st==0 else 'v[0:15]'}\n")
                for t in range(8):
                    d=64+64*j+16*(t%4)
                    L.append(f" v_mfma_f32_32x32x16_bf16 v[{d}:{d+15}], a[{192+4*t}:{195+4*t}], v[{24+4*((t//4+j)%3)}:{27+4*((t//4+j)%3)}], v[{d}:{d+15}]\n")
        txt+="".join(L)
        txt+=" s_sub_u32 s64, s64, 1\n s_cmp_lg_u32 s64, 0\n s_cbranch_scc1 L_xm\n s_nop 15\n"
    if cfg.get('extra_nop'):
        txt+=f" s_mov_b32 s64, {cfg['extra_nop']}\nL_xn:\n"+" s_nop 15\n"*16+" s_sub_u32 s64, s64, 1\n s_cmp_lg_u32 s64, 0\n s_cbranch_scc1 L_xn\n"
    txt+=" s_nop 1\n"+slow_path()
    txt+=f"""L_end:
    s_endpgm
.section .rodata,"a"
.p2align 6
.amdhsa_kernel {NAME}_kernel
  .amdhsa_next_free_vgpr 512
  .amdhsa_next_free_sgpr 96
  .amdhsa_accum_offset 256
  .amdhsa_group_segment_fixed_size 0
  .amdhsa_kernarg_size 48
  .amdhsa_user_sgpr_count 2
  .amdhsa_user_sgpr_kernarg_segment_ptr 1
  .amdhsa_system_sgpr_workgroup_id_x 1
.end_amdhsa_kernel
"""
    open(path,'w').write(txt)
    from collections import Counter
    print(path, "ops",len(out),"est",est, dict(Counter(o.kind for o in out)), "code",addr)
    if cfg.get('verbose'): print(' segs',[b-a for a,b in zip(marks,marks[1:]+[est])])
    from asm import asm
    asm(path)
    return out
```

```python
from cfgs import *
b=dict(verbose=False)
T=lambda **k: mk('tri',4,5,True,40,**b,**k)
emit(T(extra_mfma=(1,'m16')),'x_base.s')
emit(T(extra_mfma=(33,'m16')),'x_m16.s')
emit(T(extra_mfma=(33,'m32')),'x_m32.s')
emit(T(extra_mfma=(33,'m16nop')),'x_m16nop.s')
emit(T(extra_mfma=(33,'m16v')),'x_m16v.s')
emit(T(probe=(13,15,'rt')),'x_p4.s')
```

```python
import sys
from gen import *
HEADS={
 'simple':dict(v=[(0,'012345')],
    plan=[(-1,('Q',0)),(-1,('K',0)),(-1,('Q',1)),(-1,('V',0)),(-1,('q',0)),(-1,('Q',2)),(-1,('q',1)),(-1,('Q',3)),(-1,('q',2)),(-1,('Q',4)),
          (-1,('q',3)),(-1,('Q',5)),(-1,('B',1)),(-1,('q',4)),(-1,('q',5))], nb=2, t=0, qfree=[0,0]),
 'h5':dict(v=[(0,'012'),(1,'012'),(2,'012'),(3,'0123'),(4,'01234'),(0,'345'),(1,'345'),(2,'345'),(3,'45'),(4,'5')],
    plan=[(-1,('Q',0)),(-1,('K',0)),(-1,('Q',1)),(-1,('V',0)),(-1,('q',0)),(-1,('Q',2)),
          (0,('q',1)),(0,('B',1,1)),(0,('B',2,1)),(1,('q',2)),(1,('B',3,1)),(2,('Q',3,1)),(5,('B',4,1)),(8,('Q',4,1)),(11,('q',3)),(11,('Q',5,1)),
          (16,('q',4)),(19,('q',5))], nb=5, t=13, qfree=[17,20]),
 'h6':dict(v=[(0,'01'),(1,'012'),(0,'2'),(2,'012'),(3,'012'),(4,'0123'),(5,'0123'),(0,'345'),(1,'345'),(2,'345'),(3,'345'),(4,'45'),(5,'45')],
    plan=[(-1,('Q',0)),(-1,('K',0)),(-1,('Q',1)),(-1,('V',0)),(-1,('q',0)),(-1,('B',1)),
          (0,('q',1)),(0,('Q',2,1)),(0,('B',2,1)),(1,('B',3,1)),(3,('q',2)),(3,('B',4,1)),(5,('Q',3,1)),(8,('B',5,1)),(11,('Q',4,1)),(14,('q',3)),(14,('Q',5,1)),
          (19,('q',4)),(21,('q',5))], nb=6, t=17, qfree=[20,22]),
}
def mk(head='h5', tail=4, D=5, ststep=40, TQ=4.5, TB=2.4, qlat=10, minD=2, groups=([6,7],[8,9],[10,11]), **kw):
    A=list(range(6)); B=list(range(6,12))
    H=HEADS[head]
    visits=[(g,[int(c) for c in t]) for g,t in H['v']]
    plan=list(H['plan'])
    g0=max(g for g,_ in visits)+1
    for g in range(g0,32-tail): visits.append((g,A if g<16 else B))
    if tail:
        for grp in groups:
            for g in range(32-tail,32): visits.append((g,list(grp)))
    first={}; last={}; n=0
    for g,ts in visits:
        first.setdefault(g,n); last[g]=n; n+=len(ts)
    t=H['t']; nb=H['nb']; nq=6; qfree=list(H['qfree'])
    n=int(t)
    while nb<32 or nq<12:
        if t>n: n+=1; continue
        ahead=sum(1 for g in range(nb) if first[g]>n)
        resident=sum(1 for g in range(nb) if last[g]+9>n)
        canB = nb<32 and resident<8 and ahead<D
        canQ = nq<12 and qfree[nq%2]<=n
        if canB and (ahead<minD or not canQ):
            plan.append((n,('B',nb,int(TB*17/4)))); nb+=1; t=max(t,n)+TB
        elif canQ:
            plan.append((n,('Q',nq,int(TQ*17/4)))); t=max(t,n)+TQ
            if nq<10:
                plan.append((n+qlat,('q',nq))); qfree[nq%2]=n+qlat+1
            else: qfree[nq%2]=999
            nq+=1
        else: n+=1
    plan.append((6*15+1,('q',10))); plan.append((6*15+2,('q',11)))
    oimm={0:(2,None),1:(3,None),2:(4,None),3:(5,None)}
    for T in range(6,12): oimm[T]=({6:6,7:7,8:8,9:9,10:0,11:1}[T],kw.get('tailst',4))
    n=6*17
    for T in range(6):
        if T>=4: plan.append((n-3,('o',T,T-2)))
        plan.append((n,('s',T,ststep)))
        n+= (4*ststep+16)//17
    c=dict(visits=visits,plan=plan,oimm=oimm,verbose=True,ldsrate=512,dsmargin=8,merge=8)
    c.update(kw)
    if c.get('showplan'): print(sorted([(n,u[0]+str(u[1])) for n,u in plan if n>=0]))
    return c
if __name__=="__main__":
    for h in ('simple','h5','h6'):
        emit(mk(h,showplan=True),f'v4{h}.s')
```

```python
import sys, math, struct
from sched import *

NAME="standalone__gqa_softmax__near_ridge"
CSC = math.log2(math.e)/math.sqrt(128.0)
def f2u(x): return struct.unpack('<I',struct.pack('<f',x))[0]

vS=[0,8,16]; vP=[24,28,32]; vMC=36
vKa=[42,43]; vVa=[44,45,46,47]; vQa=[48,49]; vOw=[50,51,52,53]; vDMA=54; vOst=55; vOr=56
vT0,vT1=57,59; vL=[58,60]
vO=lambda slot,t: 64+32*slot+4*t
aQ=lambda b: 16*b
aK=lambda f: 160+4*f
aV=lambda t: 192+4*t
aSum=lambda slot: 224+4*slot
aOne=248
sQ=8; sK=12; sV=16; sO=20
sC=24; sTH=25; sWL=26 ; sWQ=27; sWS=28; sOffKV=29; sOffQ=30; sOffO=31; sW=32
sFlag=40
KRING=0; VRING=65536; STG=131072

class Gen:
    def __init__(s, cfg):
        s.cfg=cfg; s.P=Program(); s.nbb=0; s.bars=[]; s.vis=set()
        s.R=cfg.get('ring',8); s.LAG=cfg.get('lag',2); s.NB=s.LAG+1
        s.lastread={}; s.dmadone={}; s.occ={'K':[None]*s.R,'V':[None]*s.R}; s.slotof={}; s.dmarel={}
        s.ldpol=cfg.get('ldpol','nt'); s.stpol=cfg.get('stpol','nt')
        s.win=cfg.get('dmawin',12)
    def add(s,*a,**k):
        o=Op(*a,**k); s.P.add(o)
        if o.kind=='mfma': s.nbb+=1
        return o
    def now(s): return s.nbb-1
    def barrier(s):
        g=s.now()
        b=s.add("s_barrier",'bar',reads=[],writes=['barorder'],release=g,deadline=g)
        s.bars.append(b); return b
    def visible(s,part,g):
        if (part,g) in s.vis: return
        b=s.bars[-1]
        for bb in reversed(s.bars):
            if bb.reads and bb.release>=s.dmarel[(part,g)]+s.cfg.get('vislat',200) and s.dmadone[(part,g)]<bb.idx: b=bb; break
        assert s.dmadone[(part,g)]<b.idx, ("dma after barrier",part,g)
        b.reads.append(f"L:{part}{g}"); b.writes.append(f"vis{part}{g}"); s.vis.add((part,g))
    def dl(s,rel): return rel+s.win if rel>=0 else -1
    def dma_kv(s,part,g,rel,step):
        rd=[]
        occ=s.occ[part]
        free=[x for x in range(s.R) if occ[x] is None]
        if free: slot=free[0]
        else:
            b=s.bars[-1]
            c=[x for x in range(s.R) if s.allread[(part,occ[x])]==0 and s.lastread[(part,occ[x])]<b.idx]
            assert c, ("no free slot",part,g,occ)
            slot=min(c,key=lambda x:s.lastread[(part,occ[x])]); old=occ[slot]
            for bb in s.bars:
                if bb.idx>s.lastread[(part,old)]+s.cfg.get('freegap',60) and bb.reads: b=bb; break
            b.reads.append(f"L:rd{part}{old}"); b.writes.append(f"free{part}{old}"); rd=[f"free{part}{old}"]
        occ[slot]=g; s.slotof[(part,g)]=slot
        base=(KRING if part=='K' else VRING)+slot*8192
        s.add(f"s_add_u32 m0, s{sWL}, {base}",'salu',writes=['m0'],margin=1)
        if s.curoff!=g:
            s.add(f"s_mov_b32 s{sOffKV}, {g*8192}",'salu',writes=[f"s{sOffKV}"],margin=1); s.curoff=g
        srd=sK if part=='K' else sV
        for i in range(2):
            o=s.add(f"buffer_load_dwordx4 v{vDMA}, s[{srd}:{srd+3}], s{sOffKV} offen offset:{2048*i} {s.ldpol} lds",'dma',
                  reads=['m0',f"s{sOffKV}"]+rd,writes=[f"L:{part}{g}",'O:vm'],release=rel+i*step,deadline=s.dl(rel+i*step))
        s.dmadone[(part,g)]=o.idx; s.dmarel[(part,g)]=o.deadline
    def dma_q(s,T,rel,step):
        buf=T%2; it,j=divmod(T,6)
        assert s.stgown[buf] is None, ("stg busy",T,s.stgown); s.stgown[buf]=('Q',T)
        k=0
        for half in range(2):
            s.add(f"s_add_u32 m0, s{sWS}, {STG+buf*4096+half*896}",'salu',writes=['m0'],margin=1)
            if half==0: s.add(f"s_add_u32 s{sOffQ}, s{sWQ}, {(it*768+16*j)*256}",'salu',writes=[f"s{sOffQ}"],margin=1)
            for oc in range(2):
                s.add(f"buffer_load_dwordx4 v{vDMA}, s[{sQ}:{sQ+3}], s{sOffQ} offen offset:{2048*oc+128*half} {s.ldpol} lds",'dma',
                      reads=['m0',f"s{sOffQ}",f"L:stg{buf}"],writes=[f"L:Q{T}",'O:vm'],release=rel+k*step,deadline=s.dl(rel+k*step))
                k+=1
    def read_q(s,T,rel):
        buf=T%2; qb=s.qbuf[T]; s.qread.add(T)
        assert all(s.seen[x]==16 for x in range(T) if s.qbuf[x]==qb), ("qbuf busy",T)
        assert s.stgown[buf]==('Q',T); s.stgown[buf]=None
        for st in range(4):
            s.add(f"ds_read_b128 {rng('a',aQ(qb)+4*st,4)}, v{vQa[st%2]} offset:{buf*4096+(st//2)*1024}",'dsr',
                  reads=[f"L:Q{T}"]+(['O:vm'] if st==0 else []),writes=R('a',aQ(qb)+4*st,4)+[f"L:stg{buf}"],release=rel,margin=8,deadline=s.dl(rel),hole=True)
    def read_k(s,g,order):
        s.visible('K',g); slot=s.slotof[('K',g)]
        for f in order:
            kt,st=divmod(f,4)
            o=s.add(f"ds_read_b128 {rng('a',aK(f),4)}, v{vKa[st%2]} offset:{slot*8192+kt*4096+(st//2)*1024}",'dsr',
                  reads=[f"visK{g}"],writes=R('a',aK(f),4)+[f"L:rdK{g}"],margin=s.cfg.get('dsmargin',10))
        s.lastread[('K',g)]=o.idx; s.allread[('K',g)]-=1
    def read_v(s,g):
        s.visible('V',g); slot=s.slotof[('V',g)]
        for t in range(8):
            for kt in range(2):
                o=s.add(f"ds_read_b64_tr_b16 {rng('a',aV(t)+2*kt,2)}, v{vVa[t%4]} offset:{slot*8192+kt*4096+(t//4)*1024}",'dsr',
                      reads=[f"visV{g}"],writes=R('a',aV(t)+2*kt,2)+[f"L:rdV{g}"],margin=s.cfg.get('dsmargin',10))
        s.lastread[('V',g)]=o.idx; s.allread[('V',g)]-=1
    KORD=[0,1,2,3,7,6,5,4]
    def qk(s,n,T):
        b=n%s.NB; qb=s.qbuf[T]
        for i,f in enumerate(s.KORD):
            kt,st=divmod(f,4)
            d=vS[b]+4*kt; first=(i%4==0)
            c = "0" if first else rng('v',d,4)
            s.add(f"v_mfma_f32_16x16x32_bf16 {rng('v',d,4)}, {rng('a',aK(f),4)}, {rng('a',aQ(qb)+4*st,4)}, {c}",'mfma',
                  reads=R('a',aK(f),4)+R('a',aQ(qb)+4*st,4)+([] if first else R('v',d,4)),writes=R('v',d,4),cread=([] if first else R('v',d,4)))
    def pv(s,n,T,first):
        b=n%s.NB; slot=s.slot[T]; p=vP[b]
        d=aSum(slot); c="0" if first else rng('a',d,4)
        s.add(f"v_mfma_f32_16x16x32_bf16 {rng('a',d,4)}, {rng('a',aOne,4)}, {rng('v',p,4)}, {c}",'mfma',
              reads=R('a',aOne,4)+R('v',p,4)+([] if first else R('a',d,4)),writes=R('a',d,4),cread=([] if first else R('a',d,4)))
        for t in range(8):
            d=vO(slot,t); c="0" if first else rng('v',d,4)
            s.add(f"v_mfma_f32_16x16x32_bf16 {rng('v',d,4)}, {rng('a',aV(t),4)}, {rng('v',p,4)}, {c}",'mfma',
                  reads=R('a',aV(t),4)+R('v',p,4)+([] if first else R('v',d,4)),writes=R('v',d,4),cread=([] if first else R('v',d,4)))
    def sm(s,n,T,first):
        b=n%s.NB; S=vS[b]; p=vP[b]; mc=vMC+s.slot[T]
        if first:
            t0,t1=vT0,vT1
            V=lambda txt,rd,wr,k='valu': s.add(txt,k,reads=[f"v{x}" for x in rd],writes=[f"v{x}" for x in wr],margin=1)
            V(f"v_max3_f32 v{t0}, v{S}, v{S+1}, v{S+2}",[S,S+1,S+2],[t0])
            V(f"v_max_f32 v{t0}, v{t0}, v{S+3}",[t0,S+3],[t0])
            V(f"v_mov_b32 v{t1}, v{t0}",[t0],[t1])
            V(f"v_permlane16_swap_b32 v{t0}, v{t1}",[t0,t1],[t0,t1],'perm')
            V(f"v_max_f32 v{t0}, v{t0}, v{t1}",[t0,t1],[t0])
            V(f"v_mov_b32 v{t1}, v{t0}",[t0],[t1])
            V(f"v_permlane32_swap_b32 v{t0}, v{t1}",[t0,t1],[t0,t1],'perm')
            V(f"v_max_f32 v{t0}, v{t0}, v{t1}",[t0,t1],[t0])
            V(f"v_mul_f32 v{mc}, 0x{f2u(-CSC):08x}, v{t0}",[t0],[mc])
        sp=s.cfg.get('smsp',3)
        for k in range(4):
            for i in (2*k,2*k+1):
                s.add(f"v_fma_f32 v{S+i}, v{S+i}, s{sC}, v{mc}",'valu',reads=[f"v{S+i}",f"v{mc}"],writes=[f"v{S+i}"],margin=1)
            for i in (2*k,2*k+1):
                s.add(f"v_exp_f32 v{S+i}, v{S+i}",'trans',reads=[f"v{S+i}"],writes=[f"v{S+i}"],margin=1+(i%2==0))
            s.add(f"v_cvt_pk_bf16_f32 v{p+k}, v{S+2*k}, v{S+2*k+1}",'valu',reads=[f"v{S+2*k}",f"v{S+2*k+1}"],writes=[f"v{p+k}"],margin=1+sp*(3-k))
    def epilogue(s,T):
        slot=s.slot[T]; g0=s.now(); l=vL[T%2]; buf=s.obuf[T]
        assert s.stgown[buf] is None, ("stg busy O",T,s.stgown); s.stgown[buf]=('O',T)
        s.add(f"v_accvgpr_read_b32 v{l}, a{aSum(slot)}",'valu',reads=[f"a{aSum(slot)}"],writes=[f"v{l}"],deadline=g0-1)
        s.add(f"v_cmp_ngt_f32_e64 s[{sFlag+2*T}:{sFlag+2*T+1}], s{sTH}, v{l}",'valu',reads=[f"v{l}"],writes=[f"s{sFlag+2*T}"],deadline=g0)
        s.add(f"v_rcp_f32 v{l}, v{l}",'trans',reads=[f"v{l}"],writes=[f"v{l}"],deadline=g0+1)
        G=g0+3
        for t in range(8):
            o=vO(slot,t)
            for i in (0,2):
                s.add(f"v_pk_mul_f32 v[{o+i}:{o+i+1}], v[{o+i}:{o+i+1}], v[{l}:{l+1}] op_sel_hi:[1,0]",'pk',reads=[f"v{o+i}",f"v{o+i+1}",f"v{l}"],writes=[f"v{o+i}",f"v{o+i+1}"],release=G,deadline=G)
        W=s.cfg.get('epiw',12)
        for t in range(8):
            o=vO(slot,t); d=G+(W*t)//8
            for i in range(2):
                s.add(f"v_cvt_pk_bf16_f32 v{o+i}, v{o+2*i}, v{o+2*i+1}",'valu',reads=[f"v{o+2*i}",f"v{o+2*i+1}"],writes=[f"v{o+i}"],deadline=d)
            s.add(f"ds_write_b64 v{vOw[t%4]}, v[{o}:{o+1}] offset:{buf*4096+(t//4)*1024}",'dsw',reads=[f"v{o}",f"v{o+1}"],writes=[f"L:stg{buf}"],deadline=d+1)
        return G+W+2
    def read_o(s,T,park,rel):
        buf=s.obuf[T]; s.park[T]=park
        assert all(s.seen[x] in (0,16) and not (s.seen[x]==0 and x in s.qread) for x in range(12) if s.qbuf[x]==park), ("park busy",T,park)
        assert s.stgown[buf]==('O',T); s.stgown[buf]=None
        assert s.parkown.get(park) is None, ("park has unstored data",T,park); s.parkown[park]=[T,4]
        for j in range(4):
            s.add(f"ds_read_b128 {rng('a',aQ(park)+4*j,4)}, v{vOr} offset:{buf*4096+1024*j}",'dsr',
                  reads=[],writes=R('a',aQ(park)+4*j,4)+[f"L:stg{buf}"],release=rel,deadline=rel+4,hole=True)
    def store_o(s,T,rel,step,js=range(4)):
        it,j=divmod(T,6); park=s.park[T]
        if s.curO!=T:
            s.add(f"s_mov_b32 s{sOffO}, {(it*768+16*j)*256}",'salu',writes=[f"s{sOffO}"],margin=1); s.curO=T
        s.parkown[park][1]-=len(js); s.nst+=len(js)
        if s.parkown[park][1]==0: s.parkown[park]=None
        for k,j in enumerate(js):
            s.add(f"buffer_store_dwordx4 {rng('a',aQ(park)+4*j,4)}, v{vOst}, s[{sO}:{sO+3}], s{sOffO} offen offset:{(j//2)*2048+(j%2)*128} {s.stpol}",'gst',
                  reads=R('a',aQ(park)+4*j,4)+[f"s{sOffO}"],writes=['O:st'],release=rel+k*step,deadline=rel+k*step+2)
    def build(s):
        cfg=s.cfg; LAG=s.LAG
        visits=cfg['visits']
        s.slot={T:T%6 for T in range(12)}
        s.qbuf=cfg.get('qbuf',{**{T:T for T in range(10)},10:0,11:1})
        s.obuf={T:T%2 for T in range(12)}; s.park={}; s.curO=None
        imm=cfg.get('oimm',{})
        s.allread=defaultdict(int)
        for g,ts in visits:
            s.allread[('K',g)]+=1; s.allread[('V',g)]+=1
        ms=[]
        for vi,(g,ts) in enumerate(visits):
            for k,T in enumerate(ts): ms.append((vi,g,T,k==0,k==len(ts)-1))
        cnt=defaultdict(int)
        for m in ms: cnt[m[2]]+=1
        assert all(cnt[T]==16 for T in range(12)) and len({(m[1],m[2]) for m in ms})==192
        assert all(m[1]//16==m[2]//6 for m in ms)
        plan=defaultdict(list)
        for n,u in cfg['plan']: plan[n].append(u)
        s.curoff=None
        def doplan(n):
            rel=s.now(); us=plan.get(n,[])
            nd=sum({'B':4,'K':2,'V':2,'Q':4}.get(u[0],0) for u in us)
            step = 0 if n<0 else max(1,cfg.get('span',16)//max(nd,1))
            for u in us:
                st = u[2] if len(u)>2 and u[0] in 'BKVQ' else step
                if u[0]=='B':
                    s.dma_kv('K',u[1],rel,st); s.dma_kv('V',u[1],rel+2*st,st); rel+=4*st
                elif u[0] in 'KV':
                    s.dma_kv(u[0],u[1],rel,st); rel+=2*st
                elif u[0]=='Q':
                    s.dma_q(u[1],rel,st); rel+=4*st
                elif u[0]=='q': s.read_q(u[1],s.now())
                elif u[0]=='o': s.read_o(u[1],u[2],s.now())
                elif u[0]=='s': s.store_o(u[1],s.now(),u[2],*u[3:])
                elif u[0]=='bar': s.barrier()
        seen=defaultdict(int); seenpv=defaultdict(int); s.seen=defaultdict(int); s.qread=set(); s.stgown=[None,None]; s.parkown={}; s.nst=0
        barset=cfg.get('barvisits')
        doplan(-1)
        s.barrier(); s.read_k(ms[0][1],s.KORD)
        N=len(ms)
        for n in range(N+LAG):
            if n<N:
                vi,g,T,fi,la=ms[n]
                if la and n+1<N and (barset is None or vi+1 in barset): s.barrier()
                doplan(n)
                assert T in s.qread, ('Q not loaded',T)
                s.qk(n,T); s.seen[T]+=1
            m=n-LAG
            if m>=0:
                T1=ms[m][2]
                s.pv(m,T1,seenpv[T1]==0); seenpv[T1]+=1
                if seenpv[T1]==16:
                    e=s.epilogue(T1)
                    if T1 in imm:
                        s.read_o(T1,imm[T1][0],e)
                        if imm[T1][1] is not None: s.store_o(T1,e+10,imm[T1][1])
            if n<N:
                s.sm(n,T,seen[T]==0); seen[T]+=1
                if la and n+1<N: s.read_k(ms[n+1][1],s.KORD)
            if m+1>=0 and m+1<N and ms[m+1][3]: s.read_v(ms[m+1][1])
        assert s.nst==48
        s.P.ops=[o for o in s.P.ops if not (o.kind=='bar' and not o.reads)]
        for i,o in enumerate(s.P.ops): o.idx=i
        out=s.P.schedule(ldsrate=cfg.get('ldsrate',1024),ldsburst=cfg.get('ldsburst',1024))
        out=insert_waits(out,cfg.get('merge',9))
        verify_waits(out)
        check_hazards(out)
        return out

def PRO(cfg):
  t=f"""
    s_cmp_ge_u32 s2, 256
    s_cbranch_scc1 L_end
    s_load_dwordx4 s[64:67], s[0:1], 0
    s_load_dwordx4 s[68:71], s[0:1], 16
    v_lshrrev_b32 v1, 6, v0
    s_lshr_b32 s73, s2, 3
    s_getpc_b64 s[86:87]
L_pc:
    v_and_b32 v2, 31, v0
    v_lshlrev_b32 v2, 12, v2
    s_lshl_b32 s88, s73, 7
    v_add_u32 v2, s88, v2
    v_min_u32 v2, L_end-L_main, v2
    s_add_u32 s86, s86, L_main-L_pc
    s_addc_u32 s87, s87, 0
    v_readfirstlane_b32 s{sW}, v1
    v_and_b32 v0, 63, v0
    global_load_dword v4, v2, s[86:87]
    s_and_b32 s72, s2, 7
    s_lshr_b32 s74, s73, 1
    s_and_b32 s75, s73, 1
    s_lshl_b32 s72, s72, 4
    s_add_u32 s72, s72, s74
    s_lshl_b32 s76, s72, 18
    s_mul_i32 s77, s72, {2*768*256}
    s_mul_i32 s78, s75, {384*256}
    s_add_u32 s77, s77, s78
    s_and_b32 s79, s{sW}, 1
    s_lshr_b32 s80, s{sW}, 1
    s_lshl_b32 s81, s79, 10
    s_lshl_b32 s82, s80, 12
    s_add_u32 s{sWL}, s81, s82       ; LDS: (w&1)*1024 + (w>>1)*4096
    s_lshl_b32 s81, s79, 7
    s_add_u32 s81, s81, s82          ; global: (w&1)*128 + (w>>1)*4096
    s_mul_i32 s83, s{sW}, 24576
    s_sub_u32 s{sWQ}, s83, s81
    s_lshl_b32 s{sWS}, s{sW}, 13
    ; DMA voffset: (i>>3)*256 + ((i&7)^((i>>3)&6))*16 + wave part
    v_lshrrev_b32 v1, 3, v0
    v_and_b32 v2, 6, v1
    v_and_b32 v3, 7, v0
    v_xor_b32 v2, v2, v3
    v_lshlrev_b32 v2, 4, v2
    v_lshl_add_u32 v2, v1, 8, v2
    v_add_u32 v{vDMA}, s81, v2
    s_mov_b32 s{sQ+2}, {1152*256}
    s_mov_b32 s{sQ+3}, 0x20000
    s_mov_b32 s{sK+2}, 0x40000
    s_mov_b32 s{sK+3}, 0x20000
    s_mov_b32 s{sV+2}, 0x40000
    s_mov_b32 s{sV+3}, 0x20000
    s_mov_b32 s{sO+2}, {1152*256}
    s_mov_b32 s{sO+3}, 0x20000
    s_waitcnt lgkmcnt(0)
    s_add_u32 s{sQ}, s64, s77
    s_addc_u32 s{sQ+1}, s65, 0
    s_add_u32 s{sK}, s66, s76
    s_addc_u32 s{sK+1}, s67, 0
    s_add_u32 s{sV}, s68, s76
    s_addc_u32 s{sV+1}, s69, 0
    s_add_u32 s{sO}, s70, s77
    s_addc_u32 s{sO+1}, s71, 0
"""
  if cfg.get('adj'):
    t=t.replace("    s_add_u32 s72, s72, s74          ; pair index 0..127\n","    s_lshr_b32 s72, s2, 1\n    s_and_b32 s75, s2, 1\n")
  return t
PRO2 = f"""
    s_mov_b32 s{sC}, 0x{f2u(CSC):08x}
    s_mov_b32 s{sTH}, 0x5f800000
    s_add_u32 s84, s{sWS}, {STG}
    v_xor_b32 v2, v1, v3
    v_lshlrev_b32 v2, 4, v2
    v_lshl_add_u32 v2, v1, 8, v2
    v_add_u32 v{vOst}, s83, v2
    v_lshl_add_u32 v{vOr}, v0, 4, s84
    v_and_b32 v1, 15, v0
    v_lshrrev_b32 v2, 4, v0
    v_and_b32 v5, 7, v1
    v_lshlrev_b32 v6, 7, v5
    v_lshrrev_b32 v7, 3, v1
    v_lshl_add_u32 v6, v7, 11, v6
    v_and_b32 v3, 6, v1
    v_xor_b32 v3, v3, v2
    v_lshl_add_u32 v{vKa[0]}, v3, 4, v6
    v_xor_b32 v{vKa[1]}, 64, v{vKa[0]}
    v_add_u32 v{vQa[0]}, s84, v{vKa[0]}
    v_add_u32 v{vQa[1]}, s84, v{vKa[1]}
    v_lshrrev_b32 v3, 1, v2
    v_xor_b32 v3, v3, v5
    v_lshl_add_u32 v3, v3, 4, v6
    v_and_b32 v2, 1, v2
    v_lshl_add_u32 v3, v2, 3, v3
    v_add_u32 v{vOw[0]}, s84, v3
    v_xor_b32 v{vOw[1]}, 32, v{vOw[0]}
    v_xor_b32 v{vOw[2]}, 64, v{vOw[0]}
    v_xor_b32 v{vOw[3]}, 0x60, v{vOw[0]}
    v_lshrrev_b32 v1, 2, v0
    v_and_b32 v2, 6, v1
    v_bfe_u32 v3, v0, 1, 1
    v_xor_b32 v2, v2, v3
    v_lshlrev_b32 v2, 4, v2
    v_and_b32 v3, 1, v0
    v_lshl_add_u32 v2, v3, 3, v2
    v_and_b32 v3, 7, v1
    v_lshl_add_u32 v2, v3, 7, v2
    v_lshrrev_b32 v3, 3, v1
    v_lshl_add_u32 v2, v3, 11, v2
    v_add_u32 v{vVa[0]}, {VRING}, v2
    v_xor_b32 v{vVa[1]}, 32, v{vVa[0]}
    v_xor_b32 v{vVa[2]}, 64, v{vVa[0]}
    v_xor_b32 v{vVa[3]}, 0x60, v{vVa[0]}
    v_mov_b32 v1, 0x3f803f80
    v_accvgpr_write_b32 a{aOne}, v1
    v_accvgpr_write_b32 a{aOne+1}, v1
    v_accvgpr_write_b32 a{aOne+2}, v1
    v_accvgpr_write_b32 a{aOne+3}, v1
"""

def slow_path():
    L=[]
    A=L.append
    A("    s_or_b64 s[64:65], s[40:41], s[42:43]")
    for T in range(2,12): A(f"    s_or_b64 s[64:65], s[64:65], s[{sFlag+2*T}:{sFlag+2*T+1}]")
    A("    s_cbranch_scc0 L_end")
    A("    s_mov_b32 s66, 0")
    for T in range(12):
        A(f"    s_cmp_lg_u64 s[{sFlag+2*T}:{sFlag+2*T+1}], 0")
        A(f"    s_cselect_b32 s67, {1<<T}, 0")
        A("    s_or_b32 s66, s66, s67")
    A("    s_waitcnt vmcnt(0) lgkmcnt(0)")
    A("    v_mbcnt_lo_u32_b32 v8, -1, 0")
    A("    v_mbcnt_hi_u32_b32 v8, -1, v8")
    A("    v_and_b32 v9, 15, v8")
    A("    v_lshrrev_b32 v10, 4, v8")
    A("    v_lshlrev_b32 v11, 4, v10")
    A("    v_lshl_add_u32 v14, v9, 8, v11")
    A("    v_add_u32 v15, s83, v14")
    A("    v_and_b32 v11, 1, v10")
    A("    v_lshlrev_b32 v11, 1, v11")
    A("    v_lshrrev_b32 v12, 1, v10")
    A("    v_or_b32 v11, v11, v12")
    A("    v_lshlrev_b32 v11, 4, v11")
    A("    v_lshl_add_u32 v11, v9, 8, v11")
    A("    v_add_u32 v13, s83, v11")
    A(f"    v_subrev_u32 v16, s81, v{vDMA}")
    A(f"    s_add_u32 s68, s{sWS}, {STG-VRING}")
    for i in range(4): A(f"    v_add_u32 v{20+i}, s68, v{vVa[i]}")
    for i in range(4): A(f"    v_mov_b32 v{196+i}, 0x3f803f80")
    A("    s_mov_b32 s69, 0")
    A("L_slow_tile:")
    A("    s_bitcmp1_b32 s66, s69")
    A("    s_cbranch_scc0 L_slow_next")
    A("    s_cmp_ge_u32 s69, 6")
    A("    s_cselect_b32 s70, 0x20000, 0")
    A(f"    s_cselect_b32 s71, {(768-96)*256}, 0")
    A("    s_lshl_b32 s72, s69, 12")
    A("    s_add_u32 s71, s71, s72                ; q/o offset")
    for st in range(4): A(f"    buffer_load_dwordx4 v[{64+4*st}:{67+4*st}], v15, s[{sQ}:{sQ+3}], s71 offen offset:{64*st}")
    A("    v_mov_b32 v17, 0xff800000")
    A("    s_mov_b32 s72, s70")
    A("    s_add_u32 s73, s70, 0x20000")
    A("L_slow_max:")
    for st in range(4): A(f"    buffer_load_dwordx4 v[{80+4*st}:{83+4*st}], v14, s[{sK}:{sK+3}], s72 offen offset:{64*st}")
    A("    s_waitcnt vmcnt(0)")
    for st in range(4): A(f"    v_mfma_f32_16x16x32_bf16 v[0:3], v[{80+4*st}:{83+4*st}], v[{64+4*st}:{67+4*st}], {'0' if st==0 else 'v[0:3]'}")
    A("    s_nop 15")
    A("    v_max3_f32 v17, v17, v0, v1")
    A("    v_max3_f32 v17, v17, v2, v3")
    A("    s_add_u32 s72, s72, 4096")
    A("    s_cmp_lt_u32 s72, s73")
    A("    s_cbranch_scc1 L_slow_max")
    for sw in ("16","32"):
        A("    v_mov_b32 v18, v17"); A("    s_nop 1")
        A(f"    v_permlane{sw}_swap_b32 v17, v18"); A("    s_nop 1")
        A("    v_max_f32 v17, v17, v18")
    A(f"    v_mul_f32 v17, 0x{f2u(-CSC):08x}, v17")
    for r in range(160,196): A(f"    v_mov_b32 v{r}, 0")
    A("    s_mov_b32 s72, s70")
    A("L_slow_blk:")
    A("    s_add_u32 s74, s72, 4096")
    for f in range(8):
        kt,st=divmod(f,4)
        A(f"    buffer_load_dwordx4 v[{80+4*f}:{83+4*f}], v14, s[{sK}:{sK+3}], {'s72' if kt==0 else 's74'} offen offset:{64*st}")
    for kt in range(2):
        for half in range(2):
            A(f"    s_add_u32 m0, s{sWS}, {STG+kt*4096+half*896}")
            A("    s_nop 0")
            for oc in range(2):
                A(f"    buffer_load_dwordx4 v16, s[{sV}:{sV+3}], {'s72' if kt==0 else 's74'} offen offset:{2048*oc+128*half} lds")
    A("    s_waitcnt vmcnt(0)")
    for t in range(8):
        for kt in range(2):
            A(f"    ds_read_b64_tr_b16 v[{112+4*t+2*kt}:{113+4*t+2*kt}], v{20+t%4} offset:{kt*4096+(t//4)*1024}")
    for f in range(8):
        kt,st=divmod(f,4); d=4*kt
        A(f"    v_mfma_f32_16x16x32_bf16 v[{d}:{d+3}], v[{80+4*f}:{83+4*f}], v[{64+4*st}:{67+4*st}], {'0' if st==0 else f'v[{d}:{d+3}]'}")
    A("    s_nop 15")
    for i in range(8): A(f"    v_fma_f32 v{i}, v{i}, s{sC}, v17")
    for i in range(8): A(f"    v_exp_f32 v{i}, v{i}")
    A("    s_nop 1")
    for k in range(4): A(f"    v_cvt_pk_bf16_f32 v{24+k}, v{2*k}, v{1+2*k}")
    A("    s_waitcnt lgkmcnt(0)")
    A("    s_nop 1")
    for t in range(8): A(f"    v_mfma_f32_16x16x32_bf16 v[{160+4*t}:{163+4*t}], v[{112+4*t}:{115+4*t}], v[24:27], v[{160+4*t}:{163+4*t}]")
    A("    v_mfma_f32_16x16x32_bf16 v[192:195], v[196:199], v[24:27], v[192:195]")
    A("    s_add_u32 s72, s72, 8192")
    A("    s_cmp_lt_u32 s72, s73")
    A("    s_cbranch_scc1 L_slow_blk")
    A("    s_nop 15")
    A("    v_rcp_f32 v18, v192")
    A("    s_nop 1")
    for r in range(160,192): A(f"    v_mul_f32 v{r}, v{r}, v18")
    for m in range(4):
        o=160+8*m
        for i in range(4): A(f"    v_cvt_pk_bf16_f32 v{o+i}, v{o+2*i}, v{o+2*i+1}")
        A("    s_nop 1")
        for i in range(2): A(f"    v_permlane16_swap_b32 v{o+i}, v{o+i+2}")
        A(f"    buffer_store_dwordx4 v[{o}:{o+3}], v13, s[{sO}:{sO+3}], s71 offen offset:{64*m}")
    A("    s_waitcnt vmcnt(0)")
    A("L_slow_next:")
    A("    s_add_u32 s69, s69, 1")
    A("    s_cmp_lt_u32 s69, 12")
    A("    s_cbranch_scc1 L_slow_tile")
    return "\n".join(L)+"\n"

def isize(t):
    t=t.strip(); op=t.split()[0]
    if op.startswith(('v_mfma','ds_','buffer_','global_','v_fma_f32','v_cvt_pk','v_max3','v_pk_','v_accvgpr','v_writelane','s_mem')) or op.endswith('_e64'): return 8
    if op in('s_waitcnt','s_barrier','s_nop') or op.startswith('s_cbranch'): return 4
    for a in t.split(None,1)[1].replace(',',' ').split():
        try: v=int(a,0)
        except ValueError: continue
        if not -16<=v<=64: return 8
    return 4

HEAD = open('cdna_kernels/'+NAME+'.s.ref').read().split('; Override')[0]
def emit(cfg, path):
    g=Gen(cfg); out=g.build()
    abl=cfg.get('ablate')
    if abl:
        nb=0; o2=[]
        for o in out:
            if o.kind=='bar': nb+=1
            if nb>=3 and any((a==o.kind) or (a in o.text) for a in abl): continue
            o2.append(o)
        out=o2
    marks=[]; est=estimate(out,marks)
    stamp=cfg.get('stamp'); warm=cfg.get('warm',True)
    ns=[0]
    def st(reg, real=False):
        return [f"s_mem{'real' if real else ''}time s[90:91]","s_waitcnt lgkmcnt(0)",f"v_writelane_b32 v{reg}, s90, {ns[0]}"]
    k0=0
    while out[k0].kind in('dma','salu','nop'): k0+=1
    first=[o.text for o in out[:k0]]; nfirst=sum(1 for o in out[:k0] if o.kind=='dma')
    lines=[]; nbar=0; nm=0; probe=cfg.get('probe')
    for k in range(k0,len(out)):
        o=out[k]
        if stamp is True and o.kind=='wait' and 'v' in o.tag and any(x.kind=='bar' for x in out[k+1:k+12]):
            ns[0]+=1; lines+=[(x,'x') for x in st(62)]; ns[0]-=1
        lines.append((o.text,o.kind))
        if o.kind=='bar': nbar+=1
        if probe and o.kind=='bar' and nbar in probe[:2]:
            r = 92 if nbar==probe[0] else 94
            lines+=[(f"s_mem{'real' if probe[2]=='rt' else ''}time s[{r}:{r+1}]",'x'),("s_waitcnt lgkmcnt(0)",'x')]
        if o.kind=='mfma': nm+=1
        if stamp and ((stamp is True and o.kind=='bar') or (stamp is not True and o.kind=='mfma' and (nm-1)%17==0 and (nm-1)//17 in stamp)):
            ns[0]+=1; lines+=[(x,'x') for x in st(61)+st(63,True)]
    body=[]; addr=0; page=0; stubs=0
    tot=sum(isize(t) for t,_ in lines); npages=(tot+200)//4096+1
    for i,(t,kd) in enumerate(lines):
        if warm and addr>=page*4096 and page<npages:
            prevm = i>0 and lines[i-1][1]=='mfma'
            if (prevm and kd not in SC_KINDS) or addr+isize(t)>page*4096+56 or page==0:
                nxt=page+4
                body.append(f"L_stub{page}:\n s_cbranch_vccnz {'L_stub%d'%nxt if nxt<npages else 'L_back'}\n")
                body.append(f".if ((L_stub{page}-L_main)>>6) != {page*64}\n.error \"stub misplaced\"\n.endif\n")
                addr+=4; page+=1
        body.append(" "+t+"\n"); addr+=isize(t)
    while warm and page<npages:
        body.append(f"L_stub{page}:\n s_cbranch_vccnz L_back\n"); page+=1
    txt=HEAD+"; @launch grid=(256,1,1) block=(256,1,1) lds=163840\n"
    txt+=f'.amdgcn_target "amdgcn-amd-amdhsa--gfx950"\n.text\n.globl {NAME}_kernel\n.p2align 8\n.type {NAME}_kernel,@function\n{NAME}_kernel:\n'
    if probe:
        txt+=" s_memrealtime s[90:91]\n"
        if probe[0]==0: txt+=f" s_mem{'real' if probe[2]=='rt' else ''}time s[92:93]\n"
        txt+=" s_waitcnt lgkmcnt(0)\n"
        if cfg.get('gstart'):
            txt+=" s_load_dwordx2 s[34:35], s[0:1], 32\n s_not_b32 s36, s90\n v_mov_b32 v10, s36\n v_mov_b32 v11, 0\n s_waitcnt lgkmcnt(0)\n v_cmp_eq_u32 vcc, 0, v0\n s_and_saveexec_b64 s[36:37], vcc\n s_cbranch_execz L_gs\n global_atomic_umax v11, v10, s[34:35]\nL_gs:\n s_mov_b64 exec, s[36:37]\n"
    if cfg.get('pre_nop'):
        txt+=f" s_mov_b32 s64, {cfg['pre_nop']}\nL_pn:\n"+" s_nop 15\n"*16+" s_sub_u32 s64, s64, 1\n s_cmp_lg_u32 s64, 0\n s_cbranch_scc1 L_pn\n"
    txt+=PRO(cfg)
    txt+="".join(" "+t+"\n" for t in first)
    if stamp:
        n=ns[0]; ns[0]=0
        txt+=" v_mov_b32 v61, 0\n v_mov_b32 v62, 0\n v_mov_b32 v63, 0\n"+"".join(" "+x+"\n" for x in st(61)+st(63,True)); ns[0]=n
    txt+=PRO2
    txt+=f"    s_waitcnt vmcnt({nfirst})\n"
    if warm:
        txt+="    ; touch the first line of every 4 KB code page (instruction-cache warm-up while the first loads are in flight)\n    s_mov_b64 vcc, -1\n"
        for w in range(3): txt+=f"    s_cmp_eq_u32 s{sW}, {w}\n    s_cbranch_scc1 L_stub{w}\n"
        txt+="    s_branch L_stub3\n"
        txt+="L_back:\n    s_mov_b64 vcc, 0\n"
    txt+="    s_branch L_main\n.p2align 12\nL_main:\n"
    txt+="".join(body)
    if stamp:
        ns[0]+=1; txt+="".join(" "+x+"\n" for x in st(61)+st(63,True)); ns[0]+=1
        txt+=" s_waitcnt vmcnt(0)\n"+"".join(" "+x+"\n" for x in st(61)+st(63,True))
        txt+=f""" s_load_dwordx2 s[92:93], s[0:1], 40
 s_lshl_b32 s90, s2, 2
 s_add_u32 s90, s90, s{sW}
 s_mul_i32 s90, s90, 768
 v_mbcnt_lo_u32_b32 v1, -1, 0
 v_mbcnt_hi_u32_b32 v1, -1, v1
 v_lshlrev_b32 v1, 2, v1
 v_add_u32 v1, s90, v1
 s_waitcnt lgkmcnt(0)
 global_store_dword v1, v61, s[92:93]
 global_store_dword v1, v62, s[92:93] offset:256
 global_store_dword v1, v63, s[92:93] offset:512
"""
    if probe:
        if probe[1]==99: txt+=f" s_mem{'real' if probe[2]=='rt' else ''}time s[94:95]\n s_waitcnt lgkmcnt(0)\n"
        if probe[1]==100: txt+=f" s_waitcnt vmcnt(0)\n s_mem{'real' if probe[2]=='rt' else ''}time s[94:95]\n s_waitcnt lgkmcnt(0)\n"
        if probe[1]<0: txt+=" s_mov_b32 s94, s92\n"
        if cfg.get('gstart'):
            txt+=" v_mov_b32 v11, 0\n global_load_dword v10, v11, s[34:35] sc0 sc1\n s_waitcnt vmcnt(0)\n v_readfirstlane_b32 s90, v10\n s_nop 3\n s_not_b32 s90, s90\n"
            if cfg['gstart']==2: txt+=" s_mov_b32 s92, s90\n"
        txt+=" s_sub_u32 s94, s94, s92\n"
        if probe[2]=='cyc': txt+=" s_lshr_b32 s94, s94, 4\n"
        txt+=" s_add_u32 s94, s94, 10000\nL_spin:\n s_memrealtime s[92:93]\n s_waitcnt lgkmcnt(0)\n s_sub_u32 s92, s92, s90\n s_cmp_lt_u32 s92, s94\n s_cbranch_scc1 L_spin\n"
    if cfg.get('extra_mfma'):
        n,kind=cfg['extra_mfma']
        txt+=f" s_waitcnt vmcnt(0)\n s_mov_b32 s64, {n}\nL_xm:\n"
        L=[]
        if kind.startswith('m16'):
            for j in range(6):
                for i,f in enumerate(Gen.KORD):
                    kt,st=divmod(f,4); d=8*(j%2)+4*kt
                    L.append(f" v_mfma_f32_16x16x32_bf16 v[{d}:{d+3}], a[{160+4*f}:{163+4*f}], a[{192+16*(j%2)+4*st}:{195+16*(j%2)+4*st}], {'0' if i%4==0 else f'v[{d}:{d+3}]'}\n")
                for t in range(8):
                    d=64+32*j+4*t
                    L.append(f" v_mfma_f32_16x16x32_bf16 v[{d}:{d+3}], a[{192+4*t}:{195+4*t}], v[{24+4*(j%3)}:{27+4*(j%3)}], v[{d}:{d+3}]\n")
            if kind=='m16nop': L=[x+(" s_nop 0\n s_nop 0\n s_nop 0\n s_nop 0\n s_nop 0\n" if k%2 else "") for k,x in enumerate(L)]
            if kind=='m16v': L=[x+(f" v_exp_f32 v{40+k%8}, v{24+k%12}\n" if k%2 else f" v_fma_f32 v{48+k%8}, v{24+k%12}, s24, v{25+k%10}\n v_cvt_pk_bf16_f32 v{49+k%8}, v{24+k%12}, v{25+k%10}\n") for k,x in enumerate(L)]
        else:
            for j in range(3):
                for st in range(8):
                    L.append(f" v_mfma_f32_32x32x16_bf16 v[0:15], a[{160+4*st}:{163+4*st}], a[{192+4*((st+j)%8)}:{195+4*((st+j)%8)}], {'0' if st==0 else 'v[0:15]'}\n")
                for t in range(8):
                    d=64+64*j+16*(t%4)
                    L.append(f" v_mfma_f32_32x32x16_bf16 v[{d}:{d+15}], a[{192+4*t}:{195+4*t}], v[{24+4*((t//4+j)%3)}:{27+4*((t//4+j)%3)}], v[{d}:{d+15}]\n")
        txt+="".join(L)
        txt+=" s_sub_u32 s64, s64, 1\n s_cmp_lg_u32 s64, 0\n s_cbranch_scc1 L_xm\n s_nop 15\n"
    if cfg.get('extra_nop'):
        txt+=f" s_mov_b32 s64, {cfg['extra_nop']}\nL_xn:\n"+" s_nop 15\n"*16+" s_sub_u32 s64, s64, 1\n s_cmp_lg_u32 s64, 0\n s_cbranch_scc1 L_xn\n"
    txt+=" s_nop 1\n"+slow_path()
    txt+=f"""L_end:
    s_endpgm
.section .rodata,"a"
.p2align 6
.amdhsa_kernel {NAME}_kernel
  .amdhsa_next_free_vgpr 512
  .amdhsa_next_free_sgpr 96
  .amdhsa_accum_offset 256
  .amdhsa_group_segment_fixed_size 0
  .amdhsa_kernarg_size 48
  .amdhsa_user_sgpr_count 2
  .amdhsa_user_sgpr_kernarg_segment_ptr 1
  .amdhsa_system_sgpr_workgroup_id_x 1
.end_amdhsa_kernel
"""
    open(path,'w').write(txt)
    from collections import Counter
    print(path, "ops",len(out),"est",est, dict(Counter(o.kind for o in out)), "code",addr)
    if cfg.get('verbose'): print(' segs',[b-a for a,b in zip(marks,marks[1:]+[est])])
    if stamp and stamp is not True:
        mt=[]; estimate(out,None,mt); pts=[mt[17*n] for n in stamp]+[est]
        print(' est stamp segs',[b-a for a,b in zip(pts,pts[1:])])
    from asm import asm
    asm(path)
    return out
```

```python
import re
from collections import defaultdict

COST = dict(mfma=8, valu=4, trans=8, perm=8, pk=4, dsr=4, dsw=12, dma=12, gld=12, gst=8, salu=0, bar=0, wait=0, nop=0)
VALU_KINDS = ('valu','trans','perm','pk')
MEM_KINDS = ('dsr','dsw','dma','gld','gst')
SC_KINDS = ('salu','bar','wait','nop')
DS=('dsr','dsw'); VM=('dma','gld','gst')

def R(p, lo, n=1):
    return [f"{p}{i}" for i in range(lo, lo+n)]
def rng(p, lo, n):
    return f"{p}{lo}" if n==1 else f"{p}[{lo}:{lo+n-1}]"

class Op:
    __slots__=('text','kind','reads','writes','cread','release','deadline','margin','preds','succs','idx','bb','pos','lat','prio','cost','tag','hole','nws','gap')
    def __init__(s, text, kind, reads=(), writes=(), cread=(), release=None, deadline=None, margin=0, tag=None, cost=None, hole=False):
        s.text=text; s.kind=kind; s.reads=list(reads); s.writes=list(writes); s.cread=list(cread)
        s.release=release; s.deadline=deadline; s.margin=margin
        s.preds=[]; s.succs=[]; s.bb=None; s.pos=None; s.tag=tag; s.hole=hole
        s.cost = COST[kind] if cost is None else cost
        s.nws = 1; s.gap=None
    def __repr__(s): return f"<{s.text}>"

def vec(S): return {x for x in S if x[0] in 'va' and x[1:].isdigit()}
def hazard_dist(a, b):
    d=0
    aw=set(a.writes); br=set(b.reads); bw=set(b.writes)
    if a.kind=='mfma':
        D=vec(aw)
        if b.kind=='mfma':
            ab = vec(br)-set(b.cread)
            if D & ab: d=max(d,8)
            c=set(b.cread)
            if D & c and c!=D: d=max(d,6)
        elif b.kind in VALU_KINDS:
            if D & (br|bw): d=max(d,8)
            if set(a.cread) & bw: d=max(d,3)
        elif b.kind in MEM_KINDS:
            if D & (br|bw): d=max(d,8)
    elif a.kind in VALU_KINDS:
        W=vec(aw)
        if b.kind=='mfma' and W & br: d=max(d,2)
        if b.kind=='perm' and W & br: d=max(d,2)
        if a.kind=='trans' and b.kind in ('valu','perm','pk') and W & br: d=max(d,1)
        sw={x for x in aw if x[0]=='s' or x=='vcc'}
        if sw & br:
            if b.kind in VALU_KINDS: d=max(d,2)
            elif b.kind in MEM_KINDS: d=max(d,5)
            else: d=max(d,2)
    elif a.kind=='salu':
        if 'm0' in aw and b.kind=='dma': d=max(d,1)
    elif a.kind=='gst':
        if vec(set(a.reads)) & bw: d=max(d,2)
    return d

class Program:
    def __init__(s):
        s.ops=[]
    def add(s, op):
        op.idx=len(s.ops); s.ops.append(op); return op
    def build_deps(s):
        lastw={}; readers=defaultdict(list)
        for o in s.ops:
            P=set()
            for r in o.reads:
                if r in lastw: P.add(lastw[r])
            for w in o.writes:
                if w in lastw: P.add(lastw[w])
                for x in readers[w]: P.add(x)
            P.discard(o)
            for p in P:
                o.preds.append(p); p.succs.append(o)
            for r in o.reads: readers[r].append(o)
            for w in o.writes:
                lastw[w]=o; readers[w]=[]
    def schedule(s, budget=8, ldsrate=1024, ldsburst=1024):
        s.build_deps()
        bbs=[o for o in s.ops if o.kind=='mfma']
        for i,o in enumerate(bbs): o.bb=i
        N=len(bbs)
        for o in reversed(s.ops):
            if o.kind=='mfma': continue
            lat = N-1
            pr = lat
            if o.deadline is not None: pr=min(pr,o.deadline)
            wr={w for w in o.writes if ':' not in w}
            for x in o.succs:
                mg = o.margin if wr & set(x.reads) else 0
                if x.kind=='mfma':
                    lat=min(lat,x.bb-1); pr=min(pr,x.bb-1-mg)
                else:
                    lat=min(lat,x.lat); pr=min(pr,x.prio-mg)
            o.lat=lat; o.prio=pr
            if o.release is not None and o.release>lat: o.release=lat
        out=[]
        npred={o:len(o.preds) for o in s.ops}
        ready=[o for o in s.ops if o.kind!='mfma' and not o.preds]
        cur=[-1]
        def dist(o):
            need=0; k=0
            for p in reversed(out[-10:]):
                d=hazard_dist(p,o)
                if d>k: need=max(need,d-k)
                k+=p.nws
            return need
        def emit(o):
            n=dist(o)
            if n>0:
                nop=Op(f"s_nop {n-1}",'nop'); nop.nws=n; nop.cost=4*n; nop.pos=len(out); nop.gap=cur[0]; out.append(nop)
            o.pos=len(out); o.gap=cur[0]; out.append(o)
            for x in o.succs:
                npred[x]-=1
                if npred[x]==0 and x.kind!='mfma': ready.append(x)
            if o in ready: ready.remove(o)
            return o.cost+(4*n)
        lastds=[-9]; tok=[ldsburst]
        def fill(g):
            cur[0]=g
            used=0; shadow=(g>=0); memok=True; bud=budget
            last=(g==N-1)
            tok[0]=min(ldsburst,tok[0]+ldsrate)
            while True:
                cands=[o for o in ready if (o.release is None or o.release<=g)]
                if not cands: break
                if g<0:
                    cands=[o for o in cands if o.prio<=g]
                    if not cands: break
                    cands.sort(key=lambda o:o.idx); emit(cands[0]); continue
                cands.sort(key=lambda o:(o.prio,o.idx))
                sc=[o for o in cands if o.kind in SC_KINDS]
                if shadow and sc:
                    shadow=False; emit(sc[0]); continue
                shadow=False
                pk=[o for o in cands if o.kind=='pk' and o.prio<=g]
                if pk: bud=max(bud,20)
                rem=bud-used
                v=[o for o in cands if o.kind in('valu','trans','perm') and dist(o)==0]
                if memok:
                    pick=None
                    for o in cands:
                        if o.kind not in MEM_KINDS or dist(o): continue
                        if o.kind in('dma','gld') and lastds[0]>=g-1 and o.lat>g and o.prio>g-4: continue
                        due = o.prio<=g
                        if o.kind=='dsr':
                            by = 512 if 'b64' in o.text else 1024
                            if not due and (tok[0]<by or (used==0 and tok[0]<ldsburst)): continue
                            ok = (o.cost<=rem and not o.hole) or (due and used<12) or (o.hole and o.cost<=rem and sum(x.cost for x in v)<rem)
                        else:
                            ok = used==0 and (due or not v)
                        if ok: pick=o; break
                    if pick:
                        used+=emit(pick)
                        if pick.kind in DS: lastds[0]=g
                        if pick.kind=='dsr': tok[0]-= 512 if 'b64' in pick.text else 1024
                        if pick.kind=='gst': bud=max(bud,22)
                        continue
                fit=[o for o in v if o.cost<=rem]
                due=[o for o in v if o.prio<=g]
                pick=None
                if fit:
                    pick=fit[0]
                    if rem%8==0 and pick.cost==4:
                        n4=[o for o in fit if o.cost==4]; n8=[o for o in fit if o.cost==8]
                        if len(n4)<2 and n8: pick=n8[0]
                    if due and due[0] not in fit: pick=due[0]
                elif due: pick=due[0]
                if pick:
                    memok=False; used+=emit(pick); continue
                if pk and dist(pk[0])==0 or (pk and pk[0].lat<=g):
                    memok=False; used=max(used,20); used+=emit(pk[0]); continue
                must=[o for o in cands if o.lat<=g or (o.prio<=g and o.kind in SC_KINDS)]
                if must:
                    o=must[0]
                    c=emit(o)
                    if o.kind in SC_KINDS: c+=4
                    if o.kind in MEM_KINDS and not memok: c+=8
                    if o.kind in VALU_KINDS: memok=False
                    used+=c; continue
                break
            return used
        fill(-1)
        for g,m in enumerate(bbs):
            assert npred[m]==0, (g,m,[p for p in m.preds if p.pos is None])
            cur[0]=g
            emit(m)
            fill(g)
        left=[o for o in s.ops if o.pos is None]
        assert not left, left[:5]
        s.out=out
        return out

def insert_waits(out, merge=9):
    res=[]
    lg=[]; vm=[]
    def need(lst,o):
        k=-1
        rs={x for x in set(o.reads)|set(o.writes) if not x.startswith('O:')}
        for i,p in enumerate(lst):
            shared=set(p.writes)&rs
            if not shared: continue
            if p.kind in DS and o.kind in DS:
                shared={x for x in shared if not x.startswith('L:')}
                if p.kind=='dsr' and o.kind=='dsr':
                    shared={x for x in shared if x in o.reads}
                if not shared: continue
            if p.kind in VM and o.kind in VM:
                shared={x for x in shared if x in o.reads}
                if not shared: continue
            k=i
        return k
    def ridx(p):
        j=len(res)-1
        while res[j] is not p: j-=1
        return j
    for o in out:
        kl=need(lg,o); kv=need(vm,o)
        if kl>=0:
            while kl+1<len(lg) and lg[kl+1].gap<=o.gap-merge: kl+=1
        if kl>=0 or kv>=0:
            pl = lg[kl] if kl>=0 else None
            pv = vm[kv] if kv>=0 else None
            lastprod=max(ridx(p) for p in (pl,pv) if p is not None)
            pos=len(res)
            j=len(res)-1; tries=0; found=None
            while j>lastprod and tries<3:
                if res[j].kind=='mfma':
                    tries+=1
                    nxt = res[j+1] if j+1<len(res) else o
                    if nxt.kind=='wait' or nxt.kind not in SC_KINDS:
                        found=j+1; break
                j-=1
            if found is not None: pos=found
            cnt=lambda p,kinds: sum(1 for x in res[ridx(p)+1:pos] if x.kind in kinds)
            nl = min(15,cnt(pl,DS)) if pl else None
            nv = min(63,cnt(pv,VM)) if pv else None
            if pos<len(res) and res[pos].kind=='wait':
                w=res[pos]
                if nl is not None: w.tag['l']=min(nl,w.tag.get('l',99))
                if nv is not None: w.tag['v']=min(nv,w.tag.get('v',99))
            else:
                w=Op('','wait',tag={}); w.gap=o.gap
                if nl is not None: w.tag['l']=nl
                if nv is not None: w.tag['v']=nv
                res.insert(pos,w)
            w.text='s_waitcnt '+' '.join(([f"vmcnt({w.tag['v']})"] if 'v' in w.tag else [])+([f"lgkmcnt({w.tag['l']})"] if 'l' in w.tag else []))
            if kl>=0: lg=lg[kl+1:]
            if kv>=0: vm=vm[kv+1:]
        res.append(o)
        if o.kind in DS: lg.append(o)
        if o.kind in VM: vm.append(o)
        assert len(vm)<=63, "vmcnt overflow"
    return res

def verify_waits(out):
    lg=[]; vm=[]
    for o in out:
        if o.kind=='wait':
            if 'l' in o.tag: lg=lg[max(0,len(lg)-o.tag['l']):] if o.tag['l'] else []
            if 'v' in o.tag: vm=vm[max(0,len(vm)-o.tag['v']):] if o.tag['v'] else []
            continue
        rs={x for x in set(o.reads)|set(o.writes) if not x.startswith('O:')}
        for p in lg:
            sh=set(p.writes)&rs
            if o.kind in DS:
                sh={x for x in sh if not x.startswith('L:')}
                if p.kind=='dsr' and o.kind=='dsr': sh={x for x in sh if x in o.reads}
            assert not sh,(p,o,sh)
        for p in vm:
            sh=set(p.writes)&rs
            if o.kind in VM: sh={x for x in sh if x in o.reads}
            assert not sh,(p,o,sh)
        if o.kind in DS: lg.append(o)
        if o.kind in VM: vm.append(o)

def check_hazards(out):
    for i,o in enumerate(out):
        k=0
        for p in reversed(out[max(0,i-10):i]):
            d=hazard_dist(p,o)
            assert d<=k, (p,o,d,k)
            k+=p.nws

def estimate(out, marks=None, mt=None):
    t=0; lastm=-100; prev=None; vend=-100; blk=-100; dsend=-100
    for o in out:
        k=o.kind
        if k=='mfma':
            t=max(t,lastm+16,blk); lastm=t; t+=8
            if mt is not None: mt.append(t)
        elif k in SC_KINDS:
            c = 4*o.nws
            if prev is not None and prev.kind=='mfma': c-=4
            if k=='bar':
                c+=24
                if marks is not None: marks.append(t)
            t+=c
        else:
            if k=='pk': t=max(t,lastm+28)
            if k in MEM_KINDS: t=max(t,vend+8)
            if k=='dma' and prev.kind=='dsr': t+=16
            if k=='gst': blk=t+22
            t+=o.cost
            if k in VALU_KINDS: vend=t
        prev=o
    return t
```

```python
import sys
from gen import *
HEADS={
 'simple':dict(v=[(0,'012345')],
    plan=[(-1,('Q',0)),(-1,('K',0)),(-1,('Q',1)),(-1,('V',0)),(-1,('q',0)),(-1,('Q',2)),(-1,('q',1)),(-1,('Q',3)),(-1,('q',2)),(-1,('Q',4)),
          (-1,('q',3)),(-1,('Q',5)),(-1,('B',1)),(-1,('q',4)),(-1,('q',5))], nb=2, t=0, qfree=[0,0]),
 'h5':dict(v=[(0,'012'),(1,'012'),(2,'012'),(3,'0123'),(4,'01234'),(0,'345'),(1,'345'),(2,'345'),(3,'45'),(4,'5')],
    plan=[(-1,('Q',0)),(-1,('K',0)),(-1,('Q',1)),(-1,('V',0)),(-1,('q',0)),(-1,('Q',2)),
          (0,('q',1)),(0,('B',1,1)),(0,('B',2,1)),(1,('q',2)),(1,('B',3,1)),(2,('Q',3,1)),(5,('B',4,1)),(8,('Q',4,1)),(11,('q',3)),(11,('Q',5,1)),
          (16,('q',4)),(19,('q',5))], nb=5, t=13, qfree=[17,20]),
 'h6':dict(v=[(0,'01'),(1,'012'),(0,'2'),(2,'012'),(3,'012'),(4,'0123'),(5,'0123'),(0,'345'),(1,'345'),(2,'345'),(3,'345'),(4,'45'),(5,'45')],
    plan=[(-1,('Q',0)),(-1,('K',0)),(-1,('Q',1)),(-1,('V',0)),(-1,('q',0)),(-1,('B',1)),
          (0,('q',1)),(0,('Q',2,1)),(0,('B',2,1)),(1,('B',3,1)),(3,('q',2)),(3,('B',4,1)),(5,('Q',3,1)),(8,('B',5,1)),(11,('Q',4,1)),(14,('q',3)),(14,('Q',5,1)),
          (19,('q',4)),(21,('q',5))], nb=6, t=17, qfree=[20,22]),
}
def mk(head='h5', tail=4, D=5, ststep=40, TQ=5, TB=3, qlat=14, minD=3, groups=([6,7],[8,9],[10,11]), **kw):
    A=list(range(6)); B=list(range(6,12))
    H=HEADS[head]
    visits=[(g,[int(c) for c in t]) for g,t in H['v']]
    plan=list(H['plan'])
    g0=max(g for g,_ in visits)+1
    for g in range(g0,32-tail): visits.append((g,A if g<16 else B))
    if 'tailv' in kw:
        for g,t in kw['tailv']: visits.append((g,[6+int(c) for c in t]))
    elif tail:
        for k,grp in enumerate(groups):
            gs=list(range(32-tail,32))
            if kw.get('snake') and k%2: gs=gs[::-1]
            for g in gs:
                if visits[-1][0]==g: visits[-1]=(g,visits[-1][1]+list(grp))
                else: visits.append((g,list(grp)))
    first={}; last={}; n=0
    for g,ts in visits:
        first.setdefault(g,n); last[g]=n; n+=len(ts)
    t=H['t']; nb=H['nb']; nq=6; qfree=list(H['qfree'])
    n=int(t)
    while nb<32 or nq<12:
        if t>n: n+=1; continue
        ahead=sum(1 for g in range(nb) if first[g]>n)
        resident=sum(1 for g in range(nb) if last[g]+9>n)
        canB = nb<32 and resident<8 and ahead<D
        canQ = nq<12 and qfree[nq%2]<=n
        if canB and (ahead<minD or not canQ):
            plan.append((n,('B',nb,int(TB*17/4)))); nb+=1; t=max(t,n)+TB
        elif canQ:
            plan.append((n,('Q',nq,int(TQ*17/4)))); t=max(t,n)+TQ
            if nq<10:
                plan.append((n+qlat,('q',nq))); qfree[nq%2]=n+qlat+1
            else: qfree[nq%2]=999
            nq+=1
        else: n+=1
    plan.append((6*15+1,('q',10))); plan.append((6*15+2,('q',11)))
    oimm={0:(2,None),1:(3,None),2:(4,None),3:(5,None)}
    ts=kw.get('tailst',[4]*6)
    for T in range(6,12): oimm[T]=({6:6,7:7,8:8,9:9,10:0,11:1}[T],ts[T-6])
    n=6*17
    for T in range(6):
        if T>=4: plan.append((n-3,('o',T,T-2)))
        plan.append((n,('s',T,ststep)))
        n+= (4*ststep+16)//17
    c=dict(visits=visits,plan=plan,oimm=oimm,verbose=True,ldsrate=512,dsmargin=8,merge=8,dmapair=False)
    c.update(kw)
    if c.get('showplan'): print(sorted([(n,u[0]+str(u[1])) for n,u in plan if n>=0]))
    return c
if __name__=="__main__":
    for h in ('simple','h5','h6'):
        emit(mk(h,showplan=True),f'v4{h}.s')
```

```python
import sys, math, struct
from sched import *

NAME="standalone__gqa_softmax__near_ridge"
CSC = math.log2(math.e)/math.sqrt(128.0)
def f2u(x): return struct.unpack('<I',struct.pack('<f',x))[0]

vS=[0,8,16]; vP=[24,28,32,36]; vMC=40
vKa=[46,47]; vVa=[48,49,50,51]; vQa=[52,53]; vOw=[54,55,52,53]; vDMA=56; vOst=57; vOr=62; vIdx=63
vT0,vT1=59,61; vL=[58,60]; vBp=61
vO=lambda slot,t: 64+32*slot+4*t
aQ=lambda b: 16*b
aK=lambda f: 160+4*f
aV=lambda t: 192+4*t
aSum=lambda slot: 224+4*(slot//2)
aOneS=236; aOneD=[240,244]
sQ=8; sK=12; sV=16; sO=20
sC=24; sTH=25; sWL=26 ; sWQ=27; sWS=28; sOffKV=29; sOffQ=30; sOffO=31; sW=32
sFlag=40
KRING=0; VRING=65536; STG=131072

class Gen:
    def __init__(s, cfg):
        s.cfg=cfg; s.P=Program(); s.nbb=0; s.bars=[]; s.vis=set()
        s.R=cfg.get('ring',8); s.LAG=cfg.get('lag',2); s.NB=s.LAG+1
        s.lastread={}; s.dmadone={}; s.occ={'K':[None]*s.R,'V':[None]*s.R}; s.slotof={}; s.dmarel={}
        s.ldpol=cfg.get('ldpol','nt'); s.stpol=cfg.get('stpol','nt')
        s.win=cfg.get('dmawin',12); s.np=0 if cfg.get('dmapair',True) else 1
    def add(s,*a,**k):
        o=Op(*a,**k); s.P.add(o)
        if o.kind=='mfma': s.nbb+=1
        return o
    def now(s): return s.nbb-1
    def barrier(s):
        g=s.now()
        b=s.add("s_barrier",'bar',reads=[],writes=['barorder'],release=g,deadline=g)
        s.bars.append(b); return b
    def visible(s,part,g):
        if (part,g) in s.vis: return
        b=s.bars[-1]
        for bb in reversed(s.bars):
            if bb.reads and bb.release>=s.dmarel[(part,g)]+s.cfg.get('vislat',200) and s.dmadone[(part,g)]<bb.idx: b=bb; break
        assert s.dmadone[(part,g)]<b.idx, ("dma after barrier",part,g)
        b.reads.append(f"L:{part}{g}"); b.writes.append(f"vis{part}{g}"); s.vis.add((part,g))
    def dl(s,rel): return rel+s.win if rel>=0 else -1
    def dma_kv(s,part,g,rel,step):
        rd=[]
        occ=s.occ[part]
        free=[x for x in range(s.R) if occ[x] is None]
        if free: slot=free[0]
        else:
            b=s.bars[-1]
            c=[x for x in range(s.R) if s.allread[(part,occ[x])]==0 and s.lastread[(part,occ[x])]<b.idx]
            assert c, ("no free slot",part,g,occ)
            slot=min(c,key=lambda x:s.lastread[(part,occ[x])]); old=occ[slot]
            for bb in s.bars:
                if bb.idx>s.lastread[(part,old)]+s.cfg.get('freegap',60) and bb.reads: b=bb; break
            b.reads.append(f"L:rd{part}{old}"); b.writes.append(f"free{part}{old}"); rd=[f"free{part}{old}"]
        occ[slot]=g; s.slotof[(part,g)]=slot
        base=(KRING if part=='K' else VRING)+slot*8192
        s.add(f"s_add_u32 m0, s{sWL}, {base}",'salu',writes=['m0'],margin=1)
        if s.curoff!=g:
            s.add(f"s_mov_b32 s{sOffKV}, {g*8192}",'salu',writes=[f"s{sOffKV}"],margin=1); s.curoff=g
        srd=sK if part=='K' else sV
        for i in range(2):
            o=s.add(f"buffer_load_dwordx4 v{vDMA}, s[{srd}:{srd+3}], s{sOffKV} offen offset:{2048*i} {s.ldpol} lds",'dma',
                  reads=['m0',f"s{sOffKV}"]+rd,writes=[f"L:{part}{g}",'O:vm'],release=rel+i*step*s.np,deadline=s.dl(rel+i*step*s.np),tag=('pair' if i and not s.np else None))
        s.dmadone[(part,g)]=o.idx; s.dmarel[(part,g)]=o.deadline
    def dma_q(s,T,rel,step):
        buf=T%2; it,j=divmod(T,6)
        assert s.stgown[buf] is None, ("stg busy",T,s.stgown); s.stgown[buf]=('Q',T)
        k=0
        for half in range(2):
            s.add(f"s_add_u32 m0, s{sWS}, {STG+buf*4096+half*896}",'salu',writes=['m0'],margin=1)
            if half==0: s.add(f"s_add_u32 s{sOffQ}, s{sWQ}, {(it*768+16*j)*256}",'salu',writes=[f"s{sOffQ}"],margin=1)
            for oc in range(2):
                s.add(f"buffer_load_dwordx4 v{vDMA}, s[{sQ}:{sQ+3}], s{sOffQ} offen offset:{2048*oc+128*half} {s.ldpol} lds",'dma',
                      reads=['m0',f"s{sOffQ}",f"L:stg{buf}"],writes=[f"L:Q{T}",'O:vm'],release=rel+(k if s.np else 2*half)*step,deadline=s.dl(rel+(k if s.np else 2*half)*step),tag=('pair' if oc and not s.np else None))
                k+=1
    def read_q(s,T,rel):
        buf=T%2; qb=s.qbuf[T]; s.qread.add(T)
        assert all(s.seen[x]==16 for x in range(T) if s.qbuf[x]==qb), ("qbuf busy",T)
        assert s.stgown[buf]==('Q',T); s.stgown[buf]=None
        for st in range(4):
            s.add(f"ds_read_b128 {rng('a',aQ(qb)+4*st,4)}, v{vQa[st%2]} offset:{buf*4096+(st//2)*1024}",'dsr',
                  reads=[f"L:Q{T}",f"v{vQa[st%2]}"]+(['O:vm'] if st==0 else []),writes=R('a',aQ(qb)+4*st,4)+[f"L:stg{buf}"],release=rel,margin=8,deadline=s.dl(rel),hole=True)
    def read_k(s,g,order):
        s.visible('K',g); slot=s.slotof[('K',g)]
        for f in order:
            kt,st=divmod(f,4)
            o=s.add(f"ds_read_b128 {rng('a',aK(f),4)}, v{vKa[st%2]} offset:{slot*8192+kt*4096+(st//2)*1024}",'dsr',
                  reads=[f"visK{g}"],writes=R('a',aK(f),4)+[f"L:rdK{g}"],margin=s.cfg.get('dsmargin',10))
        s.lastread[('K',g)]=o.idx; s.allread[('K',g)]-=1
    def read_v(s,g):
        s.visible('V',g); slot=s.slotof[('V',g)]
        for t in range(8):
            for kt in range(2):
                o=s.add(f"ds_read_b64_tr_b16 {rng('a',aV(t)+2*kt,2)}, v{vVa[t%4]} offset:{slot*8192+kt*4096+(t//4)*1024}",'dsr',
                      reads=[f"visV{g}"],writes=R('a',aV(t)+2*kt,2)+[f"L:rdV{g}"],margin=s.cfg.get('dsmargin',10))
        s.lastread[('V',g)]=o.idx; s.allread[('V',g)]-=1
    KORD=[0,1,2,3,7,6,5,4]
    def qk(s,n,T):
        b=n%s.NB; qb=s.qbuf[T]
        for i,f in enumerate(s.KORD):
            kt,st=divmod(f,4)
            d=vS[b]+4*kt; first=(i%4==0)
            c = "0" if first else rng('v',d,4)
            s.add(f"v_mfma_f32_16x16x32_bf16 {rng('v',d,4)}, {rng('a',aK(f),4)}, {rng('a',aQ(qb)+4*st,4)}, {c}",'mfma',
                  reads=R('a',aK(f),4)+R('a',aQ(qb)+4*st,4)+([] if first else R('v',d,4)),writes=R('v',d,4),cread=([] if first else R('v',d,4)))
    def pv(s,n,T,first):
        slot=s.slot[T]; p=vP[s.pbuf[n]]
        d=aSum(slot); mode=s.summode[n]
        if (T//2) not in s.zeroed:
            s.zeroed.add(T//2)
            for r in range(4): s.add(f"v_accvgpr_write_b32 a{d+r}, 0",'valu',writes=[f"a{d+r}"],margin=2)
        if mode=='single':
            a=aOneD[slot%2]
            s.add(f"v_mfma_f32_16x16x32_bf16 {rng('a',d,4)}, {rng('a',a,4)}, {rng('v',p,4)}, {rng('a',d,4)}",'mfma',
                  reads=R('a',a,4)+R('v',p,4)+R('a',d,4),writes=R('a',d,4),cread=R('a',d,4),tag='sum')
        elif mode=='second':
            s.add(f"v_smfmac_f32_16x16x64_bf16 {rng('a',d,4)}, {rng('a',aOneS,4)}, {rng('v',p-4,8)}, v{vIdx}",'mfma',
                  reads=R('a',aOneS,4)+R('v',p-4,8)+R('a',d,4),writes=R('a',d,4),cread=R('a',d,4),cost=12,tag='sum')
        if s.pending_epi is not None and mode=='second':
            X=s.pending_epi; s.pending_epi=None; s.finish(X,5)
        for t in range(8):
            d=vO(slot,t); c="0" if first else rng('v',d,4)
            s.add(f"v_mfma_f32_16x16x32_bf16 {rng('v',d,4)}, {rng('a',aV(t),4)}, {rng('v',p,4)}, {c}",'mfma',
                  reads=R('a',aV(t),4)+R('v',p,4)+([] if first else R('v',d,4)),writes=R('v',d,4),cread=([] if first else R('v',d,4)))
    def finish(s,T,off):
        e=s.epilogue(T,off)
        if T in s.imm:
            s.read_o(T,s.imm[T][0],e)
            if s.imm[T][1] is not None: s.store_o(T,e+s.cfg.get('stlag',10),s.imm[T][1])
    def sm(s,n,T,first):
        b=n%s.NB; S=vS[b]; p=vP[s.pbuf[n]]; mc=vMC+s.slot[T]; zero=s.cfg.get('zero')
        if first and not zero:
            t0,t1=(mc,None) if s.cfg.get('bperm',True) else (vT0,vT1)
            V=lambda txt,rd,wr,k='valu': s.add(txt,k,reads=[f"v{x}" for x in rd],writes=[f"v{x}" for x in wr],margin=1)
            V(f"v_max3_f32 v{t0}, v{S}, v{S+1}, v{S+2}",[S,S+1,S+2],[t0])
            V(f"v_max_f32 v{t0}, v{t0}, v{S+3}",[t0,S+3],[t0])
            if s.cfg.get('bperm',True):
                s.add(f"ds_bpermute_b32 v{t0}, v{vBp}, v{t0}",'dsr',reads=[f"v{t0}"],writes=[f"v{t0}"],margin=6)
            else:
                V(f"v_mov_b32 v{t1}, v{t0}",[t0],[t1])
                V(f"v_permlane16_swap_b32 v{t0}, v{t1}",[t0,t1],[t0,t1],'perm')
                V(f"v_max_f32 v{t0}, v{t0}, v{t1}",[t0,t1],[t0])
                V(f"v_mov_b32 v{t1}, v{t0}",[t0],[t1])
                V(f"v_permlane32_swap_b32 v{t0}, v{t1}",[t0,t1],[t0,t1],'perm')
                V(f"v_max_f32 v{t0}, v{t0}, v{t1}",[t0,t1],[t0])
            V(f"v_mul_f32 v{mc}, 0x{f2u(-CSC):08x}, v{t0}",[t0],[mc])
        sp=s.cfg.get('smsp',3)
        for k in range(4):
            for i in (2*k,2*k+1):
                if zero: s.add(f"v_mul_f32 v{S+i}, s{sC}, v{S+i}",'valu',reads=[f"v{S+i}"],writes=[f"v{S+i}"],margin=1)
                else: s.add(f"v_fma_f32 v{S+i}, v{S+i}, s{sC}, v{mc}",'valu',reads=[f"v{S+i}",f"v{mc}"],writes=[f"v{S+i}"],margin=1)
            for i in (2*k,2*k+1):
                s.add(f"v_exp_f32 v{S+i}, v{S+i}",'trans',reads=[f"v{S+i}"],writes=[f"v{S+i}"],margin=1+(i%2==0))
            s.add(f"v_cvt_pk_bf16_f32 v{p+k}, v{S+2*k}, v{S+2*k+1}",'valu',reads=[f"v{S+2*k}",f"v{S+2*k+1}"],writes=[f"v{p+k}"],margin=1+sp*(3-k))
    def epilogue(s,T,off=0):
        slot=s.slot[T]; g0=s.now()+off; l=vL[T%2]; buf=s.obuf[T]; tmp=(vT0 if s.cfg.get('bperm',True) else l+1); a=aSum(slot)+2*(slot%2)
        assert s.stgown[buf] is None, ("stg busy O",T,s.stgown); s.stgown[buf]=('O',T)
        if not s.owdone:
            assert len(s.qread)==12
            s.owdone=True
            s.add(f"v_xor_b32 v{vOw[2]}, 64, v{vOw[0]}",'valu',writes=[f"v{vOw[2]}"])
            s.add(f"v_xor_b32 v{vOw[3]}, 64, v{vOw[1]}",'valu',writes=[f"v{vOw[3]}"])
        s.add(f"v_accvgpr_read_b32 v{l}, a{a}",'valu',reads=[f"a{a}"],writes=[f"v{l}"],deadline=g0-1)
        s.add(f"v_accvgpr_read_b32 v{tmp}, a{a+1}",'valu',reads=[f"a{a+1}"],writes=[f"v{tmp}"],deadline=g0-1)
        s.add(f"v_add_f32 v{l}, v{l}, v{tmp}",'valu',reads=[f"v{l}",f"v{tmp}"],writes=[f"v{l}"],deadline=g0)
        s.add(f"v_cmp_ngt_f32_e64 s[{sFlag+2*T}:{sFlag+2*T+1}], s{sTH}, v{l}",'valu',reads=[f"v{l}"],writes=[f"s{sFlag+2*T}"],deadline=g0)
        s.add(f"v_rcp_f32 v{l}, v{l}",'trans',reads=[f"v{l}"],writes=[f"v{l}"],deadline=g0+1)
        G=g0+3
        for t in range(8):
            o=vO(slot,t)
            for i in (0,2):
                s.add(f"v_pk_mul_f32 v[{o+i}:{o+i+1}], v[{o+i}:{o+i+1}], v[{l}:{l+1}] op_sel_hi:[1,0]",'pk',reads=[f"v{o+i}",f"v{o+i+1}",f"v{l}"],writes=[f"v{o+i}",f"v{o+i+1}"],release=G,deadline=G)
        W=s.cfg.get('epiw',12)
        for t in range(8):
            o=vO(slot,t); d=G+(W*t)//8
            for i in range(2):
                s.add(f"v_cvt_pk_bf16_f32 v{o+i}, v{o+2*i}, v{o+2*i+1}",'valu',reads=[f"v{o+2*i}",f"v{o+2*i+1}"],writes=[f"v{o+i}"],deadline=d)
            s.add(f"ds_write_b64 v{vOw[t%4]}, v[{o}:{o+1}] offset:{buf*4096+(t//4)*1024}",'dsw',reads=[f"v{o}",f"v{o+1}",f"v{vOw[t%4]}"],writes=[f"L:stg{buf}"],deadline=d+1)
        return G+W+2
    def read_o(s,T,park,rel):
        buf=s.obuf[T]; s.park[T]=park
        assert all(s.seen[x] in (0,16) and not (s.seen[x]==0 and x in s.qread) for x in range(12) if s.qbuf[x]==park), ("park busy",T,park)
        assert s.stgown[buf]==('O',T); s.stgown[buf]=None
        assert s.parkown.get(park) is None, ("park has unstored data",T,park); s.parkown[park]=[T,4]
        for j in range(4):
            s.add(f"ds_read_b128 {rng('a',aQ(park)+4*j,4)}, v{vOr} offset:{buf*4096+1024*j}",'dsr',
                  reads=[],writes=R('a',aQ(park)+4*j,4)+[f"L:stg{buf}"],release=rel,deadline=rel+4,hole=True)
    def store_o(s,T,rel,step,js=range(4)):
        it,j=divmod(T,6); park=s.park[T]
        if s.curO!=T:
            s.add(f"s_mov_b32 s{sOffO}, {(it*768+16*j)*256}",'salu',writes=[f"s{sOffO}"],margin=1); s.curO=T
        s.parkown[park][1]-=len(js); s.nst+=len(js)
        if s.parkown[park][1]==0: s.parkown[park]=None
        for k,j in enumerate(js):
            s.add(f"buffer_store_dwordx4 {rng('a',aQ(park)+4*j,4)}, v{vOst}, s[{sO}:{sO+3}], s{sOffO} offen offset:{(j//2)*2048+(j%2)*128} {s.stpol if isinstance(s.stpol,str) else s.stpol[T]}",'gst',
                  reads=R('a',aQ(park)+4*j,4)+[f"s{sOffO}"],writes=['O:st'],release=rel+k*step,deadline=rel+k*step+2)
    def build(s):
        cfg=s.cfg; LAG=s.LAG
        visits=cfg['visits']
        s.slot={T:T%6 for T in range(12)}
        s.qbuf=cfg.get('qbuf',{**{T:T for T in range(10)},10:0,11:1})
        s.obuf={T:T%2 for T in range(12)}; s.park={}; s.curO=None
        s.imm=cfg.get('oimm',{}); s.zeroed=set(); s.pending_epi=None; s.owdone=False
        s.allread=defaultdict(int)
        for g,ts in visits:
            s.allread[('K',g)]+=1; s.allread[('V',g)]+=1
        ms=[]
        for vi,(g,ts) in enumerate(visits):
            for k,T in enumerate(ts): ms.append((vi,g,T,k==0,k==len(ts)-1))
        cnt=defaultdict(int)
        for m in ms: cnt[m[2]]+=1
        assert all(cnt[T]==16 for T in range(12)) and len({(m[1],m[2]) for m in ms})==192
        assert all(m[1]//16==m[2]//6 for m in ms)
        s.summode={}; s.pbuf={}; pb=0; n=0
        while n<len(ms):
            T=ms[n][2]
            if cfg.get('smf',True) and T%2==0 and n+1<len(ms) and ms[n+1][2]==T+1:
                if pb%2: pb+=1
                s.summode[n]='first'; s.summode[n+1]='second'; s.pbuf[n]=pb%4; s.pbuf[n+1]=(pb+1)%4; pb+=2; n+=2
            else:
                s.summode[n]='single'; s.pbuf[n]=pb%4; pb+=1; n+=1
        plan=defaultdict(list)
        for n,u in cfg['plan']: plan[n].append(u)
        s.curoff=None
        def doplan(n):
            rel=s.now(); us=plan.get(n,[])
            nd=sum({'B':4,'K':2,'V':2,'Q':4}.get(u[0],0) for u in us)
            step = 0 if n<0 else max(1,cfg.get('span',16)//max(nd,1))
            for u in us:
                st = u[2] if len(u)>2 and u[0] in 'BKVQ' else step
                if u[0]=='B':
                    s.dma_kv('K',u[1],rel,st); s.dma_kv('V',u[1],rel+2*st,st); rel+=4*st
                elif u[0] in 'KV':
                    s.dma_kv(u[0],u[1],rel,st); rel+=2*st
                elif u[0]=='Q':
                    s.dma_q(u[1],rel,st); rel+=4*st
                elif u[0]=='q': s.read_q(u[1],s.now())
                elif u[0]=='o': s.read_o(u[1],u[2],s.now())
                elif u[0]=='s': s.store_o(u[1],s.now(),u[2],*u[3:])
                elif u[0]=='bar': s.barrier()
        s.msbb={}; seen=defaultdict(int); seenpv=defaultdict(int); s.seen=defaultdict(int); s.qread=set(); s.stgown=[None,None]; s.parkown={}; s.nst=0
        barset=cfg.get('barvisits')
        doplan(-1)
        s.barrier(); s.read_k(ms[0][1],s.KORD)
        N=len(ms)
        for n in range(N+LAG):
            if n<N:
                vi,g,T,fi,la=ms[n]
                if la and n+1<N and (barset is None or vi+1 in barset): s.barrier()
                doplan(n)
                assert T in s.qread, ('Q not loaded',T)
                s.msbb[n]=s.nbb
                s.qk(n,T); s.seen[T]+=1
            m=n-LAG
            if m>=0:
                T1=ms[m][2]
                s.pv(m,T1,seenpv[T1]==0); seenpv[T1]+=1
                if seenpv[T1]==16:
                    if s.summode[m]=='first': s.pending_epi=T1
                    else: s.finish(T1,0)
            if n<N:
                s.sm(n,T,seen[T]==0); seen[T]+=1
                if la and n+1<N: s.read_k(ms[n+1][1],s.KORD)
            if m+1>=0 and m+1<N and ms[m+1][3]: s.read_v(ms[m+1][1])
        assert s.nst==48
        s.P.ops=[o for o in s.P.ops if not (o.kind=='bar' and not o.reads)]
        for i,o in enumerate(s.P.ops): o.idx=i
        out=s.P.schedule(ldsrate=cfg.get('ldsrate',1024),ldsburst=cfg.get('ldsburst',1024))
        out=insert_waits(out,cfg.get('merge',9))
        verify_waits(out)
        check_hazards(out)
        return out

def PRO(cfg):
  t=f"""
    s_cmp_ge_u32 s2, 256
    s_cbranch_scc1 L_end
    s_load_dwordx4 s[64:67], s[0:1], 0
    s_load_dwordx4 s[68:71], s[0:1], 16
    v_lshrrev_b32 v1, 6, v0
    s_lshr_b32 s73, s2, 3
    s_getpc_b64 s[86:87]
L_pc:
    v_and_b32 v2, 31, v0
    v_lshlrev_b32 v2, 12, v2
    s_lshl_b32 s88, s73, 7
    v_add_u32 v2, s88, v2
    v_min_u32 v2, L_end-L_main, v2
    s_add_u32 s86, s86, L_main-L_pc
    s_addc_u32 s87, s87, 0
    v_readfirstlane_b32 s{sW}, v1
    v_and_b32 v0, 63, v0
    global_load_dword v4, v2, s[86:87]
    s_and_b32 s72, s2, 7
    s_lshr_b32 s74, s73, 1
    s_and_b32 s75, s73, 1
    s_lshl_b32 s72, s72, 4
    s_add_u32 s72, s72, s74
    s_lshl_b32 s76, s72, 18
    s_mul_i32 s77, s72, {2*768*256}
    s_mul_i32 s78, s75, {384*256}
    s_add_u32 s77, s77, s78
    s_and_b32 s79, s{sW}, 1
    s_lshr_b32 s80, s{sW}, 1
    s_lshl_b32 s81, s79, 10
    s_lshl_b32 s82, s80, 12
    s_add_u32 s{sWL}, s81, s82       ; LDS: (w&1)*1024 + (w>>1)*4096
    s_lshl_b32 s81, s79, 7
    s_add_u32 s81, s81, s82          ; global: (w&1)*128 + (w>>1)*4096
    s_mul_i32 s83, s{sW}, 24576
    s_sub_u32 s{sWQ}, s83, s81
    s_lshl_b32 s{sWS}, s{sW}, 13
    ; DMA voffset: (i>>3)*256 + ((i&7)^((i>>3)&6))*16 + wave part
    v_lshrrev_b32 v1, 3, v0
    v_and_b32 v2, 6, v1
    v_and_b32 v3, 7, v0
    v_xor_b32 v2, v2, v3
    v_lshlrev_b32 v2, 4, v2
    v_lshl_add_u32 v2, v1, 8, v2
    v_add_u32 v{vDMA}, s81, v2
    s_mov_b32 s{sQ+2}, {1152*256}
    s_mov_b32 s{sQ+3}, 0x20000
    s_mov_b32 s{sK+2}, 0x40000
    s_mov_b32 s{sK+3}, 0x20000
    s_mov_b32 s{sV+2}, 0x40000
    s_mov_b32 s{sV+3}, 0x20000
    s_mov_b32 s{sO+2}, {1152*256}
    s_mov_b32 s{sO+3}, 0x20000
    s_waitcnt lgkmcnt(0)
    s_add_u32 s{sQ}, s64, s77
    s_addc_u32 s{sQ+1}, s65, 0
    s_add_u32 s{sK}, s66, s76
    s_addc_u32 s{sK+1}, s67, 0
    s_add_u32 s{sV}, s68, s76
    s_addc_u32 s{sV+1}, s69, 0
    s_add_u32 s{sO}, s70, s77
    s_addc_u32 s{sO+1}, s71, 0
"""
  if cfg.get('adj'):
    t=t.replace("    s_add_u32 s72, s72, s74          ; pair index 0..127\n","    s_lshr_b32 s72, s2, 1\n    s_and_b32 s75, s2, 1\n")
  return t
PRO2 = f"""
    s_mov_b32 s{sC}, 0x{f2u(CSC):08x}
    s_mov_b32 s{sTH}, 0x5f800000
    s_add_u32 s84, s{sWS}, {STG}
    v_xor_b32 v2, v1, v3
    v_lshlrev_b32 v2, 4, v2
    v_lshl_add_u32 v2, v1, 8, v2
    v_add_u32 v{vOst}, s83, v2
    v_lshl_add_u32 v{vOr}, v0, 4, s84
    v_and_b32 v1, 15, v0
    v_lshrrev_b32 v2, 4, v0
    v_lshlrev_b32 v{vBp}, 2, v1
    v_and_b32 v5, 7, v1
    v_lshlrev_b32 v6, 7, v5
    v_lshrrev_b32 v7, 3, v1
    v_lshl_add_u32 v6, v7, 11, v6
    v_and_b32 v3, 6, v1
    v_xor_b32 v3, v3, v2
    v_lshl_add_u32 v{vKa[0]}, v3, 4, v6
    v_xor_b32 v{vKa[1]}, 64, v{vKa[0]}
    v_add_u32 v{vQa[0]}, s84, v{vKa[0]}
    v_add_u32 v{vQa[1]}, s84, v{vKa[1]}
    v_lshrrev_b32 v3, 1, v2
    v_xor_b32 v3, v3, v5
    v_lshl_add_u32 v3, v3, 4, v6
    v_and_b32 v2, 1, v2
    v_lshl_add_u32 v3, v2, 3, v3
    v_add_u32 v{vOw[0]}, s84, v3
    v_xor_b32 v{vOw[1]}, 32, v{vOw[0]}
    v_lshrrev_b32 v1, 2, v0
    v_and_b32 v2, 6, v1
    v_bfe_u32 v3, v0, 1, 1
    v_xor_b32 v2, v2, v3
    v_lshlrev_b32 v2, 4, v2
    v_and_b32 v3, 1, v0
    v_lshl_add_u32 v2, v3, 3, v2
    v_and_b32 v3, 7, v1
    v_lshl_add_u32 v2, v3, 7, v2
    v_lshrrev_b32 v3, 3, v1
    v_lshl_add_u32 v2, v3, 11, v2
    v_add_u32 v{vVa[0]}, {VRING}, v2
    v_xor_b32 v{vVa[1]}, 32, v{vVa[0]}
    v_xor_b32 v{vVa[2]}, 64, v{vVa[0]}
    v_xor_b32 v{vVa[3]}, 0x60, v{vVa[0]}
    ; row-sum operands: sparse pair pattern, index, and dense single-tile patterns
    v_mov_b32 v1, 0x3f803f80
    v_bfe_u32 v2, v0, 1, 1
    v_lshrrev_b32 v3, 5, v0
    v_cmp_eq_u32 vcc, v2, v3
    v_and_b32 v5, 3, v0
    v_mov_b32 v6, 0x4444
    v_cndmask_b32 v2, 0, v1, vcc
    v_cmp_eq_u32 vcc, 0, v5
    v_accvgpr_write_b32 a{aOneS}, v2
    v_accvgpr_write_b32 a{aOneS+1}, v2
    v_cndmask_b32 v3, 0, v1, vcc
    v_cmp_eq_u32 vcc, 2, v5
    v_accvgpr_write_b32 a{aOneS+2}, v2
    v_accvgpr_write_b32 a{aOneS+3}, v2
    v_cndmask_b32 v2, 0, v1, vcc
    v_and_b32 v5, 1, v0
    v_mul_u32_u24 v5, 0xaaaa, v5
    v_add_u32 v{vIdx}, v5, v6
    v_accvgpr_write_b32 a{aOneD[0]}, v3
    v_accvgpr_write_b32 a{aOneD[0]+1}, v3
    v_accvgpr_write_b32 a{aOneD[0]+2}, v3
    v_accvgpr_write_b32 a{aOneD[0]+3}, v3
    v_accvgpr_write_b32 a{aOneD[1]}, v2
    v_accvgpr_write_b32 a{aOneD[1]+1}, v2
    v_accvgpr_write_b32 a{aOneD[1]+2}, v2
    v_accvgpr_write_b32 a{aOneD[1]+3}, v2
"""

def slow_path():
    L=[]
    A=L.append
    A("    s_or_b64 s[64:65], s[40:41], s[42:43]")
    for T in range(2,12): A(f"    s_or_b64 s[64:65], s[64:65], s[{sFlag+2*T}:{sFlag+2*T+1}]")
    A("    s_cbranch_scc0 L_end")
    A("    s_mov_b32 s66, 0")
    for T in range(12):
        A(f"    s_cmp_lg_u64 s[{sFlag+2*T}:{sFlag+2*T+1}], 0")
        A(f"    s_cselect_b32 s67, {1<<T}, 0")
        A("    s_or_b32 s66, s66, s67")
    A("    s_waitcnt vmcnt(0) lgkmcnt(0)")
    A("    v_mbcnt_lo_u32_b32 v8, -1, 0")
    A("    v_mbcnt_hi_u32_b32 v8, -1, v8")
    A("    v_and_b32 v9, 15, v8")
    A("    v_lshrrev_b32 v10, 4, v8")
    A("    v_lshlrev_b32 v11, 4, v10")
    A("    v_lshl_add_u32 v14, v9, 8, v11")
    A("    v_add_u32 v15, s83, v14")
    A("    v_and_b32 v11, 1, v10")
    A("    v_lshlrev_b32 v11, 1, v11")
    A("    v_lshrrev_b32 v12, 1, v10")
    A("    v_or_b32 v11, v11, v12")
    A("    v_lshlrev_b32 v11, 4, v11")
    A("    v_lshl_add_u32 v11, v9, 8, v11")
    A("    v_add_u32 v13, s83, v11")
    A(f"    v_subrev_u32 v16, s81, v{vDMA}")
    A(f"    s_add_u32 s68, s{sWS}, {STG-VRING}")
    for i in range(4): A(f"    v_add_u32 v{20+i}, s68, v{vVa[i]}")
    for i in range(4): A(f"    v_mov_b32 v{196+i}, 0x3f803f80")
    A("    s_mov_b32 s69, 0")
    A("L_slow_tile:")
    A("    s_bitcmp1_b32 s66, s69")
    A("    s_cbranch_scc0 L_slow_next")
    A("    s_cmp_ge_u32 s69, 6")
    A("    s_cselect_b32 s70, 0x20000, 0")
    A(f"    s_cselect_b32 s71, {(768-96)*256}, 0")
    A("    s_lshl_b32 s72, s69, 12")
    A("    s_add_u32 s71, s71, s72                ; q/o offset")
    for st in range(4): A(f"    buffer_load_dwordx4 v[{64+4*st}:{67+4*st}], v15, s[{sQ}:{sQ+3}], s71 offen offset:{64*st}")
    A("    v_mov_b32 v17, 0xff800000")
    A("    s_mov_b32 s72, s70")
    A("    s_add_u32 s73, s70, 0x20000")
    A("L_slow_max:")
    for st in range(4): A(f"    buffer_load_dwordx4 v[{80+4*st}:{83+4*st}], v14, s[{sK}:{sK+3}], s72 offen offset:{64*st}")
    A("    s_waitcnt vmcnt(0)")
    for st in range(4): A(f"    v_mfma_f32_16x16x32_bf16 v[0:3], v[{80+4*st}:{83+4*st}], v[{64+4*st}:{67+4*st}], {'0' if st==0 else 'v[0:3]'}")
    A("    s_nop 15")
    A("    v_max3_f32 v17, v17, v0, v1")
    A("    v_max3_f32 v17, v17, v2, v3")
    A("    s_add_u32 s72, s72, 4096")
    A("    s_cmp_lt_u32 s72, s73")
    A("    s_cbranch_scc1 L_slow_max")
    for sw in ("16","32"):
        A("    v_mov_b32 v18, v17"); A("    s_nop 1")
        A(f"    v_permlane{sw}_swap_b32 v17, v18"); A("    s_nop 1")
        A("    v_max_f32 v17, v17, v18")
    A(f"    v_mul_f32 v17, 0x{f2u(-CSC):08x}, v17")
    for r in range(160,196): A(f"    v_mov_b32 v{r}, 0")
    A("    s_mov_b32 s72, s70")
    A("L_slow_blk:")
    A("    s_add_u32 s74, s72, 4096")
    for f in range(8):
        kt,st=divmod(f,4)
        A(f"    buffer_load_dwordx4 v[{80+4*f}:{83+4*f}], v14, s[{sK}:{sK+3}], {'s72' if kt==0 else 's74'} offen offset:{64*st}")
    for kt in range(2):
        for half in range(2):
            A(f"    s_add_u32 m0, s{sWS}, {STG+kt*4096+half*896}")
            A("    s_nop 0")
            for oc in range(2):
                A(f"    buffer_load_dwordx4 v16, s[{sV}:{sV+3}], {'s72' if kt==0 else 's74'} offen offset:{2048*oc+128*half} lds")
    A("    s_waitcnt vmcnt(0)")
    for t in range(8):
        for kt in range(2):
            A(f"    ds_read_b64_tr_b16 v[{112+4*t+2*kt}:{113+4*t+2*kt}], v{20+t%4} offset:{kt*4096+(t//4)*1024}")
    for f in range(8):
        kt,st=divmod(f,4); d=4*kt
        A(f"    v_mfma_f32_16x16x32_bf16 v[{d}:{d+3}], v[{80+4*f}:{83+4*f}], v[{64+4*st}:{67+4*st}], {'0' if st==0 else f'v[{d}:{d+3}]'}")
    A("    s_nop 15")
    for i in range(8): A(f"    v_fma_f32 v{i}, v{i}, s{sC}, v17")
    for i in range(8): A(f"    v_exp_f32 v{i}, v{i}")
    A("    s_nop 1")
    for k in range(4): A(f"    v_cvt_pk_bf16_f32 v{24+k}, v{2*k}, v{1+2*k}")
    A("    s_waitcnt lgkmcnt(0)")
    A("    s_nop 1")
    for t in range(8): A(f"    v_mfma_f32_16x16x32_bf16 v[{160+4*t}:{163+4*t}], v[{112+4*t}:{115+4*t}], v[24:27], v[{160+4*t}:{163+4*t}]")
    A("    v_mfma_f32_16x16x32_bf16 v[192:195], v[196:199], v[24:27], v[192:195]")
    A("    s_add_u32 s72, s72, 8192")
    A("    s_cmp_lt_u32 s72, s73")
    A("    s_cbranch_scc1 L_slow_blk")
    A("    s_nop 15")
    A("    v_rcp_f32 v18, v192")
    A("    s_nop 1")
    for r in range(160,192): A(f"    v_mul_f32 v{r}, v{r}, v18")
    for m in range(4):
        o=160+8*m
        for i in range(4): A(f"    v_cvt_pk_bf16_f32 v{o+i}, v{o+2*i}, v{o+2*i+1}")
        A("    s_nop 1")
        for i in range(2): A(f"    v_permlane16_swap_b32 v{o+i}, v{o+i+2}")
        A(f"    buffer_store_dwordx4 v[{o}:{o+3}], v13, s[{sO}:{sO+3}], s71 offen offset:{64*m}")
    A("    s_waitcnt vmcnt(0)")
    A("L_slow_next:")
    A("    s_add_u32 s69, s69, 1")
    A("    s_cmp_lt_u32 s69, 12")
    A("    s_cbranch_scc1 L_slow_tile")
    return "\n".join(L)+"\n"

def isize(t):
    t=t.strip(); op=t.split()[0]
    if op.startswith(('v_mfma','v_smfmac','ds_','buffer_','global_','v_fma_f32','v_cvt_pk','v_max3','v_pk_','v_accvgpr','v_writelane','s_mem')) or op.endswith('_e64'): return 8
    if op in('s_waitcnt','s_barrier','s_nop') or op.startswith('s_cbranch'): return 4
    for a in t.split(None,1)[1].replace(',',' ').split():
        try: v=int(a,0)
        except ValueError: continue
        if not -16<=v<=64: return 8
    return 4

HEAD = open('cdna_kernels/'+NAME+'.s.ref').read().split('; Override')[0]
def emit(cfg, path):
    g=Gen(cfg); out=g.build()
    abl=cfg.get('ablate')
    if abl:
        nb=0; o2=[]
        for o in out:
            if o.kind=='bar': nb+=1
            if nb>=3 and any((a==o.kind) or (a in o.text) for a in abl): continue
            o2.append(o)
        out=o2
    marks=[]; est=estimate(out,marks)
    stamp=cfg.get('stamp'); warm=cfg.get('warm',True)
    SST=[x for x in list(range(64,81))+list(range(33,40))+list(range(85,90))+list(range(92,102))]
    ns=[0]
    def st2():
        i=ns[0]; ns[0]+=1
        return ["s_memtime s[90:91]","s_memrealtime s[2:3]","s_waitcnt lgkmcnt(0)",f"s_mov_b32 s{SST[2*i]}, s90",f"s_mov_b32 s{SST[2*i+1]}, s2"]
    if stamp: first_st=st2(); stbb={g.msbb[n] for n in stamp}
    k0=0
    while out[k0].kind in('dma','salu','nop'): k0+=1
    first=[o.text for o in out[:k0]]; nfirst=sum(1 for o in out[:k0] if o.kind=='dma')
    lines=[]; nbar=0; nm=0; probe=cfg.get('probe')
    for k in range(k0,len(out)):
        o=out[k]
        lines.append((o.text,o.kind))
        if o.kind=='bar': nbar+=1
        if probe and o.kind=='bar' and nbar in probe[:2]:
            r = 92 if nbar==probe[0] else 94
            lines+=[(f"s_mem{'real' if probe[2]=='rt' else ''}time s[{r}:{r+1}]",'x'),("s_waitcnt lgkmcnt(0)",'x')]
        if stamp and o.kind=='mfma' and o.bb in stbb: lines+=[(x,'x') for x in st2()]
    body=[]; addr=0; page=0; stubs=0
    tot=sum(isize(t) for t,_ in lines); npages=(tot+200)//4096+1
    for i,(t,kd) in enumerate(lines):
        if warm and addr>=page*4096 and page<npages:
            prevm = i>0 and lines[i-1][1]=='mfma'
            if (prevm and kd not in SC_KINDS) or addr+isize(t)>page*4096+56 or page==0:
                nxt=page+4
                body.append(f"L_stub{page}:\n s_cbranch_vccnz {'L_stub%d'%nxt if nxt<npages else 'L_back'}\n")
                body.append(f".if ((L_stub{page}-L_main)>>6) != {page*64}\n.error \"stub misplaced\"\n.endif\n")
                addr+=4; page+=1
        body.append(" "+t+"\n"); addr+=isize(t)
    while warm and page<npages:
        body.append(f"L_stub{page}:\n s_cbranch_vccnz L_back\n"); page+=1
    txt=HEAD+"; @launch grid=(256,1,1) block=(256,1,1) lds=163840\n"
    txt+=f'.amdgcn_target "amdgcn-amd-amdhsa--gfx950"\n.text\n.globl {NAME}_kernel\n.p2align 8\n.type {NAME}_kernel,@function\n{NAME}_kernel:\n'
    if probe:
        txt+=" s_memrealtime s[90:91]\n"
        if probe[0]==0: txt+=f" s_mem{'real' if probe[2]=='rt' else ''}time s[92:93]\n"
        txt+=" s_waitcnt lgkmcnt(0)\n"
        if cfg.get('gstart'):
            txt+=" s_load_dwordx2 s[34:35], s[0:1], 32\n s_not_b32 s36, s90\n v_mov_b32 v10, s36\n v_mov_b32 v11, 0\n s_waitcnt lgkmcnt(0)\n v_cmp_eq_u32 vcc, 0, v0\n s_and_saveexec_b64 s[36:37], vcc\n s_cbranch_execz L_gs\n global_atomic_umax v11, v10, s[34:35]\nL_gs:\n s_mov_b64 exec, s[36:37]\n"
    if cfg.get('pre_nop'):
        txt+=f" s_mov_b32 s64, {cfg['pre_nop']}\nL_pn:\n"+" s_nop 15\n"*16+" s_sub_u32 s64, s64, 1\n s_cmp_lg_u32 s64, 0\n s_cbranch_scc1 L_pn\n"
    txt+=PRO(cfg)
    txt+="".join(" "+t+"\n" for t in first)
    if stamp: txt+=" s_mov_b32 s4, s2\n"+"".join(" "+x+"\n" for x in first_st)
    txt+=PRO2
    txt+=f"    s_waitcnt vmcnt({nfirst})\n"
    if warm:
        txt+="    ; touch the first line of every 4 KB code page (instruction-cache warm-up while the first loads are in flight)\n    s_mov_b64 vcc, -1\n"
        for w in range(3): txt+=f"    s_cmp_eq_u32 s{sW}, {w}\n    s_cbranch_scc1 L_stub{w}\n"
        txt+="    s_branch L_stub3\n"
        txt+="L_back:\n    s_mov_b64 vcc, 0\n"
    txt+="    s_branch L_main\n.p2align 12\nL_main:\n"
    txt+="".join(body)
    if stamp:
        txt+="".join(" "+x+"\n" for x in st2())
        txt+=" s_waitcnt vmcnt(0)\n"+"".join(" "+x+"\n" for x in st2())
        txt+=" v_mov_b32 v2, 0\n v_mov_b32 v3, 0\n"
        for i in range(ns[0]): txt+=f" v_writelane_b32 v2, s{SST[2*i]}, {i}\n v_writelane_b32 v3, s{SST[2*i+1]}, {i}\n"
        txt+=f""" s_load_dwordx2 s[92:93], s[0:1], 40
 s_lshl_b32 s90, s4, 2
 s_add_u32 s90, s90, s{sW}
 s_mul_i32 s90, s90, 768
 v_mbcnt_lo_u32_b32 v1, -1, 0
 v_mbcnt_hi_u32_b32 v1, -1, v1
 v_lshlrev_b32 v1, 2, v1
 v_add_u32 v1, s90, v1
 s_waitcnt lgkmcnt(0)
 global_store_dword v1, v2, s[92:93]
 global_store_dword v1, v3, s[92:93] offset:512
"""
    if probe:
        if probe[1]==99: txt+=f" s_mem{'real' if probe[2]=='rt' else ''}time s[94:95]\n s_waitcnt lgkmcnt(0)\n"
        if probe[1]==100: txt+=f" s_waitcnt vmcnt(0)\n s_mem{'real' if probe[2]=='rt' else ''}time s[94:95]\n s_waitcnt lgkmcnt(0)\n"
        if probe[1]<0: txt+=" s_mov_b32 s94, s92\n"
        if cfg.get('gstart'):
            txt+=" v_mov_b32 v11, 0\n global_load_dword v10, v11, s[34:35] sc0 sc1\n s_waitcnt vmcnt(0)\n v_readfirstlane_b32 s90, v10\n s_nop 3\n s_not_b32 s90, s90\n"
            if cfg['gstart']==2: txt+=" s_mov_b32 s92, s90\n"
        txt+=" s_sub_u32 s94, s94, s92\n"
        if probe[2]=='cyc': txt+=" s_lshr_b32 s94, s94, 4\n"
        txt+=" s_add_u32 s94, s94, 10000\nL_spin:\n s_memrealtime s[92:93]\n s_waitcnt lgkmcnt(0)\n s_sub_u32 s92, s92, s90\n s_cmp_lt_u32 s92, s94\n s_cbranch_scc1 L_spin\n"
    if cfg.get('extra_mfma'):
        n,kind=cfg['extra_mfma']
        txt+=f" s_waitcnt vmcnt(0)\n s_mov_b32 s64, {n}\nL_xm:\n"
        L=[]
        if kind.startswith('m16'):
            for j in range(6):
                for i,f in enumerate(Gen.KORD):
                    kt,st=divmod(f,4); d=8*(j%2)+4*kt
                    L.append(f" v_mfma_f32_16x16x32_bf16 v[{d}:{d+3}], a[{160+4*f}:{163+4*f}], a[{192+16*(j%2)+4*st}:{195+16*(j%2)+4*st}], {'0' if i%4==0 else f'v[{d}:{d+3}]'}\n")
                for t in range(8):
                    d=64+32*j+4*t
                    L.append(f" v_mfma_f32_16x16x32_bf16 v[{d}:{d+3}], a[{192+4*t}:{195+4*t}], v[{24+4*(j%3)}:{27+4*(j%3)}], v[{d}:{d+3}]\n")
            if kind=='m16nop': L=[x+(" s_nop 0\n s_nop 0\n s_nop 0\n s_nop 0\n s_nop 0\n" if k%2 else "") for k,x in enumerate(L)]
            if kind=='m16v': L=[x+(f" v_exp_f32 v{40+k%8}, v{24+k%12}\n" if k%2 else f" v_fma_f32 v{48+k%8}, v{24+k%12}, s24, v{25+k%10}\n v_cvt_pk_bf16_f32 v{49+k%8}, v{24+k%12}, v{25+k%10}\n") for k,x in enumerate(L)]
        else:
            for j in range(3):
                for st in range(8):
                    L.append(f" v_mfma_f32_32x32x16_bf16 v[0:15], a[{160+4*st}:{163+4*st}], a[{192+4*((st+j)%8)}:{195+4*((st+j)%8)}], {'0' if st==0 else 'v[0:15]'}\n")
                for t in range(8):
                    d=64+64*j+16*(t%4)
                    L.append(f" v_mfma_f32_32x32x16_bf16 v[{d}:{d+15}], a[{192+4*t}:{195+4*t}], v[{24+4*((t//4+j)%3)}:{27+4*((t//4+j)%3)}], v[{d}:{d+15}]\n")
        txt+="".join(L)
        txt+=" s_sub_u32 s64, s64, 1\n s_cmp_lg_u32 s64, 0\n s_cbranch_scc1 L_xm\n s_nop 15\n"
    if cfg.get('extra_nop'):
        txt+=f" s_mov_b32 s64, {cfg['extra_nop']}\nL_xn:\n"+" s_nop 15\n"*16+" s_sub_u32 s64, s64, 1\n s_cmp_lg_u32 s64, 0\n s_cbranch_scc1 L_xn\n"
    txt+=" s_nop 1\n"+slow_path()
    txt+=f"""L_end:
    s_endpgm
.section .rodata,"a"
.p2align 6
.amdhsa_kernel {NAME}_kernel
  .amdhsa_next_free_vgpr 512
  .amdhsa_next_free_sgpr 102
  .amdhsa_accum_offset 256
  .amdhsa_group_segment_fixed_size 0
  .amdhsa_kernarg_size 48
  .amdhsa_user_sgpr_count 2
  .amdhsa_user_sgpr_kernarg_segment_ptr 1
  .amdhsa_system_sgpr_workgroup_id_x 1
.end_amdhsa_kernel
"""
    open(path,'w').write(txt)
    from collections import Counter
    print(path, "ops",len(out),"est",est, dict(Counter(o.kind for o in out)), "code",addr)
    if cfg.get('verbose'): print(' segs',[b-a for a,b in zip(marks,marks[1:]+[est])])
    if stamp and stamp is not True:
        mt=[]; estimate(out,None,mt); pts=[mt[g.msbb[n]] for n in stamp]+[est]
        print(' est stamp segs',[b-a for a,b in zip(pts,pts[1:])])
    from asm import asm
    asm(path)
    return out
```

```python
import re
from collections import defaultdict

COST = dict(mfma=8, valu=4, trans=8, perm=8, pk=4, dsr=4, dsw=12, dma=12, gld=12, gst=8, salu=0, bar=0, wait=0, nop=0)
VALU_KINDS = ('valu','trans','perm','pk')
MEM_KINDS = ('dsr','dsw','dma','gld','gst')
SC_KINDS = ('salu','bar','wait','nop')
DS=('dsr','dsw'); VM=('dma','gld','gst')

def R(p, lo, n=1):
    return [f"{p}{i}" for i in range(lo, lo+n)]
def rng(p, lo, n):
    return f"{p}{lo}" if n==1 else f"{p}[{lo}:{lo+n-1}]"

class Op:
    __slots__=('text','kind','reads','writes','cread','release','deadline','margin','preds','succs','idx','bb','pos','lat','prio','cost','tag','hole','nws','gap')
    def __init__(s, text, kind, reads=(), writes=(), cread=(), release=None, deadline=None, margin=0, tag=None, cost=None, hole=False):
        s.text=text; s.kind=kind; s.reads=list(reads); s.writes=list(writes); s.cread=list(cread)
        s.release=release; s.deadline=deadline; s.margin=margin
        s.preds=[]; s.succs=[]; s.bb=None; s.pos=None; s.tag=tag; s.hole=hole
        s.cost = COST[kind] if cost is None else cost
        s.nws = 1; s.gap=None
    def __repr__(s): return f"<{s.text}>"

def vec(S): return {x for x in S if x[0] in 'va' and x[1:].isdigit()}
def hazard_dist(a, b):
    d=0
    aw=set(a.writes); br=set(b.reads); bw=set(b.writes)
    if a.kind=='mfma':
        D=vec(aw)
        if b.kind=='mfma':
            ab = vec(br)-set(b.cread)
            if D & ab: d=max(d,8)
            c=set(b.cread)
            if D & c and (c!=D or a.cost!=b.cost): d=max(d,10)
        elif b.kind in VALU_KINDS:
            if D & (br|bw): d=max(d,12 if a.cost==12 else 8)
            if set(a.cread) & bw: d=max(d,3)
        elif b.kind in MEM_KINDS:
            if D & (br|bw): d=max(d,8)
    elif a.kind in VALU_KINDS:
        W=vec(aw)
        if b.kind=='mfma' and W & br: d=max(d,2)
        if b.kind=='perm' and W & br: d=max(d,2)
        if a.kind=='trans' and b.kind in ('valu','perm','pk') and W & br: d=max(d,1)
        sw={x for x in aw if x[0]=='s' or x=='vcc'}
        if sw & br:
            if b.kind in VALU_KINDS: d=max(d,2)
            elif b.kind in MEM_KINDS: d=max(d,5)
            else: d=max(d,2)
    elif a.kind=='salu':
        if 'm0' in aw and b.kind=='dma': d=max(d,1)
    elif a.kind=='gst':
        if vec(set(a.reads)) & bw: d=max(d,2)
    return d

class Program:
    def __init__(s):
        s.ops=[]
    def add(s, op):
        op.idx=len(s.ops); s.ops.append(op); return op
    def build_deps(s):
        lastw={}; readers=defaultdict(list)
        for o in s.ops:
            P=set()
            for r in o.reads:
                if r in lastw: P.add(lastw[r])
            for w in o.writes:
                if w in lastw: P.add(lastw[w])
                for x in readers[w]: P.add(x)
            P.discard(o)
            for p in P:
                o.preds.append(p); p.succs.append(o)
            for r in o.reads: readers[r].append(o)
            for w in o.writes:
                lastw[w]=o; readers[w]=[]
    def schedule(s, budget=8, ldsrate=1024, ldsburst=1024):
        s.build_deps()
        bbs=[o for o in s.ops if o.kind=='mfma']
        for i,o in enumerate(bbs): o.bb=i
        N=len(bbs)
        for o in reversed(s.ops):
            if o.kind=='mfma': continue
            lat = N-1
            pr = lat
            if o.deadline is not None: pr=min(pr,o.deadline)
            wr={w for w in o.writes if ':' not in w}
            for x in o.succs:
                mg = o.margin if wr & set(x.reads) else 0
                if x.kind=='mfma':
                    lat=min(lat,x.bb-1); pr=min(pr,x.bb-1-mg)
                else:
                    lat=min(lat,x.lat); pr=min(pr,x.prio-mg)
            o.lat=lat; o.prio=pr
            if o.release is not None and o.release>lat: o.release=lat
        out=[]
        npred={o:len(o.preds) for o in s.ops}
        ready=[o for o in s.ops if o.kind!='mfma' and not o.preds]
        cur=[-1]
        def dist(o):
            need=0; k=0
            for p in reversed(out[-14:]):
                d=hazard_dist(p,o)
                if d>k: need=max(need,d-k)
                k+=p.nws
            return need
        def emit(o):
            n=dist(o)
            if n>0:
                nop=Op(f"s_nop {n-1}",'nop'); nop.nws=n; nop.cost=4*n; nop.pos=len(out); nop.gap=cur[0]; out.append(nop)
            o.pos=len(out); o.gap=cur[0]; out.append(o)
            for x in o.succs:
                npred[x]-=1
                if npred[x]==0 and x.kind!='mfma': ready.append(x)
            if o in ready: ready.remove(o)
            return o.cost+(4*n)
        lastds=[-9]; tok=[ldsburst]
        def fill(g):
            cur[0]=g
            used=0; shadow=(g>=0); memok=True; bud=budget-(bbs[g].cost-8 if g>=0 else 0)
            last=(g==N-1)
            tok[0]=min(ldsburst,tok[0]+ldsrate)
            while True:
                cands=[o for o in ready if (o.release is None or o.release<=g)]
                if not cands: break
                if g<0:
                    cands=[o for o in cands if o.prio<=g]
                    if not cands: break
                    cands.sort(key=lambda o:o.idx); emit(cands[0]); continue
                cands.sort(key=lambda o:(o.prio,o.idx))
                sc=[o for o in cands if o.kind in SC_KINDS]
                if shadow and sc:
                    shadow=False; emit(sc[0]); continue
                shadow=False
                pk=[o for o in cands if o.kind=='pk' and o.prio<=g]
                if pk: bud=max(bud,20)
                rem=bud-used
                v=[o for o in cands if o.kind in('valu','trans','perm') and dist(o)==0 and (o.lat<=g or all(p.kind!='dsr' or p.gap<=g-5 for p in o.preds))]
                if memok:
                    pick=None
                    for o in cands:
                        if o.kind not in MEM_KINDS or dist(o): continue
                        if o.kind in('dma','gld') and lastds[0]>=g-1 and o.lat>g and o.prio>g-4: continue
                        due = o.prio<=g
                        if o.kind=='dsr':
                            by = 512 if 'b64' in o.text else 0 if 'bperm' in o.text else 1024
                            if by and not due and (tok[0]<by or (used==0 and tok[0]<ldsburst)): continue
                            ok = (o.cost<=rem and not o.hole) or (due and used<12) or (o.hole and o.cost<=rem and sum(x.cost for x in v)<rem)
                        else:
                            ok = (used==0 and (due or not v)) or (o.tag=='pair' and out[-1].kind=='dma')
                        if ok: pick=o; break
                    if pick:
                        used+=emit(pick)
                        if pick.kind in DS: lastds[0]=g
                        if pick.kind=='dsr': tok[0]-= 512 if 'b64' in pick.text else 0 if 'bperm' in pick.text else 1024
                        if pick.kind=='gst': bud=max(bud,22)
                        continue
                fit=[o for o in v if o.cost<=rem]
                due=[o for o in v if o.prio<=g]
                pick=None
                if fit:
                    pick=fit[0]
                    if rem%8==0 and pick.cost==4:
                        n4=[o for o in fit if o.cost==4]; n8=[o for o in fit if o.cost==8]
                        if len(n4)<2 and n8: pick=n8[0]
                    if due and due[0] not in fit: pick=due[0]
                elif due: pick=due[0]
                if pick:
                    memok=False; used+=emit(pick); continue
                if pk and dist(pk[0])==0 or (pk and pk[0].lat<=g):
                    memok=False; used=max(used,20); used+=emit(pk[0]); continue
                must=[o for o in cands if o.lat<=g or (o.prio<=g and o.kind in SC_KINDS)]
                if must:
                    o=must[0]
                    c=emit(o)
                    if o.kind in SC_KINDS: c+=4
                    if o.kind in MEM_KINDS and not memok: c+=8
                    if o.kind in VALU_KINDS: memok=False
                    used+=c; continue
                break
            return used
        fill(-1)
        for g,m in enumerate(bbs):
            assert npred[m]==0, (g,m,[p for p in m.preds if p.pos is None])
            cur[0]=g
            emit(m)
            fill(g)
        left=[o for o in s.ops if o.pos is None]
        assert not left, left[:5]
        s.out=out
        return out

def insert_waits(out, merge=9):
    res=[]
    lg=[]; vm=[]
    def need(lst,o):
        k=-1
        rs={x for x in set(o.reads)|set(o.writes) if not x.startswith('O:')}
        for i,p in enumerate(lst):
            shared=set(p.writes)&rs
            if not shared: continue
            if p.kind in DS and o.kind in DS:
                shared={x for x in shared if not x.startswith('L:')}
                if p.kind=='dsr' and o.kind=='dsr':
                    shared={x for x in shared if x in o.reads}
                if not shared: continue
            if p.kind in VM and o.kind in VM:
                shared={x for x in shared if x in o.reads}
                if not shared: continue
            k=i
        return k
    def ridx(p):
        j=len(res)-1
        while res[j] is not p: j-=1
        return j
    for o in out:
        kl=need(lg,o); kv=need(vm,o)
        if kl>=0:
            while kl+1<len(lg) and lg[kl+1].gap<=o.gap-merge: kl+=1
        if kl>=0 or kv>=0:
            pl = lg[kl] if kl>=0 else None
            pv = vm[kv] if kv>=0 else None
            lastprod=max(ridx(p) for p in (pl,pv) if p is not None)
            pos=len(res)
            j=len(res)-1; tries=0; found=None
            while j>lastprod and tries<3:
                if res[j].kind=='mfma':
                    tries+=1
                    nxt = res[j+1] if j+1<len(res) else o
                    if nxt.kind=='wait' or nxt.kind not in SC_KINDS:
                        found=j+1; break
                j-=1
            if found is not None: pos=found
            cnt=lambda p,kinds: sum(1 for x in res[ridx(p)+1:pos] if x.kind in kinds)
            nl = min(15,cnt(pl,DS)) if pl else None
            nv = min(63,cnt(pv,VM)) if pv else None
            if pos<len(res) and res[pos].kind=='wait':
                w=res[pos]
                if nl is not None: w.tag['l']=min(nl,w.tag.get('l',99))
                if nv is not None: w.tag['v']=min(nv,w.tag.get('v',99))
            else:
                w=Op('','wait',tag={}); w.gap=o.gap
                if nl is not None: w.tag['l']=nl
                if nv is not None: w.tag['v']=nv
                res.insert(pos,w)
            w.text='s_waitcnt '+' '.join(([f"vmcnt({w.tag['v']})"] if 'v' in w.tag else [])+([f"lgkmcnt({w.tag['l']})"] if 'l' in w.tag else []))
            if kl>=0: lg=lg[kl+1:]
            if kv>=0: vm=vm[kv+1:]
        res.append(o)
        if o.kind in DS: lg.append(o)
        if o.kind in VM: vm.append(o)
        assert len(vm)<=63, "vmcnt overflow"
    return res

def verify_waits(out):
    lg=[]; vm=[]
    for o in out:
        if o.kind=='wait':
            if 'l' in o.tag: lg=lg[max(0,len(lg)-o.tag['l']):] if o.tag['l'] else []
            if 'v' in o.tag: vm=vm[max(0,len(vm)-o.tag['v']):] if o.tag['v'] else []
            continue
        rs={x for x in set(o.reads)|set(o.writes) if not x.startswith('O:')}
        for p in lg:
            sh=set(p.writes)&rs
            if o.kind in DS:
                sh={x for x in sh if not x.startswith('L:')}
                if p.kind=='dsr' and o.kind=='dsr': sh={x for x in sh if x in o.reads}
            assert not sh,(p,o,sh)
        for p in vm:
            sh=set(p.writes)&rs
            if o.kind in VM: sh={x for x in sh if x in o.reads}
            assert not sh,(p,o,sh)
        if o.kind in DS: lg.append(o)
        if o.kind in VM: vm.append(o)

def check_hazards(out):
    for i,o in enumerate(out):
        k=0
        for p in reversed(out[max(0,i-14):i]):
            d=hazard_dist(p,o)
            assert d<=k, (p,o,d,k)
            k+=p.nws

def estimate(out, marks=None, mt=None):
    t=0; lastm=-100; prev=None; vend=-100; blk=-100; dsend=-100
    for o in out:
        k=o.kind
        if k=='mfma':
            t=max(t,lastm+16,blk); lastm=t; t+=o.cost
            if mt is not None: mt.append(t)
        elif k in SC_KINDS:
            c = 4*o.nws
            if prev is not None and prev.kind=='mfma': c-=4
            if k=='bar':
                c+=24
                if marks is not None: marks.append(t)
            t+=c
        else:
            if k=='pk': t=max(t,lastm+28)
            if k in MEM_KINDS: t=max(t,vend+8)
            if k=='dma' and prev.kind=='dsr': t+=16
            if k=='dma' and prev.kind=='dma': t-=4
            if k=='gst': blk=t+22
            t+=o.cost
            if k in VALU_KINDS: vend=t
        prev=o
    return t
```

```python
from cfgs import *
b=dict(verbose=False)
emit(mk(tail=0,**b),'t_0.s')
emit(mk(tail=2,snake=True,**b),'t_2.s')
emit(mk(tail=4,snake=True,**b),'t_4.s')
emit(mk(tail=6,snake=True,D=7,ststep=34,tailst=[10,10,10,10,3,3],**b),'t_6.s')
emit(mk(tail=4,snake=True,stpol='',**b),'t_4def.s')
emit(mk(tail=0,stpol='',**b),'t_0def.s')
```

```python
from cfgs import *
b=dict(verbose=False,tail=4,snake=True)
A='sc0 sc1 nt'
emit(mk(**b),'u_nt.s')
emit(mk(stpol=A,**b),'u_all.s')
emit(mk(stpol='sc1',**b),'u_sc1.s')
emit(mk(stpol=[A]*10+['nt']*2,**b),'u_mix.s')
emit(mk(stpol=[A]*6+['nt']*6,**b),'u_mix2.s')
emit(mk(stpol='sc1 nt',**b),'u_sc1nt.s')
```

```python
import sys
from gen import *
HEADS={
 'simple':dict(v=[(0,'012345')],
    plan=[(-1,('Q',0)),(-1,('K',0)),(-1,('Q',1)),(-1,('V',0)),(-1,('q',0)),(-1,('Q',2)),(-1,('q',1)),(-1,('Q',3)),(-1,('q',2)),(-1,('Q',4)),
          (-1,('q',3)),(-1,('Q',5)),(-1,('B',1)),(-1,('q',4)),(-1,('q',5))], nb=2, t=0, qfree=[0,0]),
 'h5':dict(v=[(0,'012'),(1,'012'),(2,'012'),(3,'0123'),(4,'01234'),(0,'345'),(1,'345'),(2,'345'),(3,'45'),(4,'5')],
    plan=[(-1,('Q',0)),(-1,('K',0)),(-1,('Q',1)),(-1,('V',0)),(-1,('q',0)),(-1,('Q',2)),
          (0,('q',1)),(0,('B',1,1)),(0,('B',2,1)),(1,('q',2)),(1,('B',3,1)),(2,('Q',3,1)),(5,('B',4,1)),(8,('Q',4,1)),(11,('q',3)),(11,('Q',5,1)),
          (16,('q',4)),(19,('q',5))], nb=5, t=13, qfree=[17,20]),
 'h6':dict(v=[(0,'01'),(1,'012'),(0,'2'),(2,'012'),(3,'012'),(4,'0123'),(5,'0123'),(0,'345'),(1,'345'),(2,'345'),(3,'345'),(4,'45'),(5,'45')],
    plan=[(-1,('Q',0)),(-1,('K',0)),(-1,('Q',1)),(-1,('V',0)),(-1,('q',0)),(-1,('B',1)),
          (0,('q',1)),(0,('Q',2,1)),(0,('B',2,1)),(1,('B',3,1)),(3,('q',2)),(3,('B',4,1)),(5,('Q',3,1)),(8,('B',5,1)),(11,('Q',4,1)),(14,('q',3)),(14,('Q',5,1)),
          (19,('q',4)),(21,('q',5))], nb=6, t=17, qfree=[20,22]),
}
def mk(head='h5', tail=4, D=5, ststep=40, TQ=5, TB=3, qlat=14, minD=3, groups=([6,7],[8,9],[10,11]), **kw):
    A=list(range(6)); B=list(range(6,12))
    H=HEADS[head]
    visits=[(g,[int(c) for c in t]) for g,t in H['v']]
    plan=list(H['plan'])
    g0=max(g for g,_ in visits)+1
    for g in range(g0,32-tail): visits.append((g,A if g<16 else B))
    if 'tailv' in kw:
        for g,t in kw['tailv']: visits.append((g,[6+int(c) for c in t]))
    elif tail:
        for k,grp in enumerate(groups):
            gs=list(range(32-tail,32))
            if kw.get('snake') and k%2: gs=gs[::-1]
            for g in gs:
                if visits[-1][0]==g: visits[-1]=(g,visits[-1][1]+list(grp))
                else: visits.append((g,list(grp)))
    first={}; last={}; n=0
    for g,ts in visits:
        first.setdefault(g,n); last[g]=n; n+=len(ts)
    t=H['t']; nb=H['nb']; nq=6; qfree=list(H['qfree'])
    n=int(t)
    while nb<32 or nq<12:
        if t>n: n+=1; continue
        ahead=sum(1 for g in range(nb) if first[g]>n)
        resident=sum(1 for g in range(nb) if last[g]+9>n)
        canB = nb<32 and resident<8 and ahead<D
        canQ = nq<12 and qfree[nq%2]<=n
        if canB and (ahead<minD or not canQ):
            plan.append((n,('B',nb,int(TB*17/4)))); nb+=1; t=max(t,n)+TB
        elif canQ:
            plan.append((n,('Q',nq,int(TQ*17/4)))); t=max(t,n)+TQ
            if nq<10:
                plan.append((n+qlat,('q',nq))); qfree[nq%2]=n+qlat+1
            else: qfree[nq%2]=999
            nq+=1
        else: n+=1
    plan.append((6*15+1,('q',10))); plan.append((6*15+2,('q',11)))
    oimm={0:(2,None),1:(3,None),2:(4,None),3:(5,None)}
    ts=kw.get('tailst',[4]*6)
    for T in range(6,12): oimm[T]=({6:6,7:7,8:8,9:9,10:0,11:1}[T],ts[T-6])
    n=6*17
    if kw.get('direct'):
        oimm={0:(None,kw.get('st01',8)),1:(None,kw.get('st01',8)),2:(2,None),3:(3,None),4:(4,None),5:(5,None)}
        for T in range(6,12): oimm[T]=(None,ts[T-6])
        n=6*18
        for T in range(2,6):
            plan.append((n,('s',T,ststep))); n+= (4*ststep+16)//17
    else:
      for T in range(6):
        if T>=4: plan.append((n-3,('o',T,T-2)))
        plan.append((n,('s',T,ststep)))
        n+= (4*ststep+16)//17
    c=dict(visits=visits,plan=plan,oimm=oimm,verbose=True,ldsrate=512,dsmargin=8,merge=8,dmapair=False)
    c.update(kw)
    if c.get('showplan'): print(sorted([(n,u[0]+str(u[1])) for n,u in plan if n>=0]))
    return c
if False:
    for h in ('simple','h5','h6'):
        emit(mk(h,showplan=True),f'v4{h}.s')
HEADS['h7']=dict(v=[(0,'01'),(1,'012'),(0,'2'),(2,'012'),(3,'0123'),(4,'012345'),(3,'45'),(0,'345'),(1,'345'),(2,'345')],
    plan=[(-1,('Q',0)),(-1,('K',0)),(-1,('Q',1)),(-1,('K',1)),(-1,('q',0)),(-1,('V',0)),(-1,('V',1)),
          (0,('q',1)),(0,('Q',2,1)),(1,('B',2,1)),(3,('q',2)),(3,('B',3,1)),(4,('Q',3,1)),(6,('B',4,1)),(8,('Q',4,1)),(11,('q',3)),(11,('Q',5,1)),
          (15,('q',4)),(17,('q',5))], nb=5, t=14, qfree=[16,18])
HEADS['h8']=dict(v=[(0,'01'),(1,'01'),(2,'0123'),(1,'23'),(0,'23'),(3,'012345'),(2,'45'),(1,'45'),(0,'45')],
    plan=[(-1,('Q',0)),(-1,('K',0)),(-1,('Q',1)),(-1,('K',1)),(-1,('q',0)),(-1,('V',0)),(-1,('V',1)),
          (0,('q',1)),(0,('B',2,1)),(1,('Q',2,1)),(2,('Q',3,1)),(5,('q',2)),(5,('B',3,1)),(6,('q',3)),(6,('Q',4,1)),(8,('Q',5,1)),
          (14,('q',4)),(16,('q',5))], nb=4, t=11, qfree=[15,17])
HEADS['h7p']=dict(v=HEADS['h7']['v'],
    plan=[(-1,('Q',0)),(-1,('K',0)),(-1,('Q',1)),(-1,('K',1)),(-1,('q',0)),(-1,('V',0)),(-1,('V',1)),(-1,('p',0)),(-1,('Q',2)),
          (0,('q',1,6)),(0,('B',2,1)),(0,('p',1,8)),(2,('B',3,1)),(3,('q',2,6)),(3,('Q',3,1)),(6,('B',4,1)),(8,('Q',4,1)),(11,('q',3)),(11,('Q',5,1)),
          (15,('q',4)),(17,('q',5))], nb=5, t=14, qfree=[16,18])
HEADS['h5p']=dict(v=HEADS['h5']['v'],
    plan=[(-1,('Q',0)),(-1,('K',0)),(-1,('Q',1)),(-1,('V',0)),(-1,('q',0)),(-1,('Q',2)),(-1,('p',0)),
          (0,('q',1,6)),(0,('B',1,1)),(0,('p',1,8)),(1,('B',2,1)),(1,('q',2,6)),(2,('B',3,1)),(3,('Q',3,1)),(5,('B',4,1)),(8,('Q',4,1)),(11,('q',3)),(11,('Q',5,1)),
          (16,('q',4)),(19,('q',5))], nb=5, t=13, qfree=[17,20])
def hq(quiet_end=20, bsl=12, b3=6, b4=10, b5=14, b6=None):
    v=[(0,'01'),(1,'01'),(2,'0123'),(1,'23'),(0,'23'),(3,'0123'),(4,'0123'),(5,'0123'),(6,'012345'),(0,'45'),(1,'45'),(2,'45'),(3,'45'),(4,'45'),(5,'45')]
    e=quiet_end
    plan=[(-1,('Q',0)),(-1,('K',0)),(-1,('Q',1)),(-1,('K',1)),(-1,('q',0)),(-1,('V',0)),(-1,('V',1)),
          (0,('q',1)),(0,('B',2,1)),(1,('Q',2,1)),(2,('Q',3,1)),(5,('q',2)),(6,('q',3)),
          (b3,('B',3,bsl)),(b4,('B',4,bsl)),(b5,('B',5,bsl)),(e-2,('B',6,4)),(e,('Q',4,2)),(e+1,('Q',5,2)),(27,('q',4)),(28,('q',5))]
    return dict(v=v,plan=plan,nb=7,t=e+6,qfree=[28,29])
HEADS['q20']=hq(20); HEADS['q18']=hq(18,10,6,9,12); HEADS['q16']=hq(16,8,6,8,11)
def hr(e=20,bsl=12):
    v=[(0,'01'),(1,'01'),(2,'0123'),(1,'23'),(0,'23'),(3,'0123'),(4,'0123'),(5,'0123'),(6,'0123'),(7,'012345'),(0,'45'),(1,'45'),(2,'45'),(3,'45'),(4,'45'),(5,'45'),(6,'45')]
    plan=[(-1,('Q',0)),(-1,('K',0)),(-1,('Q',1)),(-1,('K',1)),(-1,('q',0)),(-1,('V',0)),(-1,('V',1)),
          (0,('q',1)),(0,('B',2,1)),(1,('Q',2,1)),(2,('Q',3,1)),(5,('q',2)),(6,('q',3)),
          (6,('B',3,bsl)),(10,('B',4,bsl)),(14,('B',5,bsl)),(18,('B',6,bsl)),(e,('B',7,4)),(e+1,('Q',4,4)),(e+3,('Q',5,4)),(31,('q',4)),(32,('q',5))]
    return dict(v=v,plan=plan,nb=8,t=e+8,qfree=[32,33])
HEADS['r22']=hr(22)
def hj(J, loads, t):
    v=[(0,'01'),(1,'01'),(2,'0123'),(1,'23'),(0,'23')]+[(g,'0123') for g in range(3,J)]+[(J,'012345')]+[(g,'45') for g in range(J)]
    n4=12+4*(J-3)+4
    plan=[(-1,('Q',0)),(-1,('K',0)),(-1,('Q',1)),(-1,('K',1)),(-1,('q',0)),(-1,('V',0)),(-1,('V',1)),(-1,('p',0)),
          (0,('q',1)),(0,('B',2,1)),(0,('p',1)),(1,('Q',2,1)),(2,('Q',3,1)),(5,('q',2)),(6,('q',3))]+loads+[(n4-1,('q',4)),(n4,('q',5))]
    return dict(v=v,plan=plan,nb=J+1,t=t,qfree=[n4,n4+1])
HEADS['j3a']=hj(3,[(6,('B',3,2)),(7,('Q',4,4)),(9,('Q',5,4))],13)
HEADS['j4a']=hj(4,[(6,('B',3,6)),(8,('B',4,6)),(10,('Q',4,8)),(13,('Q',5,8))],17)
HEADS['j4b']=hj(4,[(6,('B',3,6)),(9,('B',4,6)),(12,('Q',4,4)),(14,('Q',5,4))],18)
HEADS['j5a']=hj(5,[(6,('B',3,6)),(8,('B',4,6)),(10,('B',5,8)),(13,('Q',4,8)),(16,('Q',5,8))],20)
```

```python
import sys, math, struct
from sched import *

NAME="standalone__gqa_softmax__near_ridge"
CSC = math.log2(math.e)/math.sqrt(128.0)
def f2u(x): return struct.unpack('<I',struct.pack('<f',x))[0]

vS=[0,8,16]; vP=[24,28,32,36]; vMCs=[63,41,42,43,44,45]; vBp=40
vKa=[46,47]; vVa=[48,49,50,51]; vQa=[52,53]; vDMA=54; vIdx=55
vOw=[56,57,52,53]; vOst=58; vOr=59
vL=[60,62]; vT0=61; vT1=None
vCI={0:56,1:60}; aSave=248
vO=lambda slot,t: 64+32*slot+4*t
aQ=lambda b: 16*b
aK=lambda f: 160+4*f
aV=lambda t: 192+4*t
aSum=lambda slot: 224+4*(slot//2)
aOneS=236; aOneD=[240,244]
sQ=8; sK=12; sV=16; sO=20
sC=24; sTH=25; sWL=26 ; sWQ=27; sWS=28; sOffKV=29; sOffQ=30; sOffO=31; sW=32; sMSK=7
sFlag=40
KRING=0; VRING=65536; STG=131072

class Gen:
    def __init__(s, cfg):
        s.cfg=cfg; s.P=Program(); s.nbb=0; s.bars=[]; s.vis=set()
        s.R=cfg.get('ring',8); s.LAG=cfg.get('lag',2); s.NB=s.LAG+1
        s.lastread={}; s.dmadone={}; s.occ={'K':[None]*s.R,'V':[None]*s.R}; s.slotof={}; s.dmarel={}
        s.ldpol=cfg.get('ldpol','nt'); s.stpol=cfg.get('stpol','nt')
        s.urgent=False; s.win=cfg.get('dmawin',12); s.np=0 if cfg.get('dmapair',True) else 1
    def add(s,*a,**k):
        o=Op(*a,**k); s.P.add(o)
        if o.kind=='mfma': s.nbb+=1
        return o
    def now(s): return s.nbb-1
    def barrier(s):
        g=s.now()
        b=s.add("s_barrier",'bar',reads=[],writes=['barorder'],release=g,deadline=g)
        s.bars.append(b); return b
    def visible(s,part,g):
        if (part,g) in s.vis: return
        b=s.bars[-1]
        for bb in reversed(s.bars):
            if bb.reads and bb.release>=s.dmarel[(part,g)]+s.cfg.get('vislat',200) and s.dmadone[(part,g)]<bb.idx: b=bb; break
        assert s.dmadone[(part,g)]<b.idx, ("dma after barrier",part,g)
        b.reads.append(f"L:{part}{g}"); b.writes.append(f"vis{part}{g}"); s.vis.add((part,g))
    def dl(s,rel): return (rel+(0 if s.urgent else s.win)) if rel>=0 else -1
    def dma_kv(s,part,g,rel,step):
        rd=[]
        occ=s.occ[part]
        free=[x for x in range(s.R) if occ[x] is None]
        if free: slot=free[0]
        else:
            b=s.bars[-1]
            c=[x for x in range(s.R) if s.allread[(part,occ[x])]==0 and s.lastread[(part,occ[x])]<b.idx]
            assert c, ("no free slot",part,g,occ)
            slot=min(c,key=lambda x:s.lastread[(part,occ[x])]); old=occ[slot]
            for bb in s.bars:
                if bb.idx>s.lastread[(part,old)]+s.cfg.get('freegap',60) and bb.reads: b=bb; break
            b.reads.append(f"L:rd{part}{old}"); b.writes.append(f"free{part}{old}"); rd=[f"free{part}{old}"]
        occ[slot]=g; s.slotof[(part,g)]=slot
        base=(KRING if part=='K' else VRING)+slot*8192
        s.add(f"s_add_u32 m0, s{sWL}, {base}",'salu',writes=['m0'],margin=1)
        if s.curoff!=g:
            s.add(f"s_mov_b32 s{sOffKV}, {g*8192}",'salu',writes=[f"s{sOffKV}"],margin=1); s.curoff=g
        srd=sK if part=='K' else sV
        for i in range(2):
            o=s.add(f"buffer_load_dwordx4 v{vDMA}, s[{srd}:{srd+3}], s{sOffKV} offen offset:{2048*i} {s.ldpol} lds",'dma',
                  reads=['m0',f"s{sOffKV}"]+rd,writes=[f"L:{part}{g}",'O:vm'],release=rel+i*step*s.np,deadline=s.dl(rel+i*step*s.np),tag=('pair' if i and not s.np else None))
        s.dmadone[(part,g)]=o.idx; s.dmarel[(part,g)]=o.deadline
    def dma_q(s,T,rel,step):
        buf=T%2; it,j=divmod(T,6)
        assert s.stgown[buf] is None, ("stg busy",T,s.stgown); s.stgown[buf]=('Q',T)
        k=0
        for half in range(2):
            s.add(f"s_add_u32 m0, s{sWS}, {STG+buf*4096+half*896}",'salu',writes=['m0'],margin=1)
            if half==0: s.add(f"s_add_u32 s{sOffQ}, s{sWQ}, {(it*768+16*j)*256}",'salu',writes=[f"s{sOffQ}"],margin=1)
            for oc in range(2):
                s.add(f"buffer_load_dwordx4 v{vDMA}, s[{sQ}:{sQ+3}], s{sOffQ} offen offset:{2048*oc+128*half} {s.ldpol} lds",'dma',
                      reads=['m0',f"s{sOffQ}",f"L:stg{buf}"],writes=[f"L:Q{T}",'O:vm'],release=rel+(k if s.np else 2*half)*step,deadline=s.dl(rel+(k if s.np else 2*half)*step),tag=('pair' if oc and not s.np else None))
                k+=1
    def read_q(s,T,rel):
        buf=T%2; qb=s.qbuf[T]; s.qread.add(T)
        assert all(s.seen[x]==16 for x in range(T) if s.qbuf[x]==qb), ("qbuf busy",T)
        assert s.stgown[buf]==('Q',T); s.stgown[buf]=None
        if T in s.pres:
            raw=vO(5,0)+16*T; tmp=vO(4,0)
            for st in range(4):
                s.add(f"ds_read_b128 {rng('v',raw+4*st,4)}, v{vQa[st%2]} offset:{buf*4096+(st//2)*1024}",'dsr',
                      reads=[f"L:Q{T}",f"v{vQa[st%2]}"]+(['O:vm'] if st==0 else []),writes=R('v',raw+4*st,4)+[f"L:stg{buf}"],release=rel,deadline=rel)
            return
        s._read_q_plain(T,rel)
    def prescale(s,T,rel,off=0):
        if T not in s.pres: return
        qb=s.qbuf[T]
        if True:
            raw=vO(5,0)+16*T; tmp=vO(4,0)
            G = rel+off
            kw=dict(release=G,deadline=G)
            for r in range(16):
                x=raw+r; a=tmp+2*r
                s.add(f"v_lshlrev_b32 v{a}, 16, v{x}",'valu',reads=[f"v{x}"],writes=[f"v{a}"],**kw)
                s.add(f"v_and_b32 v{a+1}, s{sMSK}, v{x}",'valu',reads=[f"v{x}"],writes=[f"v{a+1}"],**kw)
            for r in range(16):
                x=raw+r; a=tmp+2*r
                s.add(f"v_pk_mul_f32 v[{a}:{a+1}], v[{a}:{a+1}], s[{sC}:{sC+1}] op_sel_hi:[1,0]",'pk',reads=[f"v{a}",f"v{a+1}"],writes=[f"v{a}",f"v{a+1}"],**kw)
                s.add(f"v_cvt_pk_bf16_f32 v{x}, v{a}, v{a+1}",'valu',reads=[f"v{a}",f"v{a+1}"],writes=[f"v{x}"],**kw)
                s.add(f"v_accvgpr_write_b32 a{aQ(qb)+r}, v{x}",'valu',reads=[f"v{x}"],writes=[f"a{aQ(qb)+r}"],**kw)
            return
    def _read_q_plain(s,T,rel):
        buf=T%2; qb=s.qbuf[T]
        for st in range(4):
            s.add(f"ds_read_b128 {rng('a',aQ(qb)+4*st,4)}, v{vQa[st%2]} offset:{buf*4096+(st//2)*1024}",'dsr',
                  reads=[f"L:Q{T}",f"v{vQa[st%2]}"]+(['O:vm'] if st==0 else []),writes=R('a',aQ(qb)+4*st,4)+[f"L:stg{buf}"],release=rel,margin=8,deadline=s.dl(rel),hole=True)
    def read_k(s,g,order):
        s.visible('K',g); slot=s.slotof[('K',g)]
        for f in order:
            kt,st=divmod(f,4)
            o=s.add(f"ds_read_b128 {rng('a',aK(f),4)}, v{vKa[st%2]} offset:{slot*8192+kt*4096+(st//2)*1024}",'dsr',
                  reads=[f"visK{g}"],writes=R('a',aK(f),4)+[f"L:rdK{g}"],margin=s.cfg.get('dsmargin',10))
        s.lastread[('K',g)]=o.idx; s.allread[('K',g)]-=1
    def read_v(s,g):
        s.visible('V',g); slot=s.slotof[('V',g)]
        for t in range(8):
            for kt in range(2):
                o=s.add(f"ds_read_b64_tr_b16 {rng('a',aV(t)+2*kt,2)}, v{vVa[t%4]} offset:{slot*8192+kt*4096+(t//4)*1024}",'dsr',
                      reads=[f"visV{g}"],writes=R('a',aV(t)+2*kt,2)+[f"L:rdV{g}"],margin=s.cfg.get('dsmargin',10))
        s.lastread[('V',g)]=o.idx; s.allread[('V',g)]-=1
    KORD=[0,1,2,3,7,6,5,4]
    def qk(s,n,T):
        b=n%s.NB; qb=s.qbuf[T]
        for i,f in enumerate(s.KORD):
            kt,st=divmod(f,4)
            d=vS[b]+4*kt; first=(i%4==0)
            cr = R('v',d,4); c=rng('v',d,4)
            if first:
                if T in s.pres and s.seen[T]>0: cr=R('v',vCI[T],4); c=rng('v',vCI[T],4)
                else: cr=[]; c="0"
            s.add(f"v_mfma_f32_16x16x32_bf16 {rng('v',d,4)}, {rng('a',aK(f),4)}, {rng('a',aQ(qb)+4*st,4)}, {c}",'mfma',
                  reads=R('a',aK(f),4)+R('a',aQ(qb)+4*st,4)+cr,writes=R('v',d,4),cread=cr)
        if T==0 and T in s.pres and s.seen[T]==15:
            for r in range(4): s.add(f"v_accvgpr_read_b32 v{vCI[0]+r}, a{aSave+r}",'valu',reads=[],writes=[f"v{vCI[0]+r}"])
    def pv(s,n,T,first):
        slot=s.slot[T]; p=vP[s.pbuf[n]]
        d=aSum(slot); mode=s.summode[n]
        if (T//2) not in s.zeroed:
            s.zeroed.add(T//2)
            for r in range(4): s.add(f"v_accvgpr_write_b32 a{d+r}, 0",'valu',writes=[f"a{d+r}"],margin=2)
        if mode=='single':
            a=aOneD[slot%2]
            s.add(f"v_mfma_f32_16x16x32_bf16 {rng('a',d,4)}, {rng('a',a,4)}, {rng('v',p,4)}, {rng('a',d,4)}",'mfma',
                  reads=R('a',a,4)+R('v',p,4)+R('a',d,4),writes=R('a',d,4),cread=R('a',d,4),tag='sum')
        elif mode=='second':
            s.add(f"v_smfmac_f32_16x16x64_bf16 {rng('a',d,4)}, {rng('a',aOneS,4)}, {rng('v',p-4,8)}, v{vIdx}",'mfma',
                  reads=R('a',aOneS,4)+R('v',p-4,8)+R('a',d,4),writes=R('a',d,4),cread=R('a',d,4),cost=12,tag='sum')
        if s.pending_epi is not None and mode=='second':
            X=s.pending_epi; s.pending_epi=None; s.finish(X,5)
        for t in range(8):
            d=vO(slot,t); c="0" if first else rng('v',d,4)
            s.add(f"v_mfma_f32_16x16x32_bf16 {rng('v',d,4)}, {rng('a',aV(t),4)}, {rng('v',p,4)}, {c}",'mfma',
                  reads=R('a',aV(t),4)+R('v',p,4)+([] if first else R('v',d,4)),writes=R('v',d,4),cread=([] if first else R('v',d,4)))
    def finish(s,T,off):
        e=s.epilogue(T,off)
        if T in s.imm:
            s.read_o(T,s.imm[T][0],e)
            if s.imm[T][1] is not None: s.store_o(T,e+s.cfg.get('stlag',10),s.imm[T][1])
    def sm(s,n,T,first):
        b=n%s.NB; S=vS[b]; p=vP[s.pbuf[n]]; mc=vMCs[s.slot[T]]; zero=s.cfg.get('zero'); pre=T in s.pres
        if pre: mc=vCI[T]
        if first and not zero:
            t0,t1=(mc,None) if s.cfg.get('bperm',True) else (vT0,vT1)
            V=lambda txt,rd,wr,k='valu': s.add(txt,k,reads=[f"v{x}" for x in rd],writes=[f"v{x}" for x in wr],margin=1)
            V(f"v_max3_f32 v{t0}, v{S}, v{S+1}, v{S+2}",[S,S+1,S+2],[t0])
            V(f"v_max_f32 v{t0}, v{t0}, v{S+3}",[t0,S+3],[t0])
            if s.cfg.get('bperm',True):
                s.add(f"ds_bpermute_b32 v{t0}, v{vBp}, v{t0}",'dsr',reads=[f"v{t0}"],writes=[f"v{t0}"],margin=6)
            else:
                V(f"v_mov_b32 v{t1}, v{t0}",[t0],[t1])
                V(f"v_permlane16_swap_b32 v{t0}, v{t1}",[t0,t1],[t0,t1],'perm')
                V(f"v_max_f32 v{t0}, v{t0}, v{t1}",[t0,t1],[t0])
                V(f"v_mov_b32 v{t1}, v{t0}",[t0],[t1])
                V(f"v_permlane32_swap_b32 v{t0}, v{t1}",[t0,t1],[t0,t1],'perm')
                V(f"v_max_f32 v{t0}, v{t0}, v{t1}",[t0,t1],[t0])
            if pre:
                V(f"v_xor_b32 v{mc}, 0x80000000, v{t0}",[t0],[mc])
                for r in range(1,4): V(f"v_mov_b32 v{mc+r}, v{mc}",[mc],[mc+r])
            else: V(f"v_mul_f32 v{mc}, 0x{f2u(-CSC):08x}, v{t0}",[t0],[mc])
        sp=s.cfg.get('smsp',3)
        for k in range(4):
            for i in (2*k,2*k+1):
                if pre:
                    if first: s.add(f"v_add_f32 v{S+i}, v{S+i}, v{mc}",'valu',reads=[f"v{S+i}",f"v{mc}"],writes=[f"v{S+i}"],margin=1)
                elif zero: s.add(f"v_mul_f32 v{S+i}, s{sC}, v{S+i}",'valu',reads=[f"v{S+i}"],writes=[f"v{S+i}"],margin=1)
                else: s.add(f"v_fma_f32 v{S+i}, v{S+i}, s{sC}, v{mc}",'valu',reads=[f"v{S+i}",f"v{mc}"],writes=[f"v{S+i}"],margin=1)
            for i in (2*k,2*k+1):
                s.add(f"v_exp_f32 v{S+i}, v{S+i}",'trans',reads=[f"v{S+i}"],writes=[f"v{S+i}"],margin=1+(i%2==0))
            s.add(f"v_cvt_pk_bf16_f32 v{p+k}, v{S+2*k}, v{S+2*k+1}",'valu',reads=[f"v{S+2*k}",f"v{S+2*k+1}"],writes=[f"v{p+k}"],margin=1+sp*(3-k))
    def epilogue(s,T,off=0):
        slot=s.slot[T]; g0=s.now()+off; l=vL[T%2]; buf=s.obuf[T]; tmp=(vT0 if s.cfg.get('bperm',True) else l+1); a=aSum(slot)+2*(slot%2)
        direct=s.cfg.get('direct')
        if not direct:
            assert s.stgown[buf] is None, ("stg busy O",T,s.stgown); s.stgown[buf]=('O',T)
        if not s.owdone and not direct:
            assert len(s.qread)==12
            s.owdone=True
            s.add(f"v_xor_b32 v{vOw[2]}, 64, v{vOw[0]}",'valu',reads=[f"v{vOw[0]}"],writes=[f"v{vOw[2]}"])
            s.add(f"v_xor_b32 v{vOw[3]}, 64, v{vOw[1]}",'valu',reads=[f"v{vOw[1]}"],writes=[f"v{vOw[3]}"])
        s.add(f"v_accvgpr_read_b32 v{l}, a{a}",'valu',reads=[f"a{a}"],writes=[f"v{l}"],deadline=g0-1)
        s.add(f"v_accvgpr_read_b32 v{tmp}, a{a+1}",'valu',reads=[f"a{a+1}"],writes=[f"v{tmp}"],deadline=g0-1)
        s.add(f"v_add_f32 v{l}, v{l}, v{tmp}",'valu',reads=[f"v{l}",f"v{tmp}"],writes=[f"v{l}"],deadline=g0)
        s.add(f"v_cmp_ngt_f32_e64 s[{sFlag+2*T}:{sFlag+2*T+1}], s{sTH}, v{l}",'valu',reads=[f"v{l}"],writes=[f"s{sFlag+2*T}"],deadline=g0)
        s.add(f"v_rcp_f32 v{l}, v{l}",'trans',reads=[f"v{l}"],writes=[f"v{l}"],deadline=g0+1)
        G=g0+3
        for t in range(8):
            o=vO(slot,t)
            for i in (0,2):
                s.add(f"v_pk_mul_f32 v[{o+i}:{o+i+1}], v[{o+i}:{o+i+1}], v[{l}:{l+1}] op_sel_hi:[1,0]",'pk',reads=[f"v{o+i}",f"v{o+i+1}",f"v{l}"],writes=[f"v{o+i}",f"v{o+i+1}"],release=G,deadline=G)
        W=s.cfg.get('epiw',12)
        if direct:
            for m in range(4):
                o=vO(slot,2*m); d=G+(W*m)//4
                for i in range(4):
                    s.add(f"v_cvt_pk_bf16_f32 v{o+i}, v{o+2*i}, v{o+2*i+1}",'valu',reads=[f"v{o+2*i}",f"v{o+2*i+1}"],writes=[f"v{o+i}"],deadline=d+i//2)
                for i in range(2):
                    s.add(f"v_permlane16_swap_b32 v{o+i}, v{o+i+2}",'perm',reads=[f"v{o+i}",f"v{o+i+2}"],writes=[f"v{o+i}",f"v{o+i+2}"],deadline=d+2+i)
            return G+4
        for t in range(8):
            o=vO(slot,t); d=G+(W*t)//8
            for i in range(2):
                s.add(f"v_cvt_pk_bf16_f32 v{o+i}, v{o+2*i}, v{o+2*i+1}",'valu',reads=[f"v{o+2*i}",f"v{o+2*i+1}"],writes=[f"v{o+i}"],deadline=d)
            s.add(f"ds_write_b64 v{vOw[t%4]}, v[{o}:{o+1}] offset:{buf*4096+(t//4)*1024}",'dsw',reads=[f"v{o}",f"v{o+1}",f"v{vOw[t%4]}"],writes=[f"L:stg{buf}"],deadline=d+1)
        return G+W+2
    def read_o(s,T,park,rel):
        buf=s.obuf[T]; s.park[T]=park
        if s.cfg.get('direct'):
            if park is None: return
            assert all(s.seen[x] in (0,16) and not (s.seen[x]==0 and x in s.qread) for x in range(12) if s.qbuf[x]==park), ("park busy",T,park)
            assert s.parkown.get(park) is None; s.parkown[park]=[T,4]
            W=s.cfg.get('epiw',12)
            for m in range(4):
                o=vO(s.slot[T],2*m)
                for i in range(4):
                    s.add(f"v_accvgpr_write_b32 a{aQ(park)+4*m+i}, v{o+i}",'valu',reads=[f"v{o+i}"],writes=[f"a{aQ(park)+4*m+i}"],deadline=rel+(W*m)//4+i//2+s.cfg.get('accslack',0))
            return
        assert all(s.seen[x] in (0,16) and not (s.seen[x]==0 and x in s.qread) for x in range(12) if s.qbuf[x]==park), ("park busy",T,park)
        assert s.stgown[buf]==('O',T); s.stgown[buf]=None
        assert s.parkown.get(park) is None, ("park has unstored data",T,park); s.parkown[park]=[T,4]
        for j in range(4):
            s.add(f"ds_read_b128 {rng('a',aQ(park)+4*j,4)}, v{vOr} offset:{buf*4096+1024*j}",'dsr',
                  reads=[f"v{vOr}"],writes=R('a',aQ(park)+4*j,4)+[f"L:stg{buf}"],release=rel,deadline=rel+4,hole=True)
    def store_o(s,T,rel,step,js=range(4)):
        it,j=divmod(T,6); park=s.park[T]
        if s.curO!=T:
            s.add(f"s_mov_b32 s{sOffO}, {(it*768+16*j)*256}",'salu',writes=[f"s{sOffO}"],margin=1); s.curO=T
        s.nst+=len(js)
        if park is not None:
            s.parkown[park][1]-=len(js)
            if s.parkown[park][1]==0: s.parkown[park]=None
        if s.cfg.get('direct'):
            pol=s.stpol if isinstance(s.stpol,str) else s.stpol[T]
            for k,m in enumerate(js):
                p,r=('a',aQ(park)+4*m) if park is not None else ('v',vO(s.slot[T],2*m))
                s.add(f"buffer_store_dwordx4 {rng(p,r,4)}, v{vOst}, s[{sO}:{sO+3}], s{sOffO} offen offset:{64*m} {pol}",'gst',
                      reads=R(p,r,4)+[f"s{sOffO}",f"v{vOst}"],writes=['O:st'],release=rel+k*step,deadline=rel+k*step+2)
            return
        for k,j in enumerate(js):
            s.add(f"buffer_store_dwordx4 {rng('a',aQ(park)+4*j,4)}, v{vOst}, s[{sO}:{sO+3}], s{sOffO} offen offset:{(j//2)*2048+(j%2)*128} {s.stpol if isinstance(s.stpol,str) else s.stpol[T]}",'gst',
                  reads=R('a',aQ(park)+4*j,4)+[f"s{sOffO}",f"v{vOst}"],writes=['O:st'],release=rel+k*step,deadline=rel+k*step+2)
    def build(s):
        cfg=s.cfg; LAG=s.LAG
        visits=cfg['visits']
        s.slot={T:T%6 for T in range(12)}
        s.qbuf=cfg.get('qbuf',{**{T:T for T in range(10)},10:0,11:1})
        s.obuf={T:T%2 for T in range(12)}; s.park={}; s.curO=None
        s.pres=set(cfg.get('pres',())); s.imm=cfg.get('oimm',{}); s.zeroed=set(); s.pending_epi=None; s.owdone=False
        s.allread=defaultdict(int)
        for g,ts in visits:
            s.allread[('K',g)]+=1; s.allread[('V',g)]+=1
        ms=[]
        for vi,(g,ts) in enumerate(visits):
            for k,T in enumerate(ts): ms.append((vi,g,T,k==0,k==len(ts)-1))
        cnt=defaultdict(int)
        for m in ms: cnt[m[2]]+=1
        assert all(cnt[T]==16 for T in range(12)) and len({(m[1],m[2]) for m in ms})==192
        assert all(m[1]//16==m[2]//6 for m in ms)
        s.summode={}; s.pbuf={}; pb=0; n=0
        while n<len(ms):
            T=ms[n][2]
            if cfg.get('smf',True) and T%2==0 and n+1<len(ms)-(2 if cfg.get('lastsingle',True) else 0) and ms[n+1][2]==T+1:
                if pb%2: pb+=1
                s.summode[n]='first'; s.summode[n+1]='second'; s.pbuf[n]=pb%4; s.pbuf[n+1]=(pb+1)%4; pb+=2; n+=2
            else:
                s.summode[n]='single'; s.pbuf[n]=pb%4; pb+=1; n+=1
        plan=defaultdict(list)
        for n,u in cfg['plan']: plan[n].append(u)
        s.curoff=None
        def doplan(n):
            rel=s.now(); us=plan.get(n,[])
            nd=sum({'B':4,'K':2,'V':2,'Q':4}.get(u[0],0) for u in us)
            step = 0 if n<0 else max(1,cfg.get('span',16)//max(nd,1))
            for u in us:
                st = u[2] if len(u)>2 and u[0] in 'BKVQ' else step
                s.urgent = u[0] in 'BKVQ' and st<=1 and cfg.get('urgent',True)
                if s.urgent and rel<0: st=0
                if u[0]=='B':
                    s.dma_kv('K',u[1],rel,st); s.dma_kv('V',u[1],rel+2*st,st); rel+=4*st
                elif u[0] in 'KV':
                    s.dma_kv(u[0],u[1],rel,st); rel+=2*st
                elif u[0]=='Q':
                    s.dma_q(u[1],rel,st); rel+=4*st
                elif u[0]=='q': s.read_q(u[1],s.now()+(u[2] if len(u)>2 else 0)); rel=max(rel,s.now()+(u[2] if len(u)>2 else 0))
                elif u[0]=='p': s.prescale(u[1],s.now(),u[2] if len(u)>2 else 0)
                elif u[0]=='o': s.read_o(u[1],u[2],s.now())
                elif u[0]=='s': s.store_o(u[1],s.now(),u[2],*u[3:])
                elif u[0]=='bar': s.barrier()
        s.msbb={}; seen=defaultdict(int); seenpv=defaultdict(int); s.seen=defaultdict(int); s.qread=set(); s.stgown=[None,None]; s.parkown={}; s.nst=0
        barset=cfg.get('barvisits')
        doplan(-1)
        s.barrier(); s.read_k(ms[0][1],s.KORD)
        N=len(ms)
        for n in range(N+LAG):
            if n<N:
                vi,g,T,fi,la=ms[n]
                if la and n+1<N and (barset is None or vi+1 in barset): s.barrier()
                doplan(n)
                assert T in s.qread, ('Q not loaded',T)
                s.msbb[n]=s.nbb
                s.qk(n,T); s.seen[T]+=1
            m=n-LAG
            if m>=0:
                T1=ms[m][2]
                s.pv(m,T1,seenpv[T1]==0); seenpv[T1]+=1
                if seenpv[T1]==16:
                    if s.summode[m]=='first': s.pending_epi=T1
                    else: s.finish(T1,0)
            if n<N:
                s.sm(n,T,seen[T]==0); seen[T]+=1
                if la and n+1<N: s.read_k(ms[n+1][1],s.KORD)
            if m+1>=0 and m+1<N and ms[m+1][3]: s.read_v(ms[m+1][1])
        assert s.nst==48
        s.P.ops=[o for o in s.P.ops if not (o.kind=='bar' and not o.reads)]
        for i,o in enumerate(s.P.ops): o.idx=i
        out=s.P.schedule(ldsrate=cfg.get('ldsrate',1024),ldsburst=cfg.get('ldsburst',1024))
        out=insert_waits(out,cfg.get('merge',9))
        verify_waits(out)
        check_hazards(out)
        return out

def PRO(cfg):
  t=f"""
    s_cmp_ge_u32 s2, 256
    s_cbranch_scc1 L_end
    s_load_dwordx4 s[64:67], s[0:1], 0
    s_load_dwordx4 s[68:71], s[0:1], 16
    v_lshrrev_b32 v1, 6, v0
    s_lshr_b32 s73, s2, 3
    s_getpc_b64 s[86:87]
L_pc:
    v_and_b32 v2, 31, v0
    v_lshlrev_b32 v2, 12, v2
    s_lshl_b32 s88, s73, 7
    v_add_u32 v2, s88, v2
    v_min_u32 v2, L_end-L_main, v2
    s_add_u32 s86, s86, L_main-L_pc
    s_addc_u32 s87, s87, 0
    v_readfirstlane_b32 s{sW}, v1
    v_and_b32 v0, 63, v0
    global_load_dword v4, v2, s[86:87]
    s_and_b32 s72, s2, 7
    s_lshr_b32 s74, s73, 1
    s_and_b32 s75, s73, 1
    s_lshl_b32 s72, s72, 4
    s_add_u32 s72, s72, s74
    s_lshl_b32 s76, s72, 18
    s_mul_i32 s77, s72, {2*768*256}
    s_mul_i32 s78, s75, {384*256}
    s_add_u32 s77, s77, s78
    s_and_b32 s79, s{sW}, 1
    s_lshr_b32 s80, s{sW}, 1
    s_lshl_b32 s81, s79, 10
    s_lshl_b32 s82, s80, 12
    s_add_u32 s{sWL}, s81, s82       ; LDS: (w&1)*1024 + (w>>1)*4096
    s_lshl_b32 s81, s79, 7
    s_add_u32 s81, s81, s82          ; global: (w&1)*128 + (w>>1)*4096
    s_mul_i32 s83, s{sW}, 24576
    s_sub_u32 s{sWQ}, s83, s81
    s_lshl_b32 s{sWS}, s{sW}, 13
    ; DMA voffset: (i>>3)*256 + ((i&7)^((i>>3)&6))*16 + wave part
    v_lshrrev_b32 v1, 3, v0
    v_and_b32 v2, 6, v1
    v_and_b32 v3, 7, v0
    v_xor_b32 v2, v2, v3
    v_lshlrev_b32 v2, 4, v2
    v_lshl_add_u32 v2, v1, 8, v2
    v_add_u32 v{vDMA}, s81, v2
    s_mov_b32 s{sQ+2}, {1152*256}
    s_mov_b32 s{sQ+3}, 0x20000
    s_mov_b32 s{sK+2}, 0x40000
    s_mov_b32 s{sK+3}, 0x20000
    s_mov_b32 s{sV+2}, 0x40000
    s_mov_b32 s{sV+3}, 0x20000
    s_mov_b32 s{sO+2}, {1152*256}
    s_mov_b32 s{sO+3}, 0x20000
    s_waitcnt lgkmcnt(0)
    s_add_u32 s{sQ}, s64, s77
    s_addc_u32 s{sQ+1}, s65, 0
    s_add_u32 s{sK}, s66, s76
    s_addc_u32 s{sK+1}, s67, 0
    s_add_u32 s{sV}, s68, s76
    s_addc_u32 s{sV+1}, s69, 0
    s_add_u32 s{sO}, s70, s77
    s_addc_u32 s{sO+1}, s71, 0
"""
  if cfg.get('adj'):
    t=t.replace("    s_add_u32 s72, s72, s74          ; pair index 0..127\n","    s_lshr_b32 s72, s2, 1\n    s_and_b32 s75, s2, 1\n")
  return t
PRO2 = f"""
    s_mov_b32 s{sC}, 0x{f2u(CSC):08x}
    s_mov_b32 s{sTH}, 0x5f800000
    s_mov_b32 s{sMSK}, 0xffff0000
    s_add_u32 s84, s{sWS}, {STG}
    v_xor_b32 v2, v1, v3
    v_lshlrev_b32 v2, 4, v2
    v_lshl_add_u32 v2, v1, 8, v2
    v_add_u32 v{vOst}, s83, v2
    v_lshl_add_u32 v{vOr}, v0, 4, s84
    v_and_b32 v1, 15, v0
    v_lshrrev_b32 v2, 4, v0
    v_lshlrev_b32 v{vBp}, 2, v1
    v_and_b32 v5, 7, v1
    v_lshlrev_b32 v6, 7, v5
    v_lshrrev_b32 v7, 3, v1
    v_lshl_add_u32 v6, v7, 11, v6
    v_and_b32 v3, 6, v1
    v_xor_b32 v3, v3, v2
    v_lshl_add_u32 v{vKa[0]}, v3, 4, v6
    v_xor_b32 v{vKa[1]}, 64, v{vKa[0]}
    v_add_u32 v{vQa[0]}, s84, v{vKa[0]}
    v_add_u32 v{vQa[1]}, s84, v{vKa[1]}
    v_lshrrev_b32 v3, 1, v2
    v_xor_b32 v3, v3, v5
    v_lshl_add_u32 v3, v3, 4, v6
    v_and_b32 v2, 1, v2
    v_lshl_add_u32 v3, v2, 3, v3
    v_add_u32 v{vOw[0]}, s84, v3
    v_xor_b32 v{vOw[1]}, 32, v{vOw[0]}
    v_lshrrev_b32 v1, 2, v0
    v_and_b32 v2, 6, v1
    v_bfe_u32 v3, v0, 1, 1
    v_xor_b32 v2, v2, v3
    v_lshlrev_b32 v2, 4, v2
    v_and_b32 v3, 1, v0
    v_lshl_add_u32 v2, v3, 3, v2
    v_and_b32 v3, 7, v1
    v_lshl_add_u32 v2, v3, 7, v2
    v_lshrrev_b32 v3, 3, v1
    v_lshl_add_u32 v2, v3, 11, v2
    v_add_u32 v{vVa[0]}, {VRING}, v2
    v_xor_b32 v{vVa[1]}, 32, v{vVa[0]}
    v_xor_b32 v{vVa[2]}, 64, v{vVa[0]}
    v_xor_b32 v{vVa[3]}, 0x60, v{vVa[0]}
    ; row-sum operands: sparse pair pattern, index, and dense single-tile patterns
    v_mov_b32 v1, 0x3f803f80
    v_bfe_u32 v2, v0, 1, 1
    v_lshrrev_b32 v3, 5, v0
    v_cmp_eq_u32 vcc, v2, v3
    v_and_b32 v5, 3, v0
    v_mov_b32 v6, 0x4444
    v_cndmask_b32 v2, 0, v1, vcc
    v_cmp_eq_u32 vcc, 0, v5
    v_accvgpr_write_b32 a{aOneS}, v2
    v_accvgpr_write_b32 a{aOneS+1}, v2
    v_cndmask_b32 v3, 0, v1, vcc
    v_cmp_eq_u32 vcc, 2, v5
    v_accvgpr_write_b32 a{aOneS+2}, v2
    v_accvgpr_write_b32 a{aOneS+3}, v2
    v_cndmask_b32 v2, 0, v1, vcc
    v_and_b32 v5, 1, v0
    v_mul_u32_u24 v5, 0xaaaa, v5
    v_add_u32 v{vIdx}, v5, v6
    v_accvgpr_write_b32 a{aOneD[0]}, v3
    v_accvgpr_write_b32 a{aOneD[0]+1}, v3
    v_accvgpr_write_b32 a{aOneD[0]+2}, v3
    v_accvgpr_write_b32 a{aOneD[0]+3}, v3
    v_accvgpr_write_b32 a{aOneD[1]}, v2
    v_accvgpr_write_b32 a{aOneD[1]+1}, v2
    v_accvgpr_write_b32 a{aOneD[1]+2}, v2
    v_accvgpr_write_b32 a{aOneD[1]+3}, v2
"""

def slow_path():
    L=[]
    A=L.append
    A("    s_or_b64 s[64:65], s[40:41], s[42:43]")
    for T in range(2,12): A(f"    s_or_b64 s[64:65], s[64:65], s[{sFlag+2*T}:{sFlag+2*T+1}]")
    A("    s_cbranch_scc0 L_end")
    A("    s_mov_b32 s66, 0")
    for T in range(12):
        A(f"    s_cmp_lg_u64 s[{sFlag+2*T}:{sFlag+2*T+1}], 0")
        A(f"    s_cselect_b32 s67, {1<<T}, 0")
        A("    s_or_b32 s66, s66, s67")
    A("    s_waitcnt vmcnt(0) lgkmcnt(0)")
    A("    v_mbcnt_lo_u32_b32 v8, -1, 0")
    A("    v_mbcnt_hi_u32_b32 v8, -1, v8")
    A("    v_and_b32 v9, 15, v8")
    A("    v_lshrrev_b32 v10, 4, v8")
    A("    v_lshlrev_b32 v11, 4, v10")
    A("    v_lshl_add_u32 v14, v9, 8, v11")
    A("    v_add_u32 v15, s83, v14")
    A("    v_and_b32 v11, 1, v10")
    A("    v_lshlrev_b32 v11, 1, v11")
    A("    v_lshrrev_b32 v12, 1, v10")
    A("    v_or_b32 v11, v11, v12")
    A("    v_lshlrev_b32 v11, 4, v11")
    A("    v_lshl_add_u32 v11, v9, 8, v11")
    A("    v_add_u32 v13, s83, v11")
    A(f"    v_subrev_u32 v16, s81, v{vDMA}")
    A(f"    s_add_u32 s68, s{sWS}, {STG-VRING}")
    for i in range(4): A(f"    v_add_u32 v{20+i}, s68, v{vVa[i]}")
    for i in range(4): A(f"    v_mov_b32 v{196+i}, 0x3f803f80")
    A("    s_mov_b32 s69, 0")
    A("L_slow_tile:")
    A("    s_bitcmp1_b32 s66, s69")
    A("    s_cbranch_scc0 L_slow_next")
    A("    s_cmp_ge_u32 s69, 6")
    A("    s_cselect_b32 s70, 0x20000, 0")
    A(f"    s_cselect_b32 s71, {(768-96)*256}, 0")
    A("    s_lshl_b32 s72, s69, 12")
    A("    s_add_u32 s71, s71, s72                ; q/o offset")
    for st in range(4): A(f"    buffer_load_dwordx4 v[{64+4*st}:{67+4*st}], v15, s[{sQ}:{sQ+3}], s71 offen offset:{64*st}")
    A("    v_mov_b32 v17, 0xff800000")
    A("    s_mov_b32 s72, s70")
    A("    s_add_u32 s73, s70, 0x20000")
    A("L_slow_max:")
    for st in range(4): A(f"    buffer_load_dwordx4 v[{80+4*st}:{83+4*st}], v14, s[{sK}:{sK+3}], s72 offen offset:{64*st}")
    A("    s_waitcnt vmcnt(0)")
    for st in range(4): A(f"    v_mfma_f32_16x16x32_bf16 v[0:3], v[{80+4*st}:{83+4*st}], v[{64+4*st}:{67+4*st}], {'0' if st==0 else 'v[0:3]'}")
    A("    s_nop 15")
    A("    v_max3_f32 v17, v17, v0, v1")
    A("    v_max3_f32 v17, v17, v2, v3")
    A("    s_add_u32 s72, s72, 4096")
    A("    s_cmp_lt_u32 s72, s73")
    A("    s_cbranch_scc1 L_slow_max")
    for sw in ("16","32"):
        A("    v_mov_b32 v18, v17"); A("    s_nop 1")
        A(f"    v_permlane{sw}_swap_b32 v17, v18"); A("    s_nop 1")
        A("    v_max_f32 v17, v17, v18")
    A(f"    v_mul_f32 v17, 0x{f2u(-CSC):08x}, v17")
    for r in range(160,196): A(f"    v_mov_b32 v{r}, 0")
    A("    s_mov_b32 s72, s70")
    A("L_slow_blk:")
    A("    s_add_u32 s74, s72, 4096")
    for f in range(8):
        kt,st=divmod(f,4)
        A(f"    buffer_load_dwordx4 v[{80+4*f}:{83+4*f}], v14, s[{sK}:{sK+3}], {'s72' if kt==0 else 's74'} offen offset:{64*st}")
    for kt in range(2):
        for half in range(2):
            A(f"    s_add_u32 m0, s{sWS}, {STG+kt*4096+half*896}")
            A("    s_nop 0")
            for oc in range(2):
                A(f"    buffer_load_dwordx4 v16, s[{sV}:{sV+3}], {'s72' if kt==0 else 's74'} offen offset:{2048*oc+128*half} lds")
    A("    s_waitcnt vmcnt(0)")
    for t in range(8):
        for kt in range(2):
            A(f"    ds_read_b64_tr_b16 v[{112+4*t+2*kt}:{113+4*t+2*kt}], v{20+t%4} offset:{kt*4096+(t//4)*1024}")
    for f in range(8):
        kt,st=divmod(f,4); d=4*kt
        A(f"    v_mfma_f32_16x16x32_bf16 v[{d}:{d+3}], v[{80+4*f}:{83+4*f}], v[{64+4*st}:{67+4*st}], {'0' if st==0 else f'v[{d}:{d+3}]'}")
    A("    s_nop 15")
    for i in range(8): A(f"    v_fma_f32 v{i}, v{i}, s{sC}, v17")
    for i in range(8): A(f"    v_exp_f32 v{i}, v{i}")
    A("    s_nop 1")
    for k in range(4): A(f"    v_cvt_pk_bf16_f32 v{24+k}, v{2*k}, v{1+2*k}")
    A("    s_waitcnt lgkmcnt(0)")
    A("    s_nop 1")
    for t in range(8): A(f"    v_mfma_f32_16x16x32_bf16 v[{160+4*t}:{163+4*t}], v[{112+4*t}:{115+4*t}], v[24:27], v[{160+4*t}:{163+4*t}]")
    A("    v_mfma_f32_16x16x32_bf16 v[192:195], v[196:199], v[24:27], v[192:195]")
    A("    s_add_u32 s72, s72, 8192")
    A("    s_cmp_lt_u32 s72, s73")
    A("    s_cbranch_scc1 L_slow_blk")
    A("    s_nop 15")
    A("    v_rcp_f32 v18, v192")
    A("    s_nop 1")
    for r in range(160,192): A(f"    v_mul_f32 v{r}, v{r}, v18")
    for m in range(4):
        o=160+8*m
        for i in range(4): A(f"    v_cvt_pk_bf16_f32 v{o+i}, v{o+2*i}, v{o+2*i+1}")
        A("    s_nop 1")
        for i in range(2): A(f"    v_permlane16_swap_b32 v{o+i}, v{o+i+2}")
        A(f"    buffer_store_dwordx4 v[{o}:{o+3}], v13, s[{sO}:{sO+3}], s71 offen offset:{64*m}")
    A("    s_waitcnt vmcnt(0)")
    A("L_slow_next:")
    A("    s_add_u32 s69, s69, 1")
    A("    s_cmp_lt_u32 s69, 12")
    A("    s_cbranch_scc1 L_slow_tile")
    return "\n".join(L)+"\n"

def isize(t):
    t=t.strip(); op=t.split()[0]
    if op.startswith(('v_mfma','v_smfmac','ds_','buffer_','global_','v_fma_f32','v_cvt_pk','v_max3','v_pk_','v_accvgpr','v_writelane','s_mem')) or op.endswith('_e64'): return 8
    if op in('s_waitcnt','s_barrier','s_nop') or op.startswith('s_cbranch'): return 4
    for a in t.split(None,1)[1].replace(',',' ').split():
        try: v=int(a,0)
        except ValueError: continue
        if not -16<=v<=64: return 8
    return 4

HEAD = open('cdna_kernels/'+NAME+'.s.ref').read().split('; Override')[0]
def emit(cfg, path):
    g=Gen(cfg); out=g.build()
    abl=cfg.get('ablate')
    if abl:
        nb=0; o2=[]
        for o in out:
            if o.kind=='bar': nb+=1
            if nb>=3 and any((a==o.kind) or (a in o.text) for a in abl): continue
            o2.append(o)
        out=o2
    marks=[]; est=estimate(out,marks)
    stamp=cfg.get('stamp'); warm=cfg.get('warm',True)
    SST=[x for x in list(range(64,81))+list(range(33,40))+list(range(85,90))+list(range(92,102))]
    ns=[0]
    def st2():
        i=ns[0]; ns[0]+=1
        return ["s_memtime s[90:91]","s_memrealtime s[2:3]","s_waitcnt lgkmcnt(0)",f"s_mov_b32 s{SST[2*i]}, s90",f"s_mov_b32 s{SST[2*i+1]}, s2"]
    if stamp: first_st=st2(); stbb={g.msbb[n] for n in stamp}
    k0=0
    while out[k0].kind in('dma','salu','nop'): k0+=1
    first=[o.text for o in out[:k0]]; nfirst=sum(1 for o in out[:k0] if o.kind=='dma')
    lines=[]; nbar=0; nm=0; probe=cfg.get('probe')
    for k in range(k0,len(out)):
        o=out[k]
        lines.append((o.text,o.kind))
        if o.kind=='bar': nbar+=1
        if probe and o.kind=='bar' and nbar in probe[:2]:
            r = 92 if nbar==probe[0] else 94
            lines+=[(f"s_mem{'real' if probe[2]=='rt' else ''}time s[{r}:{r+1}]",'x'),("s_waitcnt lgkmcnt(0)",'x')]
        if stamp and o.kind=='mfma' and o.bb in stbb: lines+=[(x,'x') for x in st2()]
    body=[]; addr=0; page=0; stubs=0
    tot=sum(isize(t) for t,_ in lines); npages=(tot+200)//4096+1
    for i,(t,kd) in enumerate(lines):
        if warm and addr>=page*4096 and page<npages:
            prevm = i>0 and lines[i-1][1]=='mfma'
            if (prevm and kd not in SC_KINDS) or addr+isize(t)>page*4096+56 or page==0:
                nxt=page+4
                body.append(f"L_stub{page}:\n s_cbranch_vccnz {'L_stub%d'%nxt if nxt<npages else 'L_back'}\n")
                body.append(f".if ((L_stub{page}-L_main)>>6) != {page*64}\n.error \"stub misplaced\"\n.endif\n")
                addr+=4; page+=1
        body.append(" "+t+"\n"); addr+=isize(t)
    while warm and page<npages:
        body.append(f"L_stub{page}:\n s_cbranch_vccnz L_back\n"); page+=1
    txt=HEAD+"; @launch grid=(256,1,1) block=(256,1,1) lds=163840\n"
    txt+=f'.amdgcn_target "amdgcn-amd-amdhsa--gfx950"\n.text\n.globl {NAME}_kernel\n.p2align 8\n.type {NAME}_kernel,@function\n{NAME}_kernel:\n'
    if probe:
        txt+=" s_memrealtime s[90:91]\n"
        if probe[0]==0: txt+=f" s_mem{'real' if probe[2]=='rt' else ''}time s[92:93]\n"
        txt+=" s_waitcnt lgkmcnt(0)\n"
        if cfg.get('gstart'):
            txt+=" s_load_dwordx2 s[34:35], s[0:1], 32\n s_not_b32 s36, s90\n v_mov_b32 v10, s36\n v_mov_b32 v11, 0\n s_waitcnt lgkmcnt(0)\n v_cmp_eq_u32 vcc, 0, v0\n s_and_saveexec_b64 s[36:37], vcc\n s_cbranch_execz L_gs\n global_atomic_umax v11, v10, s[34:35]\nL_gs:\n s_mov_b64 exec, s[36:37]\n"
    if stamp and cfg.get('stamp0'):
        txt+=" s_memtime s[90:91]\n s_memrealtime s[92:93]\n s_waitcnt lgkmcnt(0)\n s_mov_b32 s5, s90\n s_mov_b32 s6, s92\n"
    if cfg.get('pre_nop'):
        txt+=f" s_mov_b32 s64, {cfg['pre_nop']}\nL_pn:\n"+" s_nop 15\n"*16+" s_sub_u32 s64, s64, 1\n s_cmp_lg_u32 s64, 0\n s_cbranch_scc1 L_pn\n"
    txt+=PRO(cfg)
    txt+="".join(" "+t+"\n" for t in first)
    if stamp: txt+=" s_mov_b32 s4, s2\n"+"".join(" "+x+"\n" for x in first_st)
    txt+=PRO2
    if cfg.get('direct'):
        txt+=f"""    ; O store offset after the row swaps: r*256 + 16*[0,2,1,3][g] + w*24576
    v_and_b32 v1, 15, v0
    v_bfe_u32 v2, v0, 4, 1
    v_lshrrev_b32 v3, 5, v0
    v_lshl_add_u32 v2, v2, 1, v3
    v_lshlrev_b32 v2, 4, v2
    v_lshl_add_u32 v2, v1, 8, v2
    v_add_u32 v{vOst}, s83, v2
"""
    if 0 in g.pres:
        for r in range(4): txt+=f"    v_accvgpr_write_b32 a{aSave+r}, v{vCI[0]+r}\n"
    txt+=f"    s_waitcnt vmcnt({nfirst})\n"
    if warm:
        txt+="    ; touch the first line of every 4 KB code page (instruction-cache warm-up while the first loads are in flight)\n    s_mov_b64 vcc, -1\n"
        for w in range(3): txt+=f"    s_cmp_eq_u32 s{sW}, {w}\n    s_cbranch_scc1 L_stub{w}\n"
        txt+="    s_branch L_stub3\n"
        txt+="L_back:\n    s_mov_b64 vcc, 0\n"
    txt+="    s_branch L_main\n.p2align 12\nL_main:\n"
    txt+="".join(body)
    if stamp:
        txt+="".join(" "+x+"\n" for x in st2())
        txt+=" s_waitcnt vmcnt(0)\n"+"".join(" "+x+"\n" for x in st2())
        txt+=" v_mov_b32 v2, 0\n v_mov_b32 v3, 0\n"
        o_=1 if cfg.get('stamp0') else 0
        if o_: txt+=" v_writelane_b32 v2, s5, 0\n v_writelane_b32 v3, s6, 0\n"
        for i in range(ns[0]): txt+=f" v_writelane_b32 v2, s{SST[2*i]}, {i+o_}\n v_writelane_b32 v3, s{SST[2*i+1]}, {i+o_}\n"
        txt+=f""" s_load_dwordx2 s[92:93], s[0:1], 40
 s_lshl_b32 s90, s4, 2
 s_add_u32 s90, s90, s{sW}
 s_mul_i32 s90, s90, 768
 v_mbcnt_lo_u32_b32 v1, -1, 0
 v_mbcnt_hi_u32_b32 v1, -1, v1
 v_lshlrev_b32 v1, 2, v1
 v_add_u32 v1, s90, v1
 s_waitcnt lgkmcnt(0)
 global_store_dword v1, v2, s[92:93]
 global_store_dword v1, v3, s[92:93] offset:512
"""
    if probe:
        if probe[1]==99: txt+=f" s_mem{'real' if probe[2]=='rt' else ''}time s[94:95]\n s_waitcnt lgkmcnt(0)\n"
        if probe[1]==100: txt+=f" s_waitcnt vmcnt(0)\n s_mem{'real' if probe[2]=='rt' else ''}time s[94:95]\n s_waitcnt lgkmcnt(0)\n"
        if probe[1]<0: txt+=" s_mov_b32 s94, s92\n"
        if cfg.get('gstart'):
            txt+=" v_mov_b32 v11, 0\n global_load_dword v10, v11, s[34:35] sc0 sc1\n s_waitcnt vmcnt(0)\n v_readfirstlane_b32 s90, v10\n s_nop 3\n s_not_b32 s90, s90\n"
            if cfg['gstart']==2: txt+=" s_mov_b32 s92, s90\n"
        txt+=" s_sub_u32 s94, s94, s92\n"
        if probe[2]=='cyc': txt+=" s_lshr_b32 s94, s94, 4\n"
        txt+=" s_add_u32 s94, s94, 10000\nL_spin:\n s_memrealtime s[92:93]\n s_waitcnt lgkmcnt(0)\n s_sub_u32 s92, s92, s90\n s_cmp_lt_u32 s92, s94\n s_cbranch_scc1 L_spin\n"
    if cfg.get('extra_mfma'):
        n,kind=cfg['extra_mfma']
        txt+=f" s_waitcnt vmcnt(0)\n s_mov_b32 s64, {n}\nL_xm:\n"
        L=[]
        if kind.startswith('m16'):
            for j in range(6):
                for i,f in enumerate(Gen.KORD):
                    kt,st=divmod(f,4); d=8*(j%2)+4*kt
                    L.append(f" v_mfma_f32_16x16x32_bf16 v[{d}:{d+3}], a[{160+4*f}:{163+4*f}], a[{192+16*(j%2)+4*st}:{195+16*(j%2)+4*st}], {'0' if i%4==0 else f'v[{d}:{d+3}]'}\n")
                for t in range(8):
                    d=64+32*j+4*t
                    L.append(f" v_mfma_f32_16x16x32_bf16 v[{d}:{d+3}], a[{192+4*t}:{195+4*t}], v[{24+4*(j%3)}:{27+4*(j%3)}], v[{d}:{d+3}]\n")
            if kind=='m16nop': L=[x+(" s_nop 0\n s_nop 0\n s_nop 0\n s_nop 0\n s_nop 0\n" if k%2 else "") for k,x in enumerate(L)]
            if kind=='m16v': L=[x+(f" v_exp_f32 v{40+k%8}, v{24+k%12}\n" if k%2 else f" v_fma_f32 v{48+k%8}, v{24+k%12}, s24, v{25+k%10}\n v_cvt_pk_bf16_f32 v{49+k%8}, v{24+k%12}, v{25+k%10}\n") for k,x in enumerate(L)]
        else:
            for j in range(3):
                for st in range(8):
                    L.append(f" v_mfma_f32_32x32x16_bf16 v[0:15], a[{160+4*st}:{163+4*st}], a[{192+4*((st+j)%8)}:{195+4*((st+j)%8)}], {'0' if st==0 else 'v[0:15]'}\n")
                for t in range(8):
                    d=64+64*j+16*(t%4)
                    L.append(f" v_mfma_f32_32x32x16_bf16 v[{d}:{d+15}], a[{192+4*t}:{195+4*t}], v[{24+4*((t//4+j)%3)}:{27+4*((t//4+j)%3)}], v[{d}:{d+15}]\n")
        txt+="".join(L)
        txt+=" s_sub_u32 s64, s64, 1\n s_cmp_lg_u32 s64, 0\n s_cbranch_scc1 L_xm\n s_nop 15\n"
    if cfg.get('extra_nop'):
        txt+=f" s_mov_b32 s64, {cfg['extra_nop']}\nL_xn:\n"+" s_nop 15\n"*16+" s_sub_u32 s64, s64, 1\n s_cmp_lg_u32 s64, 0\n s_cbranch_scc1 L_xn\n"
    txt+=" s_nop 1\n"+slow_path()
    txt+=f"""L_end:
    s_endpgm
.section .rodata,"a"
.p2align 6
.amdhsa_kernel {NAME}_kernel
  .amdhsa_next_free_vgpr 512
  .amdhsa_next_free_sgpr 102
  .amdhsa_accum_offset 256
  .amdhsa_group_segment_fixed_size 0
  .amdhsa_kernarg_size 48
  .amdhsa_user_sgpr_count 2
  .amdhsa_user_sgpr_kernarg_segment_ptr 1
  .amdhsa_system_sgpr_workgroup_id_x 1
.end_amdhsa_kernel
"""
    open(path,'w').write(txt)
    from collections import Counter
    print(path, "ops",len(out),"est",est, dict(Counter(o.kind for o in out)), "code",addr)
    if cfg.get('verbose'): print(' segs',[b-a for a,b in zip(marks,marks[1:]+[est])])
    if stamp and stamp is not True:
        mt=[]; estimate(out,None,mt); pts=[mt[g.msbb[n]] for n in stamp]+[est]
        print(' est stamp segs',[b-a for a,b in zip(pts,pts[1:])])
    from asm import asm
    asm(path)
    return out
```

```python
import re
from collections import defaultdict

COST = dict(mfma=8, valu=4, trans=8, perm=8, pk=4, dsr=4, dsw=12, dma=12, gld=12, gst=8, salu=0, bar=0, wait=0, nop=0)
VALU_KINDS = ('valu','trans','perm','pk')
MEM_KINDS = ('dsr','dsw','dma','gld','gst')
SC_KINDS = ('salu','bar','wait','nop')
DS=('dsr','dsw'); VM=('dma','gld','gst')

def R(p, lo, n=1):
    return [f"{p}{i}" for i in range(lo, lo+n)]
def rng(p, lo, n):
    return f"{p}{lo}" if n==1 else f"{p}[{lo}:{lo+n-1}]"

class Op:
    __slots__=('text','kind','reads','writes','cread','release','deadline','margin','preds','succs','idx','bb','pos','lat','prio','cost','tag','hole','nws','gap')
    def __init__(s, text, kind, reads=(), writes=(), cread=(), release=None, deadline=None, margin=0, tag=None, cost=None, hole=False):
        s.text=text; s.kind=kind; s.reads=list(reads); s.writes=list(writes); s.cread=list(cread)
        s.release=release; s.deadline=deadline; s.margin=margin
        s.preds=[]; s.succs=[]; s.bb=None; s.pos=None; s.tag=tag; s.hole=hole
        s.cost = COST[kind] if cost is None else cost
        s.nws = 1; s.gap=None
    def __repr__(s): return f"<{s.text}>"

def vec(S): return {x for x in S if x[0] in 'va' and x[1:].isdigit()}
def hazard_dist(a, b):
    d=0
    aw=set(a.writes); br=set(b.reads); bw=set(b.writes)
    if a.kind=='mfma':
        D=vec(aw)
        if b.kind=='mfma':
            ab = vec(br)-set(b.cread)
            if D & ab: d=max(d,8)
            c=set(b.cread)
            if D & c and (c!=D or a.cost!=b.cost): d=max(d,10)
        elif b.kind in VALU_KINDS:
            if D & (br|bw): d=max(d,12 if a.cost==12 else 8)
            if set(a.cread) & bw: d=max(d,3)
        elif b.kind in MEM_KINDS:
            if D & (br|bw): d=max(d,8)
    elif a.kind in VALU_KINDS:
        W=vec(aw)
        if b.kind=='mfma' and W & br: d=max(d,2)
        if b.kind=='perm' and W & br: d=max(d,2)
        if a.kind=='trans' and b.kind in ('valu','perm','pk') and W & br: d=max(d,1)
        sw={x for x in aw if x[0]=='s' or x=='vcc'}
        if sw & br:
            if b.kind in VALU_KINDS: d=max(d,2)
            elif b.kind in MEM_KINDS: d=max(d,5)
            else: d=max(d,2)
    elif a.kind=='salu':
        if 'm0' in aw and b.kind=='dma': d=max(d,1)
    elif a.kind=='gst':
        if vec(set(a.reads)) & bw: d=max(d,2)
    return d

class Program:
    def __init__(s):
        s.ops=[]
    def add(s, op):
        op.idx=len(s.ops); s.ops.append(op); return op
    def build_deps(s):
        lastw={}; readers=defaultdict(list)
        for o in s.ops:
            P=set()
            for r in o.reads:
                if r in lastw: P.add(lastw[r])
            for w in o.writes:
                if w in lastw: P.add(lastw[w])
                for x in readers[w]: P.add(x)
            P.discard(o)
            for p in P:
                o.preds.append(p); p.succs.append(o)
            for r in o.reads: readers[r].append(o)
            for w in o.writes:
                lastw[w]=o; readers[w]=[]
    def schedule(s, budget=8, ldsrate=1024, ldsburst=1024):
        s.build_deps()
        bbs=[o for o in s.ops if o.kind=='mfma']
        for i,o in enumerate(bbs): o.bb=i
        N=len(bbs)
        for o in reversed(s.ops):
            if o.kind=='mfma': continue
            lat = N-1
            pr = lat
            if o.deadline is not None: pr=min(pr,o.deadline)
            wr={w for w in o.writes if ':' not in w}
            for x in o.succs:
                mg = o.margin if wr & set(x.reads) else 0
                if x.kind=='mfma':
                    lat=min(lat,x.bb-1); pr=min(pr,x.bb-1-mg)
                else:
                    lat=min(lat,x.lat); pr=min(pr,x.prio-mg)
            o.lat=lat; o.prio=pr
            if o.release is not None and o.release>lat: o.release=lat
        out=[]
        npred={o:len(o.preds) for o in s.ops}
        ready=[o for o in s.ops if o.kind!='mfma' and not o.preds]
        cur=[-1]
        def dist(o):
            need=0; k=0
            for p in reversed(out[-14:]):
                d=hazard_dist(p,o)
                if d>k: need=max(need,d-k)
                k+=p.nws
            return need
        def emit(o):
            n=dist(o)
            if n>0:
                nop=Op(f"s_nop {n-1}",'nop'); nop.nws=n; nop.cost=4*n; nop.pos=len(out); nop.gap=cur[0]; out.append(nop)
            o.pos=len(out); o.gap=cur[0]; out.append(o)
            for x in o.succs:
                npred[x]-=1
                if npred[x]==0 and x.kind!='mfma': ready.append(x)
            if o in ready: ready.remove(o)
            return o.cost+(4*n)
        lastds=[-9]; tok=[ldsburst]
        def fill(g):
            cur[0]=g
            used=0; shadow=(g>=0); memok=True; bud=budget-(bbs[g].cost-8 if g>=0 else 0)
            last=(g==N-1)
            tok[0]=min(ldsburst,tok[0]+ldsrate)
            while True:
                cands=[o for o in ready if (o.release is None or o.release<=g)]
                if not cands: break
                if g<0:
                    cands=[o for o in cands if o.prio<=g]
                    if not cands: break
                    cands.sort(key=lambda o:o.idx); emit(cands[0]); continue
                cands.sort(key=lambda o:(o.prio,o.idx))
                sc=[o for o in cands if o.kind in SC_KINDS]
                if shadow and sc:
                    shadow=False; emit(sc[0]); continue
                shadow=False
                if last:
                    m=[o for o in cands if o.kind in MEM_KINDS+SC_KINDS and dist(o)==0]
                    if m: emit(m[0]); continue
                pk=[o for o in cands if o.kind=='pk' and o.prio<=g]
                if pk: bud=max(bud,20)
                rem=bud-used
                v=[o for o in cands if o.kind in('valu','trans','perm') and dist(o)==0 and (o.lat<=g or all(p.kind!='dsr' or p.gap<=g-5 for p in o.preds))]
                if memok:
                    pick=None
                    for o in cands:
                        if o.kind not in MEM_KINDS or dist(o): continue
                        if o.kind in('dma','gld') and lastds[0]>=g-1 and o.lat>g and o.prio>g-4 and not (o.release==o.deadline and lastds[0]<g): continue
                        due = o.prio<=g
                        if o.kind=='dsr':
                            by = 512 if 'b64' in o.text else 0 if 'bperm' in o.text else 1024
                            if by and not due and (tok[0]<by or (used==0 and tok[0]<ldsburst)): continue
                            ok = (o.cost<=rem and not o.hole) or (due and used<12) or (o.hole and o.cost<=rem and sum(x.cost for x in v)<rem)
                        else:
                            ok = (used==0 and (due or not v)) or (o.tag=='pair' and out[-1].kind=='dma')
                        if ok: pick=o; break
                    if pick:
                        used+=emit(pick)
                        if pick.kind in DS: lastds[0]=g
                        if pick.kind=='dsr': tok[0]-= 512 if 'b64' in pick.text else 0 if 'bperm' in pick.text else 1024
                        if pick.kind=='gst': bud=max(bud,22)
                        continue
                fit=[o for o in v if o.cost<=rem]
                due=[o for o in v if o.prio<=g]
                pick=None
                if fit:
                    pick=fit[0]
                    if rem%8==0 and pick.cost==4:
                        n4=[o for o in fit if o.cost==4]; n8=[o for o in fit if o.cost==8]
                        if len(n4)<2 and n8: pick=n8[0]
                    if due and due[0] not in fit: pick=due[0]
                elif due: pick=due[0]
                if pick:
                    memok=False; used+=emit(pick); continue
                if pk and dist(pk[0])==0 or (pk and pk[0].lat<=g):
                    memok=False; used=max(used,20); used+=emit(pk[0]); continue
                must=[o for o in cands if o.lat<=g or (o.prio<=g and o.kind in SC_KINDS)]
                if must:
                    o=must[0]
                    c=emit(o)
                    if o.kind in SC_KINDS: c+=4
                    if o.kind in MEM_KINDS and not memok: c+=8
                    if o.kind in VALU_KINDS: memok=False
                    used+=c; continue
                break
            return used
        fill(-1)
        for g,m in enumerate(bbs):
            assert npred[m]==0, (g,m,[p for p in m.preds if p.pos is None])
            cur[0]=g
            emit(m)
            fill(g)
        left=[o for o in s.ops if o.pos is None]
        assert not left, left[:5]
        s.out=out
        return out

def insert_waits(out, merge=9):
    res=[]
    lg=[]; vm=[]
    def need(lst,o):
        k=-1
        rs={x for x in set(o.reads)|set(o.writes) if not x.startswith('O:')}
        for i,p in enumerate(lst):
            shared=set(p.writes)&rs
            if not shared: continue
            if p.kind in DS and o.kind in DS:
                shared={x for x in shared if not x.startswith('L:')}
                if p.kind=='dsr' and o.kind=='dsr':
                    shared={x for x in shared if x in o.reads}
                if not shared: continue
            if p.kind in VM and o.kind in VM:
                shared={x for x in shared if x in o.reads}
                if not shared: continue
            k=i
        return k
    def ridx(p):
        j=len(res)-1
        while res[j] is not p: j-=1
        return j
    for o in out:
        kl=need(lg,o); kv=need(vm,o)
        if kl>=0:
            while kl+1<len(lg) and lg[kl+1].gap<=o.gap-merge: kl+=1
        if kl>=0 or kv>=0:
            pl = lg[kl] if kl>=0 else None
            pv = vm[kv] if kv>=0 else None
            lastprod=max(ridx(p) for p in (pl,pv) if p is not None)
            pos=len(res)
            j=len(res)-1; tries=0; found=None
            while j>lastprod and tries<3:
                if res[j].kind=='mfma':
                    tries+=1
                    nxt = res[j+1] if j+1<len(res) else o
                    if nxt.kind=='wait' or nxt.kind not in SC_KINDS:
                        found=j+1; break
                j-=1
            if found is not None: pos=found
            cnt=lambda p,kinds: sum(1 for x in res[ridx(p)+1:pos] if x.kind in kinds)
            nl = min(15,cnt(pl,DS)) if pl else None
            nv = min(63,cnt(pv,VM)) if pv else None
            if pos<len(res) and res[pos].kind=='wait':
                w=res[pos]
                if nl is not None: w.tag['l']=min(nl,w.tag.get('l',99))
                if nv is not None: w.tag['v']=min(nv,w.tag.get('v',99))
            else:
                w=Op('','wait',tag={}); w.gap=o.gap
                if nl is not None: w.tag['l']=nl
                if nv is not None: w.tag['v']=nv
                res.insert(pos,w)
            w.text='s_waitcnt '+' '.join(([f"vmcnt({w.tag['v']})"] if 'v' in w.tag else [])+([f"lgkmcnt({w.tag['l']})"] if 'l' in w.tag else []))
            if kl>=0: lg=lg[kl+1:]
            if kv>=0: vm=vm[kv+1:]
        res.append(o)
        if o.kind in DS: lg.append(o)
        if o.kind in VM: vm.append(o)
        assert len(vm)<=63, "vmcnt overflow"
    return res

def verify_waits(out):
    lg=[]; vm=[]
    for o in out:
        if o.kind=='wait':
            if 'l' in o.tag: lg=lg[max(0,len(lg)-o.tag['l']):] if o.tag['l'] else []
            if 'v' in o.tag: vm=vm[max(0,len(vm)-o.tag['v']):] if o.tag['v'] else []
            continue
        rs={x for x in set(o.reads)|set(o.writes) if not x.startswith('O:')}
        for p in lg:
            sh=set(p.writes)&rs
            if o.kind in DS:
                sh={x for x in sh if not x.startswith('L:')}
                if p.kind=='dsr' and o.kind=='dsr': sh={x for x in sh if x in o.reads}
            assert not sh,(p,o,sh)
        for p in vm:
            sh=set(p.writes)&rs
            if o.kind in VM: sh={x for x in sh if x in o.reads}
            assert not sh,(p,o,sh)
        if o.kind in DS: lg.append(o)
        if o.kind in VM: vm.append(o)

def check_hazards(out):
    for i,o in enumerate(out):
        k=0
        for p in reversed(out[max(0,i-14):i]):
            d=hazard_dist(p,o)
            assert d<=k, (p,o,d,k)
            k+=p.nws

def estimate(out, marks=None, mt=None):
    t=0; lastm=-100; prev=None; vend=-100; blk=-100; dsend=-100
    for o in out:
        k=o.kind
        if k=='mfma':
            t=max(t,lastm+16,blk); lastm=t; t+=o.cost
            if mt is not None: mt.append(t)
        elif k in SC_KINDS:
            c = 4*o.nws
            if prev is not None and prev.kind=='mfma': c-=4
            if k=='bar':
                c+=24
                if marks is not None: marks.append(t)
            t+=c
        else:
            if k=='pk': t=max(t,lastm+28)
            if k in MEM_KINDS: t=max(t,vend+8)
            if k=='dma' and prev.kind=='dsr': t+=16
            if k=='dma' and prev.kind=='dma': t-=4
            if k=='gst': blk=t+22
            t+=o.cost
            if k in VALU_KINDS: vend=t
        prev=o
    return t
```

```python
from cfgs import *
A='sc0 sc1 nt'
b=dict(verbose=False,tail=4,snake=True,stpol=A)
HEADS['j6a']=hj(6,[(6,('B',3,10)),(9,('B',4,10)),(12,('B',5,10)),(16,('B',6,4)),(18,('Q',4,3)),(20,('Q',5,3))],24)
emit(mk('h7',**b),f'g_h7.s')
emit(mk('h8',**b),f'g_h8.s')
emit(mk('j4a',**b),f'g_j4a.s')
emit(mk('j4a',pres=(0,1),**b),f'g_j4ap.s')
emit(mk('j6a',pres=(0,1),**b),f'g_j6ap.s')
emit(mk('h7p',pres=(0,1),**b),f'g_h7p.s')
```

```python
import sys
from gen import *
HEADS={
 'simple':dict(v=[(0,'012345')],
    plan=[(-1,('Q',0)),(-1,('K',0)),(-1,('Q',1)),(-1,('V',0)),(-1,('q',0)),(-1,('Q',2)),(-1,('q',1)),(-1,('Q',3)),(-1,('q',2)),(-1,('Q',4)),
          (-1,('q',3)),(-1,('Q',5)),(-1,('B',1)),(-1,('q',4)),(-1,('q',5))], nb=2, t=0, qfree=[0,0]),
 'h5':dict(v=[(0,'012'),(1,'012'),(2,'012'),(3,'0123'),(4,'01234'),(0,'345'),(1,'345'),(2,'345'),(3,'45'),(4,'5')],
    plan=[(-1,('Q',0)),(-1,('K',0)),(-1,('Q',1)),(-1,('V',0)),(-1,('q',0)),(-1,('Q',2)),
          (0,('q',1)),(0,('B',1,1)),(0,('B',2,1)),(1,('q',2)),(1,('B',3,1)),(2,('Q',3,1)),(5,('B',4,1)),(8,('Q',4,1)),(11,('q',3)),(11,('Q',5,1)),
          (16,('q',4)),(19,('q',5))], nb=5, t=13, qfree=[17,20]),
 'h6':dict(v=[(0,'01'),(1,'012'),(0,'2'),(2,'012'),(3,'012'),(4,'0123'),(5,'0123'),(0,'345'),(1,'345'),(2,'345'),(3,'345'),(4,'45'),(5,'45')],
    plan=[(-1,('Q',0)),(-1,('K',0)),(-1,('Q',1)),(-1,('V',0)),(-1,('q',0)),(-1,('B',1)),
          (0,('q',1)),(0,('Q',2,1)),(0,('B',2,1)),(1,('B',3,1)),(3,('q',2)),(3,('B',4,1)),(5,('Q',3,1)),(8,('B',5,1)),(11,('Q',4,1)),(14,('q',3)),(14,('Q',5,1)),
          (19,('q',4)),(21,('q',5))], nb=6, t=17, qfree=[20,22]),
}
def mk(head='h5', tail=4, D=5, ststep=40, TQ=5, TB=3, qlat=14, minD=3, groups=([6,7],[8,9],[10,11]), **kw):
    A=list(range(6)); B=list(range(6,12))
    H=HEADS[head]
    visits=[(g,[int(c) for c in t]) for g,t in H['v']]
    plan=list(H['plan'])
    g0=max(g for g,_ in visits)+1
    for g in range(g0,32-tail): visits.append((g,A if g<16 else B))
    if 'tailv' in kw:
        for g,t in kw['tailv']: visits.append((g,[6+int(c) for c in t]))
    elif tail:
        for k,grp in enumerate(groups):
            gs=list(range(32-tail,32))
            if kw.get('snake') and k%2: gs=gs[::-1]
            for g in gs:
                if visits[-1][0]==g: visits[-1]=(g,visits[-1][1]+list(grp))
                else: visits.append((g,list(grp)))
    first={}; last={}; n=0
    for g,ts in visits:
        first.setdefault(g,n); last[g]=n; n+=len(ts)
    t=H['t']; nb=H['nb']; nq=6; qfree=list(H['qfree'])
    n=int(t)
    while nb<32 or nq<12:
        if t>n or (kw.get('quiet') and kw['quiet'][0]<=n<kw['quiet'][1]): n+=1; continue
        if nq==12: TB=kw.get('TB2',TB)
        if n>=96: TB=kw.get('TB3',TB)
        ahead=sum(1 for g in range(nb) if first[g]>n)
        resident=sum(1 for g in range(nb) if last[g]+9>n)
        canB = nb<32 and resident<8 and ahead<D
        canQ = nq<12 and qfree[nq%2]<=n
        if canB and (ahead<minD or not canQ):
            plan.append((n,('B',nb,int(TB*17/4)))); nb+=1; t=max(t,n)+TB
        elif canQ:
            plan.append((n,('Q',nq,int(TQ*17/4)))); t=max(t,n)+TQ
            if nq<10:
                plan.append((n+qlat,('q',nq))); qfree[nq%2]=n+qlat+1
            else: qfree[nq%2]=999
            nq+=1
        else: n+=1
    plan.append((6*15+1,('q',10))); plan.append((6*15+2,('q',11)))
    oimm={0:(2,None),1:(3,None),2:(4,None),3:(5,None)}
    ts=kw.get('tailst',[4]*6)
    for T in range(6,12): oimm[T]=({6:6,7:7,8:8,9:9,10:0,11:1}[T],ts[T-6])
    n=kw.get('st0',102)
    if kw.get('direct'):
        oimm={0:(None,kw.get('st01',8)),1:(None,kw.get('st01',8)),2:(2,None),3:(3,None),4:(4,None),5:(5,None)}
        for T in range(6,12): oimm[T]=(None,ts[T-6])
        n=6*18
        for T in range(2,6):
            plan.append((n,('s',T,ststep))); n+= (4*ststep+16)//17
    else:
      for T in range(6):
        if T>=4: plan.append((n-3,('o',T,T-2)))
        plan.append((n,('s',T,ststep)))
        n+= (4*ststep+16)//17
    for n in kw.get('cpf',()): plan.append((n,('c',0)))
    c=dict(visits=visits,plan=plan,oimm=oimm,verbose=True,ldsrate=512,dsmargin=8,merge=8,dmapair=False)
    c.update(kw)
    if c.get('showplan'): print(sorted([(n,u[0]+str(u[1])) for n,u in plan if n>=0]))
    return c
if False:
    for h in ('simple','h5','h6'):
        emit(mk(h,showplan=True),f'v4{h}.s')
HEADS['h7']=dict(v=[(0,'01'),(1,'012'),(0,'2'),(2,'012'),(3,'0123'),(4,'012345'),(3,'45'),(0,'345'),(1,'345'),(2,'345')],
    plan=[(-1,('Q',0)),(-1,('K',0)),(-1,('Q',1)),(-1,('K',1)),(-1,('q',0)),(-1,('V',0)),(-1,('V',1)),
          (0,('q',1)),(0,('Q',2,1)),(1,('B',2,1)),(3,('q',2)),(3,('B',3,1)),(4,('Q',3,1)),(6,('B',4,1)),(8,('Q',4,1)),(11,('q',3)),(11,('Q',5,1)),
          (15,('q',4)),(17,('q',5))], nb=5, t=14, qfree=[16,18])
HEADS['h8']=dict(v=[(0,'01'),(1,'01'),(2,'0123'),(1,'23'),(0,'23'),(3,'012345'),(2,'45'),(1,'45'),(0,'45')],
    plan=[(-1,('Q',0)),(-1,('K',0)),(-1,('Q',1)),(-1,('K',1)),(-1,('q',0)),(-1,('V',0)),(-1,('V',1)),
          (0,('q',1)),(0,('B',2,1)),(1,('Q',2,1)),(2,('Q',3,1)),(5,('q',2)),(5,('B',3,1)),(6,('q',3)),(6,('Q',4,1)),(8,('Q',5,1)),
          (14,('q',4)),(16,('q',5))], nb=4, t=11, qfree=[15,17])
HEADS['h7p']=dict(v=HEADS['h7']['v'],
    plan=[(-1,('Q',0)),(-1,('K',0)),(-1,('Q',1)),(-1,('K',1)),(-1,('q',0)),(-1,('V',0)),(-1,('V',1)),(-1,('p',0)),(-1,('Q',2)),
          (0,('q',1,6)),(0,('B',2,1)),(0,('p',1,8)),(2,('B',3,1)),(3,('q',2,6)),(3,('Q',3,1)),(6,('B',4,1)),(8,('Q',4,1)),(11,('q',3)),(11,('Q',5,1)),
          (15,('q',4)),(17,('q',5))], nb=5, t=14, qfree=[16,18])
HEADS['h5p']=dict(v=HEADS['h5']['v'],
    plan=[(-1,('Q',0)),(-1,('K',0)),(-1,('Q',1)),(-1,('V',0)),(-1,('q',0)),(-1,('Q',2)),(-1,('p',0)),
          (0,('q',1,6)),(0,('B',1,1)),(0,('p',1,8)),(1,('B',2,1)),(1,('q',2,6)),(2,('B',3,1)),(3,('Q',3,1)),(5,('B',4,1)),(8,('Q',4,1)),(11,('q',3)),(11,('Q',5,1)),
          (16,('q',4)),(19,('q',5))], nb=5, t=13, qfree=[17,20])
def hq(quiet_end=20, bsl=12, b3=6, b4=10, b5=14, b6=None):
    v=[(0,'01'),(1,'01'),(2,'0123'),(1,'23'),(0,'23'),(3,'0123'),(4,'0123'),(5,'0123'),(6,'012345'),(0,'45'),(1,'45'),(2,'45'),(3,'45'),(4,'45'),(5,'45')]
    e=quiet_end
    plan=[(-1,('Q',0)),(-1,('K',0)),(-1,('Q',1)),(-1,('K',1)),(-1,('q',0)),(-1,('V',0)),(-1,('V',1)),
          (0,('q',1)),(0,('B',2,1)),(1,('Q',2,1)),(2,('Q',3,1)),(5,('q',2)),(6,('q',3)),
          (b3,('B',3,bsl)),(b4,('B',4,bsl)),(b5,('B',5,bsl)),(e-2,('B',6,4)),(e,('Q',4,2)),(e+1,('Q',5,2)),(27,('q',4)),(28,('q',5))]
    return dict(v=v,plan=plan,nb=7,t=e+6,qfree=[28,29])
HEADS['q20']=hq(20); HEADS['q18']=hq(18,10,6,9,12); HEADS['q16']=hq(16,8,6,8,11)
def hr(e=20,bsl=12):
    v=[(0,'01'),(1,'01'),(2,'0123'),(1,'23'),(0,'23'),(3,'0123'),(4,'0123'),(5,'0123'),(6,'0123'),(7,'012345'),(0,'45'),(1,'45'),(2,'45'),(3,'45'),(4,'45'),(5,'45'),(6,'45')]
    plan=[(-1,('Q',0)),(-1,('K',0)),(-1,('Q',1)),(-1,('K',1)),(-1,('q',0)),(-1,('V',0)),(-1,('V',1)),
          (0,('q',1)),(0,('B',2,1)),(1,('Q',2,1)),(2,('Q',3,1)),(5,('q',2)),(6,('q',3)),
          (6,('B',3,bsl)),(10,('B',4,bsl)),(14,('B',5,bsl)),(18,('B',6,bsl)),(e,('B',7,4)),(e+1,('Q',4,4)),(e+3,('Q',5,4)),(31,('q',4)),(32,('q',5))]
    return dict(v=v,plan=plan,nb=8,t=e+8,qfree=[32,33])
HEADS['r22']=hr(22)
def hj(J, loads, t):
    v=[(0,'01'),(1,'01'),(2,'0123'),(1,'23'),(0,'23')]+[(g,'0123') for g in range(3,J)]+[(J,'012345')]+[(g,'45') for g in range(J)]
    n4=12+4*(J-3)+4
    plan=[(-1,('Q',0)),(-1,('K',0)),(-1,('Q',1)),(-1,('K',1)),(-1,('q',0)),(-1,('V',0)),(-1,('V',1)),(-1,('p',0)),
          (0,('q',1)),(0,('B',2,1)),(0,('p',1)),(1,('Q',2,1)),(2,('Q',3,1)),(5,('q',2)),(6,('q',3))]+loads+[(n4-1,('q',4)),(n4,('q',5))]
    return dict(v=v,plan=plan,nb=J+1,t=t,qfree=[n4,n4+1])
HEADS['j3a']=hj(3,[(6,('B',3,2)),(7,('Q',4,4)),(9,('Q',5,4))],13)
HEADS['j4a']=hj(4,[(6,('B',3,6)),(8,('B',4,6)),(10,('Q',4,8)),(13,('Q',5,8))],17)
HEADS['j4b']=hj(4,[(6,('B',3,6)),(9,('B',4,6)),(12,('Q',4,4)),(14,('Q',5,4))],18)
HEADS['j5a']=hj(5,[(6,('B',3,6)),(8,('B',4,6)),(10,('B',5,8)),(13,('Q',4,8)),(16,('Q',5,8))],20)
HEADS['j6a']=hj(6,[(6,('B',3,10)),(9,('B',4,10)),(12,('B',5,10)),(16,('B',6,4)),(18,('Q',4,3)),(20,('Q',5,3))],24)
HEADS['j5q']=hj(5,[(6,('B',3,10)),(9,('B',4,10)),(12,('B',5,8)),(15,('Q',4,4)),(17,('Q',5,4))],21)
```

```python
import sys, math, struct
from sched import *

NAME="standalone__gqa_softmax__near_ridge"
CSC = math.log2(math.e)/math.sqrt(128.0)
def f2u(x): return struct.unpack('<I',struct.pack('<f',x))[0]

vS=[0,8,16]; vP=[24,28,32,36]; vMCs=[63,41,42,43,44,45]; vBp=40
vKa=[46,47]; vVa=[48,49,50,51]; vQa=[52,53]; vDMA=54; vIdx=55
vOw=[56,57,52,53]; vOst=58; vOr=59
vL=[60,62]; vT0=61; vT1=None
vCI={0:56,1:60}; aSave=248
vO=lambda slot,t: 64+32*slot+4*t
aQ=lambda b: 16*b
aK=lambda f: 160+4*f
aV=lambda t: 192+4*t
aSum=lambda slot: 224+4*(slot//2)
aOneS=236; aOneD=[240,244]
sQ=8; sK=12; sV=16; sO=20
sC=24; sTH=25; sWL=26 ; sWQ=27; sWS=28; sOffKV=29; sOffQ=30; sOffO=31; sW=32; sMSK=7
sFlag=40
KRING=0; VRING=65536; STG=131072

class Gen:
    def __init__(s, cfg):
        s.cfg=cfg; s.P=Program(); s.nbb=0; s.bars=[]; s.vis=set()
        s.R=cfg.get('ring',8); s.LAG=cfg.get('lag',2); s.NB=s.LAG+1
        s.lastread={}; s.dmadone={}; s.occ={'K':[None]*s.R,'V':[None]*s.R}; s.slotof={}; s.dmarel={}
        s.ldpol=cfg.get('ldpol','nt'); s.stpol=cfg.get('stpol','nt')
        s.urgent=False; s.win=cfg.get('dmawin',12); s.np=0 if cfg.get('dmapair',True) else 1
    def add(s,*a,**k):
        o=Op(*a,**k); s.P.add(o)
        if o.kind=='mfma': s.nbb+=1
        return o
    def now(s): return s.nbb-1
    def barrier(s):
        g=s.now()
        b=s.add("s_barrier",'bar',reads=[],writes=['barorder'],release=g,deadline=g)
        s.bars.append(b); return b
    def visible(s,part,g):
        if (part,g) in s.vis: return
        b=s.bars[-1]
        for bb in reversed(s.bars):
            if bb.reads and bb.release>=s.dmarel[(part,g)]+s.cfg.get('vislat',200) and s.dmadone[(part,g)]<bb.idx: b=bb; break
        assert s.dmadone[(part,g)]<b.idx, ("dma after barrier",part,g)
        b.reads.append(f"L:{part}{g}"); b.writes.append(f"vis{part}{g}"); s.vis.add((part,g))
    def dl(s,rel): return (rel+(0 if s.urgent else s.win)) if rel>=0 else -1
    def dma_kv(s,part,g,rel,step):
        rd=[]
        occ=s.occ[part]
        free=[x for x in range(s.R) if occ[x] is None]
        if free: slot=free[0]
        else:
            b=s.bars[-1]
            c=[x for x in range(s.R) if s.allread[(part,occ[x])]==0 and s.lastread[(part,occ[x])]<b.idx]
            assert c, ("no free slot",part,g,occ)
            slot=min(c,key=lambda x:s.lastread[(part,occ[x])]); old=occ[slot]
            for bb in s.bars:
                if bb.idx>s.lastread[(part,old)]+s.cfg.get('freegap',60) and bb.reads: b=bb; break
            b.reads.append(f"L:rd{part}{old}"); b.writes.append(f"free{part}{old}"); rd=[f"free{part}{old}"]
        occ[slot]=g; s.slotof[(part,g)]=slot
        base=(KRING if part=='K' else VRING)+slot*8192
        s.add(f"s_add_u32 m0, s{sWL}, {base}",'salu',writes=['m0'],margin=1)
        if s.curoff!=g:
            s.add(f"s_mov_b32 s{sOffKV}, {g*8192}",'salu',writes=[f"s{sOffKV}"],margin=1); s.curoff=g
        srd=sK if part=='K' else sV
        for i in range(2):
            o=s.add(f"buffer_load_dwordx4 v{vDMA}, s[{srd}:{srd+3}], s{sOffKV} offen offset:{2048*i} {s.ldpol} lds",'dma',
                  reads=['m0',f"s{sOffKV}"]+rd,writes=[f"L:{part}{g}",'O:vm'],release=rel+i*step*s.np,deadline=s.dl(rel+i*step*s.np),tag=('pair' if i and not s.np else None))
        s.dmadone[(part,g)]=o.idx; s.dmarel[(part,g)]=o.deadline
    def dma_q(s,T,rel,step):
        buf=T%2; it,j=divmod(T,6)
        assert s.stgown[buf] is None, ("stg busy",T,s.stgown); s.stgown[buf]=('Q',T)
        k=0
        for half in range(2):
            s.add(f"s_add_u32 m0, s{sWS}, {STG+buf*4096+half*896}",'salu',writes=['m0'],margin=1)
            if half==0: s.add(f"s_add_u32 s{sOffQ}, s{sWQ}, {(it*768+16*j)*256}",'salu',writes=[f"s{sOffQ}"],margin=1)
            for oc in range(2):
                s.add(f"buffer_load_dwordx4 v{vDMA}, s[{sQ}:{sQ+3}], s{sOffQ} offen offset:{2048*oc+128*half} {s.ldpol} lds",'dma',
                      reads=['m0',f"s{sOffQ}",f"L:stg{buf}0",f"L:stg{buf}1"],writes=[f"L:Q{T}",'O:vm'],release=rel+(k if s.np else 2*half)*step,deadline=s.dl(rel+(k if s.np else 2*half)*step),tag=('pair' if oc and not s.np else None))
                k+=1
    def read_q(s,T,rel):
        buf=T%2; qb=s.qbuf[T]; s.qread.add(T)
        assert all(s.seen[x]==16 for x in range(T) if s.qbuf[x]==qb), ("qbuf busy",T)
        assert s.stgown[buf]==('Q',T); s.stgown[buf]=None
        if T in s.pres:
            raw=vO(5,0)+16*T; tmp=vO(4,0)
            for st in range(4):
                s.add(f"ds_read_b128 {rng('v',raw+4*st,4)}, v{vQa[st%2]} offset:{buf*4096+(st//2)*1024}",'dsr',
                      reads=[f"L:Q{T}",f"v{vQa[st%2]}"]+(['O:vm'] if st==0 else []),writes=R('v',raw+4*st,4)+[f"L:stg{buf}{st//2}",f"O:q{T}"],release=rel,deadline=rel)
            return
        s._read_q_plain(T,rel)
    def prescale(s,T,rel,off=0):
        if T not in s.pres: return
        qb=s.qbuf[T]
        if True:
            raw=vO(5,0)+16*T; tmp=vO(4,0)
            G = rel+off
            kw=dict(release=G,deadline=G)
            for r in range(16):
                x=raw+r; a=tmp+2*r
                s.add(f"v_lshlrev_b32 v{a}, 16, v{x}",'valu',reads=[f"v{x}"],writes=[f"v{a}"],**kw)
                s.add(f"v_and_b32 v{a+1}, s{sMSK}, v{x}",'valu',reads=[f"v{x}"],writes=[f"v{a+1}"],**kw)
            for r in range(16):
                x=raw+r; a=tmp+2*r
                s.add(f"v_pk_mul_f32 v[{a}:{a+1}], v[{a}:{a+1}], s[{sC}:{sC+1}] op_sel_hi:[1,0]",'pk',reads=[f"v{a}",f"v{a+1}"],writes=[f"v{a}",f"v{a+1}"],**kw)
                s.add(f"v_cvt_pk_bf16_f32 v{x}, v{a}, v{a+1}",'valu',reads=[f"v{a}",f"v{a+1}"],writes=[f"v{x}"],**kw)
                s.add(f"v_accvgpr_write_b32 a{aQ(qb)+r}, v{x}",'valu',reads=[f"v{x}"],writes=[f"a{aQ(qb)+r}"],**kw)
            return
    def _read_q_plain(s,T,rel):
        buf=T%2; qb=s.qbuf[T]
        for st in range(4):
            s.add(f"ds_read_b128 {rng('a',aQ(qb)+4*st,4)}, v{vQa[st%2]} offset:{buf*4096+(st//2)*1024}",'dsr',
                  reads=[f"L:Q{T}",f"v{vQa[st%2]}"]+(['O:vm'] if st==0 else []),writes=R('a',aQ(qb)+4*st,4)+[f"L:stg{buf}{st//2}",f"O:q{T}"],release=rel,margin=8,deadline=s.dl(rel),hole=True)
    def read_k(s,g,order):
        s.visible('K',g); slot=s.slotof[('K',g)]
        for f in order:
            kt,st=divmod(f,4)
            o=s.add(f"ds_read_b128 {rng('a',aK(f),4)}, v{vKa[st%2]} offset:{slot*8192+kt*4096+(st//2)*1024}",'dsr',
                  reads=[f"visK{g}"],writes=R('a',aK(f),4)+[f"L:rdK{g}"],margin=s.cfg.get('dsmargin',10))
        s.lastread[('K',g)]=o.idx; s.allread[('K',g)]-=1
    def read_v(s,g):
        s.visible('V',g); slot=s.slotof[('V',g)]
        for t in range(8):
            for kt in range(2):
                o=s.add(f"ds_read_b64_tr_b16 {rng('a',aV(t)+2*kt,2)}, v{vVa[t%4]} offset:{slot*8192+kt*4096+(t//4)*1024}",'dsr',
                      reads=[f"visV{g}"],writes=R('a',aV(t)+2*kt,2)+[f"L:rdV{g}"],margin=s.cfg.get('dsmargin',10))
        s.lastread[('V',g)]=o.idx; s.allread[('V',g)]-=1
    KORD=[0,1,2,3,7,6,5,4]
    def qk(s,n,T):
        b=n%s.NB; qb=s.qbuf[T]
        for i,f in enumerate(s.KORD):
            kt,st=divmod(f,4)
            d=vS[b]+4*kt; first=(i%4==0)
            cr = R('v',d,4); c=rng('v',d,4)
            if first:
                if T in s.pres and s.seen[T]>0: cr=R('v',vCI[T],4); c=rng('v',vCI[T],4)
                else: cr=[]; c="0"
            s.add(f"v_mfma_f32_16x16x32_bf16 {rng('v',d,4)}, {rng('a',aK(f),4)}, {rng('a',aQ(qb)+4*st,4)}, {c}",'mfma',
                  reads=R('a',aK(f),4)+R('a',aQ(qb)+4*st,4)+cr,writes=R('v',d,4),cread=cr)
        if T==0 and T in s.pres and s.seen[T]==15:
            for r in range(4): s.add(f"v_accvgpr_read_b32 v{vCI[0]+r}, a{aSave+r}",'valu',reads=[],writes=[f"v{vCI[0]+r}"])
    def pv(s,n,T,first):
        slot=s.slot[T]; p=vP[s.pbuf[n]]
        d=aSum(slot); mode=s.summode[n]
        if (T//2) not in s.zeroed:
            s.zeroed.add(T//2)
            for r in range(4): s.add(f"v_accvgpr_write_b32 a{d+r}, 0",'valu',writes=[f"a{d+r}"],margin=2)
        if mode=='single':
            a=aOneD[slot%2]
            s.add(f"v_mfma_f32_16x16x32_bf16 {rng('a',d,4)}, {rng('a',a,4)}, {rng('v',p,4)}, {rng('a',d,4)}",'mfma',
                  reads=R('a',a,4)+R('v',p,4)+R('a',d,4),writes=R('a',d,4),cread=R('a',d,4),tag='sum')
        elif mode=='second':
            s.add(f"v_smfmac_f32_16x16x64_bf16 {rng('a',d,4)}, {rng('a',aOneS,4)}, {rng('v',p-4,8)}, v{vIdx}",'mfma',
                  reads=R('a',aOneS,4)+R('v',p-4,8)+R('a',d,4),writes=R('a',d,4),cread=R('a',d,4),cost=12,tag='sum')
        if s.pending_epi is not None and mode=='second':
            X=s.pending_epi; s.pending_epi=None; s.finish(X,5)
        for t in range(8):
            d=vO(slot,t); c="0" if first else rng('v',d,4)
            s.add(f"v_mfma_f32_16x16x32_bf16 {rng('v',d,4)}, {rng('a',aV(t),4)}, {rng('v',p,4)}, {c}",'mfma',
                  reads=R('a',aV(t),4)+R('v',p,4)+([] if first else R('v',d,4)),writes=R('v',d,4),cread=([] if first else R('v',d,4)))
    def finish(s,T,off):
        e=s.epilogue(T,off)
        if T in s.imm:
            s.read_o(T,s.imm[T][0],e)
            if s.imm[T][1] is not None: s.store_o(T,e+s.cfg.get('stlag',10),s.imm[T][1])
    def sm(s,n,T,first):
        b=n%s.NB; S=vS[b]; p=vP[s.pbuf[n]]; mc=vMCs[s.slot[T]]; zero=s.cfg.get('zero'); pre=T in s.pres
        if pre: mc=vCI[T]
        if first and not zero:
            t0,t1=(mc,None) if s.cfg.get('bperm',True) else (vT0,vT1)
            V=lambda txt,rd,wr,k='valu': s.add(txt,k,reads=[f"v{x}" for x in rd],writes=[f"v{x}" for x in wr],margin=1)
            V(f"v_max3_f32 v{t0}, v{S}, v{S+1}, v{S+2}",[S,S+1,S+2],[t0])
            V(f"v_max_f32 v{t0}, v{t0}, v{S+3}",[t0,S+3],[t0])
            if s.cfg.get('bperm',True):
                s.add(f"ds_bpermute_b32 v{t0}, v{vBp}, v{t0}",'dsr',reads=[f"v{t0}"],writes=[f"v{t0}"],margin=6)
            else:
                V(f"v_mov_b32 v{t1}, v{t0}",[t0],[t1])
                V(f"v_permlane16_swap_b32 v{t0}, v{t1}",[t0,t1],[t0,t1],'perm')
                V(f"v_max_f32 v{t0}, v{t0}, v{t1}",[t0,t1],[t0])
                V(f"v_mov_b32 v{t1}, v{t0}",[t0],[t1])
                V(f"v_permlane32_swap_b32 v{t0}, v{t1}",[t0,t1],[t0,t1],'perm')
                V(f"v_max_f32 v{t0}, v{t0}, v{t1}",[t0,t1],[t0])
            if pre:
                V(f"v_xor_b32 v{mc}, 0x80000000, v{t0}",[t0],[mc])
                for r in range(1,4): V(f"v_mov_b32 v{mc+r}, v{mc}",[mc],[mc+r])
            else: V(f"v_mul_f32 v{mc}, 0x{f2u(-CSC):08x}, v{t0}",[t0],[mc])
        sp=s.cfg.get('smsp',3)
        for k in range(4):
            for i in (2*k,2*k+1):
                if pre:
                    if first: s.add(f"v_add_f32 v{S+i}, v{S+i}, v{mc}",'valu',reads=[f"v{S+i}",f"v{mc}"],writes=[f"v{S+i}"],margin=1)
                elif zero: s.add(f"v_mul_f32 v{S+i}, s{sC}, v{S+i}",'valu',reads=[f"v{S+i}"],writes=[f"v{S+i}"],margin=1)
                else: s.add(f"v_fma_f32 v{S+i}, v{S+i}, s{sC}, v{mc}",'valu',reads=[f"v{S+i}",f"v{mc}"],writes=[f"v{S+i}"],margin=1)
            for i in (2*k,2*k+1):
                s.add(f"v_exp_f32 v{S+i}, v{S+i}",'trans',reads=[f"v{S+i}"],writes=[f"v{S+i}"],margin=1+(i%2==0))
            s.add(f"v_cvt_pk_bf16_f32 v{p+k}, v{S+2*k}, v{S+2*k+1}",'valu',reads=[f"v{S+2*k}",f"v{S+2*k+1}"],writes=[f"v{p+k}"],margin=1+sp*(3-k))
    def epilogue(s,T,off=0):
        slot=s.slot[T]; g0=s.now()+off; l=vL[T%2]; buf=s.obuf[T]; tmp=(vT0 if s.cfg.get('bperm',True) else l+1); a=aSum(slot)+2*(slot%2)
        direct=s.cfg.get('direct')
        if not direct:
            assert s.stgown[buf] is None, ("stg busy O",T,s.stgown); s.stgown[buf]=('O',T)
        if not s.owdone and not direct:
            assert len(s.qread)==12
            s.owdone=True
            s.add(f"v_xor_b32 v{vOw[2]}, 64, v{vOw[0]}",'valu',reads=[f"v{vOw[0]}"],writes=[f"v{vOw[2]}"])
            s.add(f"v_xor_b32 v{vOw[3]}, 64, v{vOw[1]}",'valu',reads=[f"v{vOw[1]}"],writes=[f"v{vOw[3]}"])
        s.add(f"v_accvgpr_read_b32 v{l}, a{a}",'valu',reads=[f"a{a}"],writes=[f"v{l}"],deadline=g0-1)
        s.add(f"v_accvgpr_read_b32 v{tmp}, a{a+1}",'valu',reads=[f"a{a+1}"],writes=[f"v{tmp}"],deadline=g0-1)
        s.add(f"v_add_f32 v{l}, v{l}, v{tmp}",'valu',reads=[f"v{l}",f"v{tmp}"],writes=[f"v{l}"],deadline=g0)
        s.add(f"v_cmp_ngt_f32_e64 s[{sFlag+2*T}:{sFlag+2*T+1}], s{sTH}, v{l}",'valu',reads=[f"v{l}"],writes=[f"s{sFlag+2*T}"],deadline=g0)
        s.add(f"v_rcp_f32 v{l}, v{l}",'trans',reads=[f"v{l}"],writes=[f"v{l}"],deadline=g0+1)
        G=g0+3
        def pks(ts):
          for t in ts:
            o=vO(slot,t)
            for i in (0,2):
                s.add(f"v_pk_mul_f32 v[{o+i}:{o+i+1}], v[{o+i}:{o+i+1}], v[{l}:{l+1}] op_sel_hi:[1,0]",'pk',reads=[f"v{o+i}",f"v{o+i+1}",f"v{l}"],writes=[f"v{o+i}",f"v{o+i+1}"],release=G,deadline=G)
        pks(range(8) if direct else range(4))
        W=s.cfg.get('epiw',12)
        if direct:
            for m in range(4):
                o=vO(slot,2*m); d=G+(W*m)//4
                for i in range(4):
                    s.add(f"v_cvt_pk_bf16_f32 v{o+i}, v{o+2*i}, v{o+2*i+1}",'valu',reads=[f"v{o+2*i}",f"v{o+2*i+1}"],writes=[f"v{o+i}"],deadline=d+i//2)
                for i in range(2):
                    s.add(f"v_permlane16_swap_b32 v{o+i}, v{o+i+2}",'perm',reads=[f"v{o+i}",f"v{o+i+2}"],writes=[f"v{o+i}",f"v{o+i+2}"],deadline=d+2+i)
            return G+4
        if s.cfg.get('w2',True) and T<s.cfg.get('w2last',11):
            pks(range(4,8))
            for t in range(4):
                d=G+(W*t)//4
                for u in (t,t+4):
                    o=vO(slot,u)
                    for i in range(2):
                        s.add(f"v_cvt_pk_bf16_f32 v{o+i}, v{o+2*i}, v{o+2*i+1}",'valu',reads=[f"v{o+2*i}",f"v{o+2*i+1}"],writes=[f"v{o+i}"],deadline=d+(u>=4))
                o=vO(slot,t); p=vO(slot,t+4)
                s.add(f"ds_write2st64_b64 v{vOw[t]}, v[{o}:{o+1}], v[{p}:{p+1}] offset0:{buf*8} offset1:{buf*8+2}",'dsw',reads=[f"v{o}",f"v{o+1}",f"v{p}",f"v{p+1}",f"v{vOw[t]}"],writes=[f"L:stg{buf}0",f"L:stg{buf}1"],deadline=d+2,cost=20)
            return G+W+1
        for t in range(8):
            if t==4: pks(range(4,8))
            o=vO(slot,t); d=G+(W*t)//8
            for i in range(2):
                s.add(f"v_cvt_pk_bf16_f32 v{o+i}, v{o+2*i}, v{o+2*i+1}",'valu',reads=[f"v{o+2*i}",f"v{o+2*i+1}"],writes=[f"v{o+i}"],deadline=d)
            s.add(f"ds_write_b64 v{vOw[t%4]}, v[{o}:{o+1}] offset:{buf*4096+(t//4)*1024}",'dsw',reads=[f"v{o}",f"v{o+1}",f"v{vOw[t%4]}"],writes=[f"L:stg{buf}{t//4}"],deadline=d+s.cfg.get('dswd',1))
        return G+W+1+s.cfg.get('dswd',1)
    def read_o(s,T,park,rel):
        buf=s.obuf[T]; s.park[T]=park
        if s.cfg.get('direct'):
            if park is None: return
            assert all(s.seen[x] in (0,16) and not (s.seen[x]==0 and x in s.qread) for x in range(12) if s.qbuf[x]==park), ("park busy",T,park)
            assert s.parkown.get(park) is None; s.parkown[park]=[T,4]
            W=s.cfg.get('epiw',12)
            for m in range(4):
                o=vO(s.slot[T],2*m)
                for i in range(4):
                    s.add(f"v_accvgpr_write_b32 a{aQ(park)+4*m+i}, v{o+i}",'valu',reads=[f"v{o+i}"],writes=[f"a{aQ(park)+4*m+i}"],deadline=rel+(W*m)//4+i//2+s.cfg.get('accslack',0))
            return
        assert all(s.seen[x] in (0,16) and not (s.seen[x]==0 and x in s.qread) for x in range(12) if s.qbuf[x]==park), ("park busy",T,park)
        assert s.stgown[buf]==('O',T); s.stgown[buf]=None
        assert s.parkown.get(park) is None, ("park has unstored data",T,park); s.parkown[park]=[T,4]
        for j in (0,2,1,3):
            kw=dict(release=rel,deadline=rel+4,hole=True)
            if j<2:
                s.add(f"ds_read_b128 {rng('a',aQ(park)+4*j,4)}, v{vOr} offset:{buf*4096+1024*j}",'dsr',
                      reads=[f"v{vOr}"],writes=R('a',aQ(park)+4*j,4)+[f"L:stg{buf}{j%2}"],**kw)
            else:
                for h in range(2):
                    s.add(f"ds_read_b64 {rng('a',aQ(park)+4*j+2*h,2)}, v{vOr} offset:{buf*4096+1024*j+8*(1-h)}",'dsr',
                          reads=[f"v{vOr}"],writes=R('a',aQ(park)+4*j+2*h,2)+[f"L:stg{buf}{j%2}"],**kw)
    def store_o(s,T,rel,step,js=(0,2,1,3)):
        it,j=divmod(T,6); park=s.park[T]
        if T>=6: rel=max(rel,s.laststore+step)
        s.laststore=rel+(len(js)-1)*step
        if s.curO!=T:
            s.add(f"s_mov_b32 s{sOffO}, {(it*768+16*j)*256}",'salu',writes=[f"s{sOffO}"],margin=1); s.curO=T
        s.nst+=len(js)
        if park is not None:
            s.parkown[park][1]-=len(js)
            if s.parkown[park][1]==0: s.parkown[park]=None
        if s.cfg.get('direct'):
            pol=s.stpol if isinstance(s.stpol,str) else s.stpol[T]
            for k,m in enumerate(js):
                p,r=('a',aQ(park)+4*m) if park is not None else ('v',vO(s.slot[T],2*m))
                s.add(f"buffer_store_dwordx4 {rng(p,r,4)}, v{vOst}, s[{sO}:{sO+3}], s{sOffO} offen offset:{64*m} {pol}",'gst',
                      reads=R(p,r,4)+[f"s{sOffO}",f"v{vOst}"],writes=['O:st'],release=rel+k*step,deadline=rel+k*step+2)
            return
        for k,j in enumerate(js):
            s.add(f"buffer_store_dwordx4 {rng('a',aQ(park)+4*j,4)}, v{vOst}, s[{sO}:{sO+3}], s{sOffO} offen offset:{(j//2)*2048+(j%2)*128} {s.stpol if isinstance(s.stpol,str) else s.stpol[T]}",'gst',
                  reads=R('a',aQ(park)+4*j,4)+[f"s{sOffO}",f"v{vOst}"],writes=['O:st'],release=rel+k*step,deadline=rel+k*step+2)
    def build(s):
        cfg=s.cfg; LAG=s.LAG
        visits=cfg['visits']
        s.slot={T:T%6 for T in range(12)}
        s.qbuf=cfg.get('qbuf',{**{T:T for T in range(10)},10:0,11:1})
        s.obuf={T:T%2 for T in range(12)}; s.park={}; s.curO=None
        s.pres=set(cfg.get('pres',())); s.imm=cfg.get('oimm',{}); s.zeroed=set(); s.pending_epi=None; s.owdone=False
        s.allread=defaultdict(int)
        for g,ts in visits:
            s.allread[('K',g)]+=1; s.allread[('V',g)]+=1
        ms=[]
        for vi,(g,ts) in enumerate(visits):
            for k,T in enumerate(ts): ms.append((vi,g,T,k==0,k==len(ts)-1))
        cnt=defaultdict(int)
        for m in ms: cnt[m[2]]+=1
        assert all(cnt[T]==16 for T in range(12)) and len({(m[1],m[2]) for m in ms})==192
        assert all(m[1]//16==m[2]//6 for m in ms)
        s.summode={}; s.pbuf={}; pb=0; n=0
        while n<len(ms):
            T=ms[n][2]
            if cfg.get('smf',True) and T%2==0 and n+1<len(ms)-(2 if cfg.get('lastsingle',True) else 0) and ms[n+1][2]==T+1:
                if pb%2: pb+=1
                s.summode[n]='first'; s.summode[n+1]='second'; s.pbuf[n]=pb%4; s.pbuf[n+1]=(pb+1)%4; pb+=2; n+=2
            else:
                s.summode[n]='single'; s.pbuf[n]=pb%4; pb+=1; n+=1
        plan=defaultdict(list)
        for n,u in cfg['plan']: plan[n].append(u)
        s.curoff=None
        def doplan(n):
            rel=s.now(); us=plan.get(n,[])
            nd=sum({'B':4,'K':2,'V':2,'Q':4}.get(u[0],0) for u in us)
            step = 0 if n<0 else max(1,cfg.get('span',16)//max(nd,1))
            for u in us:
                st = u[2] if len(u)>2 and u[0] in 'BKVQ' else step
                s.urgent = u[0] in 'BKVQ' and st<=1 and cfg.get('urgent',True)
                if s.urgent and rel<0: st=0
                if u[0]=='B':
                    s.dma_kv('K',u[1],rel,st); s.dma_kv('V',u[1],rel+2*st,st); rel+=4*st
                elif u[0] in 'KV':
                    s.dma_kv(u[0],u[1],rel,st); rel+=2*st
                elif u[0]=='Q':
                    s.dma_q(u[1],rel,st); rel+=4*st
                elif u[0]=='q': s.read_q(u[1],s.now()+(u[2] if len(u)>2 else 0)); rel=max(rel,s.now()+(u[2] if len(u)>2 else 0))
                elif u[0]=='p': s.prescale(u[1],s.now(),u[2] if len(u)>2 else 0)
                elif u[0]=='o': s.read_o(u[1],u[2],s.now())
                elif u[0]=='s': s.store_o(u[1],s.now(),u[2],*u[3:])
                elif u[0]=='bar': s.barrier()
                elif u[0]=='c': s.add(f"buffer_load_dword a252, v{vDMA}, s[36:39], s35 offen",'gld',writes=['O:vm'],release=s.now(),deadline=s.now()+12)
        s.msbb={}; seen=defaultdict(int); seenpv=defaultdict(int); s.seen=defaultdict(int); s.qread=set(); s.stgown=[None,None]; s.parkown={}; s.nst=0; s.laststore=-99
        barset=cfg.get('barvisits')
        doplan(-1)
        s.barrier(); s.read_k(ms[0][1],s.KORD)
        N=len(ms)
        for n in range(N+LAG):
            if n<N:
                vi,g,T,fi,la=ms[n]
                if la and n+1<N and (barset is None or vi+1 in barset) and n not in cfg.get('nobar',()) and n<=cfg.get('lastbar',999): s.barrier()
                doplan(n)
                assert T in s.qread, ('Q not loaded',T)
                s.msbb[n]=s.nbb
                s.qk(n,T); s.seen[T]+=1
            m=n-LAG
            if m>=0:
                T1=ms[m][2]
                s.pv(m,T1,seenpv[T1]==0); seenpv[T1]+=1
                if seenpv[T1]==16:
                    if s.summode[m]=='first': s.pending_epi=T1
                    else: s.finish(T1,0)
            if n<N:
                s.sm(n,T,seen[T]==0); seen[T]+=1
                if la and n+1<N: s.read_k(ms[n+1][1],s.KORD)
            if m+1>=0 and m+1<N and ms[m+1][3]: s.read_v(ms[m+1][1])
        assert s.nst==48
        s.P.ops=[o for o in s.P.ops if not (o.kind=='bar' and not o.reads)]
        for i,o in enumerate(s.P.ops): o.idx=i
        out=s.P.schedule(ldsrate=cfg.get('ldsrate',1024),ldsburst=cfg.get('ldsburst',1024),dswd=cfg.get('dswd',1),dswsp=cfg.get('dswsp',1),holeburst=cfg.get('holeburst',12),wdma=cfg.get('wdma',-1),dmaw=cfg.get('dmaw',-1))
        out=insert_waits(out,cfg.get('merge',9))
        verify_waits(out)
        check_hazards(out)
        return out

def PRO(cfg):
  t=f"""
    s_cmp_ge_u32 s2, 256
    s_cbranch_scc1 L_end
    s_load_dwordx4 s[64:67], s[0:1], 0
    s_load_dwordx4 s[68:71], s[0:1], 16
    v_lshrrev_b32 v1, 6, v0
    s_lshr_b32 s73, s2, 3
    s_getpc_b64 s[86:87]
L_pc:
    v_and_b32 v2, 31, v0
    v_lshlrev_b32 v2, 12, v2
    s_lshl_b32 s88, s73, 7
    v_add_u32 v2, s88, v2
    v_min_u32 v2, L_end-L_main, v2
    s_add_u32 s86, s86, L_main-L_pc
    s_addc_u32 s87, s87, 0
    v_readfirstlane_b32 s{sW}, v1
    v_and_b32 v0, 63, v0
    global_load_dword v4, v2, s[86:87]
    s_and_b32 s72, s2, 7
    s_lshr_b32 s74, s73, 1
    s_and_b32 s75, s73, 1
    s_lshl_b32 s72, s72, 4
    s_add_u32 s72, s72, s74
    s_lshl_b32 s76, s72, 18
    s_mul_i32 s77, s72, {2*768*256}
    s_mul_i32 s78, s75, {384*256}
    s_add_u32 s77, s77, s78
    s_and_b32 s79, s{sW}, 1
    s_lshr_b32 s80, s{sW}, 1
    s_lshl_b32 s81, s79, 10
    s_lshl_b32 s82, s80, 12
    s_add_u32 s{sWL}, s81, s82       ; LDS: (w&1)*1024 + (w>>1)*4096
    s_lshl_b32 s81, s79, 7
    s_add_u32 s81, s81, s82          ; global: (w&1)*128 + (w>>1)*4096
    s_mul_i32 s83, s{sW}, 24576
    s_sub_u32 s{sWQ}, s83, s81
    s_lshl_b32 s{sWS}, s{sW}, 13
    ; DMA voffset: (i>>3)*256 + ((i&7)^((i>>3)&6))*16 + wave part
    v_lshrrev_b32 v1, 3, v0
    v_and_b32 v2, 6, v1
    v_and_b32 v3, 7, v0
    v_xor_b32 v2, v2, v3
    v_lshlrev_b32 v2, 4, v2
    v_lshl_add_u32 v2, v1, 8, v2
    v_add_u32 v{vDMA}, s81, v2
    s_mov_b32 s{sQ+2}, {1152*256}
    s_mov_b32 s{sQ+3}, 0x20000
    s_mov_b32 s{sK+2}, 0x40000
    s_mov_b32 s{sK+3}, 0x20000
    s_mov_b32 s{sV+2}, 0x40000
    s_mov_b32 s{sV+3}, 0x20000
    s_mov_b32 s{sO+2}, {1152*256}
    s_mov_b32 s{sO+3}, 0x20000
    s_waitcnt lgkmcnt(0)
    s_add_u32 s{sQ}, s64, s77
    s_addc_u32 s{sQ+1}, s65, 0
    s_add_u32 s{sK}, s66, s76
    s_addc_u32 s{sK+1}, s67, 0
    s_add_u32 s{sV}, s68, s76
    s_addc_u32 s{sV+1}, s69, 0
    s_add_u32 s{sO}, s70, s77
    s_addc_u32 s{sO+1}, s71, 0
"""
  if cfg.get('adj'):
    t=t.replace("    s_add_u32 s72, s72, s74          ; pair index 0..127\n","    s_lshr_b32 s72, s2, 1\n    s_and_b32 s75, s2, 1\n")
  return t
PRO2 = f"""
    s_mov_b32 s{sC}, 0x{f2u(CSC):08x}
    s_mov_b32 s{sTH}, 0x5f800000
    s_mov_b32 s{sMSK}, 0xffff0000
    s_mov_b32 s36, s86
    s_mov_b32 s37, s87
    s_mov_b32 s38, L_end-L_main
    s_mov_b32 s39, 0x20000
    s_lshl_b32 s35, s74, 13
    s_lshl_b32 s34, s75, 11
    s_add_u32 s35, s35, s34
    s_add_u32 s84, s{sWS}, {STG}
    v_xor_b32 v2, v1, v3
    v_lshlrev_b32 v2, 4, v2
    v_lshl_add_u32 v2, v1, 8, v2
    v_add_u32 v{vOst}, s83, v2
    v_lshl_add_u32 v{vOr}, v0, 4, s84
    v_and_b32 v1, 15, v0
    v_lshrrev_b32 v2, 4, v0
    v_lshlrev_b32 v{vBp}, 2, v1
    v_and_b32 v5, 7, v1
    v_lshlrev_b32 v6, 7, v5
    v_lshrrev_b32 v7, 3, v1
    v_lshl_add_u32 v6, v7, 11, v6
    v_and_b32 v3, 6, v1
    v_xor_b32 v3, v3, v2
    v_lshl_add_u32 v{vKa[0]}, v3, 4, v6
    v_xor_b32 v{vKa[1]}, 64, v{vKa[0]}
    v_add_u32 v{vQa[0]}, s84, v{vKa[0]}
    v_add_u32 v{vQa[1]}, s84, v{vKa[1]}
    v_lshrrev_b32 v3, 1, v2
    v_xor_b32 v3, v3, v5
    v_lshl_add_u32 v3, v3, 4, v6
    v_and_b32 v2, 1, v2
    v_xor_b32 v2, v2, v7
    v_lshl_add_u32 v3, v2, 3, v3
    v_add_u32 v{vOw[0]}, s84, v3
    v_xor_b32 v{vOw[1]}, 32, v{vOw[0]}
    v_lshrrev_b32 v1, 2, v0
    v_and_b32 v2, 6, v1
    v_bfe_u32 v3, v0, 1, 1
    v_xor_b32 v2, v2, v3
    v_lshlrev_b32 v2, 4, v2
    v_and_b32 v3, 1, v0
    v_lshl_add_u32 v2, v3, 3, v2
    v_and_b32 v3, 7, v1
    v_lshl_add_u32 v2, v3, 7, v2
    v_lshrrev_b32 v3, 3, v1
    v_lshl_add_u32 v2, v3, 11, v2
    v_add_u32 v{vVa[0]}, {VRING}, v2
    v_xor_b32 v{vVa[1]}, 32, v{vVa[0]}
    v_xor_b32 v{vVa[2]}, 64, v{vVa[0]}
    v_xor_b32 v{vVa[3]}, 0x60, v{vVa[0]}
    ; row-sum operands: sparse pair pattern, index, and dense single-tile patterns
    v_mov_b32 v1, 0x3f803f80
    v_bfe_u32 v2, v0, 1, 1
    v_lshrrev_b32 v3, 5, v0
    v_cmp_eq_u32 vcc, v2, v3
    v_and_b32 v5, 3, v0
    v_mov_b32 v6, 0x4444
    v_cndmask_b32 v2, 0, v1, vcc
    v_cmp_eq_u32 vcc, 0, v5
    v_accvgpr_write_b32 a{aOneS}, v2
    v_accvgpr_write_b32 a{aOneS+1}, v2
    v_cndmask_b32 v3, 0, v1, vcc
    v_cmp_eq_u32 vcc, 2, v5
    v_accvgpr_write_b32 a{aOneS+2}, v2
    v_accvgpr_write_b32 a{aOneS+3}, v2
    v_cndmask_b32 v2, 0, v1, vcc
    v_and_b32 v5, 1, v0
    v_mul_u32_u24 v5, 0xaaaa, v5
    v_add_u32 v{vIdx}, v5, v6
    v_accvgpr_write_b32 a{aOneD[0]}, v3
    v_accvgpr_write_b32 a{aOneD[0]+1}, v3
    v_accvgpr_write_b32 a{aOneD[0]+2}, v3
    v_accvgpr_write_b32 a{aOneD[0]+3}, v3
    v_accvgpr_write_b32 a{aOneD[1]}, v2
    v_accvgpr_write_b32 a{aOneD[1]+1}, v2
    v_accvgpr_write_b32 a{aOneD[1]+2}, v2
    v_accvgpr_write_b32 a{aOneD[1]+3}, v2
"""

def slow_path():
    L=[]
    A=L.append
    A("    s_or_b64 s[64:65], s[40:41], s[42:43]")
    for T in range(2,12): A(f"    s_or_b64 s[64:65], s[64:65], s[{sFlag+2*T}:{sFlag+2*T+1}]")
    A("    s_cbranch_scc0 L_end")
    A("    s_mov_b32 s66, 0")
    for T in range(12):
        A(f"    s_cmp_lg_u64 s[{sFlag+2*T}:{sFlag+2*T+1}], 0")
        A(f"    s_cselect_b32 s67, {1<<T}, 0")
        A("    s_or_b32 s66, s66, s67")
    A("    s_waitcnt vmcnt(0) lgkmcnt(0)")
    A("    v_mbcnt_lo_u32_b32 v8, -1, 0")
    A("    v_mbcnt_hi_u32_b32 v8, -1, v8")
    A("    v_and_b32 v9, 15, v8")
    A("    v_lshrrev_b32 v10, 4, v8")
    A("    v_lshlrev_b32 v11, 4, v10")
    A("    v_lshl_add_u32 v14, v9, 8, v11")
    A("    v_add_u32 v15, s83, v14")
    A("    v_and_b32 v11, 1, v10")
    A("    v_lshlrev_b32 v11, 1, v11")
    A("    v_lshrrev_b32 v12, 1, v10")
    A("    v_or_b32 v11, v11, v12")
    A("    v_lshlrev_b32 v11, 4, v11")
    A("    v_lshl_add_u32 v11, v9, 8, v11")
    A("    v_add_u32 v13, s83, v11")
    A(f"    v_subrev_u32 v16, s81, v{vDMA}")
    A(f"    s_add_u32 s68, s{sWS}, {STG-VRING}")
    for i in range(4): A(f"    v_add_u32 v{20+i}, s68, v{vVa[i]}")
    for i in range(4): A(f"    v_mov_b32 v{196+i}, 0x3f803f80")
    A("    s_mov_b32 s69, 0")
    A("L_slow_tile:")
    A("    s_bitcmp1_b32 s66, s69")
    A("    s_cbranch_scc0 L_slow_next")
    A("    s_cmp_ge_u32 s69, 6")
    A("    s_cselect_b32 s70, 0x20000, 0")
    A(f"    s_cselect_b32 s71, {(768-96)*256}, 0")
    A("    s_lshl_b32 s72, s69, 12")
    A("    s_add_u32 s71, s71, s72                ; q/o offset")
    for st in range(4): A(f"    buffer_load_dwordx4 v[{64+4*st}:{67+4*st}], v15, s[{sQ}:{sQ+3}], s71 offen offset:{64*st}")
    A("    v_mov_b32 v17, 0xff800000")
    A("    s_mov_b32 s72, s70")
    A("    s_add_u32 s73, s70, 0x20000")
    A("L_slow_max:")
    for st in range(4): A(f"    buffer_load_dwordx4 v[{80+4*st}:{83+4*st}], v14, s[{sK}:{sK+3}], s72 offen offset:{64*st}")
    A("    s_waitcnt vmcnt(0)")
    for st in range(4): A(f"    v_mfma_f32_16x16x32_bf16 v[0:3], v[{80+4*st}:{83+4*st}], v[{64+4*st}:{67+4*st}], {'0' if st==0 else 'v[0:3]'}")
    A("    s_nop 15")
    A("    v_max3_f32 v17, v17, v0, v1")
    A("    v_max3_f32 v17, v17, v2, v3")
    A("    s_add_u32 s72, s72, 4096")
    A("    s_cmp_lt_u32 s72, s73")
    A("    s_cbranch_scc1 L_slow_max")
    for sw in ("16","32"):
        A("    v_mov_b32 v18, v17"); A("    s_nop 1")
        A(f"    v_permlane{sw}_swap_b32 v17, v18"); A("    s_nop 1")
        A("    v_max_f32 v17, v17, v18")
    A(f"    v_mul_f32 v17, 0x{f2u(-CSC):08x}, v17")
    for r in range(160,196): A(f"    v_mov_b32 v{r}, 0")
    A("    s_mov_b32 s72, s70")
    A("L_slow_blk:")
    A("    s_add_u32 s74, s72, 4096")
    for f in range(8):
        kt,st=divmod(f,4)
        A(f"    buffer_load_dwordx4 v[{80+4*f}:{83+4*f}], v14, s[{sK}:{sK+3}], {'s72' if kt==0 else 's74'} offen offset:{64*st}")
    for kt in range(2):
        for half in range(2):
            A(f"    s_add_u32 m0, s{sWS}, {STG+kt*4096+half*896}")
            A("    s_nop 0")
            for oc in range(2):
                A(f"    buffer_load_dwordx4 v16, s[{sV}:{sV+3}], {'s72' if kt==0 else 's74'} offen offset:{2048*oc+128*half} lds")
    A("    s_waitcnt vmcnt(0)")
    for t in range(8):
        for kt in range(2):
            A(f"    ds_read_b64_tr_b16 v[{112+4*t+2*kt}:{113+4*t+2*kt}], v{20+t%4} offset:{kt*4096+(t//4)*1024}")
    for f in range(8):
        kt,st=divmod(f,4); d=4*kt
        A(f"    v_mfma_f32_16x16x32_bf16 v[{d}:{d+3}], v[{80+4*f}:{83+4*f}], v[{64+4*st}:{67+4*st}], {'0' if st==0 else f'v[{d}:{d+3}]'}")
    A("    s_nop 15")
    for i in range(8): A(f"    v_fma_f32 v{i}, v{i}, s{sC}, v17")
    for i in range(8): A(f"    v_exp_f32 v{i}, v{i}")
    A("    s_nop 1")
    for k in range(4): A(f"    v_cvt_pk_bf16_f32 v{24+k}, v{2*k}, v{1+2*k}")
    A("    s_waitcnt lgkmcnt(0)")
    A("    s_nop 1")
    for t in range(8): A(f"    v_mfma_f32_16x16x32_bf16 v[{160+4*t}:{163+4*t}], v[{112+4*t}:{115+4*t}], v[24:27], v[{160+4*t}:{163+4*t}]")
    A("    v_mfma_f32_16x16x32_bf16 v[192:195], v[196:199], v[24:27], v[192:195]")
    A("    s_add_u32 s72, s72, 8192")
    A("    s_cmp_lt_u32 s72, s73")
    A("    s_cbranch_scc1 L_slow_blk")
    A("    s_nop 15")
    A("    v_rcp_f32 v18, v192")
    A("    s_nop 1")
    for r in range(160,192): A(f"    v_mul_f32 v{r}, v{r}, v18")
    for m in range(4):
        o=160+8*m
        for i in range(4): A(f"    v_cvt_pk_bf16_f32 v{o+i}, v{o+2*i}, v{o+2*i+1}")
        A("    s_nop 1")
        for i in range(2): A(f"    v_permlane16_swap_b32 v{o+i}, v{o+i+2}")
        A(f"    buffer_store_dwordx4 v[{o}:{o+3}], v13, s[{sO}:{sO+3}], s71 offen offset:{64*m}")
    A("    s_waitcnt vmcnt(0)")
    A("L_slow_next:")
    A("    s_add_u32 s69, s69, 1")
    A("    s_cmp_lt_u32 s69, 12")
    A("    s_cbranch_scc1 L_slow_tile")
    return "\n".join(L)+"\n"

def isize(t):
    t=t.strip(); op=t.split()[0]
    if op.startswith(('v_mfma','v_smfmac','ds_','buffer_','global_','v_fma_f32','v_cvt_pk','v_max3','v_pk_','v_accvgpr','v_writelane','s_mem')) or op.endswith('_e64'): return 8
    if op in('s_waitcnt','s_barrier','s_nop') or op.startswith('s_cbranch'): return 4
    for a in t.split(None,1)[1].replace(',',' ').split():
        try: v=int(a,0)
        except ValueError: continue
        if not -16<=v<=64: return 8
    return 4

HEAD = open('cdna_kernels/'+NAME+'.s.ref').read().split('; Override')[0]
def emit(cfg, path):
    g=Gen(cfg); out=g.build()
    abl=cfg.get('ablate')
    if abl:
        nb=0; o2=[]
        for o in out:
            if o.kind=='bar': nb+=1
            if nb>=3 and any((a==o.kind) or (a in o.text) for a in abl): continue
            o2.append(o)
        out=o2
    marks=[]; est=estimate(out,marks)
    stamp=cfg.get('stamp'); warm=cfg.get('warm',True)
    SST=[x for x in list(range(64,81))+list(range(33,34))+list(range(85,90))+list(range(92,102))]
    ns=[0]
    def st2():
        i=ns[0]; ns[0]+=1
        return ["s_memtime s[90:91]","s_memrealtime s[2:3]","s_waitcnt lgkmcnt(0)",f"s_mov_b32 s{SST[2*i]}, s90",f"s_mov_b32 s{SST[2*i+1]}, s2"]
    if stamp: first_st=st2(); stbb={g.msbb[n] for n in stamp}
    k0=0
    while out[k0].kind in('dma','salu','nop'): k0+=1
    first=[o.text for o in out[:k0]]; nfirst=sum(1 for o in out[:k0] if o.kind=='dma')
    lines=[]; nbar=0; nm=0; probe=cfg.get('probe')
    for k in range(k0,len(out)):
        o=out[k]
        lines.append((o.text,o.kind))
        if o.kind=='bar': nbar+=1
        if probe and o.kind=='mfma' and o.bb in [g.msbb.get(x) for x in probe[:2] if x not in (0,99,100,-1)]:
            r = 92 if o.bb==g.msbb.get(probe[0]) else 94
            lines+=[(f"s_mem{'real' if probe[2]=='rt' else ''}time s[{r}:{r+1}]",'x'),("s_waitcnt lgkmcnt(0)",'x')]
        if stamp and o.kind=='mfma' and o.bb in stbb: lines+=[(x,'x') for x in st2()]
    body=[]; addr=0; page=0; stubs=0
    tot=sum(isize(t) for t,_ in lines); npages=(tot+200)//4096+1
    for i,(t,kd) in enumerate(lines):
        if warm and addr>=page*4096 and page<npages:
            prevm = i>0 and lines[i-1][1]=='mfma'
            if (prevm and kd not in SC_KINDS) or addr+isize(t)>page*4096+56 or page==0:
                nxt=page+4
                body.append(f"L_stub{page}:\n s_cbranch_vccnz {'L_stub%d'%nxt if nxt<npages else 'L_back'}\n")
                body.append(f".if ((L_stub{page}-L_main)>>6) != {page*64}\n.error \"stub misplaced\"\n.endif\n")
                addr+=4; page+=1
        body.append(" "+t+"\n"); addr+=isize(t)
    while warm and page<npages:
        body.append(f"L_stub{page}:\n s_cbranch_vccnz L_back\n"); page+=1
    txt=HEAD+"; @launch grid=(256,1,1) block=(256,1,1) lds=163840\n"
    txt+=f'.amdgcn_target "amdgcn-amd-amdhsa--gfx950"\n.text\n.globl {NAME}_kernel\n.p2align 8\n.type {NAME}_kernel,@function\n{NAME}_kernel:\n'
    if probe:
        txt+=" s_memrealtime s[90:91]\n"
        if probe[0]==0: txt+=f" s_mem{'real' if probe[2]=='rt' else ''}time s[92:93]\n"
        txt+=" s_waitcnt lgkmcnt(0)\n"
        if cfg.get('gstart'):
            txt+=" s_load_dwordx2 s[34:35], s[0:1], 32\n s_not_b32 s36, s90\n v_mov_b32 v10, s36\n v_mov_b32 v11, 0\n s_waitcnt lgkmcnt(0)\n v_cmp_eq_u32 vcc, 0, v0\n s_and_saveexec_b64 s[36:37], vcc\n s_cbranch_execz L_gs\n global_atomic_umax v11, v10, s[34:35]\nL_gs:\n s_mov_b64 exec, s[36:37]\n"
    if stamp and cfg.get('stamp0'):
        txt+=" s_memtime s[90:91]\n s_memrealtime s[92:93]\n s_waitcnt lgkmcnt(0)\n s_mov_b32 s5, s90\n s_mov_b32 s6, s92\n"
    if cfg.get('pre_nop'):
        txt+=f" s_mov_b32 s64, {cfg['pre_nop']}\nL_pn:\n"+" s_nop 15\n"*16+" s_sub_u32 s64, s64, 1\n s_cmp_lg_u32 s64, 0\n s_cbranch_scc1 L_pn\n"
    txt+=PRO(cfg)
    txt+="".join(" "+t+"\n" for t in first)
    if stamp: txt+=" s_mov_b32 s4, s2\n"+"".join(" "+x+"\n" for x in first_st)
    txt+=PRO2
    if cfg.get('direct'):
        txt+=f"""    ; O store offset after the row swaps: r*256 + 16*[0,2,1,3][g] + w*24576
    v_and_b32 v1, 15, v0
    v_bfe_u32 v2, v0, 4, 1
    v_lshrrev_b32 v3, 5, v0
    v_lshl_add_u32 v2, v2, 1, v3
    v_lshlrev_b32 v2, 4, v2
    v_lshl_add_u32 v2, v1, 8, v2
    v_add_u32 v{vOst}, s83, v2
"""
    if 0 in g.pres:
        for r in range(4): txt+=f"    v_accvgpr_write_b32 a{aSave+r}, v{vCI[0]+r}\n"
    txt+=f"    s_waitcnt vmcnt({nfirst})\n"
    if warm:
        txt+="    ; touch the first line of every 4 KB code page (instruction-cache warm-up while the first loads are in flight)\n    s_mov_b64 vcc, -1\n"
        for w in range(3): txt+=f"    s_cmp_eq_u32 s{sW}, {w}\n    s_cbranch_scc1 L_stub{w}\n"
        txt+="    s_branch L_stub3\n"
        txt+="L_back:\n    s_mov_b64 vcc, 0\n"
    txt+="    s_branch L_main\n.p2align 12\nL_main:\n"
    txt+="".join(body)
    if stamp:
        txt+="".join(" "+x+"\n" for x in st2())
        txt+=" s_waitcnt vmcnt(0)\n"+"".join(" "+x+"\n" for x in st2())
        txt+=" v_mov_b32 v2, 0\n v_mov_b32 v3, 0\n"
        o_=1 if cfg.get('stamp0') else 0
        if o_: txt+=" v_writelane_b32 v2, s5, 0\n v_writelane_b32 v3, s6, 0\n"
        for i in range(ns[0]): txt+=f" v_writelane_b32 v2, s{SST[2*i]}, {i+o_}\n v_writelane_b32 v3, s{SST[2*i+1]}, {i+o_}\n"
        txt+=f""" s_load_dwordx2 s[92:93], s[0:1], 40
 s_lshl_b32 s90, s4, 2
 s_add_u32 s90, s90, s{sW}
 s_mul_i32 s90, s90, 768
 v_mbcnt_lo_u32_b32 v1, -1, 0
 v_mbcnt_hi_u32_b32 v1, -1, v1
 v_lshlrev_b32 v1, 2, v1
 v_add_u32 v1, s90, v1
 s_waitcnt lgkmcnt(0)
 global_store_dword v1, v2, s[92:93]
 global_store_dword v1, v3, s[92:93] offset:512
"""
    if probe:
        if probe[1]==99: txt+=f" s_mem{'real' if probe[2]=='rt' else ''}time s[94:95]\n s_waitcnt lgkmcnt(0)\n"
        if probe[1]==100: txt+=f" s_waitcnt vmcnt(0)\n s_mem{'real' if probe[2]=='rt' else ''}time s[94:95]\n s_waitcnt lgkmcnt(0)\n"
        if probe[1]<0: txt+=" s_mov_b32 s94, s92\n"
        if cfg.get('gstart'):
            txt+=" v_mov_b32 v11, 0\n global_load_dword v10, v11, s[34:35] sc0 sc1\n s_waitcnt vmcnt(0)\n v_readfirstlane_b32 s90, v10\n s_nop 3\n s_not_b32 s90, s90\n"
            if cfg['gstart']==2: txt+=" s_mov_b32 s92, s90\n"
        txt+=" s_sub_u32 s94, s94, s92\n"
        if probe[2]=='cyc': txt+=" s_lshr_b32 s94, s94, 4\n"
        else: txt+=" s_lshl_b32 s94, s94, 2\n"
        txt+=" s_add_u32 s94, s94, 10000\nL_spin:\n s_memrealtime s[92:93]\n s_waitcnt lgkmcnt(0)\n s_sub_u32 s92, s92, s90\n s_cmp_lt_u32 s92, s94\n s_cbranch_scc1 L_spin\n"
    if cfg.get('extra_mfma'):
        n,kind=cfg['extra_mfma']
        txt+=f" s_waitcnt vmcnt(0)\n s_mov_b32 s64, {n}\nL_xm:\n"
        L=[]
        if kind.startswith('m16'):
            for j in range(6):
                for i,f in enumerate(Gen.KORD):
                    kt,st=divmod(f,4); d=8*(j%2)+4*kt
                    L.append(f" v_mfma_f32_16x16x32_bf16 v[{d}:{d+3}], a[{160+4*f}:{163+4*f}], a[{192+16*(j%2)+4*st}:{195+16*(j%2)+4*st}], {'0' if i%4==0 else f'v[{d}:{d+3}]'}\n")
                for t in range(8):
                    d=64+32*j+4*t
                    L.append(f" v_mfma_f32_16x16x32_bf16 v[{d}:{d+3}], a[{192+4*t}:{195+4*t}], v[{24+4*(j%3)}:{27+4*(j%3)}], v[{d}:{d+3}]\n")
            if kind=='m16nop': L=[x+(" s_nop 0\n s_nop 0\n s_nop 0\n s_nop 0\n s_nop 0\n" if k%2 else "") for k,x in enumerate(L)]
            if kind=='m16v': L=[x+(f" v_exp_f32 v{40+k%8}, v{24+k%12}\n" if k%2 else f" v_fma_f32 v{48+k%8}, v{24+k%12}, s24, v{25+k%10}\n v_cvt_pk_bf16_f32 v{49+k%8}, v{24+k%12}, v{25+k%10}\n") for k,x in enumerate(L)]
        else:
            for j in range(3):
                for st in range(8):
                    L.append(f" v_mfma_f32_32x32x16_bf16 v[0:15], a[{160+4*st}:{163+4*st}], a[{192+4*((st+j)%8)}:{195+4*((st+j)%8)}], {'0' if st==0 else 'v[0:15]'}\n")
                for t in range(8):
                    d=64+64*j+16*(t%4)
                    L.append(f" v_mfma_f32_32x32x16_bf16 v[{d}:{d+15}], a[{192+4*t}:{195+4*t}], v[{24+4*((t//4+j)%3)}:{27+4*((t//4+j)%3)}], v[{d}:{d+15}]\n")
        txt+="".join(L)
        txt+=" s_sub_u32 s64, s64, 1\n s_cmp_lg_u32 s64, 0\n s_cbranch_scc1 L_xm\n s_nop 15\n"
    if cfg.get('extra_nop'):
        txt+=f" s_mov_b32 s64, {cfg['extra_nop']}\nL_xn:\n"+" s_nop 15\n"*16+" s_sub_u32 s64, s64, 1\n s_cmp_lg_u32 s64, 0\n s_cbranch_scc1 L_xn\n"
    txt+=" s_nop 1\n"+slow_path()
    txt+=f"""L_end:
    s_endpgm
.section .rodata,"a"
.p2align 6
.amdhsa_kernel {NAME}_kernel
  .amdhsa_next_free_vgpr 512
  .amdhsa_next_free_sgpr 102
  .amdhsa_accum_offset 256
  .amdhsa_group_segment_fixed_size 0
  .amdhsa_kernarg_size 48
  .amdhsa_user_sgpr_count 2
  .amdhsa_user_sgpr_kernarg_segment_ptr 1
  .amdhsa_system_sgpr_workgroup_id_x 1
.end_amdhsa_kernel
"""
    open(path,'w').write(txt)
    from collections import Counter
    print(path, "ops",len(out),"est",est, dict(Counter(o.kind for o in out)), "code",addr)
    if cfg.get('verbose'): print(' segs',[b-a for a,b in zip(marks,marks[1:]+[est])])
    if stamp and stamp is not True:
        mt=[]; estimate(out,None,mt); pts=[mt[g.msbb[n]] for n in stamp]+[est]
        print(' est stamp segs',[b-a for a,b in zip(pts,pts[1:])])
    from asm import asm
    asm(path)
    return out
```

```python
import re
from collections import defaultdict

COST = dict(mfma=8, valu=4, trans=8, perm=8, pk=4, dsr=4, dsw=12, dma=12, gld=12, gst=8, salu=0, bar=0, wait=0, nop=0)
VALU_KINDS = ('valu','trans','perm','pk')
MEM_KINDS = ('dsr','dsw','dma','gld','gst')
SC_KINDS = ('salu','bar','wait','nop')
DS=('dsr','dsw'); VM=('dma','gld','gst')

def R(p, lo, n=1):
    return [f"{p}{i}" for i in range(lo, lo+n)]
def rng(p, lo, n):
    return f"{p}{lo}" if n==1 else f"{p}[{lo}:{lo+n-1}]"

class Op:
    __slots__=('text','kind','reads','writes','cread','release','deadline','margin','preds','succs','idx','bb','pos','lat','prio','cost','tag','hole','nws','gap')
    def __init__(s, text, kind, reads=(), writes=(), cread=(), release=None, deadline=None, margin=0, tag=None, cost=None, hole=False):
        s.text=text; s.kind=kind; s.reads=list(reads); s.writes=list(writes); s.cread=list(cread)
        s.release=release; s.deadline=deadline; s.margin=margin
        s.preds=[]; s.succs=[]; s.bb=None; s.pos=None; s.tag=tag; s.hole=hole
        s.cost = COST[kind] if cost is None else cost
        s.nws = 1; s.gap=None
    def __repr__(s): return f"<{s.text}>"

def vec(S): return {x for x in S if x[0] in 'va' and x[1:].isdigit()}
def hazard_dist(a, b):
    d=0
    aw=set(a.writes); br=set(b.reads); bw=set(b.writes)
    if a.kind=='mfma':
        D=vec(aw)
        if b.kind=='mfma':
            ab = vec(br)-set(b.cread)
            if D & ab: d=max(d,8)
            c=set(b.cread)
            if D & c and (c!=D or a.cost!=b.cost): d=max(d,10)
        elif b.kind in VALU_KINDS:
            if D & (br|bw): d=max(d,12 if a.cost==12 else 8)
            if set(a.cread) & bw: d=max(d,3)
        elif b.kind in MEM_KINDS:
            if D & (br|bw): d=max(d,8)
    elif a.kind in VALU_KINDS:
        W=vec(aw)
        if b.kind=='mfma' and W & br: d=max(d,2)
        if b.kind=='perm' and W & br: d=max(d,2)
        if a.kind=='trans' and b.kind in ('valu','perm','pk') and W & br: d=max(d,1)
        sw={x for x in aw if x[0]=='s' or x=='vcc'}
        if sw & br:
            if b.kind in VALU_KINDS: d=max(d,2)
            elif b.kind in MEM_KINDS: d=max(d,5)
            else: d=max(d,2)
    elif a.kind=='salu':
        if 'm0' in aw and b.kind=='dma': d=max(d,1)
    elif a.kind=='gst':
        if vec(set(a.reads)) & bw: d=max(d,2)
    return d

class Program:
    def __init__(s):
        s.ops=[]
    def add(s, op):
        op.idx=len(s.ops); s.ops.append(op); return op
    def build_deps(s):
        lastw={}; readers=defaultdict(list)
        for o in s.ops:
            P=set()
            for r in o.reads:
                if r in lastw: P.add(lastw[r])
            for w in o.writes:
                if w in lastw: P.add(lastw[w])
                for x in readers[w]: P.add(x)
            P.discard(o)
            for p in P:
                o.preds.append(p); p.succs.append(o)
            for r in o.reads: readers[r].append(o)
            for w in o.writes:
                lastw[w]=o; readers[w]=[]
    def schedule(s, budget=8, ldsrate=1024, ldsburst=1024, dswd=1, dswsp=1, holeburst=12):
        s.build_deps()
        bbs=[o for o in s.ops if o.kind=='mfma']
        for i,o in enumerate(bbs): o.bb=i
        N=len(bbs)
        for o in reversed(s.ops):
            if o.kind=='mfma': continue
            lat = N-1
            pr = lat
            if o.deadline is not None: pr=min(pr,o.deadline)
            wr={w for w in o.writes if ':' not in w}
            for x in o.succs:
                mg = o.margin if wr & set(x.reads) else 0
                if x.kind=='mfma':
                    lat=min(lat,x.bb-1); pr=min(pr,x.bb-1-mg)
                else:
                    lat=min(lat,x.lat); pr=min(pr,x.prio-mg)
            o.lat=lat; o.prio=pr
            if o.release is not None and o.release>lat: o.release=lat
        out=[]
        npred={o:len(o.preds) for o in s.ops}
        ready=[o for o in s.ops if o.kind!='mfma' and not o.preds]
        cur=[-1]
        def dist(o):
            need=0; k=0
            for p in reversed(out[-14:]):
                d=hazard_dist(p,o)
                if d>k: need=max(need,d-k)
                k+=p.nws
            return need
        def emit(o):
            n=dist(o)
            if n>0:
                nop=Op(f"s_nop {n-1}",'nop'); nop.nws=n; nop.cost=4*n; nop.pos=len(out); nop.gap=cur[0]; out.append(nop)
            o.pos=len(out); o.gap=cur[0]; out.append(o)
            for x in o.succs:
                npred[x]-=1
                if npred[x]==0 and x.kind!='mfma': ready.append(x)
            if o in ready: ready.remove(o)
            return o.cost+(4*n)
        lastw=[-9]; lastds=[-9]; tok=[ldsburst]
        def fill(g):
            cur[0]=g
            used=0; shadow=(g>=0); memok=True; bud=budget-(bbs[g].cost-8 if g>=0 else 0)
            last=(g==N-1)
            tok[0]=min(ldsburst,tok[0]+ldsrate)
            while True:
                cands=[o for o in ready if (o.release is None or o.release<=g)]
                if not cands: break
                if g<0:
                    cands=[o for o in cands if o.prio<=g]
                    if not cands: break
                    cands.sort(key=lambda o:o.idx); emit(cands[0]); continue
                cands.sort(key=lambda o:(o.prio,o.idx))
                sc=[o for o in cands if o.kind in SC_KINDS]
                if shadow and sc:
                    shadow=False; emit(sc[0]); continue
                shadow=False
                if last:
                    cands.sort(key=lambda o:o.idx)
                    age=lambda p: sum(x.cost for x in out[p.pos+1:])
                    vv=[o for o in cands if o.kind in VALU_KINDS and dist(o)==0]
                    inmem = out[-1].kind in MEM_KINDS+('mfma',)+SC_KINDS
                    pick=None
                    for o in cands:
                        if o.kind in SC_KINDS: pick=o; break
                    st_=[o for o in cands if o.kind=='gst' and all(p.kind!='dsr' or age(p)>=110 for p in o.preds)]
                    rd_=[o for o in cands if o.kind=='dsr']
                    wr_=[o for o in cands if o.kind=='dsw']
                    def chain(o):
                        n=1; x=o
                        while True:
                            nx=[y for y in x.succs if y.kind=='dsw' and npred[y]==1]
                            if not nx: return n
                            x=nx[0]; n+=1
                    if not pick and rd_: pick=rd_[0]
                    if not pick and wr_ and (inmem or not vv or chain(wr_[0])>=4): pick=wr_[0]
                    if not pick and st_ and (inmem or not vv or True): pick=st_[0]
                    if not pick and vv: pick=vv[0]
                    if not pick: pick=cands[0]
                    emit(pick); continue
                pk=[o for o in cands if o.kind=='pk' and o.prio<=g]
                if pk: bud=max(bud,20)
                rem=bud-used
                v=[o for o in cands if o.kind in('valu','trans','perm') and dist(o)==0 and (o.lat<=g or all(p.kind!='dsr' or p.gap<=g-5 for p in o.preds))]
                if memok:
                    pick=None
                    for o in cands:
                        if o.kind not in MEM_KINDS or dist(o): continue
                        if o.kind in('dma','gld') and lastds[0]>=g-1 and o.lat>g and o.prio>g-4 and not (o.release==o.deadline and lastds[0]<g): continue
                        due = o.prio<=g
                        if o.kind=='dsw' and o.lat>g and lastw[0]>g-dswsp: continue
                        if o.kind=='dsw' and o.lat>g and any(p.kind=='valu' and p.gap>g-dswd for p in o.preds): continue
                        if o.kind=='dsr':
                            by = 512 if 'b64' in o.text else 0 if 'bperm' in o.text else 1024
                            if by and not due and (tok[0]<by or (used==0 and tok[0]<ldsburst)): continue
                            ok = (o.cost<=rem and not o.hole) or (due and used<(holeburst if o.hole else 12)) or (o.hole and o.cost<=rem and sum(x.cost for x in v)<rem)
                        else:
                            ok = (used==0 and (due or not v)) or (o.tag=='pair' and out[-1].kind=='dma')
                        if ok: pick=o; break
                    if pick:
                        used+=emit(pick)
                        if pick.kind in DS: lastds[0]=g
                        if pick.kind=='dsw': lastw[0]=g
                        if pick.kind=='dsr': tok[0]-= 512 if 'b64' in pick.text else 0 if 'bperm' in pick.text else 1024
                        if pick.kind=='gst': bud=max(bud,22)
                        continue
                fit=[o for o in v if o.cost<=rem]
                due=[o for o in v if o.prio<=g]
                pick=None
                if fit:
                    pick=fit[0]
                    if rem%8==0 and pick.cost==4:
                        n4=[o for o in fit if o.cost==4]; n8=[o for o in fit if o.cost==8]
                        if len(n4)<2 and n8: pick=n8[0]
                    if due and due[0] not in fit: pick=due[0]
                elif due: pick=due[0]
                if pick:
                    memok=False; used+=emit(pick); continue
                if pk and dist(pk[0])==0 or (pk and pk[0].lat<=g):
                    memok=False; used=max(used,20); used+=emit(pk[0]); continue
                must=[o for o in cands if o.lat<=g or (o.prio<=g and o.kind in SC_KINDS)]
                if must:
                    o=must[0]
                    c=emit(o)
                    if o.kind in SC_KINDS: c+=4
                    if o.kind in MEM_KINDS and not memok: c+=8
                    if o.kind in VALU_KINDS: memok=False
                    used+=c; continue
                break
            return used
        fill(-1)
        for g,m in enumerate(bbs):
            assert npred[m]==0, (g,m,[p for p in m.preds if p.pos is None])
            cur[0]=g
            emit(m)
            fill(g)
        left=[o for o in s.ops if o.pos is None]
        assert not left, left[:5]
        s.out=out
        return out

def insert_waits(out, merge=9):
    res=[]
    lg=[]; vm=[]
    def need(lst,o):
        k=-1
        rs={x for x in set(o.reads)|set(o.writes) if not x.startswith('O:')}
        for i,p in enumerate(lst):
            shared=set(p.writes)&rs
            if not shared: continue
            if p.kind in DS and o.kind in DS:
                shared={x for x in shared if not x.startswith('L:')}
                if p.kind=='dsr' and o.kind=='dsr':
                    shared={x for x in shared if x in o.reads}
                if not shared: continue
            if p.kind in VM and o.kind in VM:
                shared={x for x in shared if x in o.reads}
                if not shared: continue
            k=i
        return k
    def ridx(p):
        j=len(res)-1
        while res[j] is not p: j-=1
        return j
    for o in out:
        kl=need(lg,o); kv=need(vm,o)
        if kl>=0:
            while kl+1<len(lg) and lg[kl+1].gap<=o.gap-merge: kl+=1
        if kl>=0 or kv>=0:
            pl = lg[kl] if kl>=0 else None
            pv = vm[kv] if kv>=0 else None
            lastprod=max(ridx(p) for p in (pl,pv) if p is not None)
            pos=len(res)
            j=len(res)-1; tries=0; found=None
            while j>lastprod and tries<3:
                if res[j].kind=='mfma':
                    tries+=1
                    nxt = res[j+1] if j+1<len(res) else o
                    if nxt.kind=='wait' or nxt.kind not in SC_KINDS:
                        found=j+1; break
                j-=1
            if found is not None: pos=found
            cnt=lambda p,kinds: sum(1 for x in res[ridx(p)+1:pos] if x.kind in kinds)
            nl = min(15,cnt(pl,DS)) if pl else None
            nv = min(63,cnt(pv,VM)) if pv else None
            if pos<len(res) and res[pos].kind=='wait':
                w=res[pos]
                if nl is not None: w.tag['l']=min(nl,w.tag.get('l',99))
                if nv is not None: w.tag['v']=min(nv,w.tag.get('v',99))
            else:
                w=Op('','wait',tag={}); w.gap=o.gap
                if nl is not None: w.tag['l']=nl
                if nv is not None: w.tag['v']=nv
                res.insert(pos,w)
            w.text='s_waitcnt '+' '.join(([f"vmcnt({w.tag['v']})"] if 'v' in w.tag else [])+([f"lgkmcnt({w.tag['l']})"] if 'l' in w.tag else []))
            if kl>=0: lg=lg[kl+1:]
            if kv>=0: vm=vm[kv+1:]
        res.append(o)
        if o.kind in DS: lg.append(o)
        if o.kind in VM: vm.append(o)
        assert len(vm)<=63, "vmcnt overflow"
    return res

def verify_waits(out):
    lg=[]; vm=[]
    for o in out:
        if o.kind=='wait':
            if 'l' in o.tag: lg=lg[max(0,len(lg)-o.tag['l']):] if o.tag['l'] else []
            if 'v' in o.tag: vm=vm[max(0,len(vm)-o.tag['v']):] if o.tag['v'] else []
            continue
        rs={x for x in set(o.reads)|set(o.writes) if not x.startswith('O:')}
        for p in lg:
            sh=set(p.writes)&rs
            if o.kind in DS:
                sh={x for x in sh if not x.startswith('L:')}
                if p.kind=='dsr' and o.kind=='dsr': sh={x for x in sh if x in o.reads}
            assert not sh,(p,o,sh)
        for p in vm:
            sh=set(p.writes)&rs
            if o.kind in VM: sh={x for x in sh if x in o.reads}
            assert not sh,(p,o,sh)
        if o.kind in DS: lg.append(o)
        if o.kind in VM: vm.append(o)

def check_hazards(out):
    for i,o in enumerate(out):
        k=0
        for p in reversed(out[max(0,i-14):i]):
            d=hazard_dist(p,o)
            assert d<=k, (p,o,d,k)
            k+=p.nws

def estimate(out, marks=None, mt=None):
    t=0; lastm=-100; prev=None; vend=-100; blk=-100; dsend=-100
    for o in out:
        k=o.kind
        if k=='mfma':
            t=max(t,lastm+16,blk); lastm=t; t+=o.cost
            if mt is not None: mt.append(t)
        elif k in SC_KINDS:
            c = 4*o.nws
            if prev is not None and prev.kind=='mfma': c-=4
            if k=='bar':
                c+=24
                if marks is not None: marks.append(t)
            t+=c
        else:
            if k=='pk': t=max(t,lastm+28)
            if k in MEM_KINDS: t=max(t,vend+8)
            if k=='dma' and prev.kind=='dsr': t+=16
            if k=='dma' and prev.kind=='dma': t-=4
            if k=='gst': blk=t+22
            t+=o.cost
            if k in VALU_KINDS: vend=t
        prev=o
    return t
```

```python
from cfgs import *
b=dict(verbose=False,pres=(0,1),snake=True,dswsp=2,holeburst=4,stpol='sc0 sc1 nt',tail=4,tailst=[12]*4+[3,3])
emit(mk('j4a',probe=(0,-1,'rt'),**b),f'q_0.s')
emit(mk('h7p',probe=(8,36,'rt'),**b),f'q_h7.s')
emit(mk('j4a',probe=(8,36,'rt'),**b),f'q_j4.s')
emit(mk('j6a',probe=(8,36,'rt'),**b),f'q_j6.s')
emit(mk('j4a',probe=(0,8,'rt'),**b),f'q_j4h.s')
emit(mk('j4a',probe=(126,154,'rt'),**b),f'q_j4s.s')
```

```python
import sys
from gen import *
HEADS={
 'simple':dict(v=[(0,'012345')],
    plan=[(-1,('Q',0)),(-1,('K',0)),(-1,('Q',1)),(-1,('V',0)),(-1,('q',0)),(-1,('Q',2)),(-1,('q',1)),(-1,('Q',3)),(-1,('q',2)),(-1,('Q',4)),
          (-1,('q',3)),(-1,('Q',5)),(-1,('B',1)),(-1,('q',4)),(-1,('q',5))], nb=2, t=0, qfree=[0,0]),
 'h5':dict(v=[(0,'012'),(1,'012'),(2,'012'),(3,'0123'),(4,'01234'),(0,'345'),(1,'345'),(2,'345'),(3,'45'),(4,'5')],
    plan=[(-1,('Q',0)),(-1,('K',0)),(-1,('Q',1)),(-1,('V',0)),(-1,('q',0)),(-1,('Q',2)),
          (0,('q',1)),(0,('B',1,1)),(0,('B',2,1)),(1,('q',2)),(1,('B',3,1)),(2,('Q',3,1)),(5,('B',4,1)),(8,('Q',4,1)),(11,('q',3)),(11,('Q',5,1)),
          (16,('q',4)),(19,('q',5))], nb=5, t=13, qfree=[17,20]),
 'h6':dict(v=[(0,'01'),(1,'012'),(0,'2'),(2,'012'),(3,'012'),(4,'0123'),(5,'0123'),(0,'345'),(1,'345'),(2,'345'),(3,'345'),(4,'45'),(5,'45')],
    plan=[(-1,('Q',0)),(-1,('K',0)),(-1,('Q',1)),(-1,('V',0)),(-1,('q',0)),(-1,('B',1)),
          (0,('q',1)),(0,('Q',2,1)),(0,('B',2,1)),(1,('B',3,1)),(3,('q',2)),(3,('B',4,1)),(5,('Q',3,1)),(8,('B',5,1)),(11,('Q',4,1)),(14,('q',3)),(14,('Q',5,1)),
          (19,('q',4)),(21,('q',5))], nb=6, t=17, qfree=[20,22]),
}
def mk(head='h5', tail=4, D=5, ststep=40, TQ=5, TB=3, qlat=14, minD=3, groups=([6,7],[8,9],[10,11]), **kw):
    A=list(range(6)); B=list(range(6,12))
    H=HEADS[head]
    visits=[(g,[int(c) for c in t]) for g,t in H['v']]
    plan=list(H['plan'])
    g0=max(g for g,_ in visits)+1
    for g in range(g0,32-tail): visits.append((g,A if g<16 else B))
    if 'tailv' in kw:
        for g,t in kw['tailv']: visits.append((g,[6+int(c) for c in t]))
    elif tail:
        for k,grp in enumerate(groups):
            gs=list(range(32-tail,32))
            if kw.get('snake') and k%2: gs=gs[::-1]
            for g in gs:
                if visits[-1][0]==g: visits[-1]=(g,visits[-1][1]+list(grp))
                else: visits.append((g,list(grp)))
    first={}; last={}; n=0
    for g,ts in visits:
        first.setdefault(g,n); last[g]=n; n+=len(ts)
    t=H['t']; nb=H['nb']; nq=6; qfree=list(H['qfree'])
    n=int(t)
    while nb<32 or nq<12:
        if t>n or (kw.get('quiet') and kw['quiet'][0]<=n<kw['quiet'][1]): n+=1; continue
        if nq==12: TB=kw.get('TB2',TB)
        for n_,d_ in kw.get('Dlate',()):
            if n>=n_: D=d_
        if n>=96: TB=kw.get('TB3',TB)
        ahead=sum(1 for g in range(nb) if first[g]>n)
        resident=sum(1 for g in range(nb) if last[g]+9>n)
        canB = nb<32 and resident<8 and ahead<D
        canQ = nq<12 and qfree[nq%2]<=n
        if canB and (ahead<minD or not canQ):
            plan.append((n,('B',nb,int(TB*17/4)))); nb+=1; t=max(t,n)+TB
        elif canQ:
            plan.append((n,('Q',nq,int(TQ*17/4)))); t=max(t,n)+TQ
            if nq<10:
                plan.append((n+qlat,('q',nq))); qfree[nq%2]=n+qlat+1
            else: qfree[nq%2]=999
            nq+=1
        else: n+=1
    plan.append((6*15+1,('q',10))); plan.append((6*15+2,('q',11)))
    oimm={0:(2,None),1:(3,None),2:(4,None),3:(5,None)}
    ts=kw.get('tailst',[4]*6)
    for T in range(6,12): oimm[T]=({6:6,7:7,8:8,9:9,10:0,11:1}[T],ts[T-6])
    n=kw.get('st0',102)
    if kw.get('direct'):
        oimm={0:(None,kw.get('st01',8)),1:(None,kw.get('st01',8)),2:(2,None),3:(3,None),4:(4,None),5:(5,None)}
        for T in range(6,12): oimm[T]=(None,ts[T-6])
        n=6*18
        for T in range(2,6):
            plan.append((n,('s',T,ststep))); n+= (4*ststep+16)//17
    else:
      for T in range(6):
        if T>=4: plan.append((n-3,('o',T,T-2)))
        plan.append((n,('s',T,ststep)))
        n+= (4*ststep+16)//17
    for n in kw.get('cpf',()): plan.append((n,('c',0)))
    c=dict(visits=visits,plan=plan,oimm=oimm,verbose=True,ldsrate=512,dsmargin=8,merge=8,dmapair=False)
    c.update(kw)
    if c.get('showplan'): print(sorted([(n,u[0]+str(u[1])) for n,u in plan if n>=0]))
    return c
if False:
    for h in ('simple','h5','h6'):
        emit(mk(h,showplan=True),f'v4{h}.s')
HEADS['h7']=dict(v=[(0,'01'),(1,'012'),(0,'2'),(2,'012'),(3,'0123'),(4,'012345'),(3,'45'),(0,'345'),(1,'345'),(2,'345')],
    plan=[(-1,('Q',0)),(-1,('K',0)),(-1,('Q',1)),(-1,('K',1)),(-1,('q',0)),(-1,('V',0)),(-1,('V',1)),
          (0,('q',1)),(0,('Q',2,1)),(1,('B',2,1)),(3,('q',2)),(3,('B',3,1)),(4,('Q',3,1)),(6,('B',4,1)),(8,('Q',4,1)),(11,('q',3)),(11,('Q',5,1)),
          (15,('q',4)),(17,('q',5))], nb=5, t=14, qfree=[16,18])
HEADS['h8']=dict(v=[(0,'01'),(1,'01'),(2,'0123'),(1,'23'),(0,'23'),(3,'012345'),(2,'45'),(1,'45'),(0,'45')],
    plan=[(-1,('Q',0)),(-1,('K',0)),(-1,('Q',1)),(-1,('K',1)),(-1,('q',0)),(-1,('V',0)),(-1,('V',1)),
          (0,('q',1)),(0,('B',2,1)),(1,('Q',2,1)),(2,('Q',3,1)),(5,('q',2)),(5,('B',3,1)),(6,('q',3)),(6,('Q',4,1)),(8,('Q',5,1)),
          (14,('q',4)),(16,('q',5))], nb=4, t=11, qfree=[15,17])
HEADS['h7p']=dict(v=HEADS['h7']['v'],
    plan=[(-1,('Q',0)),(-1,('K',0)),(-1,('Q',1)),(-1,('K',1)),(-1,('q',0)),(-1,('V',0)),(-1,('V',1)),(-1,('p',0)),(-1,('Q',2)),
          (0,('q',1,6)),(0,('B',2,1)),(0,('p',1,8)),(2,('B',3,1)),(3,('q',2,6)),(3,('Q',3,1)),(6,('B',4,1)),(8,('Q',4,1)),(11,('q',3)),(11,('Q',5,1)),
          (15,('q',4)),(17,('q',5))], nb=5, t=14, qfree=[16,18])
HEADS['h5p']=dict(v=HEADS['h5']['v'],
    plan=[(-1,('Q',0)),(-1,('K',0)),(-1,('Q',1)),(-1,('V',0)),(-1,('q',0)),(-1,('Q',2)),(-1,('p',0)),
          (0,('q',1,6)),(0,('B',1,1)),(0,('p',1,8)),(1,('B',2,1)),(1,('q',2,6)),(2,('B',3,1)),(3,('Q',3,1)),(5,('B',4,1)),(8,('Q',4,1)),(11,('q',3)),(11,('Q',5,1)),
          (16,('q',4)),(19,('q',5))], nb=5, t=13, qfree=[17,20])
def hq(quiet_end=20, bsl=12, b3=6, b4=10, b5=14, b6=None):
    v=[(0,'01'),(1,'01'),(2,'0123'),(1,'23'),(0,'23'),(3,'0123'),(4,'0123'),(5,'0123'),(6,'012345'),(0,'45'),(1,'45'),(2,'45'),(3,'45'),(4,'45'),(5,'45')]
    e=quiet_end
    plan=[(-1,('Q',0)),(-1,('K',0)),(-1,('Q',1)),(-1,('K',1)),(-1,('q',0)),(-1,('V',0)),(-1,('V',1)),
          (0,('q',1)),(0,('B',2,1)),(1,('Q',2,1)),(2,('Q',3,1)),(5,('q',2)),(6,('q',3)),
          (b3,('B',3,bsl)),(b4,('B',4,bsl)),(b5,('B',5,bsl)),(e-2,('B',6,4)),(e,('Q',4,2)),(e+1,('Q',5,2)),(27,('q',4)),(28,('q',5))]
    return dict(v=v,plan=plan,nb=7,t=e+6,qfree=[28,29])
HEADS['q20']=hq(20); HEADS['q18']=hq(18,10,6,9,12); HEADS['q16']=hq(16,8,6,8,11)
def hr(e=20,bsl=12):
    v=[(0,'01'),(1,'01'),(2,'0123'),(1,'23'),(0,'23'),(3,'0123'),(4,'0123'),(5,'0123'),(6,'0123'),(7,'012345'),(0,'45'),(1,'45'),(2,'45'),(3,'45'),(4,'45'),(5,'45'),(6,'45')]
    plan=[(-1,('Q',0)),(-1,('K',0)),(-1,('Q',1)),(-1,('K',1)),(-1,('q',0)),(-1,('V',0)),(-1,('V',1)),
          (0,('q',1)),(0,('B',2,1)),(1,('Q',2,1)),(2,('Q',3,1)),(5,('q',2)),(6,('q',3)),
          (6,('B',3,bsl)),(10,('B',4,bsl)),(14,('B',5,bsl)),(18,('B',6,bsl)),(e,('B',7,4)),(e+1,('Q',4,4)),(e+3,('Q',5,4)),(31,('q',4)),(32,('q',5))]
    return dict(v=v,plan=plan,nb=8,t=e+8,qfree=[32,33])
HEADS['r22']=hr(22)
def hj(J, loads, t):
    v=[(0,'01'),(1,'01'),(2,'0123'),(1,'23'),(0,'23')]+[(g,'0123') for g in range(3,J)]+[(J,'012345')]+[(g,'45') for g in range(J)]
    n4=12+4*(J-3)+4
    plan=[(-1,('Q',0)),(-1,('K',0)),(-1,('Q',1)),(-1,('K',1)),(-1,('q',0)),(-1,('V',0)),(-1,('V',1)),(-1,('p',0)),
          (0,('q',1)),(0,('B',2,1)),(0,('p',1)),(1,('Q',2,1)),(2,('Q',3,1)),(5,('q',2)),(6,('q',3))]+loads+[(n4-1,('q',4)),(n4,('q',5))]
    return dict(v=v,plan=plan,nb=J+1,t=t,qfree=[n4,n4+1])
HEADS['j3a']=hj(3,[(6,('B',3,2)),(7,('Q',4,4)),(9,('Q',5,4))],13)
HEADS['j4a']=hj(4,[(6,('B',3,6)),(8,('B',4,6)),(10,('Q',4,8)),(13,('Q',5,8))],17)
HEADS['j4b']=hj(4,[(6,('B',3,6)),(9,('B',4,6)),(12,('Q',4,4)),(14,('Q',5,4))],18)
HEADS['j5a']=hj(5,[(6,('B',3,6)),(8,('B',4,6)),(10,('B',5,8)),(13,('Q',4,8)),(16,('Q',5,8))],20)
HEADS['j6a']=hj(6,[(6,('B',3,10)),(9,('B',4,10)),(12,('B',5,10)),(16,('B',6,4)),(18,('Q',4,3)),(20,('Q',5,3))],24)
HEADS['j5q']=hj(5,[(6,('B',3,10)),(9,('B',4,10)),(12,('B',5,8)),(15,('Q',4,4)),(17,('Q',5,4))],21)
def hx(J, loads, t):
    v=[(0,'01'),(1,'01'),(2,'01'),(3,'0123'),(2,'23'),(1,'23'),(0,'23')]+[(g,'0123') for g in range(4,J)]+[(J,'012345')]+[(g,'45') for g in range(J)]
    n4=16+4*(J-4)+4
    plan=[(-1,('Q',0)),(-1,('K',0)),(-1,('Q',1)),(-1,('K',1)),(-1,('q',0)),(-1,('V',0)),(-1,('V',1)),(-1,('p',0)),
          (0,('q',1)),(0,('B',2,1)),(0,('p',1)),(1,('B',3,1)),(2,('Q',2,1)),(3,('Q',3,1)),(7,('q',2)),(8,('q',3))]+loads+[(n4-1,('q',4)),(n4,('q',5))]
    return dict(v=v,plan=plan,nb=J+1,t=t,qfree=[n4,n4+1])
HEADS['x6']=hx(6,[(8,('B',4,8)),(12,('B',5,8)),(15,('B',6,6)),(17,('Q',4,6)),(19,('Q',5,6))],23)
HEADS['x5']=hx(5,[(8,('B',4,8)),(11,('B',5,8)),(14,('Q',4,6)),(16,('Q',5,6))],20)
HEADS['x4']=hx(4,[(8,('B',4,6)),(10,('Q',4,6)),(12,('Q',5,6))],16)
```

```python
import re
from collections import defaultdict

COST = dict(mfma=8, valu=4, trans=8, perm=8, pk=4, dsr=4, dsw=12, dma=12, gld=12, gst=8, salu=0, bar=0, wait=0, nop=0)
VALU_KINDS = ('valu','trans','perm','pk')
MEM_KINDS = ('dsr','dsw','dma','gld','gst')
SC_KINDS = ('salu','bar','wait','nop')
DS=('dsr','dsw'); VM=('dma','gld','gst')

def R(p, lo, n=1):
    return [f"{p}{i}" for i in range(lo, lo+n)]
def rng(p, lo, n):
    return f"{p}{lo}" if n==1 else f"{p}[{lo}:{lo+n-1}]"

class Op:
    __slots__=('text','kind','reads','writes','cread','release','deadline','margin','preds','succs','idx','bb','pos','lat','prio','cost','tag','hole','nws','gap')
    def __init__(s, text, kind, reads=(), writes=(), cread=(), release=None, deadline=None, margin=0, tag=None, cost=None, hole=False):
        s.text=text; s.kind=kind; s.reads=list(reads); s.writes=list(writes); s.cread=list(cread)
        s.release=release; s.deadline=deadline; s.margin=margin
        s.preds=[]; s.succs=[]; s.bb=None; s.pos=None; s.tag=tag; s.hole=hole
        s.cost = COST[kind] if cost is None else cost
        s.nws = 1; s.gap=None
    def __repr__(s): return f"<{s.text}>"

def vec(S): return {x for x in S if x[0] in 'va' and x[1:].isdigit()}
def hazard_dist(a, b):
    d=0
    aw=set(a.writes); br=set(b.reads); bw=set(b.writes)
    if a.kind=='mfma':
        D=vec(aw)
        if b.kind=='mfma':
            ab = vec(br)-set(b.cread)
            if D & ab: d=max(d,8)
            c=set(b.cread)
            if D & c and (c!=D or a.cost!=b.cost): d=max(d,10)
        elif b.kind in VALU_KINDS:
            if D & (br|bw): d=max(d,12 if a.cost==12 else 8)
            if set(a.cread) & bw: d=max(d,3)
        elif b.kind in MEM_KINDS:
            if D & (br|bw): d=max(d,8)
    elif a.kind in VALU_KINDS:
        W=vec(aw)
        if b.kind=='mfma' and W & br: d=max(d,2)
        if b.kind=='perm' and W & br: d=max(d,2)
        if a.kind=='trans' and b.kind in ('valu','perm','pk') and W & br: d=max(d,1)
        sw={x for x in aw if x[0]=='s' or x=='vcc'}
        if sw & br:
            if b.kind in VALU_KINDS: d=max(d,2)
            elif b.kind in MEM_KINDS: d=max(d,5)
            else: d=max(d,2)
    elif a.kind=='salu':
        if 'm0' in aw and b.kind=='dma': d=max(d,1)
    elif a.kind=='gst':
        if vec(set(a.reads)) & bw: d=max(d,2)
    return d

class Program:
    def __init__(s):
        s.ops=[]
    def add(s, op):
        op.idx=len(s.ops); s.ops.append(op); return op
    def build_deps(s):
        lastw={}; readers=defaultdict(list)
        for o in s.ops:
            P=set()
            for r in o.reads:
                if r in lastw: P.add(lastw[r])
            for w in o.writes:
                if w in lastw: P.add(lastw[w])
                for x in readers[w]: P.add(x)
            P.discard(o)
            for p in P:
                o.preds.append(p); p.succs.append(o)
            for r in o.reads: readers[r].append(o)
            for w in o.writes:
                lastw[w]=o; readers[w]=[]
    def schedule(s, budget=8, ldsrate=1024, ldsburst=1024, dswd=1, dswsp=1, holeburst=12, wdma=-1, dmaw=-1):
        s.build_deps()
        bbs=[o for o in s.ops if o.kind=='mfma']
        for i,o in enumerate(bbs): o.bb=i
        N=len(bbs)
        for o in reversed(s.ops):
            if o.kind=='mfma': continue
            lat = N-1
            pr = lat
            if o.deadline is not None: pr=min(pr,o.deadline)
            wr={w for w in o.writes if ':' not in w}
            for x in o.succs:
                mg = o.margin if wr & set(x.reads) else 0
                if x.kind=='mfma':
                    lat=min(lat,x.bb-1); pr=min(pr,x.bb-1-mg)
                else:
                    lat=min(lat,x.lat); pr=min(pr,x.prio-mg)
            o.lat=lat; o.prio=pr
            if o.release is not None and o.release>lat: o.release=lat
        out=[]
        npred={o:len(o.preds) for o in s.ops}
        ready=[o for o in s.ops if o.kind!='mfma' and not o.preds]
        cur=[-1]
        def dist(o):
            need=0; k=0
            for p in reversed(out[-14:]):
                d=hazard_dist(p,o)
                if d>k: need=max(need,d-k)
                k+=p.nws
            return need
        def emit(o):
            n=dist(o)
            if n>0:
                nop=Op(f"s_nop {n-1}",'nop'); nop.nws=n; nop.cost=4*n; nop.pos=len(out); nop.gap=cur[0]; out.append(nop)
            o.pos=len(out); o.gap=cur[0]; out.append(o)
            for x in o.succs:
                npred[x]-=1
                if npred[x]==0 and x.kind!='mfma': ready.append(x)
            if o in ready: ready.remove(o)
            return o.cost+(4*n)
        lastdma=[-9]; lastw=[-9]; lastds=[-9]; tok=[ldsburst]
        def fill(g):
            cur[0]=g
            used=0; shadow=(g>=0); memok=True; bud=budget-(bbs[g].cost-8 if g>=0 else 0)
            last=(g==N-1)
            tok[0]=min(ldsburst,tok[0]+ldsrate)
            while True:
                cands=[o for o in ready if (o.release is None or o.release<=g)]
                if not cands: break
                if g<0:
                    cands=[o for o in cands if o.prio<=g]
                    if not cands: break
                    cands.sort(key=lambda o:o.idx); emit(cands[0]); continue
                cands.sort(key=lambda o:(o.prio,o.idx))
                sc=[o for o in cands if o.kind in SC_KINDS]
                if shadow and sc:
                    shadow=False; emit(sc[0]); continue
                shadow=False
                if last:
                    cands.sort(key=lambda o:o.idx)
                    age=lambda p: sum(x.cost for x in out[p.pos+1:])
                    vv=[o for o in cands if o.kind in VALU_KINDS and dist(o)==0]
                    inmem = out[-1].kind in MEM_KINDS+('mfma',)+SC_KINDS
                    pick=None
                    for o in cands:
                        if o.kind in SC_KINDS: pick=o; break
                    st_=[o for o in cands if o.kind=='gst' and all(p.kind!='dsr' or age(p)>=110 for p in o.preds)]
                    rd_=[o for o in cands if o.kind=='dsr']
                    wr_=[o for o in cands if o.kind=='dsw']
                    def chain(o):
                        n=1; x=o
                        while True:
                            nx=[y for y in x.succs if y.kind=='dsw' and npred[y]==1]
                            if not nx: return n
                            x=nx[0]; n+=1
                    if not pick and rd_: pick=rd_[0]
                    if not pick and wr_ and (inmem or not vv or chain(wr_[0])>=4): pick=wr_[0]
                    if not pick and st_ and (inmem or not vv or True): pick=st_[0]
                    if not pick and vv: pick=vv[0]
                    if not pick: pick=cands[0]
                    emit(pick); continue
                pk=[o for o in cands if o.kind=='pk' and o.prio<=g]
                if pk: bud=max(bud,20)
                rem=bud-used
                v=[o for o in cands if o.kind in('valu','trans','perm') and dist(o)==0 and (o.lat<=g or all(p.kind!='dsr' or p.gap<=g-5 for p in o.preds))]
                if memok:
                    pick=None
                    for o in cands:
                        if o.kind not in MEM_KINDS or dist(o): continue
                        if o.kind in('dma','gld') and lastds[0]>=g-1 and o.lat>g and o.prio>g-4 and not (o.release==o.deadline and lastds[0]<g): continue
                        due = o.prio<=g
                        if o.kind in('dma','gst') and o.lat>g and lastw[0]>=g-wdma and o.prio>g-30: continue
                        if o.kind=='dsw' and o.lat>g and lastdma[0]>=g-dmaw: continue
                        if o.kind=='dsw' and o.lat>g and lastw[0]>g-dswsp: continue
                        if o.kind=='dsw' and o.lat>g and any(p.kind=='valu' and p.gap>g-dswd for p in o.preds): continue
                        if o.kind=='dsr':
                            by = 512 if 'b64' in o.text else 0 if 'bperm' in o.text else 1024
                            if by and not due and (tok[0]<by or (used==0 and tok[0]<ldsburst)): continue
                            ok = (o.hole and o.lat<=g+4) or (o.cost<=rem and not o.hole) or (due and used<(holeburst if o.hole else 12)) or (o.hole and o.cost<=rem and sum(x.cost for x in v)<rem)
                        else:
                            ok = (used==0 and (due or not v)) or (o.tag=='pair' and out[-1].kind=='dma')
                        if ok: pick=o; break
                    if pick:
                        used+=emit(pick)
                        if pick.kind in DS: lastds[0]=g
                        if pick.kind=='dsw': lastw[0]=g
                        if pick.kind=='dma': lastdma[0]=g
                        if pick.kind=='dsr': tok[0]-= 512 if 'b64' in pick.text else 0 if 'bperm' in pick.text else 1024
                        if pick.kind=='gst': bud=max(bud,22)
                        continue
                fit=[o for o in v if o.cost<=rem]
                due=[o for o in v if o.prio<=g]
                pick=None
                if fit:
                    pick=fit[0]
                    if rem%8==0 and pick.cost==4:
                        n4=[o for o in fit if o.cost==4]; n8=[o for o in fit if o.cost==8]
                        if len(n4)<2 and n8: pick=n8[0]
                    if due and due[0] not in fit: pick=due[0]
                elif due: pick=due[0]
                if pick:
                    memok=False; used+=emit(pick); continue
                if pk and dist(pk[0])==0 or (pk and pk[0].lat<=g):
                    memok=False; used=max(used,20); used+=emit(pk[0]); continue
                must=[o for o in cands if o.lat<=g or (o.prio<=g and o.kind in SC_KINDS)]
                if must:
                    o=must[0]
                    c=emit(o)
                    if o.kind in SC_KINDS: c+=4
                    if o.kind in MEM_KINDS and not memok: c+=8
                    if o.kind in VALU_KINDS: memok=False
                    used+=c; continue
                break
            return used
        fill(-1)
        for g,m in enumerate(bbs):
            assert npred[m]==0, (g,m,[p for p in m.preds if p.pos is None])
            cur[0]=g
            emit(m)
            fill(g)
        left=[o for o in s.ops if o.pos is None]
        assert not left, left[:5]
        s.out=out
        return out

def insert_waits(out, merge=9):
    res=[]
    lg=[]; vm=[]
    def need(lst,o):
        k=-1
        rs={x for x in set(o.reads)|set(o.writes) if not x.startswith('O:')}
        for i,p in enumerate(lst):
            shared=set(p.writes)&rs
            if not shared: continue
            if p.kind in DS and o.kind in DS:
                shared={x for x in shared if not x.startswith('L:')}
                if p.kind=='dsr' and o.kind=='dsr':
                    shared={x for x in shared if x in o.reads}
                if not shared: continue
            if p.kind in VM and o.kind in VM:
                shared={x for x in shared if x in o.reads}
                if not shared: continue
            k=i
        return k
    def ridx(p):
        j=len(res)-1
        while res[j] is not p: j-=1
        return j
    for o in out:
        kl=need(lg,o); kv=need(vm,o)
        if kl>=0:
            while kl+1<len(lg) and lg[kl+1].gap<=o.gap-merge: kl+=1
        if kl>=0 or kv>=0:
            pl = lg[kl] if kl>=0 else None
            pv = vm[kv] if kv>=0 else None
            lastprod=max(ridx(p) for p in (pl,pv) if p is not None)
            pos=len(res)
            j=len(res)-1; tries=0; found=None
            while j>lastprod and tries<3:
                if res[j].kind=='mfma':
                    tries+=1
                    nxt = res[j+1] if j+1<len(res) else o
                    if nxt.kind=='wait' or nxt.kind not in SC_KINDS:
                        found=j+1; break
                j-=1
            if found is not None: pos=found
            cnt=lambda p,kinds: sum(1 for x in res[ridx(p)+1:pos] if x.kind in kinds)
            nl = min(15,cnt(pl,DS)) if pl else None
            nv = min(63,cnt(pv,VM)) if pv else None
            if pos<len(res) and res[pos].kind=='wait':
                w=res[pos]
                if nl is not None: w.tag['l']=min(nl,w.tag.get('l',99))
                if nv is not None: w.tag['v']=min(nv,w.tag.get('v',99))
            else:
                w=Op('','wait',tag={}); w.gap=o.gap
                if nl is not None: w.tag['l']=nl
                if nv is not None: w.tag['v']=nv
                res.insert(pos,w)
            w.text='s_waitcnt '+' '.join(([f"vmcnt({w.tag['v']})"] if 'v' in w.tag else [])+([f"lgkmcnt({w.tag['l']})"] if 'l' in w.tag else []))
            if kl>=0: lg=lg[kl+1:]
            if kv>=0: vm=vm[kv+1:]
        res.append(o)
        if o.kind in DS: lg.append(o)
        if o.kind in VM: vm.append(o)
        assert len(vm)<=63, "vmcnt overflow"
    return res

def verify_waits(out):
    lg=[]; vm=[]
    for o in out:
        if o.kind=='wait':
            if 'l' in o.tag: lg=lg[max(0,len(lg)-o.tag['l']):] if o.tag['l'] else []
            if 'v' in o.tag: vm=vm[max(0,len(vm)-o.tag['v']):] if o.tag['v'] else []
            continue
        rs={x for x in set(o.reads)|set(o.writes) if not x.startswith('O:')}
        for p in lg:
            sh=set(p.writes)&rs
            if o.kind in DS:
                sh={x for x in sh if not x.startswith('L:')}
                if p.kind=='dsr' and o.kind=='dsr': sh={x for x in sh if x in o.reads}
            assert not sh,(p,o,sh)
        for p in vm:
            sh=set(p.writes)&rs
            if o.kind in VM: sh={x for x in sh if x in o.reads}
            assert not sh,(p,o,sh)
        if o.kind in DS: lg.append(o)
        if o.kind in VM: vm.append(o)

def check_hazards(out):
    for i,o in enumerate(out):
        k=0
        for p in reversed(out[max(0,i-14):i]):
            d=hazard_dist(p,o)
            assert d<=k, (p,o,d,k)
            k+=p.nws

def estimate(out, marks=None, mt=None):
    t=0; lastm=-100; prev=None; vend=-100; blk=-100; dsend=-100
    for o in out:
        k=o.kind
        if k=='mfma':
            t=max(t,lastm+16,blk); lastm=t; t+=o.cost
            if mt is not None: mt.append(t)
        elif k in SC_KINDS:
            c = 4*o.nws
            if prev is not None and prev.kind=='mfma': c-=4
            if k=='bar':
                c+=24
                if marks is not None: marks.append(t)
            t+=c
        else:
            if k=='pk': t=max(t,lastm+28)
            if k in MEM_KINDS: t=max(t,vend+8)
            if k=='dma' and prev.kind=='dsr': t+=16
            if k=='dma' and prev.kind=='dma': t-=4
            if k=='gst': blk=t+22
            t+=o.cost
            if k in VALU_KINDS: vend=t
        prev=o
    return t
```

```python
from cfgs import *
b=dict(verbose=False,pres=(0,1),snake=True,dswsp=2,holeburst=4,stpol='sc0 sc1 nt',tail=4,tailst=[12]*4+[3,3],probe=(0,100,'rt'))
emit(mk('j4a',**b),f'w_a.s')
emit(mk('j4a',ldpol='',**b),f'w_b.s')
emit(mk('j4a',wdma=4,dmaw=2,Dlate=[(135,6)],lastbar=167,**b),f'w_c.s')
emit(mk('j4a',wdma=4,dmaw=2,Dlate=[(135,6)],lastbar=167,minD=4,vislat=160,nobar=(95,),**b),f'w_d.s')
emit(mk('j4a',warm=False,**b),f'w_e.s')
emit(mk('j4a',**b),f'w_f.s')
```

```python
import sys
from gen import *
HEADS={
 'simple':dict(v=[(0,'012345')],
    plan=[(-1,('Q',0)),(-1,('K',0)),(-1,('Q',1)),(-1,('V',0)),(-1,('q',0)),(-1,('Q',2)),(-1,('q',1)),(-1,('Q',3)),(-1,('q',2)),(-1,('Q',4)),
          (-1,('q',3)),(-1,('Q',5)),(-1,('B',1)),(-1,('q',4)),(-1,('q',5))], nb=2, t=0, qfree=[0,0]),
 'h5':dict(v=[(0,'012'),(1,'012'),(2,'012'),(3,'0123'),(4,'01234'),(0,'345'),(1,'345'),(2,'345'),(3,'45'),(4,'5')],
    plan=[(-1,('Q',0)),(-1,('K',0)),(-1,('Q',1)),(-1,('V',0)),(-1,('q',0)),(-1,('Q',2)),
          (0,('q',1)),(0,('B',1,1)),(0,('B',2,1)),(1,('q',2)),(1,('B',3,1)),(2,('Q',3,1)),(5,('B',4,1)),(8,('Q',4,1)),(11,('q',3)),(11,('Q',5,1)),
          (16,('q',4)),(19,('q',5))], nb=5, t=13, qfree=[17,20]),
 'h6':dict(v=[(0,'01'),(1,'012'),(0,'2'),(2,'012'),(3,'012'),(4,'0123'),(5,'0123'),(0,'345'),(1,'345'),(2,'345'),(3,'345'),(4,'45'),(5,'45')],
    plan=[(-1,('Q',0)),(-1,('K',0)),(-1,('Q',1)),(-1,('V',0)),(-1,('q',0)),(-1,('B',1)),
          (0,('q',1)),(0,('Q',2,1)),(0,('B',2,1)),(1,('B',3,1)),(3,('q',2)),(3,('B',4,1)),(5,('Q',3,1)),(8,('B',5,1)),(11,('Q',4,1)),(14,('q',3)),(14,('Q',5,1)),
          (19,('q',4)),(21,('q',5))], nb=6, t=17, qfree=[20,22]),
}
def mk(head='h5', tail=4, D=5, ststep=40, TQ=5, TB=3, qlat=14, minD=3, groups=([6,7],[8,9],[10,11]), **kw):
    A=list(range(6)); B=list(range(6,12))
    H=HEADS[head]
    visits=[(g,[int(c) for c in t]) for g,t in H['v']]
    plan=list(H['plan'])
    g0=max(g for g,_ in visits)+1
    for g in range(g0,32-tail): visits.append((g,A if g<16 else B))
    if 'tailv' in kw:
        for g,t in kw['tailv']: visits.append((g,[6+int(c) for c in t]))
    elif tail:
        for k,grp in enumerate(groups):
            gs=list(range(32-tail,32))
            if kw.get('snake') and k%2: gs=gs[::-1]
            for g in gs:
                if visits[-1][0]==g: visits[-1]=(g,visits[-1][1]+list(grp))
                else: visits.append((g,list(grp)))
    first={}; last={}; n=0
    for g,ts in visits:
        first.setdefault(g,n); last[g]=n; n+=len(ts)
    t=H['t']; nb=H['nb']; nq=6; qfree=list(H['qfree'])
    n=int(t)
    while nb<32 or nq<12:
        if t>n or (kw.get('quiet') and kw['quiet'][0]<=n<kw['quiet'][1]): n+=1; continue
        if nq==12: TB=kw.get('TB2',TB)
        for n_,d_ in kw.get('minDlate',()):
            if n>=n_: minD=d_
        for n_,d_ in kw.get('Dlate',()):
            if n>=n_: D=d_
        if n>=96: TB=kw.get('TB3',TB)
        ahead=sum(1 for g in range(nb) if first[g]>n)
        resident=sum(1 for g in range(nb) if last[g]+9>n)
        canB = nb<32 and resident<8 and ahead<D
        canQ = nq<12 and qfree[nq%2]<=n
        if canB and (ahead<minD or not canQ):
            plan.append((n,('B',nb,int(TB*17/4)))); nb+=1; t=max(t,n)+TB
        elif canQ:
            plan.append((n,('Q',nq,int(TQ*17/4)))); t=max(t,n)+TQ
            if nq<10:
                plan.append((n+qlat,('q',nq))); qfree[nq%2]=n+qlat+1
            else: qfree[nq%2]=999
            nq+=1
        else: n+=1
    plan.append((6*15+1,('q',10))); plan.append((6*15+2,('q',11)))
    oimm={0:(2,None),1:(3,None),2:(4,None),3:(5,None)}
    ts=kw.get('tailst',[4]*6)
    for T in range(6,12): oimm[T]=({6:6,7:7,8:8,9:9,10:0,11:1}[T],ts[T-6])
    n=kw.get('st0',102)
    if kw.get('direct'):
        oimm={0:(None,kw.get('st01',8)),1:(None,kw.get('st01',8)),2:(2,None),3:(3,None),4:(4,None),5:(5,None)}
        for T in range(6,12): oimm[T]=(None,ts[T-6])
        n=6*18
        for T in range(2,6):
            plan.append((n,('s',T,ststep))); n+= (4*ststep+16)//17
    else:
      for T in range(6):
        if T>=4: plan.append((n-3,('o',T,T-2)))
        plan.append((n,('s',T,ststep)))
        n+= (4*ststep+16)//17
    for n in kw.get('cpf',()): plan.append((n,('c',0)))
    c=dict(visits=visits,plan=plan,oimm=oimm,verbose=True,ldsrate=512,dsmargin=8,merge=8,dmapair=False)
    c.update(kw)
    if c.get('showplan'): print(sorted([(n,u[0]+str(u[1])) for n,u in plan if n>=0]))
    return c
if False:
    for h in ('simple','h5','h6'):
        emit(mk(h,showplan=True),f'v4{h}.s')
HEADS['h7']=dict(v=[(0,'01'),(1,'012'),(0,'2'),(2,'012'),(3,'0123'),(4,'012345'),(3,'45'),(0,'345'),(1,'345'),(2,'345')],
    plan=[(-1,('Q',0)),(-1,('K',0)),(-1,('Q',1)),(-1,('K',1)),(-1,('q',0)),(-1,('V',0)),(-1,('V',1)),
          (0,('q',1)),(0,('Q',2,1)),(1,('B',2,1)),(3,('q',2)),(3,('B',3,1)),(4,('Q',3,1)),(6,('B',4,1)),(8,('Q',4,1)),(11,('q',3)),(11,('Q',5,1)),
          (15,('q',4)),(17,('q',5))], nb=5, t=14, qfree=[16,18])
HEADS['h8']=dict(v=[(0,'01'),(1,'01'),(2,'0123'),(1,'23'),(0,'23'),(3,'012345'),(2,'45'),(1,'45'),(0,'45')],
    plan=[(-1,('Q',0)),(-1,('K',0)),(-1,('Q',1)),(-1,('K',1)),(-1,('q',0)),(-1,('V',0)),(-1,('V',1)),
          (0,('q',1)),(0,('B',2,1)),(1,('Q',2,1)),(2,('Q',3,1)),(5,('q',2)),(5,('B',3,1)),(6,('q',3)),(6,('Q',4,1)),(8,('Q',5,1)),
          (14,('q',4)),(16,('q',5))], nb=4, t=11, qfree=[15,17])
HEADS['h7p']=dict(v=HEADS['h7']['v'],
    plan=[(-1,('Q',0)),(-1,('K',0)),(-1,('Q',1)),(-1,('K',1)),(-1,('q',0)),(-1,('V',0)),(-1,('V',1)),(-1,('p',0)),(-1,('Q',2)),
          (0,('q',1,6)),(0,('B',2,1)),(0,('p',1,8)),(2,('B',3,1)),(3,('q',2,6)),(3,('Q',3,1)),(6,('B',4,1)),(8,('Q',4,1)),(11,('q',3)),(11,('Q',5,1)),
          (15,('q',4)),(17,('q',5))], nb=5, t=14, qfree=[16,18])
HEADS['h5p']=dict(v=HEADS['h5']['v'],
    plan=[(-1,('Q',0)),(-1,('K',0)),(-1,('Q',1)),(-1,('V',0)),(-1,('q',0)),(-1,('Q',2)),(-1,('p',0)),
          (0,('q',1,6)),(0,('B',1,1)),(0,('p',1,8)),(1,('B',2,1)),(1,('q',2,6)),(2,('B',3,1)),(3,('Q',3,1)),(5,('B',4,1)),(8,('Q',4,1)),(11,('q',3)),(11,('Q',5,1)),
          (16,('q',4)),(19,('q',5))], nb=5, t=13, qfree=[17,20])
def hq(quiet_end=20, bsl=12, b3=6, b4=10, b5=14, b6=None):
    v=[(0,'01'),(1,'01'),(2,'0123'),(1,'23'),(0,'23'),(3,'0123'),(4,'0123'),(5,'0123'),(6,'012345'),(0,'45'),(1,'45'),(2,'45'),(3,'45'),(4,'45'),(5,'45')]
    e=quiet_end
    plan=[(-1,('Q',0)),(-1,('K',0)),(-1,('Q',1)),(-1,('K',1)),(-1,('q',0)),(-1,('V',0)),(-1,('V',1)),
          (0,('q',1)),(0,('B',2,1)),(1,('Q',2,1)),(2,('Q',3,1)),(5,('q',2)),(6,('q',3)),
          (b3,('B',3,bsl)),(b4,('B',4,bsl)),(b5,('B',5,bsl)),(e-2,('B',6,4)),(e,('Q',4,2)),(e+1,('Q',5,2)),(27,('q',4)),(28,('q',5))]
    return dict(v=v,plan=plan,nb=7,t=e+6,qfree=[28,29])
HEADS['q20']=hq(20); HEADS['q18']=hq(18,10,6,9,12); HEADS['q16']=hq(16,8,6,8,11)
def hr(e=20,bsl=12):
    v=[(0,'01'),(1,'01'),(2,'0123'),(1,'23'),(0,'23'),(3,'0123'),(4,'0123'),(5,'0123'),(6,'0123'),(7,'012345'),(0,'45'),(1,'45'),(2,'45'),(3,'45'),(4,'45'),(5,'45'),(6,'45')]
    plan=[(-1,('Q',0)),(-1,('K',0)),(-1,('Q',1)),(-1,('K',1)),(-1,('q',0)),(-1,('V',0)),(-1,('V',1)),
          (0,('q',1)),(0,('B',2,1)),(1,('Q',2,1)),(2,('Q',3,1)),(5,('q',2)),(6,('q',3)),
          (6,('B',3,bsl)),(10,('B',4,bsl)),(14,('B',5,bsl)),(18,('B',6,bsl)),(e,('B',7,4)),(e+1,('Q',4,4)),(e+3,('Q',5,4)),(31,('q',4)),(32,('q',5))]
    return dict(v=v,plan=plan,nb=8,t=e+8,qfree=[32,33])
HEADS['r22']=hr(22)
def hj(J, loads, t):
    v=[(0,'01'),(1,'01'),(2,'0123'),(1,'23'),(0,'23')]+[(g,'0123') for g in range(3,J)]+[(J,'012345')]+[(g,'45') for g in range(J)]
    n4=12+4*(J-3)+4
    plan=[(-1,('Q',0)),(-1,('K',0)),(-1,('Q',1)),(-1,('K',1)),(-1,('q',0)),(-1,('V',0)),(-1,('V',1)),(-1,('p',0)),
          (0,('q',1)),(0,('B',2,1)),(0,('p',1)),(1,('Q',2,1)),(2,('Q',3,1)),(5,('q',2)),(6,('q',3))]+loads+[(n4-1,('q',4)),(n4,('q',5))]
    return dict(v=v,plan=plan,nb=J+1,t=t,qfree=[n4,n4+1])
HEADS['j3a']=hj(3,[(6,('B',3,2)),(7,('Q',4,4)),(9,('Q',5,4))],13)
HEADS['j4a']=hj(4,[(6,('B',3,6)),(8,('B',4,6)),(10,('Q',4,8)),(13,('Q',5,8))],17)
HEADS['j4b']=hj(4,[(6,('B',3,6)),(9,('B',4,6)),(12,('Q',4,4)),(14,('Q',5,4))],18)
HEADS['j5a']=hj(5,[(6,('B',3,6)),(8,('B',4,6)),(10,('B',5,8)),(13,('Q',4,8)),(16,('Q',5,8))],20)
HEADS['j6a']=hj(6,[(6,('B',3,10)),(9,('B',4,10)),(12,('B',5,10)),(16,('B',6,4)),(18,('Q',4,3)),(20,('Q',5,3))],24)
HEADS['j5q']=hj(5,[(6,('B',3,10)),(9,('B',4,10)),(12,('B',5,8)),(15,('Q',4,4)),(17,('Q',5,4))],21)
def hx(J, loads, t):
    v=[(0,'01'),(1,'01'),(2,'01'),(3,'0123'),(2,'23'),(1,'23'),(0,'23')]+[(g,'0123') for g in range(4,J)]+[(J,'012345')]+[(g,'45') for g in range(J)]
    n4=16+4*(J-4)+4
    plan=[(-1,('Q',0)),(-1,('K',0)),(-1,('Q',1)),(-1,('K',1)),(-1,('q',0)),(-1,('V',0)),(-1,('V',1)),(-1,('p',0)),
          (0,('q',1)),(0,('B',2,1)),(0,('p',1)),(1,('B',3,1)),(2,('Q',2,1)),(3,('Q',3,1)),(7,('q',2)),(8,('q',3))]+loads+[(n4-1,('q',4)),(n4,('q',5))]
    return dict(v=v,plan=plan,nb=J+1,t=t,qfree=[n4,n4+1])
HEADS['x6']=hx(6,[(8,('B',4,8)),(12,('B',5,8)),(15,('B',6,6)),(17,('Q',4,6)),(19,('Q',5,6))],23)
HEADS['x5']=hx(5,[(8,('B',4,8)),(11,('B',5,8)),(14,('Q',4,6)),(16,('Q',5,6))],20)
HEADS['x4']=hx(4,[(8,('B',4,6)),(10,('Q',4,6)),(12,('Q',5,6))],16)
def hk(J, pre, loads, t):
    h=hj(J,loads,t); n4=12+4*(J-3)+4
    h['plan']=pre+[(5,('q',2)),(6,('q',3))]+loads+[(n4-1,('q',4)),(n4,('q',5))]
    return h
L4=[(6,('B',3,6)),(8,('B',4,6)),(10,('Q',4,8)),(13,('Q',5,8))]
P0=[(-1,('Q',0)),(-1,('K',0)),(-1,('Q',1)),(-1,('K',1)),(-1,('q',0)),(-1,('V',0)),(-1,('V',1)),(-1,('p',0))]
HEADS['k1']=hk(4,P0+[(0,('q',1)),(0,('B',2,1)),(0,('Q',2,1)),(0,('p',1)),(1,('Q',3,1))],L4,17)
HEADS['k2']=hk(4,P0+[(0,('q',1)),(0,('B',2,1)),(0,('p',1)),(0,('Q',2,1)),(1,('Q',3,1))],L4,17)
HEADS['k3']=hk(4,P0+[(-1,('K',2)),(0,('q',1)),(0,('V',2,1)),(0,('Q',2,1)),(0,('p',1)),(1,('Q',3,1))],L4,17)
HEADS['k4']=hk(4,P0+[(0,('q',1)),(0,('B',2,1)),(0,('Q',2,1)),(0,('p',1)),(1,('Q',3,1))],[(4,('B',3,4)),(8,('B',4,6)),(10,('Q',4,8)),(13,('Q',5,8))],17)
P1=[(-1,('Q',0)),(-1,('K',0)),(-1,('Q',1)),(-1,('q',0)),(-1,('K',1)),(-1,('V',0)),(-1,('V',1)),(-1,('p',0))]
HEADS['m1']=hk(4,P1+[(0,('q',1)),(0,('B',2,1)),(0,('p',1)),(1,('Q',2,1)),(2,('Q',3,1))],L4,17)
HEADS['j4c']=hj(4,[(6,('B',3,6)),(8,('B',4,12)),(11,('Q',4,10)),(14,('Q',5,8))],20)
HEADS['j4d']=hj(4,[(6,('B',3,6)),(8,('B',4,6)),(10,('Q',4,8)),(13,('Q',5,8))],21)
HEADS['j5b']=hj(5,[(6,('B',3,6)),(8,('B',4,12)),(11,('B',5,12)),(14,('Q',4,10)),(17,('Q',5,10))],22)
HEADS['j4e']=hj(4,[(6,('B',3,6)),(8,('B',4,6)),(10,('Q',4,8)),(13,('Q',5,8))],19)
HEADS['j4f']=hj(4,[(6,('B',3,6)),(8,('B',4,8)),(11,('Q',4,8)),(14,('Q',5,6))],21)
HEADS['j5c']=hj(5,[(6,('B',3,6)),(8,('B',4,10)),(11,('B',5,10)),(14,('Q',4,8)),(17,('Q',5,8))],25)
```

```python
import sys, math, struct
from sched import *

NAME="standalone__gqa_softmax__near_ridge"
CSC = math.log2(math.e)/math.sqrt(128.0)
def f2u(x): return struct.unpack('<I',struct.pack('<f',x))[0]

vS=[0,8,16]; vP=[24,28,32,36]; vMCs=[63,41,42,43,44,45]; vBp=40
vKa=[46,47]; vVa=[48,49,50,51]; vQa=[52,53]; vDMA=54; vIdx=55
vOw=[56,57,52,53]; vOst=58; vOr=59
vL=[60,62]; vT0=61; vT1=None
vCI={0:56,1:60}; aSave=248
vO=lambda slot,t: 64+32*slot+4*t
aQ=lambda b: 16*b
aK=lambda f: 160+4*f
aV=lambda t: 192+4*t
aSum=lambda slot: 224+4*(slot//2)
aOneS=236; aOneD=[240,244]
sQ=8; sK=12; sV=16; sO=20
sC=24; sTH=25; sWL=26 ; sWQ=27; sWS=28; sOffKV=29; sOffQ=30; sOffO=31; sW=32; sMSK=7; sPar=33
sFlag=40
KRING=0; VRING=65536; STG=131072

class Gen:
    def __init__(s, cfg):
        s.cfg=cfg; s.P=Program(); s.nbb=0; s.bars=[]; s.vis=set()
        s.R=cfg.get('ring',8); s.LAG=cfg.get('lag',2); s.NB=s.LAG+1
        s.lastread={}; s.dmadone={}; s.occ={'K':[None]*s.R,'V':[None]*s.R}; s.slotof={}; s.dmarel={}
        s.ldpol=cfg.get('ldpol','nt'); s.stpol=cfg.get('stpol','nt')
        s.urgent=False; s.win=cfg.get('dmawin',12); s.np=0 if cfg.get('dmapair',True) else 1
    def add(s,*a,**k):
        o=Op(*a,**k); s.P.add(o)
        if o.kind=='mfma': s.nbb+=1
        return o
    def now(s): return s.nbb-1
    def barrier(s):
        g=s.now()
        b=s.add("s_barrier",'bar',reads=[],writes=['barorder'],release=g,deadline=g)
        s.bars.append(b); return b
    def visible(s,part,g):
        if (part,g) in s.vis: return
        b=s.bars[-1]
        for bb in reversed(s.bars):
            if bb.reads and bb.release>=s.dmarel[(part,g)]+s.cfg.get('vislat',200) and s.dmadone[(part,g)]<bb.idx: b=bb; break
        assert s.dmadone[(part,g)]<b.idx, ("dma after barrier",part,g)
        b.reads.append(f"L:{part}{g}"); b.writes.append(f"vis{part}{g}"); s.vis.add((part,g))
    def dl(s,rel): return (rel+(0 if s.urgent else s.win)) if rel>=0 else -1
    def dma_kv(s,part,g,rel,step):
        rd=[]
        occ=s.occ[part]
        free=[x for x in range(s.R) if occ[x] is None]
        if free: slot=free[0]
        else:
            b=s.bars[-1]
            c=[x for x in range(s.R) if s.allread[(part,occ[x])]==0 and s.lastread[(part,occ[x])]<b.idx]
            assert c, ("no free slot",part,g,occ)
            slot=min(c,key=lambda x:s.lastread[(part,occ[x])]); old=occ[slot]
            for bb in s.bars:
                if bb.idx>s.lastread[(part,old)]+s.cfg.get('freegap',60) and bb.reads: b=bb; break
            b.reads.append(f"L:rd{part}{old}"); b.writes.append(f"free{part}{old}"); rd=[f"free{part}{old}"]
        occ[slot]=g; s.slotof[(part,g)]=slot
        base=(KRING if part=='K' else VRING)+slot*8192
        s.add(f"s_add_u32 m0, s{sWL}, {base}",'salu',writes=['m0'],margin=1)
        if s.curoff!=g:
            s.add(f"s_mov_b32 s{sOffKV}, {g*8192}",'salu',writes=[f"s{sOffKV}"],margin=1); s.curoff=g
        srd=sK if part=='K' else sV
        for i in range(2):
            o=s.add(f"buffer_load_dwordx4 v{vDMA}, s[{srd}:{srd+3}], s{sOffKV} offen offset:{2048*i} {s.ldpol} lds",'dma',
                  reads=['m0',f"s{sOffKV}"]+rd,writes=[f"L:{part}{g}",'O:vm'],release=rel+i*step*s.np,deadline=s.dl(rel+i*step*s.np),tag=('pair' if i and not s.np else None))
        s.dmadone[(part,g)]=o.idx; s.dmarel[(part,g)]=o.deadline
    def dma_q(s,T,rel,step):
        buf=T%2; it,j=divmod(T,6)
        assert s.stgown[buf] is None, ("stg busy",T,s.stgown); s.stgown[buf]=('Q',T)
        k=0
        for half in range(2):
            s.add(f"s_add_u32 m0, s{sWS}, {STG+buf*4096+half*896}",'salu',writes=['m0'],margin=1)
            if half==0: s.add(f"s_add_u32 s{sOffQ}, s{sWQ}, {(it*768+16*j)*256}",'salu',writes=[f"s{sOffQ}"],margin=1)
            for oc in range(2):
                s.add(f"buffer_load_dwordx4 v{vDMA}, s[{sQ}:{sQ+3}], s{sOffQ} offen offset:{2048*oc+128*half} {s.ldpol} lds",'dma',
                      reads=['m0',f"s{sOffQ}",f"L:stg{buf}0",f"L:stg{buf}1"],writes=[f"L:Q{T}",'O:vm'],release=rel+(k if s.np else 2*half)*step,deadline=s.dl(rel+(k if s.np else 2*half)*step),tag=('pair' if oc and not s.np else None))
                k+=1
    def read_q(s,T,rel):
        buf=T%2; qb=s.qbuf[T]; s.qread.add(T)
        assert all(s.seen[x]==16 for x in range(T) if s.qbuf[x]==qb), ("qbuf busy",T)
        assert s.stgown[buf]==('Q',T); s.stgown[buf]=None
        if T in s.pres:
            raw=vO(5,0)+16*T; tmp=vO(4,0)
            for st in range(4):
                s.add(f"ds_read_b128 {rng('v',raw+4*st,4)}, v{vQa[st%2]} offset:{buf*4096+(st//2)*1024}",'dsr',
                      reads=[f"L:Q{T}",f"v{vQa[st%2]}"]+(['O:vm'] if st==0 else []),writes=R('v',raw+4*st,4)+[f"L:stg{buf}{st//2}",f"O:q{T}"],release=rel,deadline=rel)
            return
        s._read_q_plain(T,rel)
    def prescale(s,T,rel,off=0):
        if T not in s.pres: return
        qb=s.qbuf[T]
        if True:
            raw=vO(5,0)+16*T; tmp=vO(4,0)
            G = rel+off
            kw=dict(release=G,deadline=G)
            for r in range(16):
                x=raw+r; a=tmp+2*r
                s.add(f"v_lshlrev_b32 v{a}, 16, v{x}",'valu',reads=[f"v{x}"],writes=[f"v{a}"],**kw)
                s.add(f"v_and_b32 v{a+1}, s{sMSK}, v{x}",'valu',reads=[f"v{x}"],writes=[f"v{a+1}"],**kw)
            for r in range(16):
                x=raw+r; a=tmp+2*r
                s.add(f"v_pk_mul_f32 v[{a}:{a+1}], v[{a}:{a+1}], s[{sC}:{sC+1}] op_sel_hi:[1,0]",'pk',reads=[f"v{a}",f"v{a+1}"],writes=[f"v{a}",f"v{a+1}"],**kw)
                s.add(f"v_cvt_pk_bf16_f32 v{x}, v{a}, v{a+1}",'valu',reads=[f"v{a}",f"v{a+1}"],writes=[f"v{x}"],**kw)
                s.add(f"v_accvgpr_write_b32 a{aQ(qb)+r}, v{x}",'valu',reads=[f"v{x}"],writes=[f"a{aQ(qb)+r}"],**kw)
            return
    def _read_q_plain(s,T,rel):
        buf=T%2; qb=s.qbuf[T]
        for st in range(4):
            s.add(f"ds_read_b128 {rng('a',aQ(qb)+4*st,4)}, v{vQa[st%2]} offset:{buf*4096+(st//2)*1024}",'dsr',
                  reads=[f"L:Q{T}",f"v{vQa[st%2]}"]+(['O:vm'] if st==0 else []),writes=R('a',aQ(qb)+4*st,4)+[f"L:stg{buf}{st//2}",f"O:q{T}"],release=rel,margin=8,deadline=s.dl(rel),hole=True)
    def read_k(s,g,order):
        s.visible('K',g); slot=s.slotof[('K',g)]
        for f in order:
            kt,st=divmod(f,4)
            o=s.add(f"ds_read_b128 {rng('a',aK(f),4)}, v{vKa[st%2]} offset:{slot*8192+kt*4096+(st//2)*1024}",'dsr',
                  reads=[f"visK{g}"],writes=R('a',aK(f),4)+[f"L:rdK{g}"],margin=s.cfg.get('dsmargin',10))
        s.lastread[('K',g)]=o.idx; s.allread[('K',g)]-=1
    def read_v(s,g):
        s.visible('V',g); slot=s.slotof[('V',g)]
        for t in range(8):
            for kt in range(2):
                o=s.add(f"ds_read_b64_tr_b16 {rng('a',aV(t)+2*kt,2)}, v{vVa[t%4]} offset:{slot*8192+kt*4096+(t//4)*1024}",'dsr',
                      reads=[f"visV{g}"],writes=R('a',aV(t)+2*kt,2)+[f"L:rdV{g}"],margin=s.cfg.get('dsmargin',10))
        s.lastread[('V',g)]=o.idx; s.allread[('V',g)]-=1
    KORD=[0,1,2,3,7,6,5,4]
    def qk(s,n,T):
        b=n%s.NB; qb=s.qbuf[T]
        for i,f in enumerate(s.KORD):
            kt,st=divmod(f,4)
            d=vS[b]+4*kt; first=(i%4==0)
            cr = R('v',d,4); c=rng('v',d,4)
            if first:
                if T in s.pres and s.seen[T]>0: cr=R('v',vCI[T],4); c=rng('v',vCI[T],4)
                else: cr=[]; c="0"
            s.add(f"v_mfma_f32_16x16x32_bf16 {rng('v',d,4)}, {rng('a',aK(f),4)}, {rng('a',aQ(qb)+4*st,4)}, {c}",'mfma',
                  reads=R('a',aK(f),4)+R('a',aQ(qb)+4*st,4)+cr,writes=R('v',d,4),cread=cr)
        if T==0 and T in s.pres and s.seen[T]==15:
            for r in range(4): s.add(f"v_accvgpr_read_b32 v{vCI[0]+r}, a{aSave+r}",'valu',reads=[],writes=[f"v{vCI[0]+r}"])
    def pv(s,n,T,first):
        slot=s.slot[T]; p=vP[s.pbuf[n]]
        d=aSum(slot); mode=s.summode[n]
        if (T//2) not in s.zeroed:
            s.zeroed.add(T//2)
            for r in range(4): s.add(f"v_accvgpr_write_b32 a{d+r}, 0",'valu',writes=[f"a{d+r}"],margin=2)
        if mode=='single':
            a=aOneD[slot%2]
            s.add(f"v_mfma_f32_16x16x32_bf16 {rng('a',d,4)}, {rng('a',a,4)}, {rng('v',p,4)}, {rng('a',d,4)}",'mfma',
                  reads=R('a',a,4)+R('v',p,4)+R('a',d,4),writes=R('a',d,4),cread=R('a',d,4),tag='sum')
        elif mode=='second':
            s.add(f"v_smfmac_f32_16x16x64_bf16 {rng('a',d,4)}, {rng('a',aOneS,4)}, {rng('v',p-4,8)}, v{vIdx}",'mfma',
                  reads=R('a',aOneS,4)+R('v',p-4,8)+R('a',d,4),writes=R('a',d,4),cread=R('a',d,4),cost=12,tag='sum')
        if s.pending_epi is not None and mode=='second':
            X=s.pending_epi; s.pending_epi=None; s.finish(X,5)
        for t in range(8):
            d=vO(slot,t); c="0" if first else rng('v',d,4)
            s.add(f"v_mfma_f32_16x16x32_bf16 {rng('v',d,4)}, {rng('a',aV(t),4)}, {rng('v',p,4)}, {c}",'mfma',
                  reads=R('a',aV(t),4)+R('v',p,4)+([] if first else R('v',d,4)),writes=R('v',d,4),cread=([] if first else R('v',d,4)))
    def finish(s,T,off):
        e=s.epilogue(T,off)
        if T in s.imm:
            s.read_o(T,s.imm[T][0],e)
            if s.imm[T][1] is not None: s.store_o(T,e+s.cfg.get('stlag',10),s.imm[T][1])
    def sm(s,n,T,first):
        b=n%s.NB; S=vS[b]; p=vP[s.pbuf[n]]; mc=vMCs[s.slot[T]]; zero=s.cfg.get('zero'); pre=T in s.pres
        if pre: mc=vCI[T]
        if first and not zero:
            t0,t1=(mc,None) if s.cfg.get('bperm',True) else (vT0,vT1)
            V=lambda txt,rd,wr,k='valu': s.add(txt,k,reads=[f"v{x}" for x in rd],writes=[f"v{x}" for x in wr],margin=1)
            V(f"v_max3_f32 v{t0}, v{S}, v{S+1}, v{S+2}",[S,S+1,S+2],[t0])
            V(f"v_max_f32 v{t0}, v{t0}, v{S+3}",[t0,S+3],[t0])
            if s.cfg.get('bperm',True):
                s.add(f"ds_bpermute_b32 v{t0}, v{vBp}, v{t0}",'dsr',reads=[f"v{t0}"],writes=[f"v{t0}"],margin=6)
            else:
                V(f"v_mov_b32 v{t1}, v{t0}",[t0],[t1])
                V(f"v_permlane16_swap_b32 v{t0}, v{t1}",[t0,t1],[t0,t1],'perm')
                V(f"v_max_f32 v{t0}, v{t0}, v{t1}",[t0,t1],[t0])
                V(f"v_mov_b32 v{t1}, v{t0}",[t0],[t1])
                V(f"v_permlane32_swap_b32 v{t0}, v{t1}",[t0,t1],[t0,t1],'perm')
                V(f"v_max_f32 v{t0}, v{t0}, v{t1}",[t0,t1],[t0])
            if pre:
                V(f"v_xor_b32 v{mc}, 0x80000000, v{t0}",[t0],[mc])
                for r in range(1,4): V(f"v_mov_b32 v{mc+r}, v{mc}",[mc],[mc+r])
            else: V(f"v_mul_f32 v{mc}, 0x{f2u(-CSC):08x}, v{t0}",[t0],[mc])
        sp=s.cfg.get('smsp',3)
        for k in range(4):
            for i in (2*k,2*k+1):
                if pre:
                    if first: s.add(f"v_add_f32 v{S+i}, v{S+i}, v{mc}",'valu',reads=[f"v{S+i}",f"v{mc}"],writes=[f"v{S+i}"],margin=1)
                elif T in s.cfg.get('fake',()) and not first: pass
                elif zero: s.add(f"v_mul_f32 v{S+i}, s{sC}, v{S+i}",'valu',reads=[f"v{S+i}"],writes=[f"v{S+i}"],margin=1)
                else: s.add(f"v_fma_f32 v{S+i}, v{S+i}, s{sC}, v{mc}",'valu',reads=[f"v{S+i}",f"v{mc}"],writes=[f"v{S+i}"],margin=1)
            for i in (2*k,2*k+1):
                s.add(f"v_exp_f32 v{S+i}, v{S+i}",'trans',reads=[f"v{S+i}"],writes=[f"v{S+i}"],margin=1+(i%2==0))
            s.add(f"v_cvt_pk_bf16_f32 v{p+k}, v{S+2*k}, v{S+2*k+1}",'valu',reads=[f"v{S+2*k}",f"v{S+2*k+1}"],writes=[f"v{p+k}"],margin=1+sp*(3-k))
    def epilogue(s,T,off=0):
        slot=s.slot[T]; g0=s.now()+off; l=vL[T%2]; buf=s.obuf[T]; tmp=(vT0 if s.cfg.get('bperm',True) else l+1); a=aSum(slot)+2*(slot%2)
        direct=s.cfg.get('direct')
        if not direct:
            assert s.stgown[buf] is None, ("stg busy O",T,s.stgown); s.stgown[buf]=('O',T)
        if not s.owdone and not direct:
            assert len(s.qread)==12
            s.owdone=True
            s.add(f"v_xor_b32 v{vOw[2]}, 64, v{vOw[0]}",'valu',reads=[f"v{vOw[0]}"],writes=[f"v{vOw[2]}"])
            s.add(f"v_xor_b32 v{vOw[3]}, 64, v{vOw[1]}",'valu',reads=[f"v{vOw[1]}"],writes=[f"v{vOw[3]}"])
        s.add(f"v_accvgpr_read_b32 v{l}, a{a}",'valu',reads=[f"a{a}"],writes=[f"v{l}"],deadline=g0-1)
        s.add(f"v_accvgpr_read_b32 v{tmp}, a{a+1}",'valu',reads=[f"a{a+1}"],writes=[f"v{tmp}"],deadline=g0-1)
        s.add(f"v_add_f32 v{l}, v{l}, v{tmp}",'valu',reads=[f"v{l}",f"v{tmp}"],writes=[f"v{l}"],deadline=g0)
        s.add(f"v_cmp_ngt_f32_e64 s[{sFlag+2*T}:{sFlag+2*T+1}], s{sTH}, v{l}",'valu',reads=[f"v{l}"],writes=[f"s{sFlag+2*T}"],deadline=g0)
        s.add(f"v_rcp_f32 v{l}, v{l}",'trans',reads=[f"v{l}"],writes=[f"v{l}"],deadline=g0+1)
        G=g0+3
        def pks(ts):
          for t in ts:
            o=vO(slot,t)
            for i in (0,2):
                s.add(f"v_pk_mul_f32 v[{o+i}:{o+i+1}], v[{o+i}:{o+i+1}], v[{l}:{l+1}] op_sel_hi:[1,0]",'pk',reads=[f"v{o+i}",f"v{o+i+1}",f"v{l}"],writes=[f"v{o+i}",f"v{o+i+1}"],release=G,deadline=G)
        pks(range(8) if direct else range(4))
        W=s.cfg.get('epiw',12)
        if direct:
            for m in range(4):
                o=vO(slot,2*m); d=G+(W*m)//4
                for i in range(4):
                    s.add(f"v_cvt_pk_bf16_f32 v{o+i}, v{o+2*i}, v{o+2*i+1}",'valu',reads=[f"v{o+2*i}",f"v{o+2*i+1}"],writes=[f"v{o+i}"],deadline=d+i//2)
                for i in range(2):
                    s.add(f"v_permlane16_swap_b32 v{o+i}, v{o+i+2}",'perm',reads=[f"v{o+i}",f"v{o+i+2}"],writes=[f"v{o+i}",f"v{o+i+2}"],deadline=d+2+i)
            return G+4
        if s.cfg.get('w2',True) and T<s.cfg.get('w2last',11):
            pks(range(4,8))
            for t in range(4):
                d=G+(W*t)//4
                for u in (t,t+4):
                    o=vO(slot,u)
                    for i in range(2):
                        s.add(f"v_cvt_pk_bf16_f32 v{o+i}, v{o+2*i}, v{o+2*i+1}",'valu',reads=[f"v{o+2*i}",f"v{o+2*i+1}"],writes=[f"v{o+i}"],deadline=d+(u>=4))
                o=vO(slot,t); p=vO(slot,t+4)
                s.add(f"ds_write2st64_b64 v{vOw[t]}, v[{o}:{o+1}], v[{p}:{p+1}] offset0:{buf*8} offset1:{buf*8+2}",'dsw',reads=[f"v{o}",f"v{o+1}",f"v{p}",f"v{p+1}",f"v{vOw[t]}"],writes=[f"L:stg{buf}0",f"L:stg{buf}1"],deadline=d+2,cost=20)
            return G+W+1
        for t in range(8):
            if t==4: pks(range(4,8))
            o=vO(slot,t); d=G+(W*t)//8
            for i in range(2):
                s.add(f"v_cvt_pk_bf16_f32 v{o+i}, v{o+2*i}, v{o+2*i+1}",'valu',reads=[f"v{o+2*i}",f"v{o+2*i+1}"],writes=[f"v{o+i}"],deadline=d)
            s.add(f"ds_write_b64 v{vOw[t%4]}, v[{o}:{o+1}] offset:{buf*4096+(t//4)*1024}",'dsw',reads=[f"v{o}",f"v{o+1}",f"v{vOw[t%4]}"],writes=[f"L:stg{buf}{t//4}"],deadline=d+s.cfg.get('dswd',1))
        return G+W+1+s.cfg.get('dswd',1)
    def read_o(s,T,park,rel):
        buf=s.obuf[T]; s.park[T]=park
        if s.cfg.get('direct'):
            if park is None: return
            assert all(s.seen[x] in (0,16) and not (s.seen[x]==0 and x in s.qread) for x in range(12) if s.qbuf[x]==park), ("park busy",T,park)
            assert s.parkown.get(park) is None; s.parkown[park]=[T,4]
            W=s.cfg.get('epiw',12)
            for m in range(4):
                o=vO(s.slot[T],2*m)
                for i in range(4):
                    s.add(f"v_accvgpr_write_b32 a{aQ(park)+4*m+i}, v{o+i}",'valu',reads=[f"v{o+i}"],writes=[f"a{aQ(park)+4*m+i}"],deadline=rel+(W*m)//4+i//2+s.cfg.get('accslack',0))
            return
        assert all(s.seen[x] in (0,16) and not (s.seen[x]==0 and x in s.qread) for x in range(12) if s.qbuf[x]==park), ("park busy",T,park)
        assert s.stgown[buf]==('O',T); s.stgown[buf]=None
        assert s.parkown.get(park) is None, ("park has unstored data",T,park); s.parkown[park]=[T,4]
        for j in (0,2,1,3):
            kw=dict(release=rel,deadline=rel+4,hole=True)
            if j<2:
                s.add(f"ds_read_b128 {rng('a',aQ(park)+4*j,4)}, v{vOr} offset:{buf*4096+1024*j}",'dsr',
                      reads=[f"v{vOr}"],writes=R('a',aQ(park)+4*j,4)+[f"L:stg{buf}{j%2}"],**kw)
            else:
                for h in range(2):
                    s.add(f"ds_read_b64 {rng('a',aQ(park)+4*j+2*h,2)}, v{vOr} offset:{buf*4096+1024*j+8*(1-h)}",'dsr',
                          reads=[f"v{vOr}"],writes=R('a',aQ(park)+4*j+2*h,2)+[f"L:stg{buf}{j%2}"],**kw)
    def store_o(s,T,rel,step,js=(0,2,1,3)):
        it,j=divmod(T,6); park=s.park[T]
        if T>=6: rel=max(rel,s.laststore+step)
        s.laststore=rel+(len(js)-1)*step
        if s.curO!=T:
            s.add(f"s_mov_b32 s{sOffO}, {(it*768+16*j)*256}",'salu',writes=[f"s{sOffO}"],margin=1); s.curO=T
        s.nst+=len(js)
        if park is not None:
            s.parkown[park][1]-=len(js)
            if s.parkown[park][1]==0: s.parkown[park]=None
        if s.cfg.get('direct'):
            pol=s.stpol if isinstance(s.stpol,str) else s.stpol[T]
            for k,m in enumerate(js):
                p,r=('a',aQ(park)+4*m) if park is not None else ('v',vO(s.slot[T],2*m))
                s.add(f"buffer_store_dwordx4 {rng(p,r,4)}, v{vOst}, s[{sO}:{sO+3}], s{sOffO} offen offset:{64*m} {pol}",'gst',
                      reads=R(p,r,4)+[f"s{sOffO}",f"v{vOst}"],writes=['O:st'],release=rel+k*step,deadline=rel+k*step+2)
            return
        for k,j in enumerate(js):
            s.add(f"buffer_store_dwordx4 {rng('a',aQ(park)+4*j,4)}, v{vOst}, s[{sO}:{sO+3}], s{sOffO} offen offset:{(j//2)*2048+(j%2)*128} {s.stpol if isinstance(s.stpol,str) else s.stpol[T]}",'gst',
                  reads=R('a',aQ(park)+4*j,4)+[f"s{sOffO}",f"v{vOst}"],writes=['O:st'],release=rel+k*step,deadline=rel+k*step+2)
    def build(s):
        cfg=s.cfg; LAG=s.LAG
        visits=cfg['visits']
        s.slot={T:T%6 for T in range(12)}
        s.qbuf=cfg.get('qbuf',{**{T:T for T in range(10)},10:0,11:1})
        s.obuf={T:T%2 for T in range(12)}; s.park={}; s.curO=None
        s.pres=set(cfg.get('pres',())); s.imm=cfg.get('oimm',{}); s.zeroed=set(); s.pending_epi=None; s.owdone=False
        s.allread=defaultdict(int)
        for g,ts in visits:
            s.allread[('K',g)]+=1; s.allread[('V',g)]+=1
        ms=[]
        for vi,(g,ts) in enumerate(visits):
            for k,T in enumerate(ts): ms.append((vi,g,T,k==0,k==len(ts)-1))
        cnt=defaultdict(int)
        for m in ms: cnt[m[2]]+=1
        assert all(cnt[T]==16 for T in range(12)) and len({(m[1],m[2]) for m in ms})==192
        assert all(m[1]//16==m[2]//6 for m in ms)
        s.summode={}; s.pbuf={}; pb=0; n=0
        while n<len(ms):
            T=ms[n][2]
            if cfg.get('smf',True) and T%2==0 and n+1<len(ms)-(2 if cfg.get('lastsingle',True) else 0) and ms[n+1][2]==T+1:
                if pb%2: pb+=1
                s.summode[n]='first'; s.summode[n+1]='second'; s.pbuf[n]=pb%4; s.pbuf[n+1]=(pb+1)%4; pb+=2; n+=2
            else:
                s.summode[n]='single'; s.pbuf[n]=pb%4; pb+=1; n+=1
        plan=defaultdict(list)
        for n,u in cfg['plan']: plan[n].append(u)
        s.curoff=None
        def doplan(n):
            rel=s.now(); us=plan.get(n,[])
            nd=sum({'B':4,'K':2,'V':2,'Q':4}.get(u[0],0) for u in us)
            step = 0 if n<0 else max(1,cfg.get('span',16)//max(nd,1))
            for u in us:
                st = u[2] if len(u)>2 and u[0] in 'BKVQ' else step
                s.urgent = u[0] in 'BKVQ' and st<=1 and cfg.get('urgent',True)
                if s.urgent and rel<0: st=0
                if u[0]=='B':
                    s.dma_kv('K',u[1],rel,st); s.dma_kv('V',u[1],rel+2*st,st); rel+=4*st
                elif u[0] in 'KV':
                    s.dma_kv(u[0],u[1],rel,st); rel+=2*st
                elif u[0]=='Q':
                    s.dma_q(u[1],rel,st); rel+=4*st
                elif u[0]=='q': s.read_q(u[1],s.now()+(u[2] if len(u)>2 else 0)); rel=max(rel,s.now()+(u[2] if len(u)>2 else 0))
                elif u[0]=='p': s.prescale(u[1],s.now(),u[2] if len(u)>2 else 0)
                elif u[0]=='o': s.read_o(u[1],u[2],s.now())
                elif u[0]=='s': s.store_o(u[1],s.now(),u[2],*u[3:])
                elif u[0]=='bar': s.barrier()
                elif u[0]=='c': s.add(f"buffer_load_dword a252, v{vDMA}, s[36:39], s35 offen",'gld',writes=['O:vm'],release=s.now(),deadline=s.now()+12)
        s.msbb={}; seen=defaultdict(int); seenpv=defaultdict(int); s.seen=defaultdict(int); s.qread=set(); s.stgown=[None,None]; s.parkown={}; s.nst=0; s.laststore=-99
        barset=cfg.get('barvisits')
        doplan(-1)
        s.barrier(); s.read_k(ms[0][1],s.KORD)
        N=len(ms)
        for n in range(N+LAG):
            if n<N:
                vi,g,T,fi,la=ms[n]
                if la and n+1<N and (barset is None or vi+1 in barset) and n not in cfg.get('nobar',()) and n<=cfg.get('lastbar',999): s.barrier()
                doplan(n)
                assert T in s.qread, ('Q not loaded',T)
                s.msbb[n]=s.nbb
                s.qk(n,T); s.seen[T]+=1
            m=n-LAG
            if m>=0:
                T1=ms[m][2]
                s.pv(m,T1,seenpv[T1]==0); seenpv[T1]+=1
                if seenpv[T1]==16:
                    if s.summode[m]=='first': s.pending_epi=T1
                    else: s.finish(T1,0)
            if n<N:
                s.sm(n,T,seen[T]==0); seen[T]+=1
                if la and n+1<N: s.read_k(ms[n+1][1],s.KORD)
            if m+1>=0 and m+1<N and ms[m+1][3]: s.read_v(ms[m+1][1])
        assert s.nst==48
        s.P.ops=[o for o in s.P.ops if not (o.kind=='bar' and not o.reads)]
        for i,o in enumerate(s.P.ops): o.idx=i
        out=s.P.schedule(ldsrate=cfg.get('ldsrate',1024),ldsburst=cfg.get('ldsburst',1024),dswd=cfg.get('dswd',1),dswsp=cfg.get('dswsp',1),holeburst=cfg.get('holeburst',12),wdma=cfg.get('wdma',-1),dmaw=cfg.get('dmaw',-1))
        out=insert_waits(out,cfg.get('merge',9))
        verify_waits(out)
        check_hazards(out)
        return out

def PRO(cfg):
  t=f"""
    s_cmp_ge_u32 s2, 256
    s_cbranch_scc1 L_end
    s_load_dwordx4 s[64:67], s[0:1], 0
    s_load_dwordx4 s[68:71], s[0:1], 16
    v_lshrrev_b32 v1, 6, v0
    s_lshr_b32 s73, s2, 3
    s_getpc_b64 s[86:87]
L_pc:
    v_and_b32 v2, 31, v0
    v_lshlrev_b32 v2, 12, v2
    s_lshl_b32 s88, s73, 7
    v_add_u32 v2, s88, v2
    v_min_u32 v2, L_end-L_main, v2
    s_add_u32 s86, s86, L_main-L_pc
    s_addc_u32 s87, s87, 0
    v_readfirstlane_b32 s{sW}, v1
    v_and_b32 v0, 63, v0
    global_load_dword v4, v2, s[86:87]
    s_and_b32 s72, s2, 7
    s_lshr_b32 s74, s73, 1
    s_and_b32 s75, s73, 1
    s_lshl_b32 s72, s72, 4
    s_add_u32 s72, s72, s74
    s_lshl_b32 s76, s72, 18
    s_mul_i32 s77, s72, {2*768*256}
    s_mul_i32 s78, s75, {384*256}
    s_add_u32 s77, s77, s78
    s_and_b32 s79, s{sW}, 1
    s_lshr_b32 s80, s{sW}, 1
    s_lshl_b32 s81, s79, 10
    s_lshl_b32 s82, s80, 12
    s_add_u32 s{sWL}, s81, s82       ; LDS: (w&1)*1024 + (w>>1)*4096
    s_lshl_b32 s81, s79, 7
    s_add_u32 s81, s81, s82          ; global: (w&1)*128 + (w>>1)*4096
    s_mul_i32 s83, s{sW}, 24576
    s_sub_u32 s{sWQ}, s83, s81
    s_lshl_b32 s{sWS}, s{sW}, 13
    ; DMA voffset: (i>>3)*256 + ((i&7)^((i>>3)&6))*16 + wave part
    v_lshrrev_b32 v1, 3, v0
    v_and_b32 v2, 6, v1
    v_and_b32 v3, 7, v0
    v_xor_b32 v2, v2, v3
    v_lshlrev_b32 v2, 4, v2
    v_lshl_add_u32 v2, v1, 8, v2
    v_add_u32 v{vDMA}, s81, v2
    s_mov_b32 s{sQ+2}, {1152*256}
    s_mov_b32 s{sQ+3}, 0x20000
    s_mov_b32 s{sK+2}, 0x40000
    s_mov_b32 s{sK+3}, 0x20000
    s_mov_b32 s{sV+2}, 0x40000
    s_mov_b32 s{sV+3}, 0x20000
    s_mov_b32 s{sO+2}, {1152*256}
    s_mov_b32 s{sO+3}, 0x20000
    s_waitcnt lgkmcnt(0)
    s_add_u32 s{sQ}, s64, s77
    s_addc_u32 s{sQ+1}, s65, 0
    s_add_u32 s{sK}, s66, s76
    s_addc_u32 s{sK+1}, s67, 0
    s_add_u32 s{sV}, s68, s76
    s_addc_u32 s{sV+1}, s69, 0
    s_add_u32 s{sO}, s70, s77
    s_addc_u32 s{sO+1}, s71, 0
"""
  if cfg.get('adj'):
    t=t.replace("    s_add_u32 s72, s72, s74          ; pair index 0..127\n","    s_lshr_b32 s72, s2, 1\n    s_and_b32 s75, s2, 1\n")
  return t
PRO2 = f"""
    s_mov_b32 s{sC}, 0x{f2u(CSC):08x}
    s_mov_b32 s{sTH}, 0x5f800000
    s_mov_b32 s{sMSK}, 0xffff0000
    s_mov_b32 s36, s86
    s_mov_b32 s37, s87
    s_mov_b32 s38, L_end-L_main
    s_mov_b32 s39, 0x20000
    s_lshl_b32 s35, s74, 13
    s_lshl_b32 s34, s75, 11
    s_add_u32 s35, s35, s34
    s_add_u32 s84, s{sWS}, {STG}
    v_xor_b32 v2, v1, v3
    v_lshlrev_b32 v2, 4, v2
    v_lshl_add_u32 v2, v1, 8, v2
    v_add_u32 v{vOst}, s83, v2
    v_lshl_add_u32 v{vOr}, v0, 4, s84
    v_and_b32 v1, 15, v0
    v_lshrrev_b32 v2, 4, v0
    v_lshlrev_b32 v{vBp}, 2, v1
    v_and_b32 v5, 7, v1
    v_lshlrev_b32 v6, 7, v5
    v_lshrrev_b32 v7, 3, v1
    v_lshl_add_u32 v6, v7, 11, v6
    v_and_b32 v3, 6, v1
    v_xor_b32 v3, v3, v2
    v_lshl_add_u32 v{vKa[0]}, v3, 4, v6
    v_xor_b32 v{vKa[1]}, 64, v{vKa[0]}
    v_add_u32 v{vQa[0]}, s84, v{vKa[0]}
    v_add_u32 v{vQa[1]}, s84, v{vKa[1]}
    v_lshrrev_b32 v3, 1, v2
    v_xor_b32 v3, v3, v5
    v_lshl_add_u32 v3, v3, 4, v6
    v_and_b32 v2, 1, v2
    v_xor_b32 v2, v2, v7
    v_lshl_add_u32 v3, v2, 3, v3
    v_add_u32 v{vOw[0]}, s84, v3
    v_xor_b32 v{vOw[1]}, 32, v{vOw[0]}
    v_lshrrev_b32 v1, 2, v0
    v_and_b32 v2, 6, v1
    v_bfe_u32 v3, v0, 1, 1
    v_xor_b32 v2, v2, v3
    v_lshlrev_b32 v2, 4, v2
    v_and_b32 v3, 1, v0
    v_lshl_add_u32 v2, v3, 3, v2
    v_and_b32 v3, 7, v1
    v_lshl_add_u32 v2, v3, 7, v2
    v_lshrrev_b32 v3, 3, v1
    v_lshl_add_u32 v2, v3, 11, v2
    v_add_u32 v{vVa[0]}, {VRING}, v2
    v_xor_b32 v{vVa[1]}, 32, v{vVa[0]}
    v_xor_b32 v{vVa[2]}, 64, v{vVa[0]}
    v_xor_b32 v{vVa[3]}, 0x60, v{vVa[0]}
    ; row-sum operands: sparse pair pattern, index, and dense single-tile patterns
    v_mov_b32 v1, 0x3f803f80
    v_bfe_u32 v2, v0, 1, 1
    v_lshrrev_b32 v3, 5, v0
    v_cmp_eq_u32 vcc, v2, v3
    v_and_b32 v5, 3, v0
    v_mov_b32 v6, 0x4444
    v_cndmask_b32 v2, 0, v1, vcc
    v_cmp_eq_u32 vcc, 0, v5
    v_accvgpr_write_b32 a{aOneS}, v2
    v_accvgpr_write_b32 a{aOneS+1}, v2
    v_cndmask_b32 v3, 0, v1, vcc
    v_cmp_eq_u32 vcc, 2, v5
    v_accvgpr_write_b32 a{aOneS+2}, v2
    v_accvgpr_write_b32 a{aOneS+3}, v2
    v_cndmask_b32 v2, 0, v1, vcc
    v_and_b32 v5, 1, v0
    v_mul_u32_u24 v5, 0xaaaa, v5
    v_add_u32 v{vIdx}, v5, v6
    v_accvgpr_write_b32 a{aOneD[0]}, v3
    v_accvgpr_write_b32 a{aOneD[0]+1}, v3
    v_accvgpr_write_b32 a{aOneD[0]+2}, v3
    v_accvgpr_write_b32 a{aOneD[0]+3}, v3
    v_accvgpr_write_b32 a{aOneD[1]}, v2
    v_accvgpr_write_b32 a{aOneD[1]+1}, v2
    v_accvgpr_write_b32 a{aOneD[1]+2}, v2
    v_accvgpr_write_b32 a{aOneD[1]+3}, v2
"""

def slow_path():
    L=[]
    A=L.append
    A("    s_or_b64 s[64:65], s[40:41], s[42:43]")
    for T in range(2,12): A(f"    s_or_b64 s[64:65], s[64:65], s[{sFlag+2*T}:{sFlag+2*T+1}]")
    A("    s_cbranch_scc0 L_end")
    A("    s_mov_b32 s66, 0")
    for T in range(12):
        A(f"    s_cmp_lg_u64 s[{sFlag+2*T}:{sFlag+2*T+1}], 0")
        A(f"    s_cselect_b32 s67, {1<<T}, 0")
        A("    s_or_b32 s66, s66, s67")
    A("    s_waitcnt vmcnt(0) lgkmcnt(0)")
    A("    v_mbcnt_lo_u32_b32 v8, -1, 0")
    A("    v_mbcnt_hi_u32_b32 v8, -1, v8")
    A("    v_and_b32 v9, 15, v8")
    A("    v_lshrrev_b32 v10, 4, v8")
    A("    v_lshlrev_b32 v11, 4, v10")
    A("    v_lshl_add_u32 v14, v9, 8, v11")
    A("    v_add_u32 v15, s83, v14")
    A("    v_and_b32 v11, 1, v10")
    A("    v_lshlrev_b32 v11, 1, v11")
    A("    v_lshrrev_b32 v12, 1, v10")
    A("    v_or_b32 v11, v11, v12")
    A("    v_lshlrev_b32 v11, 4, v11")
    A("    v_lshl_add_u32 v11, v9, 8, v11")
    A("    v_add_u32 v13, s83, v11")
    A(f"    v_subrev_u32 v16, s81, v{vDMA}")
    A(f"    s_add_u32 s68, s{sWS}, {STG-VRING}")
    for i in range(4): A(f"    v_add_u32 v{20+i}, s68, v{vVa[i]}")
    for i in range(4): A(f"    v_mov_b32 v{196+i}, 0x3f803f80")
    A("    s_mov_b32 s69, 0")
    A("L_slow_tile:")
    A("    s_bitcmp1_b32 s66, s69")
    A("    s_cbranch_scc0 L_slow_next")
    A("    s_cmp_ge_u32 s69, 6")
    A("    s_cselect_b32 s70, 0x20000, 0")
    A(f"    s_cselect_b32 s71, {(768-96)*256}, 0")
    A("    s_lshl_b32 s72, s69, 12")
    A("    s_add_u32 s71, s71, s72                ; q/o offset")
    for st in range(4): A(f"    buffer_load_dwordx4 v[{64+4*st}:{67+4*st}], v15, s[{sQ}:{sQ+3}], s71 offen offset:{64*st}")
    A("    v_mov_b32 v17, 0xff800000")
    A("    s_mov_b32 s72, s70")
    A("    s_add_u32 s73, s70, 0x20000")
    A("L_slow_max:")
    for st in range(4): A(f"    buffer_load_dwordx4 v[{80+4*st}:{83+4*st}], v14, s[{sK}:{sK+3}], s72 offen offset:{64*st}")
    A("    s_waitcnt vmcnt(0)")
    for st in range(4): A(f"    v_mfma_f32_16x16x32_bf16 v[0:3], v[{80+4*st}:{83+4*st}], v[{64+4*st}:{67+4*st}], {'0' if st==0 else 'v[0:3]'}")
    A("    s_nop 15")
    A("    v_max3_f32 v17, v17, v0, v1")
    A("    v_max3_f32 v17, v17, v2, v3")
    A("    s_add_u32 s72, s72, 4096")
    A("    s_cmp_lt_u32 s72, s73")
    A("    s_cbranch_scc1 L_slow_max")
    for sw in ("16","32"):
        A("    v_mov_b32 v18, v17"); A("    s_nop 1")
        A(f"    v_permlane{sw}_swap_b32 v17, v18"); A("    s_nop 1")
        A("    v_max_f32 v17, v17, v18")
    A(f"    v_mul_f32 v17, 0x{f2u(-CSC):08x}, v17")
    for r in range(160,196): A(f"    v_mov_b32 v{r}, 0")
    A("    s_mov_b32 s72, s70")
    A("L_slow_blk:")
    A("    s_add_u32 s74, s72, 4096")
    for f in range(8):
        kt,st=divmod(f,4)
        A(f"    buffer_load_dwordx4 v[{80+4*f}:{83+4*f}], v14, s[{sK}:{sK+3}], {'s72' if kt==0 else 's74'} offen offset:{64*st}")
    for kt in range(2):
        for half in range(2):
            A(f"    s_add_u32 m0, s{sWS}, {STG+kt*4096+half*896}")
            A("    s_nop 0")
            for oc in range(2):
                A(f"    buffer_load_dwordx4 v16, s[{sV}:{sV+3}], {'s72' if kt==0 else 's74'} offen offset:{2048*oc+128*half} lds")
    A("    s_waitcnt vmcnt(0)")
    for t in range(8):
        for kt in range(2):
            A(f"    ds_read_b64_tr_b16 v[{112+4*t+2*kt}:{113+4*t+2*kt}], v{20+t%4} offset:{kt*4096+(t//4)*1024}")
    for f in range(8):
        kt,st=divmod(f,4); d=4*kt
        A(f"    v_mfma_f32_16x16x32_bf16 v[{d}:{d+3}], v[{80+4*f}:{83+4*f}], v[{64+4*st}:{67+4*st}], {'0' if st==0 else f'v[{d}:{d+3}]'}")
    A("    s_nop 15")
    for i in range(8): A(f"    v_fma_f32 v{i}, v{i}, s{sC}, v17")
    for i in range(8): A(f"    v_exp_f32 v{i}, v{i}")
    A("    s_nop 1")
    for k in range(4): A(f"    v_cvt_pk_bf16_f32 v{24+k}, v{2*k}, v{1+2*k}")
    A("    s_waitcnt lgkmcnt(0)")
    A("    s_nop 1")
    for t in range(8): A(f"    v_mfma_f32_16x16x32_bf16 v[{160+4*t}:{163+4*t}], v[{112+4*t}:{115+4*t}], v[24:27], v[{160+4*t}:{163+4*t}]")
    A("    v_mfma_f32_16x16x32_bf16 v[192:195], v[196:199], v[24:27], v[192:195]")
    A("    s_add_u32 s72, s72, 8192")
    A("    s_cmp_lt_u32 s72, s73")
    A("    s_cbranch_scc1 L_slow_blk")
    A("    s_nop 15")
    A("    v_rcp_f32 v18, v192")
    A("    s_nop 1")
    for r in range(160,192): A(f"    v_mul_f32 v{r}, v{r}, v18")
    for m in range(4):
        o=160+8*m
        for i in range(4): A(f"    v_cvt_pk_bf16_f32 v{o+i}, v{o+2*i}, v{o+2*i+1}")
        A("    s_nop 1")
        for i in range(2): A(f"    v_permlane16_swap_b32 v{o+i}, v{o+i+2}")
        A(f"    buffer_store_dwordx4 v[{o}:{o+3}], v13, s[{sO}:{sO+3}], s71 offen offset:{64*m}")
    A("    s_waitcnt vmcnt(0)")
    A("L_slow_next:")
    A("    s_add_u32 s69, s69, 1")
    A("    s_cmp_lt_u32 s69, 12")
    A("    s_cbranch_scc1 L_slow_tile")
    return "\n".join(L)+"\n"

def isize(t):
    if 'L_thrw' in t: return 12
    t=t.strip(); op=t.split()[0]
    if op.startswith(('v_mfma','v_smfmac','ds_','buffer_','global_','v_fma_f32','v_cvt_pk','v_max3','v_pk_','v_accvgpr','v_writelane','s_mem')) or op.endswith('_e64'): return 8
    if op in('s_waitcnt','s_barrier','s_nop') or op.startswith('s_cbranch'): return 4
    for a in t.split(None,1)[1].replace(',',' ').split():
        try: v=int(a,0)
        except ValueError: continue
        if not -16<=v<=64: return 8
    return 4

HEAD = open('cdna_kernels/'+NAME+'.s.ref').read().split('; Override')[0]
def emit(cfg, path):
    g=Gen(cfg); out=g.build()
    abl=cfg.get('ablate')
    if abl:
        nb=0; o2=[]
        for o in out:
            if o.kind=='bar': nb+=1
            if nb>=3 and any((a==o.kind) or (a in o.text) for a in abl): continue
            o2.append(o)
        out=o2
    marks=[]; est=estimate(out,marks)
    stamp=cfg.get('stamp'); warm=cfg.get('warm',True)
    SST=[x for x in list(range(64,81))+list(range(85,90))+list(range(92,102))]
    ns=[0]
    def st2():
        i=ns[0]; ns[0]+=1
        return ["s_memtime s[90:91]","s_memrealtime s[2:3]","s_waitcnt lgkmcnt(0)",f"s_mov_b32 s{SST[2*i]}, s90",f"s_mov_b32 s{SST[2*i+1]}, s2"]
    if stamp: first_st=st2(); stbb={g.msbb[n] for n in stamp}
    k0=0
    while out[k0].kind in('dma','salu','nop'): k0+=1
    first=[o.text for o in out[:k0]]; nfirst=sum(1 for o in out[:k0] if o.kind=='dma')
    lines=[]; ndma=nfirst; nbar=0; nm=0; probe=cfg.get('probe')
    for k in range(k0,len(out)):
        o=out[k]
        if cfg.get('thr') and o.kind=='dma':
            if ndma<cfg['thr'][1] and ndma%2==0:
                lines+=[(f"s_cmp_eq_u32 s{sPar}, 0\n s_cbranch_scc0 L_thrw{ndma}\n s_waitcnt vmcnt({cfg['thr'][2]})\nL_thrw{ndma}:",'salu')]
            ndma+=1
        lines.append((o.text,o.kind))
        if o.kind=='bar': nbar+=1
        if probe and o.kind=='mfma' and o.bb in [g.msbb.get(x) for x in probe[:2] if x not in (0,99,100,-1)]:
            r = 92 if o.bb==g.msbb.get(probe[0]) else 94
            lines+=[(f"s_mem{'real' if probe[2]=='rt' else ''}time s[{r}:{r+1}]",'x'),("s_waitcnt lgkmcnt(0)",'x')]
        if stamp and o.kind=='mfma' and o.bb in stbb: lines+=[(x,'x') for x in st2()]
    body=[]; addr=0; page=0; stubs=0
    tot=sum(isize(t) for t,_ in lines); npages=(tot+200)//4096+1
    for i,(t,kd) in enumerate(lines):
        if warm and addr>=page*4096 and page<npages:
            prevm = i>0 and lines[i-1][1]=='mfma'
            if (prevm and kd not in SC_KINDS) or addr+isize(t)>page*4096+56 or page==0:
                nxt=page+4
                body.append(f"L_stub{page}:\n s_cbranch_vccnz {'L_stub%d'%nxt if nxt<npages else 'L_back'}\n")
                body.append(f".if ((L_stub{page}-L_main)>>6) != {page*64}\n.error \"stub misplaced\"\n.endif\n")
                addr+=4; page+=1
        body.append(" "+t+"\n"); addr+=isize(t)
    while warm and page<npages:
        body.append(f"L_stub{page}:\n s_cbranch_vccnz L_back\n"); page+=1
    txt=HEAD+"; @launch grid=(256,1,1) block=(256,1,1) lds=163840\n"
    txt+=f'.amdgcn_target "amdgcn-amd-amdhsa--gfx950"\n.text\n.globl {NAME}_kernel\n.p2align 8\n.type {NAME}_kernel,@function\n{NAME}_kernel:\n'
    if probe:
        txt+=" s_memrealtime s[90:91]\n"
        if probe[0]==0: txt+=f" s_mem{'real' if probe[2]=='rt' else ''}time s[92:93]\n"
        txt+=" s_waitcnt lgkmcnt(0)\n"
        if cfg.get('gstart'):
            txt+=" s_load_dwordx2 s[34:35], s[0:1], 32\n s_not_b32 s36, s90\n v_mov_b32 v10, s36\n v_mov_b32 v11, 0\n s_waitcnt lgkmcnt(0)\n v_cmp_eq_u32 vcc, 0, v0\n s_and_saveexec_b64 s[36:37], vcc\n s_cbranch_execz L_gs\n global_atomic_umax v11, v10, s[34:35]\nL_gs:\n s_mov_b64 exec, s[36:37]\n"
    if stamp and cfg.get('stamp0'):
        txt+=" s_memtime s[90:91]\n s_memrealtime s[92:93]\n s_waitcnt lgkmcnt(0)\n s_mov_b32 s5, s90\n s_mov_b32 s6, s92\n"
    if cfg.get('pre_nop'):
        txt+=f" s_mov_b32 s64, {cfg['pre_nop']}\nL_pn:\n"+" s_nop 15\n"*16+" s_sub_u32 s64, s64, 1\n s_cmp_lg_u32 s64, 0\n s_cbranch_scc1 L_pn\n"
    txt+=PRO(cfg)
    thr=cfg.get('thr')
    if thr:
        k1,KK,W=thr
        cut=[i for i,o in enumerate(out[:k0]) if o.kind=='dma'][k1-1]+1
        txt+=f"    s_getreg_b32 s{sPar}, hwreg(HW_REG_XCC_ID, 0, 1)\n"
        if cfg.get('thrinv'): txt+=f"    s_xor_b32 s{sPar}, s{sPar}, 1\n"
        txt+="".join(" "+t+"\n" for t in first[:cut])
        txt+=f"    s_cmp_eq_u32 s{sPar}, 0\n    s_cbranch_scc1 L_thr0\n"+"".join(" "+t+"\n" for t in first[cut:])+"L_thr0:\n"
    else:
        txt+="".join(" "+t+"\n" for t in first)
    if stamp: txt+=" s_mov_b32 s4, s2\n"+"".join(" "+x+"\n" for x in first_st)
    txt+=PRO2
    if cfg.get('direct'):
        txt+=f"""    ; O store offset after the row swaps: r*256 + 16*[0,2,1,3][g] + w*24576
    v_and_b32 v1, 15, v0
    v_bfe_u32 v2, v0, 4, 1
    v_lshrrev_b32 v3, 5, v0
    v_lshl_add_u32 v2, v2, 1, v3
    v_lshlrev_b32 v2, 4, v2
    v_lshl_add_u32 v2, v1, 8, v2
    v_add_u32 v{vOst}, s83, v2
"""
    if 0 in g.pres:
        for r in range(4): txt+=f"    v_accvgpr_write_b32 a{aSave+r}, v{vCI[0]+r}\n"
    txt+=f"    s_waitcnt vmcnt({nfirst})\n"
    if thr: txt+=f"    s_cmp_eq_u32 s{sPar}, 0\n    s_cbranch_scc0 L_thr1\n    s_waitcnt vmcnt({k1})\nL_thr1:\n"
    if warm:
        txt+="    ; touch the first line of every 4 KB code page (instruction-cache warm-up while the first loads are in flight)\n    s_mov_b64 vcc, -1\n"
        for w in range(3): txt+=f"    s_cmp_eq_u32 s{sW}, {w}\n    s_cbranch_scc1 L_stub{w}\n"
        txt+="    s_branch L_stub3\n"
        txt+="L_back:\n    s_mov_b64 vcc, 0\n"
    if thr:
        txt+=f"    s_cmp_eq_u32 s{sPar}, 0\n    s_cbranch_scc0 L_main\n"
        nd=0
        for o in out[cut:k0]:
            if o.kind=='dma':
                if nd%2==0: txt+=f" s_waitcnt vmcnt({W})\n"
                nd+=1
            txt+=" "+o.text+"\n"
    txt+="    s_branch L_main\n.p2align 12\nL_main:\n"
    txt+="".join(body)
    if stamp:
        txt+="".join(" "+x+"\n" for x in st2())
        txt+=" s_waitcnt vmcnt(0)\n"+"".join(" "+x+"\n" for x in st2())
        txt+=" v_mov_b32 v2, 0\n v_mov_b32 v3, 0\n"
        o_=1 if cfg.get('stamp0') else 0
        if o_: txt+=" v_writelane_b32 v2, s5, 0\n v_writelane_b32 v3, s6, 0\n"
        for i in range(ns[0]): txt+=f" v_writelane_b32 v2, s{SST[2*i]}, {i+o_}\n v_writelane_b32 v3, s{SST[2*i+1]}, {i+o_}\n"
        txt+=f""" s_load_dwordx2 s[92:93], s[0:1], 40
 s_lshl_b32 s90, s4, 2
 s_add_u32 s90, s90, s{sW}
 s_mul_i32 s90, s90, 768
 v_mbcnt_lo_u32_b32 v1, -1, 0
 v_mbcnt_hi_u32_b32 v1, -1, v1
 v_lshlrev_b32 v1, 2, v1
 v_add_u32 v1, s90, v1
 s_waitcnt lgkmcnt(0)
 global_store_dword v1, v2, s[92:93]
 global_store_dword v1, v3, s[92:93] offset:512
"""
    if probe:
        if probe[1]==99: txt+=f" s_mem{'real' if probe[2]=='rt' else ''}time s[94:95]\n s_waitcnt lgkmcnt(0)\n"
        if probe[1]==100: txt+=f" s_waitcnt vmcnt(0)\n s_mem{'real' if probe[2]=='rt' else ''}time s[94:95]\n s_waitcnt lgkmcnt(0)\n"
        if probe[1]<0: txt+=" s_mov_b32 s94, s92\n"
        if cfg.get('gstart'):
            txt+=" v_mov_b32 v11, 0\n global_load_dword v10, v11, s[34:35] sc0 sc1\n s_waitcnt vmcnt(0)\n v_readfirstlane_b32 s90, v10\n s_nop 3\n s_not_b32 s90, s90\n"
            if cfg['gstart']==2: txt+=" s_mov_b32 s92, s90\n"
        txt+=" s_sub_u32 s94, s94, s92\n"
        if probe[2]=='cyc': txt+=" s_lshr_b32 s94, s94, 4\n"
        else: txt+=" s_lshl_b32 s94, s94, 2\n"
        txt+=" s_add_u32 s94, s94, 10000\nL_spin:\n s_memrealtime s[92:93]\n s_waitcnt lgkmcnt(0)\n s_sub_u32 s92, s92, s90\n s_cmp_lt_u32 s92, s94\n s_cbranch_scc1 L_spin\n"
    if cfg.get('extra_mfma'):
        n,kind=cfg['extra_mfma']
        txt+=f" s_waitcnt vmcnt(0)\n s_mov_b32 s64, {n}\nL_xm:\n"
        L=[]
        if kind.startswith('m16'):
            for j in range(6):
                for i,f in enumerate(Gen.KORD):
                    kt,st=divmod(f,4); d=8*(j%2)+4*kt
                    L.append(f" v_mfma_f32_16x16x32_bf16 v[{d}:{d+3}], a[{160+4*f}:{163+4*f}], a[{192+16*(j%2)+4*st}:{195+16*(j%2)+4*st}], {'0' if i%4==0 else f'v[{d}:{d+3}]'}\n")
                for t in range(8):
                    d=64+32*j+4*t
                    L.append(f" v_mfma_f32_16x16x32_bf16 v[{d}:{d+3}], a[{192+4*t}:{195+4*t}], v[{24+4*(j%3)}:{27+4*(j%3)}], v[{d}:{d+3}]\n")
            if kind=='m16nop': L=[x+(" s_nop 0\n s_nop 0\n s_nop 0\n s_nop 0\n s_nop 0\n" if k%2 else "") for k,x in enumerate(L)]
            if kind=='m16v': L=[x+(f" v_exp_f32 v{40+k%8}, v{24+k%12}\n" if k%2 else f" v_fma_f32 v{48+k%8}, v{24+k%12}, s24, v{25+k%10}\n v_cvt_pk_bf16_f32 v{49+k%8}, v{24+k%12}, v{25+k%10}\n") for k,x in enumerate(L)]
        else:
            for j in range(3):
                for st in range(8):
                    L.append(f" v_mfma_f32_32x32x16_bf16 v[0:15], a[{160+4*st}:{163+4*st}], a[{192+4*((st+j)%8)}:{195+4*((st+j)%8)}], {'0' if st==0 else 'v[0:15]'}\n")
                for t in range(8):
                    d=64+64*j+16*(t%4)
                    L.append(f" v_mfma_f32_32x32x16_bf16 v[{d}:{d+15}], a[{192+4*t}:{195+4*t}], v[{24+4*((t//4+j)%3)}:{27+4*((t//4+j)%3)}], v[{d}:{d+15}]\n")
        txt+="".join(L)
        txt+=" s_sub_u32 s64, s64, 1\n s_cmp_lg_u32 s64, 0\n s_cbranch_scc1 L_xm\n s_nop 15\n"
    if cfg.get('extra_nop'):
        txt+=f" s_mov_b32 s64, {cfg['extra_nop']}\nL_xn:\n"+" s_nop 15\n"*16+" s_sub_u32 s64, s64, 1\n s_cmp_lg_u32 s64, 0\n s_cbranch_scc1 L_xn\n"
    txt+=" s_nop 1\n"+slow_path()
    txt+=f"""L_end:
    s_endpgm
.section .rodata,"a"
.p2align 6
.amdhsa_kernel {NAME}_kernel
  .amdhsa_next_free_vgpr 512
  .amdhsa_next_free_sgpr 102
  .amdhsa_accum_offset 256
  .amdhsa_group_segment_fixed_size 0
  .amdhsa_kernarg_size 48
  .amdhsa_user_sgpr_count 2
  .amdhsa_user_sgpr_kernarg_segment_ptr 1
  .amdhsa_system_sgpr_workgroup_id_x 1
.end_amdhsa_kernel
"""
    open(path,'w').write(txt)
    from collections import Counter
    print(path, "ops",len(out),"est",est, dict(Counter(o.kind for o in out)), "code",addr)
    if cfg.get('verbose'): print(' segs',[b-a for a,b in zip(marks,marks[1:]+[est])])
    if stamp and stamp is not True:
        mt=[]; estimate(out,None,mt); pts=[mt[g.msbb[n]] for n in stamp]+[est]
        print(' est stamp segs',[b-a for a,b in zip(pts,pts[1:])])
    from asm import asm
    asm(path)
    return out
```

```python
from cfgs import *
b=dict(verbose=False,pres=(0,1),snake=True,dswsp=2,holeburst=4,stpol='sc0 sc1 nt',tail=4,tailst=[12]*4+[3,3],thr=(6,12,4))
emit(mk('j4d',**b),'best.s')
import shutil; shutil.copy('best.s','cdna_kernels/'+NAME+'.s')
```

```python
import sys, math, struct
from sched import *

NAME="standalone__gqa_softmax__near_ridge"
CSC = math.log2(math.e)/math.sqrt(128.0)
def f2u(x): return struct.unpack('<I',struct.pack('<f',x))[0]

vS=[0,8,16]; vP=[24,28,32,36]; vMCs=[63,41,42,43,44,45]; vBp=40
vKa=[46,47]; vVa=[48,49,50,51]; vQa=[52,53]; vDMA=54; vIdx=55
vOw=[56,57,52,53]; vOst=58; vOr=59
vL=[60,62]; vT0=61; vT1=None
vCI={0:56,1:60}; aSave=248
vO=lambda slot,t: 64+32*slot+4*t
aQ=lambda b: 16*b
aK=lambda f: 160+4*f
aV=lambda t: 192+4*t
aSum=lambda slot: 224+4*(slot//2)
aOneS=236; aOneD=[240,244]
sQ=8; sK=12; sV=16; sO=20
sC=24; sTH=25; sWL=26 ; sWQ=27; sWS=28; sOffKV=29; sOffQ=30; sOffO=31; sW=32; sMSK=7; sPar=33
sFlag=40
KRING=0; VRING=65536; STG=131072

class Gen:
    def __init__(s, cfg):
        s.cfg=cfg; s.P=Program(); s.nbb=0; s.bars=[]; s.vis=set()
        s.R=cfg.get('ring',8); s.LAG=cfg.get('lag',2); s.NB=s.LAG+1
        s.lastread={}; s.dmadone={}; s.occ={'K':[None]*s.R,'V':[None]*s.R}; s.slotof={}; s.dmarel={}
        s.ldpol=cfg.get('ldpol','nt'); s.stpol=cfg.get('stpol','nt')
        s.urgent=False; s.win=cfg.get('dmawin',12); s.np=0 if cfg.get('dmapair',True) else 1
    def add(s,*a,**k):
        o=Op(*a,**k); s.P.add(o)
        if o.kind=='mfma': s.nbb+=1
        return o
    def now(s): return s.nbb-1
    def barrier(s):
        g=s.now()
        b=s.add("s_barrier",'bar',reads=[],writes=['barorder'],release=g,deadline=g)
        s.bars.append(b); return b
    def visible(s,part,g):
        if (part,g) in s.vis: return
        b=s.bars[-1]
        for bb in reversed(s.bars):
            if bb.reads and bb.release>=s.dmarel[(part,g)]+s.cfg.get('vislat',200) and s.dmadone[(part,g)]<bb.idx: b=bb; break
        assert s.dmadone[(part,g)]<b.idx, ("dma after barrier",part,g)
        b.reads.append(f"L:{part}{g}"); b.writes.append(f"vis{part}{g}"); s.vis.add((part,g))
    def dl(s,rel): return (rel+(0 if s.urgent else s.win)) if rel>=0 else -1
    def dma_kv(s,part,g,rel,step):
        rd=[]
        occ=s.occ[part]
        free=[x for x in range(s.R) if occ[x] is None]
        if free: slot=free[0]
        else:
            b=s.bars[-1]
            c=[x for x in range(s.R) if s.allread[(part,occ[x])]==0 and s.lastread[(part,occ[x])]<b.idx]
            assert c, ("no free slot",part,g,occ)
            slot=min(c,key=lambda x:s.lastread[(part,occ[x])]); old=occ[slot]
            for bb in s.bars:
                if bb.idx>s.lastread[(part,old)]+s.cfg.get('freegap',60) and bb.reads: b=bb; break
            b.reads.append(f"L:rd{part}{old}"); b.writes.append(f"free{part}{old}"); rd=[f"free{part}{old}"]
        occ[slot]=g; s.slotof[(part,g)]=slot
        base=(KRING if part=='K' else VRING)+slot*8192
        s.add(f"s_add_u32 m0, s{sWL}, {base}",'salu',writes=['m0'],margin=1)
        if s.curoff!=g:
            s.add(f"s_mov_b32 s{sOffKV}, {g*8192}",'salu',writes=[f"s{sOffKV}"],margin=1); s.curoff=g
        srd=sK if part=='K' else sV
        for i in range(2):
            o=s.add(f"buffer_load_dwordx4 v{vDMA}, s[{srd}:{srd+3}], s{sOffKV} offen offset:{2048*i} {s.ldpol} lds",'dma',
                  reads=['m0',f"s{sOffKV}"]+rd,writes=[f"L:{part}{g}",'O:vm'],release=rel+i*step*s.np,deadline=s.dl(rel+i*step*s.np),tag=('pair' if i and not s.np else None))
        s.dmadone[(part,g)]=o.idx; s.dmarel[(part,g)]=o.deadline
    def dma_q(s,T,rel,step):
        buf=T%2; it,j=divmod(T,6)
        assert s.stgown[buf] is None, ("stg busy",T,s.stgown); s.stgown[buf]=('Q',T)
        k=0
        for half in range(2):
            s.add(f"s_add_u32 m0, s{sWS}, {STG+buf*4096+half*896}",'salu',writes=['m0'],margin=1)
            if half==0: s.add(f"s_add_u32 s{sOffQ}, s{sWQ}, {(it*768+16*j)*256}",'salu',writes=[f"s{sOffQ}"],margin=1)
            for oc in range(2):
                s.add(f"buffer_load_dwordx4 v{vDMA}, s[{sQ}:{sQ+3}], s{sOffQ} offen offset:{2048*oc+128*half} {s.ldpol} lds",'dma',
                      reads=['m0',f"s{sOffQ}",f"L:stg{buf}0",f"L:stg{buf}1"],writes=[f"L:Q{T}",'O:vm'],release=rel+(k if s.np else 2*half)*step,deadline=s.dl(rel+(k if s.np else 2*half)*step),tag=('pair' if oc and not s.np else None))
                k+=1
    def read_q(s,T,rel):
        buf=T%2; qb=s.qbuf[T]; s.qread.add(T)
        assert all(s.seen[x]==16 for x in range(T) if s.qbuf[x]==qb), ("qbuf busy",T)
        assert s.stgown[buf]==('Q',T); s.stgown[buf]=None
        if T in s.pres:
            raw=vO(5,0)+16*T; tmp=vO(4,0)
            for st in range(4):
                s.add(f"ds_read_b128 {rng('v',raw+4*st,4)}, v{vQa[st%2]} offset:{buf*4096+(st//2)*1024}",'dsr',
                      reads=[f"L:Q{T}",f"v{vQa[st%2]}"]+(['O:vm'] if st==0 else []),writes=R('v',raw+4*st,4)+[f"L:stg{buf}{st//2}",f"O:q{T}"],release=rel,deadline=rel)
            return
        s._read_q_plain(T,rel)
    def prescale(s,T,rel,off=0):
        if T not in s.pres: return
        qb=s.qbuf[T]
        if True:
            raw=vO(5,0)+16*T; tmp=vO(4,0)
            G = rel+off
            kw=dict(release=G,deadline=G)
            for r in range(16):
                x=raw+r; a=tmp+2*r
                s.add(f"v_lshlrev_b32 v{a}, 16, v{x}",'valu',reads=[f"v{x}"],writes=[f"v{a}"],**kw)
                s.add(f"v_and_b32 v{a+1}, s{sMSK}, v{x}",'valu',reads=[f"v{x}"],writes=[f"v{a+1}"],**kw)
            for r in range(16):
                x=raw+r; a=tmp+2*r
                s.add(f"v_pk_mul_f32 v[{a}:{a+1}], v[{a}:{a+1}], s[{sC}:{sC+1}] op_sel_hi:[1,0]",'pk',reads=[f"v{a}",f"v{a+1}"],writes=[f"v{a}",f"v{a+1}"],**kw)
                s.add(f"v_cvt_pk_bf16_f32 v{x}, v{a}, v{a+1}",'valu',reads=[f"v{a}",f"v{a+1}"],writes=[f"v{x}"],**kw)
                s.add(f"v_accvgpr_write_b32 a{aQ(qb)+r}, v{x}",'valu',reads=[f"v{x}"],writes=[f"a{aQ(qb)+r}"],**kw)
            return
    def _read_q_plain(s,T,rel):
        buf=T%2; qb=s.qbuf[T]
        for st in range(4):
            s.add(f"ds_read_b128 {rng('a',aQ(qb)+4*st,4)}, v{vQa[st%2]} offset:{buf*4096+(st//2)*1024}",'dsr',
                  reads=[f"L:Q{T}",f"v{vQa[st%2]}"]+(['O:vm'] if st==0 else []),writes=R('a',aQ(qb)+4*st,4)+[f"L:stg{buf}{st//2}",f"O:q{T}"],release=rel,margin=8,deadline=s.dl(rel),hole=True)
    def read_k(s,g,order):
        s.visible('K',g); slot=s.slotof[('K',g)]
        for f in order:
            kt,st=divmod(f,4)
            o=s.add(f"ds_read_b128 {rng('a',aK(f),4)}, v{vKa[st%2]} offset:{slot*8192+kt*4096+(st//2)*1024}",'dsr',
                  reads=[f"visK{g}"],writes=R('a',aK(f),4)+[f"L:rdK{g}"],margin=s.cfg.get('dsmargin',10))
        s.lastread[('K',g)]=o.idx; s.allread[('K',g)]-=1
    def read_v(s,g):
        s.visible('V',g); slot=s.slotof[('V',g)]
        for t in range(8):
            for kt in range(2):
                o=s.add(f"ds_read_b64_tr_b16 {rng('a',aV(t)+2*kt,2)}, v{vVa[t%4]} offset:{slot*8192+kt*4096+(t//4)*1024}",'dsr',
                      reads=[f"visV{g}"],writes=R('a',aV(t)+2*kt,2)+[f"L:rdV{g}"],margin=s.cfg.get('dsmargin',10))
        s.lastread[('V',g)]=o.idx; s.allread[('V',g)]-=1
    KORD=[0,1,2,3,7,6,5,4]
    def qk(s,n,T):
        b=n%s.NB; qb=s.qbuf[T]
        for i,f in enumerate(s.KORD):
            kt,st=divmod(f,4)
            d=vS[b]+4*kt; first=(i%4==0)
            cr = R('v',d,4); c=rng('v',d,4)
            if first:
                if T in s.pres and s.seen[T]>0: cr=R('v',vCI[T],4); c=rng('v',vCI[T],4)
                else: cr=[]; c="0"
            s.add(f"v_mfma_f32_16x16x32_bf16 {rng('v',d,4)}, {rng('a',aK(f),4)}, {rng('a',aQ(qb)+4*st,4)}, {c}",'mfma',
                  reads=R('a',aK(f),4)+R('a',aQ(qb)+4*st,4)+cr,writes=R('v',d,4),cread=cr)
        if T==0 and T in s.pres and s.seen[T]==15:
            for r in range(4): s.add(f"v_accvgpr_read_b32 v{vCI[0]+r}, a{aSave+r}",'valu',reads=[],writes=[f"v{vCI[0]+r}"])
    def pv(s,n,T,first):
        slot=s.slot[T]; p=vP[s.pbuf[n]]
        d=aSum(slot); mode=s.summode[n]
        if (T//2) not in s.zeroed:
            s.zeroed.add(T//2)
            for r in range(4): s.add(f"v_accvgpr_write_b32 a{d+r}, 0",'valu',writes=[f"a{d+r}"],margin=2)
        if mode=='single':
            a=aOneD[slot%2]
            s.add(f"v_mfma_f32_16x16x32_bf16 {rng('a',d,4)}, {rng('a',a,4)}, {rng('v',p,4)}, {rng('a',d,4)}",'mfma',
                  reads=R('a',a,4)+R('v',p,4)+R('a',d,4),writes=R('a',d,4),cread=R('a',d,4),tag='sum')
        elif mode=='second':
            s.add(f"v_smfmac_f32_16x16x64_bf16 {rng('a',d,4)}, {rng('a',aOneS,4)}, {rng('v',p-4,8)}, v{vIdx}",'mfma',
                  reads=R('a',aOneS,4)+R('v',p-4,8)+R('a',d,4),writes=R('a',d,4),cread=R('a',d,4),cost=12,tag='sum')
        if s.pending_epi is not None and mode=='second':
            X=s.pending_epi; s.pending_epi=None; s.finish(X,5)
        for t in range(8):
            d=vO(slot,t); c="0" if first else rng('v',d,4)
            s.add(f"v_mfma_f32_16x16x32_bf16 {rng('v',d,4)}, {rng('a',aV(t),4)}, {rng('v',p,4)}, {c}",'mfma',
                  reads=R('a',aV(t),4)+R('v',p,4)+([] if first else R('v',d,4)),writes=R('v',d,4),cread=([] if first else R('v',d,4)))
    def finish(s,T,off):
        e=s.epilogue(T,off)
        if T in s.imm:
            s.read_o(T,s.imm[T][0],e)
            if s.imm[T][1] is not None: s.store_o(T,e+s.cfg.get('stlag',10),s.imm[T][1])
    def sm(s,n,T,first):
        b=n%s.NB; S=vS[b]; p=vP[s.pbuf[n]]; mc=vMCs[s.slot[T]]; zero=s.cfg.get('zero'); pre=T in s.pres
        if pre: mc=vCI[T]
        if first and not zero:
            t0,t1=(mc,None) if s.cfg.get('bperm',True) else (vT0,vT1)
            V=lambda txt,rd,wr,k='valu': s.add(txt,k,reads=[f"v{x}" for x in rd],writes=[f"v{x}" for x in wr],margin=1)
            V(f"v_max3_f32 v{t0}, v{S}, v{S+1}, v{S+2}",[S,S+1,S+2],[t0])
            V(f"v_max_f32 v{t0}, v{t0}, v{S+3}",[t0,S+3],[t0])
            if s.cfg.get('bperm',True):
                s.add(f"ds_bpermute_b32 v{t0}, v{vBp}, v{t0}",'dsr',reads=[f"v{t0}"],writes=[f"v{t0}"],margin=6)
            else:
                V(f"v_mov_b32 v{t1}, v{t0}",[t0],[t1])
                V(f"v_permlane16_swap_b32 v{t0}, v{t1}",[t0,t1],[t0,t1],'perm')
                V(f"v_max_f32 v{t0}, v{t0}, v{t1}",[t0,t1],[t0])
                V(f"v_mov_b32 v{t1}, v{t0}",[t0],[t1])
                V(f"v_permlane32_swap_b32 v{t0}, v{t1}",[t0,t1],[t0,t1],'perm')
                V(f"v_max_f32 v{t0}, v{t0}, v{t1}",[t0,t1],[t0])
            if pre:
                V(f"v_xor_b32 v{mc}, 0x80000000, v{t0}",[t0],[mc])
                for r in range(1,4): V(f"v_mov_b32 v{mc+r}, v{mc}",[mc],[mc+r])
            else: V(f"v_mul_f32 v{mc}, 0x{f2u(-CSC):08x}, v{t0}",[t0],[mc])
        sp=s.cfg.get('smsp',3)
        for k in range(4):
            for i in (2*k,2*k+1):
                if pre:
                    if first: s.add(f"v_add_f32 v{S+i}, v{S+i}, v{mc}",'valu',reads=[f"v{S+i}",f"v{mc}"],writes=[f"v{S+i}"],margin=1)
                elif T in s.cfg.get('fake',()) and not first: pass
                elif zero: s.add(f"v_mul_f32 v{S+i}, s{sC}, v{S+i}",'valu',reads=[f"v{S+i}"],writes=[f"v{S+i}"],margin=1)
                else: s.add(f"v_fma_f32 v{S+i}, v{S+i}, s{sC}, v{mc}",'valu',reads=[f"v{S+i}",f"v{mc}"],writes=[f"v{S+i}"],margin=1)
            for i in (2*k,2*k+1):
                s.add(f"v_exp_f32 v{S+i}, v{S+i}",'trans',reads=[f"v{S+i}"],writes=[f"v{S+i}"],margin=1+(i%2==0))
            s.add(f"v_cvt_pk_bf16_f32 v{p+k}, v{S+2*k}, v{S+2*k+1}",'valu',reads=[f"v{S+2*k}",f"v{S+2*k+1}"],writes=[f"v{p+k}"],margin=1+sp*(3-k))
    def epilogue(s,T,off=0):
        slot=s.slot[T]; g0=s.now()+off; l=vL[T%2]; buf=s.obuf[T]; tmp=(vT0 if s.cfg.get('bperm',True) else l+1); a=aSum(slot)+2*(slot%2)
        direct=s.cfg.get('direct')
        if not direct:
            assert s.stgown[buf] is None, ("stg busy O",T,s.stgown); s.stgown[buf]=('O',T)
        if not s.owdone and not direct:
            assert len(s.qread)==12
            s.owdone=True
            s.add(f"v_xor_b32 v{vOw[2]}, 64, v{vOw[0]}",'valu',reads=[f"v{vOw[0]}"],writes=[f"v{vOw[2]}"])
            s.add(f"v_xor_b32 v{vOw[3]}, 64, v{vOw[1]}",'valu',reads=[f"v{vOw[1]}"],writes=[f"v{vOw[3]}"])
        s.add(f"v_accvgpr_read_b32 v{l}, a{a}",'valu',reads=[f"a{a}"],writes=[f"v{l}"],deadline=g0-1)
        s.add(f"v_accvgpr_read_b32 v{tmp}, a{a+1}",'valu',reads=[f"a{a+1}"],writes=[f"v{tmp}"],deadline=g0-1)
        s.add(f"v_add_f32 v{l}, v{l}, v{tmp}",'valu',reads=[f"v{l}",f"v{tmp}"],writes=[f"v{l}"],deadline=g0)
        s.add(f"v_cmp_ngt_f32_e64 s[{sFlag+2*T}:{sFlag+2*T+1}], s{sTH}, v{l}",'valu',reads=[f"v{l}"],writes=[f"s{sFlag+2*T}"],deadline=g0)
        s.add(f"v_rcp_f32 v{l}, v{l}",'trans',reads=[f"v{l}"],writes=[f"v{l}"],deadline=g0+1)
        G=g0+3
        def pks(ts):
          for t in ts:
            o=vO(slot,t)
            for i in (0,2):
                s.add(f"v_pk_mul_f32 v[{o+i}:{o+i+1}], v[{o+i}:{o+i+1}], v[{l}:{l+1}] op_sel_hi:[1,0]",'pk',reads=[f"v{o+i}",f"v{o+i+1}",f"v{l}"],writes=[f"v{o+i}",f"v{o+i+1}"],release=G,deadline=G)
        pks(range(8) if direct else range(4))
        W=s.cfg.get('epiw',12)
        if direct:
            for m in range(4):
                o=vO(slot,2*m); d=G+(W*m)//4
                for i in range(4):
                    s.add(f"v_cvt_pk_bf16_f32 v{o+i}, v{o+2*i}, v{o+2*i+1}",'valu',reads=[f"v{o+2*i}",f"v{o+2*i+1}"],writes=[f"v{o+i}"],deadline=d+i//2)
                for i in range(2):
                    s.add(f"v_permlane16_swap_b32 v{o+i}, v{o+i+2}",'perm',reads=[f"v{o+i}",f"v{o+i+2}"],writes=[f"v{o+i}",f"v{o+i+2}"],deadline=d+2+i)
            return G+4
        if s.cfg.get('w2',True) and T<s.cfg.get('w2last',11):
            pks(range(4,8))
            for t in range(4):
                d=G+(W*t)//4
                for u in (t,t+4):
                    o=vO(slot,u)
                    for i in range(2):
                        s.add(f"v_cvt_pk_bf16_f32 v{o+i}, v{o+2*i}, v{o+2*i+1}",'valu',reads=[f"v{o+2*i}",f"v{o+2*i+1}"],writes=[f"v{o+i}"],deadline=d+(u>=4))
                o=vO(slot,t); p=vO(slot,t+4)
                s.add(f"ds_write2st64_b64 v{vOw[t]}, v[{o}:{o+1}], v[{p}:{p+1}] offset0:{buf*8} offset1:{buf*8+2}",'dsw',reads=[f"v{o}",f"v{o+1}",f"v{p}",f"v{p+1}",f"v{vOw[t]}"],writes=[f"L:stg{buf}0",f"L:stg{buf}1"],deadline=d+2,cost=20)
            return G+W+1
        for t in range(8):
            if t==4: pks(range(4,8))
            o=vO(slot,t); d=G+(W*t)//8
            for i in range(2):
                s.add(f"v_cvt_pk_bf16_f32 v{o+i}, v{o+2*i}, v{o+2*i+1}",'valu',reads=[f"v{o+2*i}",f"v{o+2*i+1}"],writes=[f"v{o+i}"],deadline=d)
            s.add(f"ds_write_b64 v{vOw[t%4]}, v[{o}:{o+1}] offset:{buf*4096+(t//4)*1024}",'dsw',reads=[f"v{o}",f"v{o+1}",f"v{vOw[t%4]}"],writes=[f"L:stg{buf}{t//4}"],deadline=d+s.cfg.get('dswd',1))
        return G+W+1+s.cfg.get('dswd',1)
    def read_o(s,T,park,rel):
        buf=s.obuf[T]; s.park[T]=park
        if s.cfg.get('direct'):
            if park is None: return
            assert all(s.seen[x] in (0,16) and not (s.seen[x]==0 and x in s.qread) for x in range(12) if s.qbuf[x]==park), ("park busy",T,park)
            assert s.parkown.get(park) is None; s.parkown[park]=[T,4]
            W=s.cfg.get('epiw',12)
            for m in range(4):
                o=vO(s.slot[T],2*m)
                for i in range(4):
                    s.add(f"v_accvgpr_write_b32 a{aQ(park)+4*m+i}, v{o+i}",'valu',reads=[f"v{o+i}"],writes=[f"a{aQ(park)+4*m+i}"],deadline=rel+(W*m)//4+i//2+s.cfg.get('accslack',0))
            return
        assert all(s.seen[x] in (0,16) and not (s.seen[x]==0 and x in s.qread) for x in range(12) if s.qbuf[x]==park), ("park busy",T,park)
        assert s.stgown[buf]==('O',T); s.stgown[buf]=None
        assert s.parkown.get(park) is None, ("park has unstored data",T,park); s.parkown[park]=[T,4]
        for j in (0,2,1,3):
            kw=dict(release=rel,deadline=rel+4,hole=True)
            if j<2:
                s.add(f"ds_read_b128 {rng('a',aQ(park)+4*j,4)}, v{vOr} offset:{buf*4096+1024*j}",'dsr',
                      reads=[f"v{vOr}"],writes=R('a',aQ(park)+4*j,4)+[f"L:stg{buf}{j%2}"],**kw)
            else:
                for h in range(2):
                    s.add(f"ds_read_b64 {rng('a',aQ(park)+4*j+2*h,2)}, v{vOr} offset:{buf*4096+1024*j+8*(1-h)}",'dsr',
                          reads=[f"v{vOr}"],writes=R('a',aQ(park)+4*j+2*h,2)+[f"L:stg{buf}{j%2}"],**kw)
    def store_o(s,T,rel,step,js=(0,2,1,3)):
        it,j=divmod(T,6); park=s.park[T]
        if T>=6: rel=max(rel,s.laststore+step)
        s.laststore=rel+(len(js)-1)*step
        if s.curO!=T:
            s.add(f"s_mov_b32 s{sOffO}, {(it*768+16*j)*256}",'salu',writes=[f"s{sOffO}"],margin=1); s.curO=T
        s.nst+=len(js)
        if park is not None:
            s.parkown[park][1]-=len(js)
            if s.parkown[park][1]==0: s.parkown[park]=None
        if s.cfg.get('direct'):
            pol=s.stpol if isinstance(s.stpol,str) else s.stpol[T]
            for k,m in enumerate(js):
                p,r=('a',aQ(park)+4*m) if park is not None else ('v',vO(s.slot[T],2*m))
                s.add(f"buffer_store_dwordx4 {rng(p,r,4)}, v{vOst}, s[{sO}:{sO+3}], s{sOffO} offen offset:{64*m} {pol}",'gst',
                      reads=R(p,r,4)+[f"s{sOffO}",f"v{vOst}"],writes=['O:st'],release=rel+k*step,deadline=rel+k*step+2)
            return
        for k,j in enumerate(js):
            s.add(f"buffer_store_dwordx4 {rng('a',aQ(park)+4*j,4)}, v{vOst}, s[{sO}:{sO+3}], s{sOffO} offen offset:{(j//2)*2048+(j%2)*128} {s.stpol if isinstance(s.stpol,str) else s.stpol[T]}",'gst',
                  reads=R('a',aQ(park)+4*j,4)+[f"s{sOffO}",f"v{vOst}"],writes=['O:st'],release=rel+k*step,deadline=rel+k*step+2)
    def build(s):
        cfg=s.cfg; LAG=s.LAG
        visits=cfg['visits']
        s.slot={T:T%6 for T in range(12)}
        s.qbuf=cfg.get('qbuf',{**{T:T for T in range(10)},10:0,11:1})
        s.obuf={T:T%2 for T in range(12)}; s.park={}; s.curO=None
        s.pres=set(cfg.get('pres',())); s.imm=cfg.get('oimm',{}); s.zeroed=set(); s.pending_epi=None; s.owdone=False
        s.allread=defaultdict(int)
        for g,ts in visits:
            s.allread[('K',g)]+=1; s.allread[('V',g)]+=1
        ms=[]
        for vi,(g,ts) in enumerate(visits):
            for k,T in enumerate(ts): ms.append((vi,g,T,k==0,k==len(ts)-1))
        cnt=defaultdict(int)
        for m in ms: cnt[m[2]]+=1
        assert all(cnt[T]==16 for T in range(12)) and len({(m[1],m[2]) for m in ms})==192
        assert all(m[1]//16==m[2]//6 for m in ms)
        s.summode={}; s.pbuf={}; pb=0; n=0
        while n<len(ms):
            T=ms[n][2]
            if cfg.get('smf',True) and T%2==0 and n+1<len(ms)-(2 if cfg.get('lastsingle',True) else 0) and ms[n+1][2]==T+1:
                if pb%2: pb+=1
                s.summode[n]='first'; s.summode[n+1]='second'; s.pbuf[n]=pb%4; s.pbuf[n+1]=(pb+1)%4; pb+=2; n+=2
            else:
                s.summode[n]='single'; s.pbuf[n]=pb%4; pb+=1; n+=1
        plan=defaultdict(list)
        for n,u in cfg['plan']: plan[n].append(u)
        s.curoff=None
        def doplan(n):
            rel=s.now(); us=plan.get(n,[])
            nd=sum({'B':4,'K':2,'V':2,'Q':4}.get(u[0],0) for u in us)
            step = 0 if n<0 else max(1,cfg.get('span',16)//max(nd,1))
            for u in us:
                st = u[2] if len(u)>2 and u[0] in 'BKVQ' else step
                s.urgent = u[0] in 'BKVQ' and st<=1 and cfg.get('urgent',True)
                if s.urgent and rel<0: st=0
                if u[0]=='B':
                    s.dma_kv('K',u[1],rel,st); s.dma_kv('V',u[1],rel+2*st,st); rel+=4*st
                elif u[0] in 'KV':
                    s.dma_kv(u[0],u[1],rel,st); rel+=2*st
                elif u[0]=='Q':
                    s.dma_q(u[1],rel,st); rel+=4*st
                elif u[0]=='q': s.read_q(u[1],s.now()+(u[2] if len(u)>2 else 0)); rel=max(rel,s.now()+(u[2] if len(u)>2 else 0))
                elif u[0]=='p': s.prescale(u[1],s.now(),u[2] if len(u)>2 else 0)
                elif u[0]=='o': s.read_o(u[1],u[2],s.now())
                elif u[0]=='s': s.store_o(u[1],s.now(),u[2],*u[3:])
                elif u[0]=='bar': s.barrier()
                elif u[0]=='c': s.add(f"buffer_load_dword a252, v{vDMA}, s[36:39], s35 offen",'gld',writes=['O:vm'],release=s.now(),deadline=s.now()+12)
        s.msbb={}; seen=defaultdict(int); seenpv=defaultdict(int); s.seen=defaultdict(int); s.qread=set(); s.stgown=[None,None]; s.parkown={}; s.nst=0; s.laststore=-99
        barset=cfg.get('barvisits')
        doplan(-1)
        s.barrier(); s.read_k(ms[0][1],s.KORD)
        N=len(ms)
        for n in range(N+LAG):
            if n<N:
                vi,g,T,fi,la=ms[n]
                if la and n+1<N and (barset is None or vi+1 in barset) and n not in cfg.get('nobar',()) and n<=cfg.get('lastbar',999): s.barrier()
                doplan(n)
                assert T in s.qread, ('Q not loaded',T)
                s.msbb[n]=s.nbb
                s.qk(n,T); s.seen[T]+=1
            m=n-LAG
            if m>=0:
                T1=ms[m][2]
                s.pv(m,T1,seenpv[T1]==0); seenpv[T1]+=1
                if seenpv[T1]==16:
                    if s.summode[m]=='first': s.pending_epi=T1
                    else: s.finish(T1,0)
            if n<N:
                s.sm(n,T,seen[T]==0); seen[T]+=1
                if la and n+1<N: s.read_k(ms[n+1][1],s.KORD)
            if m+1>=0 and m+1<N and ms[m+1][3]: s.read_v(ms[m+1][1])
        assert s.nst==48
        s.P.ops=[o for o in s.P.ops if not (o.kind=='bar' and not o.reads)]
        for i,o in enumerate(s.P.ops): o.idx=i
        out=s.P.schedule(ldsrate=cfg.get('ldsrate',1024),ldsburst=cfg.get('ldsburst',1024),dswd=cfg.get('dswd',1),dswsp=cfg.get('dswsp',1),holeburst=cfg.get('holeburst',12),wdma=cfg.get('wdma',-1),dmaw=cfg.get('dmaw',-1))
        out=insert_waits(out,cfg.get('merge',9))
        verify_waits(out)
        check_hazards(out)
        return out

def PRO(cfg):
  t=f"""
    s_cmp_ge_u32 s2, 256
    s_cbranch_scc1 L_end
    s_load_dwordx4 s[64:67], s[0:1], 0
    s_load_dwordx4 s[68:71], s[0:1], 16
    v_lshrrev_b32 v1, 6, v0
    s_lshr_b32 s73, s2, 3
    s_getpc_b64 s[86:87]
L_pc:
    v_and_b32 v2, 7, v0
    v_lshl_add_u32 v2, v2, 2, v1
    v_lshlrev_b32 v2, 12, v2
    s_lshl_b32 s88, s73, 7
    v_add_u32 v2, s88, v2
    v_min_u32 v2, L_end-L_main, v2
    s_add_u32 s86, s86, L_main-L_pc
    s_addc_u32 s87, s87, 0
    v_readfirstlane_b32 s{sW}, v1
    v_and_b32 v0, 63, v0
    global_load_dword v4, v2, s[86:87]
    s_and_b32 s72, s2, 7
    s_lshr_b32 s74, s73, 1
    s_and_b32 s75, s73, 1
    s_lshl_b32 s72, s72, 4
    s_add_u32 s72, s72, s74
    s_lshl_b32 s76, s72, 18
    s_mul_i32 s77, s72, {2*768*256}
    s_mul_i32 s78, s75, {384*256}
    s_add_u32 s77, s77, s78
    s_and_b32 s79, s{sW}, 1
    s_lshr_b32 s80, s{sW}, 1
    s_lshl_b32 s81, s79, 10
    s_lshl_b32 s82, s80, 12
    s_add_u32 s{sWL}, s81, s82       ; LDS: (w&1)*1024 + (w>>1)*4096
    s_lshl_b32 s81, s79, 7
    s_add_u32 s81, s81, s82          ; global: (w&1)*128 + (w>>1)*4096
    s_mul_i32 s83, s{sW}, 24576
    s_sub_u32 s{sWQ}, s83, s81
    s_lshl_b32 s{sWS}, s{sW}, 13
    ; DMA voffset: (i>>3)*256 + ((i&7)^((i>>3)&6))*16 + wave part
    v_lshrrev_b32 v1, 3, v0
    v_and_b32 v2, 6, v1
    v_and_b32 v3, 7, v0
    v_xor_b32 v2, v2, v3
    v_lshlrev_b32 v2, 4, v2
    v_lshl_add_u32 v2, v1, 8, v2
    v_add_u32 v{vDMA}, s81, v2
    s_mov_b32 s{sQ+2}, {1152*256}
    s_mov_b32 s{sQ+3}, 0x20000
    s_mov_b32 s{sK+2}, 0x40000
    s_mov_b32 s{sK+3}, 0x20000
    s_mov_b32 s{sV+2}, 0x40000
    s_mov_b32 s{sV+3}, 0x20000
    s_mov_b32 s{sO+2}, {1152*256}
    s_mov_b32 s{sO+3}, 0x20000
    s_waitcnt lgkmcnt(0)
    s_add_u32 s{sQ}, s64, s77
    s_addc_u32 s{sQ+1}, s65, 0
    s_add_u32 s{sK}, s66, s76
    s_addc_u32 s{sK+1}, s67, 0
    s_add_u32 s{sV}, s68, s76
    s_addc_u32 s{sV+1}, s69, 0
    s_add_u32 s{sO}, s70, s77
    s_addc_u32 s{sO+1}, s71, 0
"""
  if cfg.get('adj'):
    t=t.replace("    s_add_u32 s72, s72, s74          ; pair index 0..127\n","    s_lshr_b32 s72, s2, 1\n    s_and_b32 s75, s2, 1\n")
  return t
PRO2 = f"""
    s_mov_b32 s{sC}, 0x{f2u(CSC):08x}
    s_mov_b32 s{sTH}, 0x5f800000
    s_mov_b32 s{sMSK}, 0xffff0000
    s_mov_b32 s36, s86
    s_mov_b32 s37, s87
    s_mov_b32 s38, L_end-L_main
    s_mov_b32 s39, 0x20000
    s_lshl_b32 s35, s74, 13
    s_lshl_b32 s34, s75, 11
    s_add_u32 s35, s35, s34
    s_add_u32 s84, s{sWS}, {STG}
    v_xor_b32 v2, v1, v3
    v_lshlrev_b32 v2, 4, v2
    v_lshl_add_u32 v2, v1, 8, v2
    v_add_u32 v{vOst}, s83, v2
    v_lshl_add_u32 v{vOr}, v0, 4, s84
    v_and_b32 v1, 15, v0
    v_lshrrev_b32 v2, 4, v0
    v_lshlrev_b32 v{vBp}, 2, v1
    v_and_b32 v5, 7, v1
    v_lshlrev_b32 v6, 7, v5
    v_lshrrev_b32 v7, 3, v1
    v_lshl_add_u32 v6, v7, 11, v6
    v_and_b32 v3, 6, v1
    v_xor_b32 v3, v3, v2
    v_lshl_add_u32 v{vKa[0]}, v3, 4, v6
    v_xor_b32 v{vKa[1]}, 64, v{vKa[0]}
    v_add_u32 v{vQa[0]}, s84, v{vKa[0]}
    v_add_u32 v{vQa[1]}, s84, v{vKa[1]}
    v_lshrrev_b32 v3, 1, v2
    v_xor_b32 v3, v3, v5
    v_lshl_add_u32 v3, v3, 4, v6
    v_and_b32 v2, 1, v2
    v_xor_b32 v2, v2, v7
    v_lshl_add_u32 v3, v2, 3, v3
    v_add_u32 v{vOw[0]}, s84, v3
    v_xor_b32 v{vOw[1]}, 32, v{vOw[0]}
    v_lshrrev_b32 v1, 2, v0
    v_and_b32 v2, 6, v1
    v_bfe_u32 v3, v0, 1, 1
    v_xor_b32 v2, v2, v3
    v_lshlrev_b32 v2, 4, v2
    v_and_b32 v3, 1, v0
    v_lshl_add_u32 v2, v3, 3, v2
    v_and_b32 v3, 7, v1
    v_lshl_add_u32 v2, v3, 7, v2
    v_lshrrev_b32 v3, 3, v1
    v_lshl_add_u32 v2, v3, 11, v2
    v_add_u32 v{vVa[0]}, {VRING}, v2
    v_xor_b32 v{vVa[1]}, 32, v{vVa[0]}
    v_xor_b32 v{vVa[2]}, 64, v{vVa[0]}
    v_xor_b32 v{vVa[3]}, 0x60, v{vVa[0]}
    ; row-sum operands: sparse pair pattern, index, and dense single-tile patterns
    v_mov_b32 v1, 0x3f803f80
    v_bfe_u32 v2, v0, 1, 1
    v_lshrrev_b32 v3, 5, v0
    v_cmp_eq_u32 vcc, v2, v3
    v_and_b32 v5, 3, v0
    v_mov_b32 v6, 0x4444
    v_cndmask_b32 v2, 0, v1, vcc
    v_cmp_eq_u32 vcc, 0, v5
    v_accvgpr_write_b32 a{aOneS}, v2
    v_accvgpr_write_b32 a{aOneS+1}, v2
    v_cndmask_b32 v3, 0, v1, vcc
    v_cmp_eq_u32 vcc, 2, v5
    v_accvgpr_write_b32 a{aOneS+2}, v2
    v_accvgpr_write_b32 a{aOneS+3}, v2
    v_cndmask_b32 v2, 0, v1, vcc
    v_and_b32 v5, 1, v0
    v_mul_u32_u24 v5, 0xaaaa, v5
    v_add_u32 v{vIdx}, v5, v6
    v_accvgpr_write_b32 a{aOneD[0]}, v3
    v_accvgpr_write_b32 a{aOneD[0]+1}, v3
    v_accvgpr_write_b32 a{aOneD[0]+2}, v3
    v_accvgpr_write_b32 a{aOneD[0]+3}, v3
    v_accvgpr_write_b32 a{aOneD[1]}, v2
    v_accvgpr_write_b32 a{aOneD[1]+1}, v2
    v_accvgpr_write_b32 a{aOneD[1]+2}, v2
    v_accvgpr_write_b32 a{aOneD[1]+3}, v2
"""

def slow_path():
    L=[]
    A=L.append
    A("    s_or_b64 s[64:65], s[40:41], s[42:43]")
    for T in range(2,12): A(f"    s_or_b64 s[64:65], s[64:65], s[{sFlag+2*T}:{sFlag+2*T+1}]")
    A("    s_cbranch_scc0 L_end")
    A("    s_mov_b32 s66, 0")
    for T in range(12):
        A(f"    s_cmp_lg_u64 s[{sFlag+2*T}:{sFlag+2*T+1}], 0")
        A(f"    s_cselect_b32 s67, {1<<T}, 0")
        A("    s_or_b32 s66, s66, s67")
    A("    s_waitcnt vmcnt(0) lgkmcnt(0)")
    A("    v_mbcnt_lo_u32_b32 v8, -1, 0")
    A("    v_mbcnt_hi_u32_b32 v8, -1, v8")
    A("    v_and_b32 v9, 15, v8")
    A("    v_lshrrev_b32 v10, 4, v8")
    A("    v_lshlrev_b32 v11, 4, v10")
    A("    v_lshl_add_u32 v14, v9, 8, v11")
    A("    v_add_u32 v15, s83, v14")
    A("    v_and_b32 v11, 1, v10")
    A("    v_lshlrev_b32 v11, 1, v11")
    A("    v_lshrrev_b32 v12, 1, v10")
    A("    v_or_b32 v11, v11, v12")
    A("    v_lshlrev_b32 v11, 4, v11")
    A("    v_lshl_add_u32 v11, v9, 8, v11")
    A("    v_add_u32 v13, s83, v11")
    A(f"    v_subrev_u32 v16, s81, v{vDMA}")
    A(f"    s_add_u32 s68, s{sWS}, {STG-VRING}")
    for i in range(4): A(f"    v_add_u32 v{20+i}, s68, v{vVa[i]}")
    for i in range(4): A(f"    v_mov_b32 v{196+i}, 0x3f803f80")
    A("    s_mov_b32 s69, 0")
    A("L_slow_tile:")
    A("    s_bitcmp1_b32 s66, s69")
    A("    s_cbranch_scc0 L_slow_next")
    A("    s_cmp_ge_u32 s69, 6")
    A("    s_cselect_b32 s70, 0x20000, 0")
    A(f"    s_cselect_b32 s71, {(768-96)*256}, 0")
    A("    s_lshl_b32 s72, s69, 12")
    A("    s_add_u32 s71, s71, s72                ; q/o offset")
    for st in range(4): A(f"    buffer_load_dwordx4 v[{64+4*st}:{67+4*st}], v15, s[{sQ}:{sQ+3}], s71 offen offset:{64*st}")
    A("    v_mov_b32 v17, 0xff800000")
    A("    s_mov_b32 s72, s70")
    A("    s_add_u32 s73, s70, 0x20000")
    A("L_slow_max:")
    for st in range(4): A(f"    buffer_load_dwordx4 v[{80+4*st}:{83+4*st}], v14, s[{sK}:{sK+3}], s72 offen offset:{64*st}")
    A("    s_waitcnt vmcnt(0)")
    for st in range(4): A(f"    v_mfma_f32_16x16x32_bf16 v[0:3], v[{80+4*st}:{83+4*st}], v[{64+4*st}:{67+4*st}], {'0' if st==0 else 'v[0:3]'}")
    A("    s_nop 15")
    A("    v_max3_f32 v17, v17, v0, v1")
    A("    v_max3_f32 v17, v17, v2, v3")
    A("    s_add_u32 s72, s72, 4096")
    A("    s_cmp_lt_u32 s72, s73")
    A("    s_cbranch_scc1 L_slow_max")
    for sw in ("16","32"):
        A("    v_mov_b32 v18, v17"); A("    s_nop 1")
        A(f"    v_permlane{sw}_swap_b32 v17, v18"); A("    s_nop 1")
        A("    v_max_f32 v17, v17, v18")
    A(f"    v_mul_f32 v17, 0x{f2u(-CSC):08x}, v17")
    for r in range(160,196): A(f"    v_mov_b32 v{r}, 0")
    A("    s_mov_b32 s72, s70")
    A("L_slow_blk:")
    A("    s_add_u32 s74, s72, 4096")
    for f in range(8):
        kt,st=divmod(f,4)
        A(f"    buffer_load_dwordx4 v[{80+4*f}:{83+4*f}], v14, s[{sK}:{sK+3}], {'s72' if kt==0 else 's74'} offen offset:{64*st}")
    for kt in range(2):
        for half in range(2):
            A(f"    s_add_u32 m0, s{sWS}, {STG+kt*4096+half*896}")
            A("    s_nop 0")
            for oc in range(2):
                A(f"    buffer_load_dwordx4 v16, s[{sV}:{sV+3}], {'s72' if kt==0 else 's74'} offen offset:{2048*oc+128*half} lds")
    A("    s_waitcnt vmcnt(0)")
    for t in range(8):
        for kt in range(2):
            A(f"    ds_read_b64_tr_b16 v[{112+4*t+2*kt}:{113+4*t+2*kt}], v{20+t%4} offset:{kt*4096+(t//4)*1024}")
    for f in range(8):
        kt,st=divmod(f,4); d=4*kt
        A(f"    v_mfma_f32_16x16x32_bf16 v[{d}:{d+3}], v[{80+4*f}:{83+4*f}], v[{64+4*st}:{67+4*st}], {'0' if st==0 else f'v[{d}:{d+3}]'}")
    A("    s_nop 15")
    for i in range(8): A(f"    v_fma_f32 v{i}, v{i}, s{sC}, v17")
    for i in range(8): A(f"    v_exp_f32 v{i}, v{i}")
    A("    s_nop 1")
    for k in range(4): A(f"    v_cvt_pk_bf16_f32 v{24+k}, v{2*k}, v{1+2*k}")
    A("    s_waitcnt lgkmcnt(0)")
    A("    s_nop 1")
    for t in range(8): A(f"    v_mfma_f32_16x16x32_bf16 v[{160+4*t}:{163+4*t}], v[{112+4*t}:{115+4*t}], v[24:27], v[{160+4*t}:{163+4*t}]")
    A("    v_mfma_f32_16x16x32_bf16 v[192:195], v[196:199], v[24:27], v[192:195]")
    A("    s_add_u32 s72, s72, 8192")
    A("    s_cmp_lt_u32 s72, s73")
    A("    s_cbranch_scc1 L_slow_blk")
    A("    s_nop 15")
    A("    v_rcp_f32 v18, v192")
    A("    s_nop 1")
    for r in range(160,192): A(f"    v_mul_f32 v{r}, v{r}, v18")
    for m in range(4):
        o=160+8*m
        for i in range(4): A(f"    v_cvt_pk_bf16_f32 v{o+i}, v{o+2*i}, v{o+2*i+1}")
        A("    s_nop 1")
        for i in range(2): A(f"    v_permlane16_swap_b32 v{o+i}, v{o+i+2}")
        A(f"    buffer_store_dwordx4 v[{o}:{o+3}], v13, s[{sO}:{sO+3}], s71 offen offset:{64*m}")
    A("    s_waitcnt vmcnt(0)")
    A("L_slow_next:")
    A("    s_add_u32 s69, s69, 1")
    A("    s_cmp_lt_u32 s69, 12")
    A("    s_cbranch_scc1 L_slow_tile")
    return "\n".join(L)+"\n"

def isize(t):
    if 'L_thrw' in t: return 12
    if 'L_back2' in t: return 36
    t=t.strip(); op=t.split()[0]
    if op.startswith(('v_mfma','v_smfmac','ds_','buffer_','global_','v_fma_f32','v_cvt_pk','v_max3','v_pk_','v_accvgpr','v_writelane','s_mem')) or op.endswith('_e64'): return 8
    if op in('s_waitcnt','s_barrier','s_nop') or op.startswith('s_cbranch'): return 4
    for a in t.split(None,1)[1].replace(',',' ').split():
        try: v=int(a,0)
        except ValueError: continue
        if not -16<=v<=64: return 8
    return 4

HEAD = open('cdna_kernels/'+NAME+'.s.ref').read().split('; Override')[0]
def emit(cfg, path):
    g=Gen(cfg); out=g.build()
    abl=cfg.get('ablate')
    if abl:
        nb=0; o2=[]
        for o in out:
            if o.kind=='bar': nb+=1
            if nb>=3 and any((a==o.kind) or (a in o.text) for a in abl): continue
            o2.append(o)
        out=o2
    marks=[]; est=estimate(out,marks)
    stamp=cfg.get('stamp'); warm=cfg.get('warm',True)
    SST=[x for x in list(range(64,81))+list(range(85,90))+list(range(92,102))]
    ns=[0]
    def st2():
        i=ns[0]; ns[0]+=1
        return ["s_memtime s[90:91]","s_memrealtime s[2:3]","s_waitcnt lgkmcnt(0)",f"s_mov_b32 s{SST[2*i]}, s90",f"s_mov_b32 s{SST[2*i+1]}, s2"]
    if stamp: first_st=st2(); stbb={g.msbb[n] for n in stamp}
    k0=0
    while out[k0].kind in('dma','salu','nop'): k0+=1
    first=[o.text for o in out[:k0]]; nfirst=sum(1 for o in out[:k0] if o.kind=='dma')
    w2=cfg.get('warm2'); w2done=False; nvw=0; lines=[]; ndma=nfirst; nbar=0; nm=0; probe=cfg.get('probe')
    for k in range(k0,len(out)):
        o=out[k]
        if w2 and not w2done and o.kind=='wait' and 'v' in o.tag:
            nvw+=1
            if nvw==w2[1]:
                w2done=True; p=w2[0]
                lines.append(("s_mov_b64 vcc, -1\n"+"".join(f" s_cmp_eq_u32 s{sW}, {w}\n s_cbranch_scc1 L_stub{p+w}\n" for w in range(3))+f" s_branch L_stub{p+3}\nL_back2:\n s_mov_b64 vcc, 0",'salu'))
        if cfg.get('thr') and o.kind=='dma':
            if ndma<cfg['thr'][1] and ndma%2==0:
                lines+=[(f"s_cmp_eq_u32 s{sPar}, 0\n s_cbranch_scc0 L_thrw{ndma}\n s_waitcnt vmcnt({cfg['thr'][2]})\nL_thrw{ndma}:",'salu')]
            ndma+=1
        lines.append((o.text,o.kind))
        if o.kind=='bar': nbar+=1
        if probe and o.kind=='mfma' and o.bb in [g.msbb.get(x) for x in probe[:2] if x not in (0,99,100,-1)]:
            r = 92 if o.bb==g.msbb.get(probe[0]) else 94
            lines+=[(f"s_mem{'real' if probe[2]=='rt' else ''}time s[{r}:{r+1}]",'x'),("s_waitcnt lgkmcnt(0)",'x')]
        if stamp and o.kind=='mfma' and o.bb in stbb: lines+=[(x,'x') for x in st2()]
    body=[]; addr=0; page=0; stubs=0
    tot=sum(isize(t) for t,_ in lines); npages=(tot+200)//4096+1
    for i,(t,kd) in enumerate(lines):
        if warm and addr>=page*4096 and page<npages:
            prevm = i>0 and lines[i-1][1]=='mfma'
            if (prevm and kd not in SC_KINDS) or addr+isize(t)>page*4096+56 or page==0:
                nxt=page+4
                tgt = 'L_stub%d'%nxt if nxt<npages else ('L_back2' if w2 else 'L_back')
                if w2 and page<w2[0]<=nxt: tgt='L_back'
                body.append(f"L_stub{page}:\n s_cbranch_vccnz {tgt}\n")
                body.append(f".if ((L_stub{page}-L_main)>>6) != {page*64}\n.error \"stub misplaced\"\n.endif\n")
                addr+=4; page+=1
        body.append(" "+t+"\n"); addr+=isize(t)
    while warm and page<npages:
        body.append(f"L_stub{page}:\n s_cbranch_vccnz {'L_back2' if w2 else 'L_back'}\n"); page+=1
    txt=HEAD+"; @launch grid=(256,1,1) block=(256,1,1) lds=163840\n"
    txt+=f'.amdgcn_target "amdgcn-amd-amdhsa--gfx950"\n.text\n.globl {NAME}_kernel\n.p2align 8\n.type {NAME}_kernel,@function\n{NAME}_kernel:\n'
    if probe:
        txt+=" s_memrealtime s[90:91]\n"
        if probe[0]==0: txt+=f" s_mem{'real' if probe[2]=='rt' else ''}time s[92:93]\n"
        txt+=" s_waitcnt lgkmcnt(0)\n"
        if cfg.get('gstart'):
            txt+=" s_load_dwordx2 s[34:35], s[0:1], 32\n s_not_b32 s36, s90\n v_mov_b32 v10, s36\n v_mov_b32 v11, 0\n s_waitcnt lgkmcnt(0)\n v_cmp_eq_u32 vcc, 0, v0\n s_and_saveexec_b64 s[36:37], vcc\n s_cbranch_execz L_gs\n global_atomic_umax v11, v10, s[34:35]\nL_gs:\n s_mov_b64 exec, s[36:37]\n"
    if stamp and cfg.get('stamp0'):
        txt+=" s_memtime s[90:91]\n s_memrealtime s[92:93]\n s_waitcnt lgkmcnt(0)\n s_mov_b32 s5, s90\n s_mov_b32 s6, s92\n"
    if cfg.get('pre_nop'):
        txt+=f" s_mov_b32 s64, {cfg['pre_nop']}\nL_pn:\n"+" s_nop 15\n"*16+" s_sub_u32 s64, s64, 1\n s_cmp_lg_u32 s64, 0\n s_cbranch_scc1 L_pn\n"
    PM=" s_memrealtime s[94:95]\n s_waitcnt lgkmcnt(0)\n"
    txt+=PRO(cfg)
    if probe and probe[1]==201: txt+=PM
    thr=cfg.get('thr')
    if thr:
        k1,KK,W=thr
        cut=[i for i,o in enumerate(out[:k0]) if o.kind=='dma'][k1-1]+1
        txt+=f"    s_getreg_b32 s{sPar}, hwreg(HW_REG_XCC_ID, 0, 1)\n"
        if cfg.get('thrinv'): txt+=f"    s_xor_b32 s{sPar}, s{sPar}, 1\n"
        txt+="".join(" "+t+"\n" for t in first[:cut])
        txt+=f"    s_cmp_eq_u32 s{sPar}, 0\n    s_cbranch_scc1 L_thr0\n"+"".join(" "+t+"\n" for t in first[cut:])+"L_thr0:\n"
    else:
        txt+="".join(" "+t+"\n" for t in first)
    if probe and probe[1]==202: txt+=PM
    if stamp: txt+=" s_mov_b32 s4, s2\n"+"".join(" "+x+"\n" for x in first_st)
    txt+=PRO2
    if cfg.get('direct'):
        txt+=f"""    ; O store offset after the row swaps: r*256 + 16*[0,2,1,3][g] + w*24576
    v_and_b32 v1, 15, v0
    v_bfe_u32 v2, v0, 4, 1
    v_lshrrev_b32 v3, 5, v0
    v_lshl_add_u32 v2, v2, 1, v3
    v_lshlrev_b32 v2, 4, v2
    v_lshl_add_u32 v2, v1, 8, v2
    v_add_u32 v{vOst}, s83, v2
"""
    if 0 in g.pres:
        for r in range(4): txt+=f"    v_accvgpr_write_b32 a{aSave+r}, v{vCI[0]+r}\n"
    txt+=f"    s_waitcnt vmcnt({nfirst})\n"
    if thr: txt+=f"    s_cmp_eq_u32 s{sPar}, 0\n    s_cbranch_scc0 L_thr1\n    s_waitcnt vmcnt({k1})\nL_thr1:\n"
    if probe and probe[1]==203: txt+=PM
    if warm:
        txt+="    ; touch the first line of every 4 KB code page (instruction-cache warm-up while the first loads are in flight)\n    s_mov_b64 vcc, -1\n"
        for w in range(3): txt+=f"    s_cmp_eq_u32 s{sW}, {w}\n    s_cbranch_scc1 L_stub{w}\n"
        txt+="    s_branch L_stub3\n"
        txt+="L_back:\n    s_mov_b64 vcc, 0\n"
        if probe and probe[1]==204: txt+=PM
    if thr:
        txt+=f"    s_cmp_eq_u32 s{sPar}, 0\n    s_cbranch_scc0 L_main\n"
        nd=0
        for o in out[cut:k0]:
            if o.kind=='dma':
                if nd%2==0: txt+=f" s_waitcnt vmcnt({W})\n"
                nd+=1
            txt+=" "+o.text+"\n"
    txt+="    s_branch L_main\n.p2align 12\nL_main:\n"
    txt+="".join(body)
    if stamp:
        txt+="".join(" "+x+"\n" for x in st2())
        txt+=" s_waitcnt vmcnt(0)\n"+"".join(" "+x+"\n" for x in st2())
        txt+=" v_mov_b32 v2, 0\n v_mov_b32 v3, 0\n"
        o_=1 if cfg.get('stamp0') else 0
        if o_: txt+=" v_writelane_b32 v2, s5, 0\n v_writelane_b32 v3, s6, 0\n"
        for i in range(ns[0]): txt+=f" v_writelane_b32 v2, s{SST[2*i]}, {i+o_}\n v_writelane_b32 v3, s{SST[2*i+1]}, {i+o_}\n"
        txt+=f""" s_load_dwordx2 s[92:93], s[0:1], 40
 s_lshl_b32 s90, s4, 2
 s_add_u32 s90, s90, s{sW}
 s_mul_i32 s90, s90, 768
 v_mbcnt_lo_u32_b32 v1, -1, 0
 v_mbcnt_hi_u32_b32 v1, -1, v1
 v_lshlrev_b32 v1, 2, v1
 v_add_u32 v1, s90, v1
 s_waitcnt lgkmcnt(0)
 global_store_dword v1, v2, s[92:93]
 global_store_dword v1, v3, s[92:93] offset:512
"""
    if probe:
        if probe[1]==99: txt+=f" s_mem{'real' if probe[2]=='rt' else ''}time s[94:95]\n s_waitcnt lgkmcnt(0)\n"
        if probe[1]==100: txt+=f" s_waitcnt vmcnt(0)\n s_mem{'real' if probe[2]=='rt' else ''}time s[94:95]\n s_waitcnt lgkmcnt(0)\n"
        if probe[1]<0: txt+=" s_mov_b32 s94, s92\n"
        if cfg.get('gstart'):
            txt+=" v_mov_b32 v11, 0\n global_load_dword v10, v11, s[34:35] sc0 sc1\n s_waitcnt vmcnt(0)\n v_readfirstlane_b32 s90, v10\n s_nop 3\n s_not_b32 s90, s90\n"
            if cfg['gstart']==2: txt+=" s_mov_b32 s92, s90\n"
        txt+=" s_sub_u32 s94, s94, s92\n"
        if probe[2]=='cyc': txt+=" s_lshr_b32 s94, s94, 4\n"
        else: txt+=f" s_lshl_b32 s94, s94, {cfg.get('amp',2)}\n"
        txt+=" s_add_u32 s94, s94, 10000\nL_spin:\n s_memrealtime s[92:93]\n s_waitcnt lgkmcnt(0)\n s_sub_u32 s92, s92, s90\n s_cmp_lt_u32 s92, s94\n s_cbranch_scc1 L_spin\n"
    if cfg.get('extra_mfma'):
        n,kind=cfg['extra_mfma']
        txt+=f" s_waitcnt vmcnt(0)\n s_mov_b32 s64, {n}\nL_xm:\n"
        L=[]
        if kind.startswith('m16'):
            for j in range(6):
                for i,f in enumerate(Gen.KORD):
                    kt,st=divmod(f,4); d=8*(j%2)+4*kt
                    L.append(f" v_mfma_f32_16x16x32_bf16 v[{d}:{d+3}], a[{160+4*f}:{163+4*f}], a[{192+16*(j%2)+4*st}:{195+16*(j%2)+4*st}], {'0' if i%4==0 else f'v[{d}:{d+3}]'}\n")
                for t in range(8):
                    d=64+32*j+4*t
                    L.append(f" v_mfma_f32_16x16x32_bf16 v[{d}:{d+3}], a[{192+4*t}:{195+4*t}], v[{24+4*(j%3)}:{27+4*(j%3)}], v[{d}:{d+3}]\n")
            if kind=='m16nop': L=[x+(" s_nop 0\n s_nop 0\n s_nop 0\n s_nop 0\n s_nop 0\n" if k%2 else "") for k,x in enumerate(L)]
            if kind=='m16v': L=[x+(f" v_exp_f32 v{40+k%8}, v{24+k%12}\n" if k%2 else f" v_fma_f32 v{48+k%8}, v{24+k%12}, s24, v{25+k%10}\n v_cvt_pk_bf16_f32 v{49+k%8}, v{24+k%12}, v{25+k%10}\n") for k,x in enumerate(L)]
        else:
            for j in range(3):
                for st in range(8):
                    L.append(f" v_mfma_f32_32x32x16_bf16 v[0:15], a[{160+4*st}:{163+4*st}], a[{192+4*((st+j)%8)}:{195+4*((st+j)%8)}], {'0' if st==0 else 'v[0:15]'}\n")
                for t in range(8):
                    d=64+64*j+16*(t%4)
                    L.append(f" v_mfma_f32_32x32x16_bf16 v[{d}:{d+15}], a[{192+4*t}:{195+4*t}], v[{24+4*((t//4+j)%3)}:{27+4*((t//4+j)%3)}], v[{d}:{d+15}]\n")
        txt+="".join(L)
        txt+=" s_sub_u32 s64, s64, 1\n s_cmp_lg_u32 s64, 0\n s_cbranch_scc1 L_xm\n s_nop 15\n"
    if cfg.get('extra_nop'):
        txt+=f" s_mov_b32 s64, {cfg['extra_nop']}\nL_xn:\n"+" s_nop 15\n"*16+" s_sub_u32 s64, s64, 1\n s_cmp_lg_u32 s64, 0\n s_cbranch_scc1 L_xn\n"
    txt+=" s_nop 1\n"+slow_path()
    txt+=f"""L_end:
    s_endpgm
.section .rodata,"a"
.p2align 6
.amdhsa_kernel {NAME}_kernel
  .amdhsa_next_free_vgpr 512
  .amdhsa_next_free_sgpr 102
  .amdhsa_accum_offset 256
  .amdhsa_group_segment_fixed_size 0
  .amdhsa_kernarg_size 48
  .amdhsa_user_sgpr_count 2
  .amdhsa_user_sgpr_kernarg_segment_ptr 1
  .amdhsa_system_sgpr_workgroup_id_x 1
.end_amdhsa_kernel
"""
    open(path,'w').write(txt)
    from collections import Counter
    print(path, "ops",len(out),"est",est, dict(Counter(o.kind for o in out)), "code",addr)
    if cfg.get('verbose'): print(' segs',[b-a for a,b in zip(marks,marks[1:]+[est])])
    if stamp and stamp is not True:
        mt=[]; estimate(out,None,mt); pts=[mt[g.msbb[n]] for n in stamp]+[est]
        print(' est stamp segs',[b-a for a,b in zip(pts,pts[1:])])
    from asm import asm
    asm(path)
    return out
```

```python
from cfgs import *
b=dict(verbose=False,pres=(0,1),snake=True,dswsp=2,holeburst=4,stpol='sc0 sc1 nt',thr=(6,12,4),probe=(0,100,'rt'))
emit(mk('j4a',tail=4,tailst=[12]*4+[3,3],**b),f'c_a.s')
emit(mk('j4a',tail=3,tailst=[10]*4+[3,3],**b),f'c_b.s')
emit(mk('j4a',tail=5,tailst=[16]*4+[3,3],Dlate=[(126,6)],ststep=36,**b),f'c_c.s')
emit(mk('j4a',tail=4,tailst=[12]*4+[3,3],ldsrate=680,**b),f'c_d.s')
emit(mk('j4a',tail=4,tailst=[12]*4+[3,3],dsmargin=10,merge=10,**b),f'c_e.s')
emit(mk('j4a',tail=6,tailv=[(26,'0123'),(27,'0123'),(28,'01'),(29,'01'),(30,'01'),(31,'0123'),(30,'23'),(29,'23'),(28,'2345'),(29,'45'),(30,'45'),(31,'45'),(27,'45'),(26,'45')],tailst=[14,14,16,16,3,3],Dlate=[(120,6),(132,7)],ststep=34,**b),f'c_f.s')
```

```python
import sys, math, struct
from sched import *

NAME="standalone__gqa_softmax__near_ridge"
CSC = math.log2(math.e)/math.sqrt(128.0)
def f2u(x): return struct.unpack('<I',struct.pack('<f',x))[0]

vS=[0,8,16]; vP=[24,28,32,36]; vMCs=[63,41,42,43,44,45]; vBp=40
vKa=[46,47]; vVa=[48,49,50,51]; vQa=[52,53]; vDMA=54; vIdx=55
vOw=[56,57,52,53]; vOst=58; vOr=59
vL=[60,62]; vT0=61; vT1=None
vCI={0:56,1:60}; aSave=248
vO=lambda slot,t: 64+32*slot+4*t
aQ=lambda b: 16*b
aK=lambda f: 160+4*f
aV=lambda t: 192+4*t
aSum=lambda slot: 224+4*(slot//2)
aOneS=236; aOneD=[240,244]
sQ=8; sK=12; sV=16; sO=20
sC=24; sTH=25; sWL=26 ; sWQ=27; sWS=28; sOffKV=29; sOffQ=30; sOffO=31; sW=32; sMSK=7; sPar=33
sFlag=40
KRING=0; VRING=65536; STG=131072

class Gen:
    def __init__(s, cfg):
        s.cfg=cfg; s.P=Program(); s.nbb=0; s.bars=[]; s.vis=set()
        s.R=cfg.get('ring',8); s.LAG=cfg.get('lag',2); s.NB=s.LAG+1
        s.lastread={}; s.dmadone={}; s.occ={'K':[None]*s.R,'V':[None]*s.R}; s.slotof={}; s.dmarel={}
        s.ldpol=cfg.get('ldpol','nt'); s.stpol=cfg.get('stpol','nt')
        s.urgent=False; s.win=cfg.get('dmawin',12); s.np=0 if cfg.get('dmapair',True) else 1
    def add(s,*a,**k):
        o=Op(*a,**k); s.P.add(o)
        if o.kind=='mfma': s.nbb+=1
        return o
    def now(s): return s.nbb-1
    def barrier(s):
        g=s.now()
        b=s.add("s_barrier",'bar',reads=[],writes=['barorder'],release=g,deadline=g)
        s.bars.append(b); return b
    def visible(s,part,g):
        if (part,g) in s.vis: return
        b=s.bars[-1]
        for bb in reversed(s.bars):
            if bb.reads and bb.release>=s.dmarel[(part,g)]+s.cfg.get('vislat',200) and s.dmadone[(part,g)]<bb.idx: b=bb; break
        assert s.dmadone[(part,g)]<b.idx, ("dma after barrier",part,g)
        b.reads.append(f"L:{part}{g}"); b.writes.append(f"vis{part}{g}"); s.vis.add((part,g))
    def dl(s,rel): return (rel+(0 if s.urgent else s.win)) if rel>=0 else -1
    def dma_kv(s,part,g,rel,step):
        rd=[]
        occ=s.occ[part]
        free=[x for x in range(s.R) if occ[x] is None]
        if free: slot=free[0]
        else:
            b=s.bars[-1]
            c=[x for x in range(s.R) if s.allread[(part,occ[x])]==0 and s.lastread[(part,occ[x])]<b.idx]
            assert c, ("no free slot",part,g,occ)
            slot=min(c,key=lambda x:s.lastread[(part,occ[x])]); old=occ[slot]
            for bb in s.bars:
                if bb.idx>s.lastread[(part,old)]+s.cfg.get('freegap',60) and bb.reads: b=bb; break
            b.reads.append(f"L:rd{part}{old}"); b.writes.append(f"free{part}{old}"); rd=[f"free{part}{old}"]
        occ[slot]=g; s.slotof[(part,g)]=slot
        base=(KRING if part=='K' else VRING)+slot*8192
        s.add(f"s_add_u32 m0, s{sWL}, {base}",'salu',writes=['m0'],margin=1)
        if s.curoff!=g:
            s.add(f"s_mov_b32 s{sOffKV}, {g*8192}",'salu',writes=[f"s{sOffKV}"],margin=1); s.curoff=g
        srd=sK if part=='K' else sV
        for i in range(2):
            o=s.add(f"buffer_load_dwordx4 v{vDMA}, s[{srd}:{srd+3}], s{sOffKV} offen offset:{2048*i} {s.ldpol} lds",'dma',
                  reads=['m0',f"s{sOffKV}"]+rd,writes=[f"L:{part}{g}",'O:vm'],release=rel+i*step*s.np,deadline=s.dl(rel+i*step*s.np),tag=('pair' if i and not s.np else None))
        s.dmadone[(part,g)]=o.idx; s.dmarel[(part,g)]=o.deadline
    def dma_q(s,T,rel,step):
        buf=T%2; it,j=divmod(T,6)
        assert s.stgown[buf] is None, ("stg busy",T,s.stgown); s.stgown[buf]=('Q',T)
        k=0
        for half in range(2):
            s.add(f"s_add_u32 m0, s{sWS}, {STG+buf*4096+half*896}",'salu',writes=['m0'],margin=1)
            if half==0: s.add(f"s_add_u32 s{sOffQ}, s{sWQ}, {(it*768+16*j)*256}",'salu',writes=[f"s{sOffQ}"],margin=1)
            for oc in range(2):
                s.add(f"buffer_load_dwordx4 v{vDMA}, s[{sQ}:{sQ+3}], s{sOffQ} offen offset:{2048*oc+128*half} {s.ldpol} lds",'dma',
                      reads=['m0',f"s{sOffQ}",f"L:stg{buf}0",f"L:stg{buf}1"],writes=[f"L:Q{T}",'O:vm'],release=rel+(k if s.np else 2*half)*step,deadline=s.dl(rel+(k if s.np else 2*half)*step),tag=('pair' if oc and not s.np else None))
                k+=1
    def read_q(s,T,rel):
        buf=T%2; qb=s.qbuf[T]; s.qread.add(T)
        assert all(s.seen[x]==16 for x in range(T) if s.qbuf[x]==qb), ("qbuf busy",T)
        assert s.stgown[buf]==('Q',T); s.stgown[buf]=None
        if T in s.pres:
            raw=vO(5,0)+16*T; tmp=vO(4,0)
            for st in range(4):
                s.add(f"ds_read_b128 {rng('v',raw+4*st,4)}, v{vQa[st%2]} offset:{buf*4096+(st//2)*1024}",'dsr',
                      reads=[f"L:Q{T}",f"v{vQa[st%2]}"]+(['O:vm'] if st==0 else []),writes=R('v',raw+4*st,4)+[f"L:stg{buf}{st//2}",f"O:q{T}"],release=rel,deadline=rel)
            return
        s._read_q_plain(T,rel)
    def prescale(s,T,rel,off=0):
        if T not in s.pres: return
        qb=s.qbuf[T]
        if True:
            raw=vO(5,0)+16*T; tmp=vO(4,0)
            G = rel+off
            kw=dict(release=G,deadline=G)
            for r in range(16):
                x=raw+r; a=tmp+2*r
                s.add(f"v_lshlrev_b32 v{a}, 16, v{x}",'valu',reads=[f"v{x}"],writes=[f"v{a}"],**kw)
                s.add(f"v_and_b32 v{a+1}, s{sMSK}, v{x}",'valu',reads=[f"v{x}"],writes=[f"v{a+1}"],**kw)
            for r in range(16):
                x=raw+r; a=tmp+2*r
                s.add(f"v_pk_mul_f32 v[{a}:{a+1}], v[{a}:{a+1}], s[{sC}:{sC+1}] op_sel_hi:[1,0]",'pk',reads=[f"v{a}",f"v{a+1}"],writes=[f"v{a}",f"v{a+1}"],**kw)
                s.add(f"v_cvt_pk_bf16_f32 v{x}, v{a}, v{a+1}",'valu',reads=[f"v{a}",f"v{a+1}"],writes=[f"v{x}"],**kw)
                s.add(f"v_accvgpr_write_b32 a{aQ(qb)+r}, v{x}",'valu',reads=[f"v{x}"],writes=[f"a{aQ(qb)+r}"],**kw)
            return
    def _read_q_plain(s,T,rel):
        buf=T%2; qb=s.qbuf[T]
        for st in range(4):
            s.add(f"ds_read_b128 {rng('a',aQ(qb)+4*st,4)}, v{vQa[st%2]} offset:{buf*4096+(st//2)*1024}",'dsr',
                  reads=[f"L:Q{T}",f"v{vQa[st%2]}"]+(['O:vm'] if st==0 else []),writes=R('a',aQ(qb)+4*st,4)+[f"L:stg{buf}{st//2}",f"O:q{T}"],release=rel,margin=8,deadline=s.dl(rel),hole=True)
    def read_k(s,g,order):
        s.visible('K',g); slot=s.slotof[('K',g)]
        for f in order:
            kt,st=divmod(f,4)
            o=s.add(f"ds_read_b128 {rng('a',aK(f),4)}, v{vKa[st%2]} offset:{slot*8192+kt*4096+(st//2)*1024}",'dsr',
                  reads=[f"visK{g}"],writes=R('a',aK(f),4)+[f"L:rdK{g}"],margin=s.cfg.get('dsmargin',10))
        s.lastread[('K',g)]=o.idx; s.allread[('K',g)]-=1
    def read_v(s,g):
        s.visible('V',g); slot=s.slotof[('V',g)]
        for t in range(8):
            for kt in range(2):
                o=s.add(f"ds_read_b64_tr_b16 {rng('a',aV(t)+2*kt,2)}, v{vVa[t%4]} offset:{slot*8192+kt*4096+(t//4)*1024}",'dsr',
                      reads=[f"visV{g}"],writes=R('a',aV(t)+2*kt,2)+[f"L:rdV{g}"],margin=s.cfg.get('dsmargin',10))
        s.lastread[('V',g)]=o.idx; s.allread[('V',g)]-=1
    KORD=[0,1,2,3,7,6,5,4]
    def qk(s,n,T):
        b=n%s.NB; qb=s.qbuf[T]
        for i,f in enumerate(s.KORD):
            kt,st=divmod(f,4)
            d=vS[b]+4*kt; first=(i%4==0)
            cr = R('v',d,4); c=rng('v',d,4)
            if first:
                if T in s.pres and s.seen[T]>0: cr=R('v',vCI[T],4); c=rng('v',vCI[T],4)
                else: cr=[]; c="0"
            s.add(f"v_mfma_f32_16x16x32_bf16 {rng('v',d,4)}, {rng('a',aK(f),4)}, {rng('a',aQ(qb)+4*st,4)}, {c}",'mfma',
                  reads=R('a',aK(f),4)+R('a',aQ(qb)+4*st,4)+cr,writes=R('v',d,4),cread=cr)
        if T==0 and T in s.pres and s.seen[T]==15:
            for r in range(4): s.add(f"v_accvgpr_read_b32 v{vCI[0]+r}, a{aSave+r}",'valu',reads=[],writes=[f"v{vCI[0]+r}"])
    def pv(s,n,T,first):
        slot=s.slot[T]; p=vP[s.pbuf[n]]
        d=aSum(slot); mode=s.summode[n]
        if (T//2) not in s.zeroed:
            s.zeroed.add(T//2)
            for r in range(4): s.add(f"v_accvgpr_write_b32 a{d+r}, 0",'valu',writes=[f"a{d+r}"],margin=2)
        if mode=='single':
            a=aOneD[slot%2]
            s.add(f"v_mfma_f32_16x16x32_bf16 {rng('a',d,4)}, {rng('a',a,4)}, {rng('v',p,4)}, {rng('a',d,4)}",'mfma',
                  reads=R('a',a,4)+R('v',p,4)+R('a',d,4),writes=R('a',d,4),cread=R('a',d,4),tag='sum')
        elif mode=='second':
            s.add(f"v_smfmac_f32_16x16x64_bf16 {rng('a',d,4)}, {rng('a',aOneS,4)}, {rng('v',p-4,8)}, v{vIdx}",'mfma',
                  reads=R('a',aOneS,4)+R('v',p-4,8)+R('a',d,4),writes=R('a',d,4),cread=R('a',d,4),cost=12,tag='sum')
        if s.pending_epi is not None and mode=='second':
            X=s.pending_epi; s.pending_epi=None; s.finish(X,5)
        for t in range(8):
            d=vO(slot,t); c="0" if first else rng('v',d,4)
            s.add(f"v_mfma_f32_16x16x32_bf16 {rng('v',d,4)}, {rng('a',aV(t),4)}, {rng('v',p,4)}, {c}",'mfma',
                  reads=R('a',aV(t),4)+R('v',p,4)+([] if first else R('v',d,4)),writes=R('v',d,4),cread=([] if first else R('v',d,4)))
    def finish(s,T,off):
        e=s.epilogue(T,off)
        if T in s.imm:
            s.read_o(T,s.imm[T][0],e)
            if s.imm[T][1] is not None: s.store_o(T,e+s.cfg.get('stlag',10),s.imm[T][1])
    def sm(s,n,T,first):
        b=n%s.NB; S=vS[b]; p=vP[s.pbuf[n]]; mc=vMCs[s.slot[T]]; zero=s.cfg.get('zero'); pre=T in s.pres
        if pre: mc=vCI[T]
        if first and not zero:
            t0,t1=(mc,None) if s.cfg.get('bperm',True) else (vT0,vT1)
            V=lambda txt,rd,wr,k='valu': s.add(txt,k,reads=[f"v{x}" for x in rd],writes=[f"v{x}" for x in wr],margin=1)
            V(f"v_max3_f32 v{t0}, v{S}, v{S+1}, v{S+2}",[S,S+1,S+2],[t0])
            V(f"v_max_f32 v{t0}, v{t0}, v{S+3}",[t0,S+3],[t0])
            if s.cfg.get('bperm',True):
                s.add(f"ds_bpermute_b32 v{t0}, v{vBp}, v{t0}",'dsr',reads=[f"v{t0}"],writes=[f"v{t0}"],margin=6)
            else:
                V(f"v_mov_b32 v{t1}, v{t0}",[t0],[t1])
                V(f"v_permlane16_swap_b32 v{t0}, v{t1}",[t0,t1],[t0,t1],'perm')
                V(f"v_max_f32 v{t0}, v{t0}, v{t1}",[t0,t1],[t0])
                V(f"v_mov_b32 v{t1}, v{t0}",[t0],[t1])
                V(f"v_permlane32_swap_b32 v{t0}, v{t1}",[t0,t1],[t0,t1],'perm')
                V(f"v_max_f32 v{t0}, v{t0}, v{t1}",[t0,t1],[t0])
            if pre:
                V(f"v_xor_b32 v{mc}, 0x80000000, v{t0}",[t0],[mc])
                for r in range(1,4): V(f"v_mov_b32 v{mc+r}, v{mc}",[mc],[mc+r])
            else: V(f"v_mul_f32 v{mc}, 0x{f2u(-CSC):08x}, v{t0}",[t0],[mc])
        sp=s.cfg.get('smsp',3)
        for k in range(4):
            for i in (2*k,2*k+1):
                if pre:
                    if first: s.add(f"v_add_f32 v{S+i}, v{S+i}, v{mc}",'valu',reads=[f"v{S+i}",f"v{mc}"],writes=[f"v{S+i}"],margin=1)
                elif T in s.cfg.get('fake',()) and not first: pass
                elif zero: s.add(f"v_mul_f32 v{S+i}, s{sC}, v{S+i}",'valu',reads=[f"v{S+i}"],writes=[f"v{S+i}"],margin=1)
                else: s.add(f"v_fma_f32 v{S+i}, v{S+i}, s{sC}, v{mc}",'valu',reads=[f"v{S+i}",f"v{mc}"],writes=[f"v{S+i}"],margin=1)
            for i in (2*k,2*k+1):
                s.add(f"v_exp_f32 v{S+i}, v{S+i}",'trans',reads=[f"v{S+i}"],writes=[f"v{S+i}"],margin=1+(i%2==0))
            s.add(f"v_cvt_pk_bf16_f32 v{p+k}, v{S+2*k}, v{S+2*k+1}",'valu',reads=[f"v{S+2*k}",f"v{S+2*k+1}"],writes=[f"v{p+k}"],margin=1+sp*(3-k))
    def epilogue(s,T,off=0):
        slot=s.slot[T]; g0=s.now()+off; l=vL[T%2]; buf=s.obuf[T]; tmp=(vT0 if s.cfg.get('bperm',True) else l+1); a=aSum(slot)+2*(slot%2)
        direct=s.cfg.get('direct')
        if not direct:
            assert s.stgown[buf] is None, ("stg busy O",T,s.stgown); s.stgown[buf]=('O',T)
        if not s.owdone and not direct:
            assert len(s.qread)==12
            s.owdone=True
            s.add(f"v_xor_b32 v{vOw[2]}, 64, v{vOw[0]}",'valu',reads=[f"v{vOw[0]}"],writes=[f"v{vOw[2]}"])
            s.add(f"v_xor_b32 v{vOw[3]}, 64, v{vOw[1]}",'valu',reads=[f"v{vOw[1]}"],writes=[f"v{vOw[3]}"])
        s.add(f"v_accvgpr_read_b32 v{l}, a{a}",'valu',reads=[f"a{a}"],writes=[f"v{l}"],deadline=g0-1)
        s.add(f"v_accvgpr_read_b32 v{tmp}, a{a+1}",'valu',reads=[f"a{a+1}"],writes=[f"v{tmp}"],deadline=g0-1)
        s.add(f"v_add_f32 v{l}, v{l}, v{tmp}",'valu',reads=[f"v{l}",f"v{tmp}"],writes=[f"v{l}"],deadline=g0)
        s.add(f"v_cmp_ngt_f32_e64 s[{sFlag+2*T}:{sFlag+2*T+1}], s{sTH}, v{l}",'valu',reads=[f"v{l}"],writes=[f"s{sFlag+2*T}"],deadline=g0)
        s.add(f"v_rcp_f32 v{l}, v{l}",'trans',reads=[f"v{l}"],writes=[f"v{l}"],deadline=g0+1)
        G=g0+3
        def pks(ts):
          for t in ts:
            o=vO(slot,t)
            for i in (0,2):
                s.add(f"v_pk_mul_f32 v[{o+i}:{o+i+1}], v[{o+i}:{o+i+1}], v[{l}:{l+1}] op_sel_hi:[1,0]",'pk',reads=[f"v{o+i}",f"v{o+i+1}",f"v{l}"],writes=[f"v{o+i}",f"v{o+i+1}"],release=G,deadline=G)
        pks(range(8) if direct else range(4))
        W=s.cfg.get('epiw',12)
        if direct:
            for m in range(4):
                o=vO(slot,2*m); d=G+(W*m)//4
                for i in range(4):
                    s.add(f"v_cvt_pk_bf16_f32 v{o+i}, v{o+2*i}, v{o+2*i+1}",'valu',reads=[f"v{o+2*i}",f"v{o+2*i+1}"],writes=[f"v{o+i}"],deadline=d+i//2)
                for i in range(2):
                    s.add(f"v_permlane16_swap_b32 v{o+i}, v{o+i+2}",'perm',reads=[f"v{o+i}",f"v{o+i+2}"],writes=[f"v{o+i}",f"v{o+i+2}"],deadline=d+2+i)
            return G+4
        if s.cfg.get('w2',True) and T<s.cfg.get('w2last',11):
            pks(range(4,8))
            for t in range(4):
                d=G+(W*t)//4
                for u in (t,t+4):
                    o=vO(slot,u)
                    for i in range(2):
                        s.add(f"v_cvt_pk_bf16_f32 v{o+i}, v{o+2*i}, v{o+2*i+1}",'valu',reads=[f"v{o+2*i}",f"v{o+2*i+1}"],writes=[f"v{o+i}"],deadline=d+(u>=4))
                o=vO(slot,t); p=vO(slot,t+4)
                s.add(f"ds_write2st64_b64 v{vOw[t]}, v[{o}:{o+1}], v[{p}:{p+1}] offset0:{buf*8} offset1:{buf*8+2}",'dsw',reads=[f"v{o}",f"v{o+1}",f"v{p}",f"v{p+1}",f"v{vOw[t]}"],writes=[f"L:stg{buf}0",f"L:stg{buf}1"],deadline=d+2,cost=20)
            return G+W+1
        for t in range(8):
            if t==4: pks(range(4,8))
            o=vO(slot,t); d=G+(W*t)//8
            for i in range(2):
                s.add(f"v_cvt_pk_bf16_f32 v{o+i}, v{o+2*i}, v{o+2*i+1}",'valu',reads=[f"v{o+2*i}",f"v{o+2*i+1}"],writes=[f"v{o+i}"],deadline=d)
            s.add(f"ds_write_b64 v{vOw[t%4]}, v[{o}:{o+1}] offset:{buf*4096+(t//4)*1024}",'dsw',reads=[f"v{o}",f"v{o+1}",f"v{vOw[t%4]}"],writes=[f"L:stg{buf}{t//4}"],deadline=d+s.cfg.get('dswd',1))
        return G+W+1+s.cfg.get('dswd',1)
    def read_o(s,T,park,rel):
        buf=s.obuf[T]; s.park[T]=park
        if s.cfg.get('direct'):
            if park is None: return
            assert all(s.seen[x] in (0,16) and not (s.seen[x]==0 and x in s.qread) for x in range(12) if s.qbuf[x]==park), ("park busy",T,park)
            assert s.parkown.get(park) is None; s.parkown[park]=[T,4]
            W=s.cfg.get('epiw',12)
            for m in range(4):
                o=vO(s.slot[T],2*m)
                for i in range(4):
                    s.add(f"v_accvgpr_write_b32 a{aQ(park)+4*m+i}, v{o+i}",'valu',reads=[f"v{o+i}"],writes=[f"a{aQ(park)+4*m+i}"],deadline=rel+(W*m)//4+i//2+s.cfg.get('accslack',0))
            return
        assert all(s.seen[x] in (0,16) and not (s.seen[x]==0 and x in s.qread) for x in range(12) if s.qbuf[x]==park), ("park busy",T,park)
        assert s.stgown[buf]==('O',T); s.stgown[buf]=None
        assert s.parkown.get(park) is None, ("park has unstored data",T,park); s.parkown[park]=[T,4]
        for j in (0,2,1,3):
            kw=dict(release=rel,deadline=rel+4,hole=True)
            if j<2:
                s.add(f"ds_read_b128 {rng('a',aQ(park)+4*j,4)}, v{vOr} offset:{buf*4096+1024*j}",'dsr',
                      reads=[f"v{vOr}"],writes=R('a',aQ(park)+4*j,4)+[f"L:stg{buf}{j%2}"],**kw)
            else:
                for h in range(2):
                    s.add(f"ds_read_b64 {rng('a',aQ(park)+4*j+2*h,2)}, v{vOr} offset:{buf*4096+1024*j+8*(1-h)}",'dsr',
                          reads=[f"v{vOr}"],writes=R('a',aQ(park)+4*j+2*h,2)+[f"L:stg{buf}{j%2}"],**kw)
    def store_o(s,T,rel,step,js=(0,2,1,3)):
        it,j=divmod(T,6); park=s.park[T]
        if T>=6: rel=max(rel,s.laststore+step)
        s.laststore=rel+(len(js)-1)*step
        if s.curO!=T:
            s.add(f"s_mov_b32 s{sOffO}, {(it*768+16*j)*256}",'salu',writes=[f"s{sOffO}"],margin=1); s.curO=T
        s.nst+=len(js)
        if park is not None:
            s.parkown[park][1]-=len(js)
            if s.parkown[park][1]==0: s.parkown[park]=None
        if s.cfg.get('direct'):
            pol=s.stpol if isinstance(s.stpol,str) else s.stpol[T]
            for k,m in enumerate(js):
                p,r=('a',aQ(park)+4*m) if park is not None else ('v',vO(s.slot[T],2*m))
                s.add(f"buffer_store_dwordx4 {rng(p,r,4)}, v{vOst}, s[{sO}:{sO+3}], s{sOffO} offen offset:{64*m} {pol}",'gst',
                      reads=R(p,r,4)+[f"s{sOffO}",f"v{vOst}"],writes=['O:st'],release=rel+k*step,deadline=rel+k*step+2)
            return
        for k,j in enumerate(js):
            s.add(f"buffer_store_dwordx4 {rng('a',aQ(park)+4*j,4)}, v{vOst}, s[{sO}:{sO+3}], s{sOffO} offen offset:{(j//2)*2048+(j%2)*128} {s.stpol if isinstance(s.stpol,str) else s.stpol[T]}",'gst',
                  reads=R('a',aQ(park)+4*j,4)+[f"s{sOffO}",f"v{vOst}"],writes=['O:st'],release=rel+k*step,deadline=rel+k*step+2)
    def build(s):
        cfg=s.cfg; LAG=s.LAG
        visits=cfg['visits']
        s.slot={T:T%6 for T in range(12)}
        s.qbuf=cfg.get('qbuf',{**{T:T for T in range(10)},10:0,11:1})
        s.obuf={T:T%2 for T in range(12)}; s.park={}; s.curO=None
        s.pres=set(cfg.get('pres',())); s.imm=cfg.get('oimm',{}); s.zeroed=set(); s.pending_epi=None; s.owdone=False
        s.allread=defaultdict(int)
        for g,ts in visits:
            s.allread[('K',g)]+=1; s.allread[('V',g)]+=1
        ms=[]
        for vi,(g,ts) in enumerate(visits):
            for k,T in enumerate(ts): ms.append((vi,g,T,k==0,k==len(ts)-1))
        cnt=defaultdict(int)
        for m in ms: cnt[m[2]]+=1
        assert all(cnt[T]==16 for T in range(12)) and len({(m[1],m[2]) for m in ms})==192
        assert all(m[1]//16==m[2]//6 for m in ms)
        s.summode={}; s.pbuf={}; pb=0; n=0
        while n<len(ms):
            T=ms[n][2]
            if cfg.get('smf',True) and T%2==0 and n+1<len(ms)-(2 if cfg.get('lastsingle',True) else 0) and ms[n+1][2]==T+1:
                if pb%2: pb+=1
                s.summode[n]='first'; s.summode[n+1]='second'; s.pbuf[n]=pb%4; s.pbuf[n+1]=(pb+1)%4; pb+=2; n+=2
            else:
                s.summode[n]='single'; s.pbuf[n]=pb%4; pb+=1; n+=1
        plan=defaultdict(list)
        for n,u in cfg['plan']: plan[n].append(u)
        s.curoff=None
        def doplan(n):
            rel=s.now(); us=plan.get(n,[])
            nd=sum({'B':4,'K':2,'V':2,'Q':4}.get(u[0],0) for u in us)
            step = 0 if n<0 else max(1,cfg.get('span',16)//max(nd,1))
            for u in us:
                st = u[2] if len(u)>2 and u[0] in 'BKVQ' else step
                s.urgent = u[0] in 'BKVQ' and st<=1 and cfg.get('urgent',True)
                if s.urgent and rel<0: st=0
                if u[0]=='B':
                    s.dma_kv('K',u[1],rel,st); s.dma_kv('V',u[1],rel+2*st,st); rel+=4*st
                elif u[0] in 'KV':
                    s.dma_kv(u[0],u[1],rel,st); rel+=2*st
                elif u[0]=='Q':
                    s.dma_q(u[1],rel,st); rel+=4*st
                elif u[0]=='q': s.read_q(u[1],s.now()+(u[2] if len(u)>2 else 0)); rel=max(rel,s.now()+(u[2] if len(u)>2 else 0))
                elif u[0]=='p': s.prescale(u[1],s.now(),u[2] if len(u)>2 else 0)
                elif u[0]=='o': s.read_o(u[1],u[2],s.now())
                elif u[0]=='s': s.store_o(u[1],s.now(),u[2],*u[3:])
                elif u[0]=='bar': s.barrier()
                elif u[0]=='c': s.add(f"buffer_load_dword a252, v{vDMA}, s[36:39], s35 offen",'gld',writes=['O:vm'],release=s.now(),deadline=s.now()+12)
        s.msbb={}; seen=defaultdict(int); seenpv=defaultdict(int); s.seen=defaultdict(int); s.qread=set(); s.stgown=[None,None]; s.parkown={}; s.nst=0; s.laststore=-99
        barset=cfg.get('barvisits')
        doplan(-1)
        s.barrier(); s.read_k(ms[0][1],s.KORD)
        N=len(ms)
        for n in range(N+LAG):
            if n<N:
                vi,g,T,fi,la=ms[n]
                if la and n+1<N and (barset is None or vi+1 in barset) and n not in cfg.get('nobar',()) and n<=cfg.get('lastbar',999): s.barrier()
                doplan(n)
                assert T in s.qread, ('Q not loaded',T)
                s.msbb[n]=s.nbb
                s.qk(n,T); s.seen[T]+=1
            m=n-LAG
            if m>=0:
                T1=ms[m][2]
                s.pv(m,T1,seenpv[T1]==0); seenpv[T1]+=1
                if seenpv[T1]==16:
                    if s.summode[m]=='first': s.pending_epi=T1
                    else: s.finish(T1,0)
            if n<N:
                s.sm(n,T,seen[T]==0); seen[T]+=1
                if la and n+1<N: s.read_k(ms[n+1][1],s.KORD)
            if m+1>=0 and m+1<N and ms[m+1][3]: s.read_v(ms[m+1][1])
        assert s.nst==48
        s.P.ops=[o for o in s.P.ops if not (o.kind=='bar' and not o.reads)]
        for i,o in enumerate(s.P.ops): o.idx=i
        out=s.P.schedule(ldsrate=cfg.get('ldsrate',1024),ldsburst=cfg.get('ldsburst',1024),dswd=cfg.get('dswd',1),dswsp=cfg.get('dswsp',1),holeburst=cfg.get('holeburst',12),wdma=cfg.get('wdma',-1),dmaw=cfg.get('dmaw',-1))
        out=insert_waits(out,cfg.get('merge',9))
        verify_waits(out)
        check_hazards(out)
        return out

def PRO(cfg):
  t=f"""
    s_cmp_ge_u32 s2, 256
    s_cbranch_scc1 L_end
    s_load_dwordx4 s[64:67], s[0:1], 0
    s_load_dwordx4 s[68:71], s[0:1], 16
    v_lshrrev_b32 v1, 6, v0
    s_lshr_b32 s73, s2, 3
    s_getpc_b64 s[86:87]
L_pc:
    v_and_b32 v2, 7, v0
    v_lshl_add_u32 v2, v2, 2, v1
    v_lshlrev_b32 v2, 12, v2
    s_lshl_b32 s88, s73, 7
    v_add_u32 v2, s88, v2
    v_min_u32 v2, L_end-L_main, v2
    s_add_u32 s86, s86, L_main-L_pc
    s_addc_u32 s87, s87, 0
    v_readfirstlane_b32 s{sW}, v1
    v_and_b32 v0, 63, v0
    global_load_dword v4, v2, s[86:87]
    s_and_b32 s72, s2, 7
    s_lshr_b32 s74, s73, 1
    s_and_b32 s75, s73, 1
    s_lshl_b32 s72, s72, 4
    s_add_u32 s72, s72, s74
    s_lshl_b32 s76, s72, 18
    s_mul_i32 s77, s72, {2*768*256}
    s_mul_i32 s78, s75, {384*256}
    s_add_u32 s77, s77, s78
    s_and_b32 s79, s{sW}, 1
    s_lshr_b32 s80, s{sW}, 1
    s_lshl_b32 s81, s79, 10
    s_lshl_b32 s82, s80, 12
    s_add_u32 s{sWL}, s81, s82       ; LDS: (w&1)*1024 + (w>>1)*4096
    s_lshl_b32 s81, s79, 7
    s_add_u32 s81, s81, s82          ; global: (w&1)*128 + (w>>1)*4096
    s_mul_i32 s83, s{sW}, 24576
    s_sub_u32 s{sWQ}, s83, s81
    s_lshl_b32 s{sWS}, s{sW}, 13
    ; DMA voffset: (i>>3)*256 + ((i&7)^((i>>3)&6))*16 + wave part
    v_lshrrev_b32 v1, 3, v0
    v_and_b32 v2, 6, v1
    v_and_b32 v3, 7, v0
    v_xor_b32 v2, v2, v3
    v_lshlrev_b32 v2, 4, v2
    v_lshl_add_u32 v2, v1, 8, v2
    v_add_u32 v{vDMA}, s81, v2
    s_mov_b32 s{sQ+2}, {1152*256}
    s_mov_b32 s{sQ+3}, 0x20000
    s_mov_b32 s{sK+2}, 0x40000
    s_mov_b32 s{sK+3}, 0x20000
    s_mov_b32 s{sV+2}, 0x40000
    s_mov_b32 s{sV+3}, 0x20000
    s_mov_b32 s{sO+2}, {1152*256}
    s_mov_b32 s{sO+3}, 0x20000
    s_waitcnt lgkmcnt(0)
    s_add_u32 s{sQ}, s64, s77
    s_addc_u32 s{sQ+1}, s65, 0
    s_add_u32 s{sK}, s66, s76
    s_addc_u32 s{sK+1}, s67, 0
    s_add_u32 s{sV}, s68, s76
    s_addc_u32 s{sV+1}, s69, 0
    s_add_u32 s{sO}, s70, s77
    s_addc_u32 s{sO+1}, s71, 0
"""
  if cfg.get('adj'):
    t=t.replace("    s_add_u32 s72, s72, s74          ; pair index 0..127\n","    s_lshr_b32 s72, s2, 1\n    s_and_b32 s75, s2, 1\n")
  return t
PRO2 = f"""
    s_mov_b32 s{sC}, 0x{f2u(CSC):08x}
    s_mov_b32 s{sTH}, 0x5f800000
    s_mov_b32 s{sMSK}, 0xffff0000
    s_add_u32 s84, s{sWS}, {STG}
    v_xor_b32 v2, v1, v3
    v_lshlrev_b32 v2, 4, v2
    v_lshl_add_u32 v2, v1, 8, v2
    v_add_u32 v{vOst}, s83, v2
    v_lshl_add_u32 v{vOr}, v0, 4, s84
    v_and_b32 v1, 15, v0
    v_lshrrev_b32 v2, 4, v0
    v_lshlrev_b32 v{vBp}, 2, v1
    v_and_b32 v5, 7, v1
    v_lshlrev_b32 v6, 7, v5
    v_lshrrev_b32 v7, 3, v1
    v_lshl_add_u32 v6, v7, 11, v6
    v_and_b32 v3, 6, v1
    v_xor_b32 v3, v3, v2
    v_lshl_add_u32 v{vKa[0]}, v3, 4, v6
    v_xor_b32 v{vKa[1]}, 64, v{vKa[0]}
    v_add_u32 v{vQa[0]}, s84, v{vKa[0]}
    v_add_u32 v{vQa[1]}, s84, v{vKa[1]}
    v_lshrrev_b32 v3, 1, v2
    v_xor_b32 v3, v3, v5
    v_lshl_add_u32 v3, v3, 4, v6
    v_and_b32 v2, 1, v2
    v_xor_b32 v2, v2, v7
    v_lshl_add_u32 v3, v2, 3, v3
    v_add_u32 v{vOw[0]}, s84, v3
    v_xor_b32 v{vOw[1]}, 32, v{vOw[0]}
    v_lshrrev_b32 v1, 2, v0
    v_and_b32 v2, 6, v1
    v_bfe_u32 v3, v0, 1, 1
    v_xor_b32 v2, v2, v3
    v_lshlrev_b32 v2, 4, v2
    v_and_b32 v3, 1, v0
    v_lshl_add_u32 v2, v3, 3, v2
    v_and_b32 v3, 7, v1
    v_lshl_add_u32 v2, v3, 7, v2
    v_lshrrev_b32 v3, 3, v1
    v_lshl_add_u32 v2, v3, 11, v2
    v_add_u32 v{vVa[0]}, {VRING}, v2
    v_xor_b32 v{vVa[1]}, 32, v{vVa[0]}
    v_xor_b32 v{vVa[2]}, 64, v{vVa[0]}
    v_xor_b32 v{vVa[3]}, 0x60, v{vVa[0]}
    ; row-sum operands: sparse pair pattern, index, and dense single-tile patterns
    v_mov_b32 v1, 0x3f803f80
    v_bfe_u32 v2, v0, 1, 1
    v_lshrrev_b32 v3, 5, v0
    v_cmp_eq_u32 vcc, v2, v3
    v_and_b32 v5, 3, v0
    v_mov_b32 v6, 0x4444
    v_cndmask_b32 v2, 0, v1, vcc
    v_cmp_eq_u32 vcc, 0, v5
    v_accvgpr_write_b32 a{aOneS}, v2
    v_accvgpr_write_b32 a{aOneS+1}, v2
    v_cndmask_b32 v3, 0, v1, vcc
    v_cmp_eq_u32 vcc, 2, v5
    v_accvgpr_write_b32 a{aOneS+2}, v2
    v_accvgpr_write_b32 a{aOneS+3}, v2
    v_cndmask_b32 v2, 0, v1, vcc
    v_and_b32 v5, 1, v0
    v_mul_u32_u24 v5, 0xaaaa, v5
    v_add_u32 v{vIdx}, v5, v6
    v_accvgpr_write_b32 a{aOneD[0]}, v3
    v_accvgpr_write_b32 a{aOneD[0]+1}, v3
    v_accvgpr_write_b32 a{aOneD[0]+2}, v3
    v_accvgpr_write_b32 a{aOneD[0]+3}, v3
    v_accvgpr_write_b32 a{aOneD[1]}, v2
    v_accvgpr_write_b32 a{aOneD[1]+1}, v2
    v_accvgpr_write_b32 a{aOneD[1]+2}, v2
    v_accvgpr_write_b32 a{aOneD[1]+3}, v2
"""

def slow_path():
    L=[]
    A=L.append
    A("    s_or_b64 s[64:65], s[40:41], s[42:43]")
    for T in range(2,12): A(f"    s_or_b64 s[64:65], s[64:65], s[{sFlag+2*T}:{sFlag+2*T+1}]")
    A("    s_cbranch_scc0 L_end")
    A("    s_mov_b32 s66, 0")
    for T in range(12):
        A(f"    s_cmp_lg_u64 s[{sFlag+2*T}:{sFlag+2*T+1}], 0")
        A(f"    s_cselect_b32 s67, {1<<T}, 0")
        A("    s_or_b32 s66, s66, s67")
    A("    s_waitcnt vmcnt(0) lgkmcnt(0)")
    A("    v_mbcnt_lo_u32_b32 v8, -1, 0")
    A("    v_mbcnt_hi_u32_b32 v8, -1, v8")
    A("    v_and_b32 v9, 15, v8")
    A("    v_lshrrev_b32 v10, 4, v8")
    A("    v_lshlrev_b32 v11, 4, v10")
    A("    v_lshl_add_u32 v14, v9, 8, v11")
    A("    v_add_u32 v15, s83, v14")
    A("    v_and_b32 v11, 1, v10")
    A("    v_lshlrev_b32 v11, 1, v11")
    A("    v_lshrrev_b32 v12, 1, v10")
    A("    v_or_b32 v11, v11, v12")
    A("    v_lshlrev_b32 v11, 4, v11")
    A("    v_lshl_add_u32 v11, v9, 8, v11")
    A("    v_add_u32 v13, s83, v11")
    A(f"    v_subrev_u32 v16, s81, v{vDMA}")
    A(f"    s_add_u32 s68, s{sWS}, {STG-VRING}")
    for i in range(4): A(f"    v_add_u32 v{20+i}, s68, v{vVa[i]}")
    for i in range(4): A(f"    v_mov_b32 v{196+i}, 0x3f803f80")
    A("    s_mov_b32 s69, 0")
    A("L_slow_tile:")
    A("    s_bitcmp1_b32 s66, s69")
    A("    s_cbranch_scc0 L_slow_next")
    A("    s_cmp_ge_u32 s69, 6")
    A("    s_cselect_b32 s70, 0x20000, 0")
    A(f"    s_cselect_b32 s71, {(768-96)*256}, 0")
    A("    s_lshl_b32 s72, s69, 12")
    A("    s_add_u32 s71, s71, s72                ; q/o offset")
    for st in range(4): A(f"    buffer_load_dwordx4 v[{64+4*st}:{67+4*st}], v15, s[{sQ}:{sQ+3}], s71 offen offset:{64*st}")
    A("    v_mov_b32 v17, 0xff800000")
    A("    s_mov_b32 s72, s70")
    A("    s_add_u32 s73, s70, 0x20000")
    A("L_slow_max:")
    for st in range(4): A(f"    buffer_load_dwordx4 v[{80+4*st}:{83+4*st}], v14, s[{sK}:{sK+3}], s72 offen offset:{64*st}")
    A("    s_waitcnt vmcnt(0)")
    for st in range(4): A(f"    v_mfma_f32_16x16x32_bf16 v[0:3], v[{80+4*st}:{83+4*st}], v[{64+4*st}:{67+4*st}], {'0' if st==0 else 'v[0:3]'}")
    A("    s_nop 15")
    A("    v_max3_f32 v17, v17, v0, v1")
    A("    v_max3_f32 v17, v17, v2, v3")
    A("    s_add_u32 s72, s72, 4096")
    A("    s_cmp_lt_u32 s72, s73")
    A("    s_cbranch_scc1 L_slow_max")
    for sw in ("16","32"):
        A("    v_mov_b32 v18, v17"); A("    s_nop 1")
        A(f"    v_permlane{sw}_swap_b32 v17, v18"); A("    s_nop 1")
        A("    v_max_f32 v17, v17, v18")
    A(f"    v_mul_f32 v17, 0x{f2u(-CSC):08x}, v17")
    for r in range(160,196): A(f"    v_mov_b32 v{r}, 0")
    A("    s_mov_b32 s72, s70")
    A("L_slow_blk:")
    A("    s_add_u32 s74, s72, 4096")
    for f in range(8):
        kt,st=divmod(f,4)
        A(f"    buffer_load_dwordx4 v[{80+4*f}:{83+4*f}], v14, s[{sK}:{sK+3}], {'s72' if kt==0 else 's74'} offen offset:{64*st}")
    for kt in range(2):
        for half in range(2):
            A(f"    s_add_u32 m0, s{sWS}, {STG+kt*4096+half*896}")
            A("    s_nop 0")
            for oc in range(2):
                A(f"    buffer_load_dwordx4 v16, s[{sV}:{sV+3}], {'s72' if kt==0 else 's74'} offen offset:{2048*oc+128*half} lds")
    A("    s_waitcnt vmcnt(0)")
    for t in range(8):
        for kt in range(2):
            A(f"    ds_read_b64_tr_b16 v[{112+4*t+2*kt}:{113+4*t+2*kt}], v{20+t%4} offset:{kt*4096+(t//4)*1024}")
    for f in range(8):
        kt,st=divmod(f,4); d=4*kt
        A(f"    v_mfma_f32_16x16x32_bf16 v[{d}:{d+3}], v[{80+4*f}:{83+4*f}], v[{64+4*st}:{67+4*st}], {'0' if st==0 else f'v[{d}:{d+3}]'}")
    A("    s_nop 15")
    for i in range(8): A(f"    v_fma_f32 v{i}, v{i}, s{sC}, v17")
    for i in range(8): A(f"    v_exp_f32 v{i}, v{i}")
    A("    s_nop 1")
    for k in range(4): A(f"    v_cvt_pk_bf16_f32 v{24+k}, v{2*k}, v{1+2*k}")
    A("    s_waitcnt lgkmcnt(0)")
    A("    s_nop 1")
    for t in range(8): A(f"    v_mfma_f32_16x16x32_bf16 v[{160+4*t}:{163+4*t}], v[{112+4*t}:{115+4*t}], v[24:27], v[{160+4*t}:{163+4*t}]")
    A("    v_mfma_f32_16x16x32_bf16 v[192:195], v[196:199], v[24:27], v[192:195]")
    A("    s_add_u32 s72, s72, 8192")
    A("    s_cmp_lt_u32 s72, s73")
    A("    s_cbranch_scc1 L_slow_blk")
    A("    s_nop 15")
    A("    v_rcp_f32 v18, v192")
    A("    s_nop 1")
    for r in range(160,192): A(f"    v_mul_f32 v{r}, v{r}, v18")
    for m in range(4):
        o=160+8*m
        for i in range(4): A(f"    v_cvt_pk_bf16_f32 v{o+i}, v{o+2*i}, v{o+2*i+1}")
        A("    s_nop 1")
        for i in range(2): A(f"    v_permlane16_swap_b32 v{o+i}, v{o+i+2}")
        A(f"    buffer_store_dwordx4 v[{o}:{o+3}], v13, s[{sO}:{sO+3}], s71 offen offset:{64*m}")
    A("    s_waitcnt vmcnt(0)")
    A("L_slow_next:")
    A("    s_add_u32 s69, s69, 1")
    A("    s_cmp_lt_u32 s69, 12")
    A("    s_cbranch_scc1 L_slow_tile")
    return "\n".join(L)+"\n"

def isize(t):
    if 'L_thrw' in t: return 12
    if 'L_back2' in t: return 36
    t=t.strip(); op=t.split()[0]
    if op.startswith(('v_mfma','v_smfmac','ds_','buffer_','global_','v_fma_f32','v_cvt_pk','v_max3','v_pk_','v_accvgpr','v_writelane','s_mem')) or op.endswith('_e64'): return 8
    if op in('s_waitcnt','s_barrier','s_nop') or op.startswith('s_cbranch'): return 4
    for a in t.split(None,1)[1].replace(',',' ').split():
        try: v=int(a,0)
        except ValueError: continue
        if not -16<=v<=64: return 8
    return 4

DOC = """;
; GQA attention, O = softmax(Q K^T / sqrt(128)) V.  Generated, fully unrolled, one persistent workgroup per CU.
;  - workgroup: 4 waves x 6 q-tiles of 16 rows, two KV heads one after the other (workgroups wg and wg+8 share both heads).
;  - softmax guard: every row subtracts a reference that is one of its own scores (max over the first keys it meets), so the
"""
HEAD = open('cdna_kernels/'+NAME+'.s.ref').read().split('; Override')[0]
def emit(cfg, path):
    g=Gen(cfg); out=g.build()
    abl=cfg.get('ablate')
    if abl:
        nb=0; o2=[]
        for o in out:
            if o.kind=='bar': nb+=1
            if nb>=3 and any((a==o.kind) or (a in o.text) for a in abl): continue
            o2.append(o)
        out=o2
    marks=[]; est=estimate(out,marks)
    stamp=cfg.get('stamp'); warm=cfg.get('warm',True)
    SST=[x for x in list(range(64,81))+list(range(85,90))+list(range(92,102))]
    ns=[0]
    def st2():
        i=ns[0]; ns[0]+=1
        return ["s_memtime s[90:91]","s_memrealtime s[2:3]","s_waitcnt lgkmcnt(0)",f"s_mov_b32 s{SST[2*i]}, s90",f"s_mov_b32 s{SST[2*i+1]}, s2"]
    if stamp: first_st=st2(); stbb={g.msbb[n] for n in stamp}
    k0=0
    while out[k0].kind in('dma','salu','nop'): k0+=1
    first=[o.text for o in out[:k0]]; nfirst=sum(1 for o in out[:k0] if o.kind=='dma')
    w2=cfg.get('warm2'); w2done=False; nvw=0; lines=[]; ndma=nfirst; nbar=0; nm=0; probe=cfg.get('probe')
    for k in range(k0,len(out)):
        o=out[k]
        if w2 and not w2done and o.kind=='wait' and 'v' in o.tag:
            nvw+=1
            if nvw==w2[1]:
                w2done=True; p=w2[0]
                lines.append(("s_mov_b64 vcc, -1\n"+"".join(f" s_cmp_eq_u32 s{sW}, {w}\n s_cbranch_scc1 L_stub{p+w}\n" for w in range(3))+f" s_branch L_stub{p+3}\nL_back2:\n s_mov_b64 vcc, 0",'salu'))
        if cfg.get('thr') and o.kind=='dma':
            if ndma<cfg['thr'][1] and ndma%2==0:
                lines+=[(f"s_cmp_eq_u32 s{sPar}, 0\n s_cbranch_scc0 L_thrw{ndma}\n s_waitcnt vmcnt({cfg['thr'][2]})\nL_thrw{ndma}:",'salu')]
            ndma+=1
        lines.append((o.text,o.kind))
        if o.kind=='bar': nbar+=1
        if probe and o.kind=='mfma' and o.bb in [g.msbb.get(x) for x in probe[:2] if x not in (0,99,100,-1)]:
            r = 92 if o.bb==g.msbb.get(probe[0]) else 94
            lines+=[(f"s_mem{'real' if probe[2]=='rt' else ''}time s[{r}:{r+1}]",'x'),("s_waitcnt lgkmcnt(0)",'x')]
        if stamp and o.kind=='mfma' and o.bb in stbb: lines+=[(x,'x') for x in st2()]
    body=[]; addr=0; page=0; stubs=0
    tot=sum(isize(t) for t,_ in lines); npages=(tot+200)//4096+1
    for i,(t,kd) in enumerate(lines):
        if warm and addr>=page*4096 and page<npages:
            prevm = i>0 and lines[i-1][1]=='mfma'
            if (prevm and kd not in SC_KINDS) or addr+isize(t)>page*4096+56 or page==0:
                nxt=page+4
                tgt = 'L_stub%d'%nxt if nxt<npages else ('L_back2' if w2 else 'L_back')
                if w2 and page<w2[0]<=nxt: tgt='L_back'
                body.append(f"L_stub{page}:\n s_cbranch_vccnz {tgt}\n")
                body.append(f".if ((L_stub{page}-L_main)>>6) != {page*64}\n.error \"stub misplaced\"\n.endif\n")
                addr+=4; page+=1
        body.append(" "+t+"\n"); addr+=isize(t)
    while warm and page<npages:
        body.append(f"L_stub{page}:\n s_cbranch_vccnz {'L_back2' if w2 else 'L_back'}\n"); page+=1
    txt=HEAD+"; @launch grid=(256,1,1) block=(256,1,1) lds=163840\n"
    txt+=DOC
    txt+=f'.amdgcn_target "amdgcn-amd-amdhsa--gfx950"\n.text\n.globl {NAME}_kernel\n.p2align 8\n.type {NAME}_kernel,@function\n{NAME}_kernel:\n'
    if probe:
        txt+=" s_memrealtime s[90:91]\n"
        if probe[0]==0: txt+=f" s_mem{'real' if probe[2]=='rt' else ''}time s[92:93]\n"
        txt+=" s_waitcnt lgkmcnt(0)\n"
        if cfg.get('gstart'):
            txt+=" s_load_dwordx2 s[34:35], s[0:1], 32\n s_not_b32 s36, s90\n v_mov_b32 v10, s36\n v_mov_b32 v11, 0\n s_waitcnt lgkmcnt(0)\n v_cmp_eq_u32 vcc, 0, v0\n s_and_saveexec_b64 s[36:37], vcc\n s_cbranch_execz L_gs\n global_atomic_umax v11, v10, s[34:35]\nL_gs:\n s_mov_b64 exec, s[36:37]\n"
    if stamp and cfg.get('stamp0'):
        txt+=" s_memtime s[90:91]\n s_memrealtime s[92:93]\n s_waitcnt lgkmcnt(0)\n s_mov_b32 s5, s90\n s_mov_b32 s6, s92\n"
    if cfg.get('pre_nop'):
        txt+=f" s_mov_b32 s64, {cfg['pre_nop']}\nL_pn:\n"+" s_nop 15\n"*16+" s_sub_u32 s64, s64, 1\n s_cmp_lg_u32 s64, 0\n s_cbranch_scc1 L_pn\n"
    PM=" s_memrealtime s[94:95]\n s_waitcnt lgkmcnt(0)\n"
    txt+=PRO(cfg)
    if probe and probe[1]==201: txt+=PM
    thr=cfg.get('thr')
    if thr:
        k1,KK,W=thr
        cut=[i for i,o in enumerate(out[:k0]) if o.kind=='dma'][k1-1]+1
        txt+=f"    s_getreg_b32 s{sPar}, hwreg(HW_REG_XCC_ID, 0, 1)\n"
        if cfg.get('thrinv'): txt+=f"    s_xor_b32 s{sPar}, s{sPar}, 1\n"
        txt+="".join(" "+t+"\n" for t in first[:cut])
        txt+=f"    s_cmp_eq_u32 s{sPar}, 0\n    s_cbranch_scc1 L_thr0\n"+"".join(" "+t+"\n" for t in first[cut:])+"L_thr0:\n"
    else:
        txt+="".join(" "+t+"\n" for t in first)
    if probe and probe[1]==202: txt+=PM
    if stamp: txt+=" s_mov_b32 s4, s2\n"+"".join(" "+x+"\n" for x in first_st)
    txt+=PRO2
    if cfg.get('direct'):
        txt+=f"""    ; O store offset after the row swaps: r*256 + 16*[0,2,1,3][g] + w*24576
    v_and_b32 v1, 15, v0
    v_bfe_u32 v2, v0, 4, 1
    v_lshrrev_b32 v3, 5, v0
    v_lshl_add_u32 v2, v2, 1, v3
    v_lshlrev_b32 v2, 4, v2
    v_lshl_add_u32 v2, v1, 8, v2
    v_add_u32 v{vOst}, s83, v2
"""
    if 0 in g.pres:
        for r in range(4): txt+=f"    v_accvgpr_write_b32 a{aSave+r}, v{vCI[0]+r}\n"
    txt+=f"    s_waitcnt vmcnt({nfirst})\n"
    if thr: txt+=f"    s_cmp_eq_u32 s{sPar}, 0\n    s_cbranch_scc0 L_thr1\n    s_waitcnt vmcnt({k1})\nL_thr1:\n"
    if probe and probe[1]==203: txt+=PM
    if warm:
        txt+="    ; touch the first line of every 4 KB code page (instruction-cache warm-up while the first loads are in flight)\n    s_mov_b64 vcc, -1\n"
        for w in range(3): txt+=f"    s_cmp_eq_u32 s{sW}, {w}\n    s_cbranch_scc1 L_stub{w}\n"
        txt+="    s_branch L_stub3\n"
        txt+="L_back:\n    s_mov_b64 vcc, 0\n"
        if probe and probe[1]==204: txt+=PM
    if thr:
        txt+=f"    s_cmp_eq_u32 s{sPar}, 0\n    s_cbranch_scc0 L_main\n"
        nd=0
        for o in out[cut:k0]:
            if o.kind=='dma':
                if nd%2==0: txt+=f" s_waitcnt vmcnt({W})\n"
                nd+=1
            txt+=" "+o.text+"\n"
    txt+="    s_branch L_main\n.p2align 12\nL_main:\n"
    txt+="".join(body)
    if stamp:
        txt+="".join(" "+x+"\n" for x in st2())
        txt+=" s_waitcnt vmcnt(0)\n"+"".join(" "+x+"\n" for x in st2())
        txt+=" v_mov_b32 v2, 0\n v_mov_b32 v3, 0\n"
        o_=1 if cfg.get('stamp0') else 0
        if o_: txt+=" v_writelane_b32 v2, s5, 0\n v_writelane_b32 v3, s6, 0\n"
        for i in range(ns[0]): txt+=f" v_writelane_b32 v2, s{SST[2*i]}, {i+o_}\n v_writelane_b32 v3, s{SST[2*i+1]}, {i+o_}\n"
        txt+=f""" s_load_dwordx2 s[92:93], s[0:1], 40
 s_lshl_b32 s90, s4, 2
 s_add_u32 s90, s90, s{sW}
 s_mul_i32 s90, s90, 768
 v_mbcnt_lo_u32_b32 v1, -1, 0
 v_mbcnt_hi_u32_b32 v1, -1, v1
 v_lshlrev_b32 v1, 2, v1
 v_add_u32 v1, s90, v1
 s_waitcnt lgkmcnt(0)
 global_store_dword v1, v2, s[92:93]
 global_store_dword v1, v3, s[92:93] offset:512
"""
    if probe:
        if probe[1]==99: txt+=f" s_mem{'real' if probe[2]=='rt' else ''}time s[94:95]\n s_waitcnt lgkmcnt(0)\n"
        if probe[1]==100: txt+=f" s_waitcnt vmcnt(0)\n s_mem{'real' if probe[2]=='rt' else ''}time s[94:95]\n s_waitcnt lgkmcnt(0)\n"
        if probe[1]<0: txt+=" s_mov_b32 s94, s92\n"
        if cfg.get('gstart'):
            txt+=" v_mov_b32 v11, 0\n global_load_dword v10, v11, s[34:35] sc0 sc1\n s_waitcnt vmcnt(0)\n v_readfirstlane_b32 s90, v10\n s_nop 3\n s_not_b32 s90, s90\n"
            if cfg['gstart']==2: txt+=" s_mov_b32 s92, s90\n"
        txt+=" s_sub_u32 s94, s94, s92\n"
        if probe[2]=='cyc': txt+=" s_lshr_b32 s94, s94, 4\n"
        else: txt+=f" s_lshl_b32 s94, s94, {cfg.get('amp',2)}\n"
        txt+=" s_add_u32 s94, s94, 10000\nL_spin:\n s_memrealtime s[92:93]\n s_waitcnt lgkmcnt(0)\n s_sub_u32 s92, s92, s90\n s_cmp_lt_u32 s92, s94\n s_cbranch_scc1 L_spin\n"
    if cfg.get('extra_mfma'):
        n,kind=cfg['extra_mfma']
        txt+=f" s_waitcnt vmcnt(0)\n s_mov_b32 s64, {n}\nL_xm:\n"
        L=[]
        if kind.startswith('m16'):
            for j in range(6):
                for i,f in enumerate(Gen.KORD):
                    kt,st=divmod(f,4); d=8*(j%2)+4*kt
                    L.append(f" v_mfma_f32_16x16x32_bf16 v[{d}:{d+3}], a[{160+4*f}:{163+4*f}], a[{192+16*(j%2)+4*st}:{195+16*(j%2)+4*st}], {'0' if i%4==0 else f'v[{d}:{d+3}]'}\n")
                for t in range(8):
                    d=64+32*j+4*t
                    L.append(f" v_mfma_f32_16x16x32_bf16 v[{d}:{d+3}], a[{192+4*t}:{195+4*t}], v[{24+4*(j%3)}:{27+4*(j%3)}], v[{d}:{d+3}]\n")
            if kind=='m16nop': L=[x+(" s_nop 0\n s_nop 0\n s_nop 0\n s_nop 0\n s_nop 0\n" if k%2 else "") for k,x in enumerate(L)]
            if kind=='m16v': L=[x+(f" v_exp_f32 v{40+k%8}, v{24+k%12}\n" if k%2 else f" v_fma_f32 v{48+k%8}, v{24+k%12}, s24, v{25+k%10}\n v_cvt_pk_bf16_f32 v{49+k%8}, v{24+k%12}, v{25+k%10}\n") for k,x in enumerate(L)]
        else:
            for j in range(3):
                for st in range(8):
                    L.append(f" v_mfma_f32_32x32x16_bf16 v[0:15], a[{160+4*st}:{163+4*st}], a[{192+4*((st+j)%8)}:{195+4*((st+j)%8)}], {'0' if st==0 else 'v[0:15]'}\n")
                for t in range(8):
                    d=64+64*j+16*(t%4)
                    L.append(f" v_mfma_f32_32x32x16_bf16 v[{d}:{d+15}], a[{192+4*t}:{195+4*t}], v[{24+4*((t//4+j)%3)}:{27+4*((t//4+j)%3)}], v[{d}:{d+15}]\n")
        txt+="".join(L)
        txt+=" s_sub_u32 s64, s64, 1\n s_cmp_lg_u32 s64, 0\n s_cbranch_scc1 L_xm\n s_nop 15\n"
    if cfg.get('extra_nop'):
        txt+=f" s_mov_b32 s64, {cfg['extra_nop']}\nL_xn:\n"+" s_nop 15\n"*16+" s_sub_u32 s64, s64, 1\n s_cmp_lg_u32 s64, 0\n s_cbranch_scc1 L_xn\n"
    txt+=" s_nop 1\n"+slow_path()
    txt+=f"""L_end:
    s_endpgm
.section .rodata,"a"
.p2align 6
.amdhsa_kernel {NAME}_kernel
  .amdhsa_next_free_vgpr 512
  .amdhsa_next_free_sgpr 102
  .amdhsa_accum_offset 256
  .amdhsa_group_segment_fixed_size 0
  .amdhsa_kernarg_size 48
  .amdhsa_user_sgpr_count 2
  .amdhsa_user_sgpr_kernarg_segment_ptr 1
  .amdhsa_system_sgpr_workgroup_id_x 1
.end_amdhsa_kernel
"""
    open(path,'w').write(txt)
    from collections import Counter
    print(path, "ops",len(out),"est",est, dict(Counter(o.kind for o in out)), "code",addr)
    if cfg.get('verbose'): print(' segs',[b-a for a,b in zip(marks,marks[1:]+[est])])
    if stamp and stamp is not True:
        mt=[]; estimate(out,None,mt); pts=[mt[g.msbb[n]] for n in stamp]+[est]
        print(' est stamp segs',[b-a for a,b in zip(pts,pts[1:])])
    from asm import asm
    asm(path)
    return out
```

```python
import sys, math, struct
from sched import *

NAME="standalone__gqa_softmax__near_ridge"
CSC = math.log2(math.e)/math.sqrt(128.0)
def f2u(x): return struct.unpack('<I',struct.pack('<f',x))[0]

vS=[0,8,16]; vP=[24,28,32,36]; vMCs=[63,41,42,43,44,45]; vBp=40
vKa=[46,47]; vVa=[48,49,50,51]; vQa=[52,53]; vDMA=54; vIdx=55
vOw=[56,57,52,53]; vOst=58; vOr=59
vL=[60,62]; vT0=61; vT1=None
vCI={0:56,1:60}; aSave=248
vO=lambda slot,t: 64+32*slot+4*t
aQ=lambda b: 16*b
aK=lambda f: 160+4*f
aV=lambda t: 192+4*t
aSum=lambda slot: 224+4*(slot//2)
aOneS=236; aOneD=[240,244]
sQ=8; sK=12; sV=16; sO=20
sC=24; sTH=25; sWL=26 ; sWQ=27; sWS=28; sOffKV=29; sOffQ=30; sOffO=31; sW=32; sMSK=7; sPar=33
sFlag=40
KRING=0; VRING=65536; STG=131072

class Gen:
    def __init__(s, cfg):
        s.cfg=cfg; s.P=Program(); s.nbb=0; s.bars=[]; s.vis=set()
        s.R=cfg.get('ring',8); s.LAG=cfg.get('lag',2); s.NB=s.LAG+1
        s.lastread={}; s.dmadone={}; s.occ={'K':[None]*s.R,'V':[None]*s.R}; s.slotof={}; s.dmarel={}
        s.ldpol=cfg.get('ldpol','nt'); s.stpol=cfg.get('stpol','nt')
        s.urgent=False; s.win=cfg.get('dmawin',12); s.np=0 if cfg.get('dmapair',True) else 1
    def add(s,*a,**k):
        o=Op(*a,**k); s.P.add(o)
        if o.kind=='mfma': s.nbb+=1
        return o
    def now(s): return s.nbb-1
    def barrier(s):
        g=s.now()
        b=s.add("s_barrier",'bar',reads=[],writes=['barorder'],release=g,deadline=g)
        s.bars.append(b); return b
    def visible(s,part,g):
        if (part,g) in s.vis: return
        b=s.bars[-1]
        for bb in reversed(s.bars):
            if bb.reads and bb.release>=s.dmarel[(part,g)]+s.cfg.get('vislat',200) and s.dmadone[(part,g)]<bb.idx: b=bb; break
        assert s.dmadone[(part,g)]<b.idx, ("dma after barrier",part,g)
        b.reads.append(f"L:{part}{g}"); b.writes.append(f"vis{part}{g}"); s.vis.add((part,g))
    def dl(s,rel): return (rel+(0 if s.urgent else s.win)) if rel>=0 else -1
    def dma_kv(s,part,g,rel,step):
        rd=[]
        occ=s.occ[part]
        free=[x for x in range(s.R) if occ[x] is None]
        if free: slot=free[0]
        else:
            b=s.bars[-1]
            c=[x for x in range(s.R) if s.allread[(part,occ[x])]==0 and s.lastread[(part,occ[x])]<b.idx]
            assert c, ("no free slot",part,g,occ)
            slot=min(c,key=lambda x:s.lastread[(part,occ[x])]); old=occ[slot]
            for bb in s.bars:
                if bb.idx>s.lastread[(part,old)]+s.cfg.get('freegap',60) and bb.reads: b=bb; break
            b.reads.append(f"L:rd{part}{old}"); b.writes.append(f"free{part}{old}"); rd=[f"free{part}{old}"]
        occ[slot]=g; s.slotof[(part,g)]=slot
        base=(KRING if part=='K' else VRING)+slot*8192
        s.add(f"s_add_u32 m0, s{sWL}, {base}",'salu',writes=['m0'],margin=1)
        if s.curoff!=g:
            if s.curoff is not None and s.nbb>20 and abs(g-s.curoff)<=3: s.add(f"s_addk_i32 s{sOffKV}, {(g-s.curoff)*8192}",'salu',reads=[f"s{sOffKV}"],writes=[f"s{sOffKV}"],margin=1)
            else: s.add(f"s_mov_b32 s{sOffKV}, {g*8192}",'salu',writes=[f"s{sOffKV}"],margin=1)
            s.curoff=g
        srd=sK if part=='K' else sV
        for i in range(2):
            o=s.add(f"buffer_load_dwordx4 v{vDMA}, s[{srd}:{srd+3}], s{sOffKV} offen offset:{2048*i} {s.ldpol} lds",'dma',
                  reads=['m0',f"s{sOffKV}"]+rd,writes=[f"L:{part}{g}",'O:vm'],release=rel+i*step*s.np,deadline=s.dl(rel+i*step*s.np),tag=('pair' if i and not s.np else None))
        s.dmadone[(part,g)]=o.idx; s.dmarel[(part,g)]=o.deadline
    def dma_q(s,T,rel,step):
        buf=T%2; it,j=divmod(T,6)
        assert s.stgown[buf] is None, ("stg busy",T,s.stgown); s.stgown[buf]=('Q',T)
        k=0
        for half in range(2):
            if half: s.add(f"s_addk_i32 m0, 896",'salu',reads=['m0'],writes=['m0'],margin=1)
            else: s.add(f"s_add_u32 m0, s{sWS}, {STG+buf*4096}",'salu',writes=['m0'],margin=1)
            if half==0:
                if j>0 and T>=3 and s.lastQ==T-1: s.add(f"s_addk_i32 s{sOffQ}, 4096",'salu',reads=[f"s{sOffQ}"],writes=[f"s{sOffQ}"],margin=1)
                else: s.add(f"s_add_u32 s{sOffQ}, s{sWQ}, {(it*768+16*j)*256}",'salu',writes=[f"s{sOffQ}"],margin=1)
                s.lastQ=T
            for oc in range(2):
                s.add(f"buffer_load_dwordx4 v{vDMA}, s[{sQ}:{sQ+3}], s{sOffQ} offen offset:{2048*oc+128*half} {s.ldpol} lds",'dma',
                      reads=['m0',f"s{sOffQ}",f"L:stg{buf}0",f"L:stg{buf}1"],writes=[f"L:Q{T}",'O:vm'],release=rel+(k if s.np else 2*half)*step,deadline=s.dl(rel+(k if s.np else 2*half)*step),tag=('pair' if oc and not s.np else None))
                k+=1
    def read_q(s,T,rel):
        buf=T%2; qb=s.qbuf[T]; s.qread.add(T)
        assert all(s.seen[x]==16 for x in range(T) if s.qbuf[x]==qb), ("qbuf busy",T)
        assert s.stgown[buf]==('Q',T); s.stgown[buf]=None
        if T in s.pres:
            raw=vO(5,0)+16*T; tmp=vO(4,0)
            for st in range(4):
                s.add(f"ds_read_b128 {rng('v',raw+4*st,4)}, v{vQa[st%2]} offset:{buf*4096+(st//2)*1024}",'dsr',
                      reads=[f"L:Q{T}",f"v{vQa[st%2]}"]+(['O:vm'] if st==0 else []),writes=R('v',raw+4*st,4)+[f"L:stg{buf}{st//2}",f"O:q{T}"],release=rel,deadline=rel)
            return
        s._read_q_plain(T,rel)
    def prescale(s,T,rel,off=0):
        if T not in s.pres: return
        qb=s.qbuf[T]
        if True:
            raw=vO(5,0)+16*T; tmp=vO(4,0)
            G = rel+off
            kw=dict(release=G,deadline=G)
            for r in range(16):
                x=raw+r; a=tmp+2*r
                s.add(f"v_lshlrev_b32 v{a}, 16, v{x}",'valu',reads=[f"v{x}"],writes=[f"v{a}"],**kw)
                s.add(f"v_and_b32 v{a+1}, s{sMSK}, v{x}",'valu',reads=[f"v{x}"],writes=[f"v{a+1}"],**kw)
            for r in range(16):
                x=raw+r; a=tmp+2*r
                s.add(f"v_pk_mul_f32 v[{a}:{a+1}], v[{a}:{a+1}], s[{sC}:{sC+1}] op_sel_hi:[1,0]",'pk',reads=[f"v{a}",f"v{a+1}"],writes=[f"v{a}",f"v{a+1}"],**kw)
                s.add(f"v_cvt_pk_bf16_f32 v{x}, v{a}, v{a+1}",'valu',reads=[f"v{a}",f"v{a+1}"],writes=[f"v{x}"],**kw)
                s.add(f"v_accvgpr_write_b32 a{aQ(qb)+r}, v{x}",'valu',reads=[f"v{x}"],writes=[f"a{aQ(qb)+r}"],**kw)
            return
    def _read_q_plain(s,T,rel):
        buf=T%2; qb=s.qbuf[T]
        for st in range(4):
            s.add(f"ds_read_b128 {rng('a',aQ(qb)+4*st,4)}, v{vQa[st%2]} offset:{buf*4096+(st//2)*1024}",'dsr',
                  reads=[f"L:Q{T}",f"v{vQa[st%2]}"]+(['O:vm'] if st==0 else []),writes=R('a',aQ(qb)+4*st,4)+[f"L:stg{buf}{st//2}",f"O:q{T}"],release=rel,margin=8,deadline=s.dl(rel),hole=True)
    def read_k(s,g,order):
        s.visible('K',g); slot=s.slotof[('K',g)]
        for f in order:
            kt,st=divmod(f,4)
            o=s.add(f"ds_read_b128 {rng('a',aK(f),4)}, v{vKa[st%2]} offset:{slot*8192+kt*4096+(st//2)*1024}",'dsr',
                  reads=[f"visK{g}"],writes=R('a',aK(f),4)+[f"L:rdK{g}"],margin=s.cfg.get('dsmargin',10))
        s.lastread[('K',g)]=o.idx; s.allread[('K',g)]-=1
    def read_v(s,g):
        s.visible('V',g); slot=s.slotof[('V',g)]
        for t in range(8):
            for kt in range(2):
                o=s.add(f"ds_read_b64_tr_b16 {rng('a',aV(t)+2*kt,2)}, v{vVa[t%4]} offset:{slot*8192+kt*4096+(t//4)*1024}",'dsr',
                      reads=[f"visV{g}"],writes=R('a',aV(t)+2*kt,2)+[f"L:rdV{g}"],margin=s.cfg.get('dsmargin',10))
        s.lastread[('V',g)]=o.idx; s.allread[('V',g)]-=1
    KORD=[0,1,2,3,7,6,5,4]
    def qk(s,n,T):
        b=n%s.NB; qb=s.qbuf[T]
        for i,f in enumerate(s.KORD):
            kt,st=divmod(f,4)
            d=vS[b]+4*kt; first=(i%4==0)
            cr = R('v',d,4); c=rng('v',d,4)
            if first:
                if T in s.pres and s.seen[T]>0: cr=R('v',vCI[T],4); c=rng('v',vCI[T],4)
                else: cr=[]; c="0"
            s.add(f"v_mfma_f32_16x16x32_bf16 {rng('v',d,4)}, {rng('a',aK(f),4)}, {rng('a',aQ(qb)+4*st,4)}, {c}",'mfma',
                  reads=R('a',aK(f),4)+R('a',aQ(qb)+4*st,4)+cr,writes=R('v',d,4),cread=cr)
        if T==0 and T in s.pres and s.seen[T]==15:
            for r in range(4): s.add(f"v_accvgpr_read_b32 v{vCI[0]+r}, a{aSave+r}",'valu',reads=[],writes=[f"v{vCI[0]+r}"])
    def pv(s,n,T,first):
        slot=s.slot[T]; p=vP[s.pbuf[n]]
        d=aSum(slot); mode=s.summode[n]
        if (T//2) not in s.zeroed:
            s.zeroed.add(T//2)
            for r in range(4): s.add(f"v_accvgpr_write_b32 a{d+r}, 0",'valu',writes=[f"a{d+r}"],margin=2)
        if mode=='single':
            a=aOneD[slot%2]
            s.add(f"v_mfma_f32_16x16x32_bf16 {rng('a',d,4)}, {rng('a',a,4)}, {rng('v',p,4)}, {rng('a',d,4)}",'mfma',
                  reads=R('a',a,4)+R('v',p,4)+R('a',d,4),writes=R('a',d,4),cread=R('a',d,4),tag='sum')
        elif mode=='second':
            s.add(f"v_smfmac_f32_16x16x64_bf16 {rng('a',d,4)}, {rng('a',aOneS,4)}, {rng('v',p-4,8)}, v{vIdx}",'mfma',
                  reads=R('a',aOneS,4)+R('v',p-4,8)+R('a',d,4),writes=R('a',d,4),cread=R('a',d,4),cost=12,tag='sum')
        if s.pending_epi is not None and mode=='second':
            X=s.pending_epi; s.pending_epi=None; s.finish(X,5)
        for t in range(8):
            d=vO(slot,t); c="0" if first else rng('v',d,4)
            s.add(f"v_mfma_f32_16x16x32_bf16 {rng('v',d,4)}, {rng('a',aV(t),4)}, {rng('v',p,4)}, {c}",'mfma',
                  reads=R('a',aV(t),4)+R('v',p,4)+([] if first else R('v',d,4)),writes=R('v',d,4),cread=([] if first else R('v',d,4)))
    def finish(s,T,off):
        e=s.epilogue(T,off)
        if T in s.imm:
            s.read_o(T,s.imm[T][0],e)
            if s.imm[T][1] is not None: s.store_o(T,e+s.cfg.get('stlag',10),s.imm[T][1])
    def sm(s,n,T,first):
        b=n%s.NB; S=vS[b]; p=vP[s.pbuf[n]]; mc=vMCs[s.slot[T]]; zero=s.cfg.get('zero'); pre=T in s.pres
        if pre: mc=vCI[T]
        if first and not zero:
            t0,t1=(mc,None) if s.cfg.get('bperm',True) else (vT0,vT1)
            V=lambda txt,rd,wr,k='valu': s.add(txt,k,reads=[f"v{x}" for x in rd],writes=[f"v{x}" for x in wr],margin=1)
            V(f"v_max3_f32 v{t0}, v{S}, v{S+1}, v{S+2}",[S,S+1,S+2],[t0])
            V(f"v_max_f32 v{t0}, v{t0}, v{S+3}",[t0,S+3],[t0])
            if s.cfg.get('bperm',True):
                s.add(f"ds_bpermute_b32 v{t0}, v{vBp}, v{t0}",'dsr',reads=[f"v{t0}"],writes=[f"v{t0}"],margin=6)
            else:
                V(f"v_mov_b32 v{t1}, v{t0}",[t0],[t1])
                V(f"v_permlane16_swap_b32 v{t0}, v{t1}",[t0,t1],[t0,t1],'perm')
                V(f"v_max_f32 v{t0}, v{t0}, v{t1}",[t0,t1],[t0])
                V(f"v_mov_b32 v{t1}, v{t0}",[t0],[t1])
                V(f"v_permlane32_swap_b32 v{t0}, v{t1}",[t0,t1],[t0,t1],'perm')
                V(f"v_max_f32 v{t0}, v{t0}, v{t1}",[t0,t1],[t0])
            if pre:
                V(f"v_xor_b32 v{mc}, 0x80000000, v{t0}",[t0],[mc])
                for r in range(1,4): V(f"v_mov_b32 v{mc+r}, v{mc}",[mc],[mc+r])
            else: V(f"v_mul_f32 v{mc}, 0x{f2u(-CSC):08x}, v{t0}",[t0],[mc])
        sp=s.cfg.get('smsp',3)
        for k in range(4):
            for i in (2*k,2*k+1):
                if pre:
                    if first: s.add(f"v_add_f32 v{S+i}, v{S+i}, v{mc}",'valu',reads=[f"v{S+i}",f"v{mc}"],writes=[f"v{S+i}"],margin=1)
                elif T in s.cfg.get('fake',()) and not first: pass
                elif zero: s.add(f"v_mul_f32 v{S+i}, s{sC}, v{S+i}",'valu',reads=[f"v{S+i}"],writes=[f"v{S+i}"],margin=1)
                else: s.add(f"v_fma_f32 v{S+i}, v{S+i}, s{sC}, v{mc}",'valu',reads=[f"v{S+i}",f"v{mc}"],writes=[f"v{S+i}"],margin=1)
            for i in (2*k,2*k+1):
                s.add(f"v_exp_f32 v{S+i}, v{S+i}",'trans',reads=[f"v{S+i}"],writes=[f"v{S+i}"],margin=1+(i%2==0))
            s.add(f"v_cvt_pk_bf16_f32 v{p+k}, v{S+2*k}, v{S+2*k+1}",'valu',reads=[f"v{S+2*k}",f"v{S+2*k+1}"],writes=[f"v{p+k}"],margin=1+sp*(3-k))
    def epilogue(s,T,off=0):
        slot=s.slot[T]; g0=s.now()+off; l=vL[T%2]; buf=s.obuf[T]; tmp=(vT0 if s.cfg.get('bperm',True) else l+1); a=aSum(slot)+2*(slot%2)
        direct=s.cfg.get('direct')
        if not direct:
            assert s.stgown[buf] is None, ("stg busy O",T,s.stgown); s.stgown[buf]=('O',T)
        if not s.owdone and not direct:
            assert len(s.qread)==12
            s.owdone=True
            s.add(f"v_xor_b32 v{vOw[2]}, 64, v{vOw[0]}",'valu',reads=[f"v{vOw[0]}"],writes=[f"v{vOw[2]}"])
            s.add(f"v_xor_b32 v{vOw[3]}, 64, v{vOw[1]}",'valu',reads=[f"v{vOw[1]}"],writes=[f"v{vOw[3]}"])
        s.add(f"v_accvgpr_read_b32 v{l}, a{a}",'valu',reads=[f"a{a}"],writes=[f"v{l}"],deadline=g0-1)
        s.add(f"v_accvgpr_read_b32 v{tmp}, a{a+1}",'valu',reads=[f"a{a+1}"],writes=[f"v{tmp}"],deadline=g0-1)
        s.add(f"v_add_f32 v{l}, v{l}, v{tmp}",'valu',reads=[f"v{l}",f"v{tmp}"],writes=[f"v{l}"],deadline=g0)
        s.add(f"v_cmp_ngt_f32_e64 s[{sFlag+2*T}:{sFlag+2*T+1}], s{sTH}, v{l}",'valu',reads=[f"v{l}"],writes=[f"s{sFlag+2*T}"],deadline=g0)
        s.add(f"v_rcp_f32 v{l}, v{l}",'trans',reads=[f"v{l}"],writes=[f"v{l}"],deadline=g0+1)
        G=g0+3
        def pks(ts):
          for t in ts:
            o=vO(slot,t)
            for i in (0,2):
                s.add(f"v_pk_mul_f32 v[{o+i}:{o+i+1}], v[{o+i}:{o+i+1}], v[{l}:{l+1}] op_sel_hi:[1,0]",'pk',reads=[f"v{o+i}",f"v{o+i+1}",f"v{l}"],writes=[f"v{o+i}",f"v{o+i+1}"],release=G,deadline=G)
        pks(range(8) if direct else range(4))
        W=s.cfg.get('epiw',12)
        if direct:
            for m in range(4):
                o=vO(slot,2*m); d=G+(W*m)//4
                for i in range(4):
                    s.add(f"v_cvt_pk_bf16_f32 v{o+i}, v{o+2*i}, v{o+2*i+1}",'valu',reads=[f"v{o+2*i}",f"v{o+2*i+1}"],writes=[f"v{o+i}"],deadline=d+i//2)
                for i in range(2):
                    s.add(f"v_permlane16_swap_b32 v{o+i}, v{o+i+2}",'perm',reads=[f"v{o+i}",f"v{o+i+2}"],writes=[f"v{o+i}",f"v{o+i+2}"],deadline=d+2+i)
            return G+4
        if s.cfg.get('w2',True) and T<s.cfg.get('w2last',11):
            pks(range(4,8))
            for t in range(4):
                d=G+(W*t)//4
                for u in (t,t+4):
                    o=vO(slot,u)
                    for i in range(2):
                        s.add(f"v_cvt_pk_bf16_f32 v{o+i}, v{o+2*i}, v{o+2*i+1}",'valu',reads=[f"v{o+2*i}",f"v{o+2*i+1}"],writes=[f"v{o+i}"],deadline=d+(u>=4))
                o=vO(slot,t); p=vO(slot,t+4)
                s.add(f"ds_write2st64_b64 v{vOw[t]}, v[{o}:{o+1}], v[{p}:{p+1}] offset0:{buf*8} offset1:{buf*8+2}",'dsw',reads=[f"v{o}",f"v{o+1}",f"v{p}",f"v{p+1}",f"v{vOw[t]}"],writes=[f"L:stg{buf}0",f"L:stg{buf}1"],deadline=d+2,cost=20)
            return G+W+1
        for t in range(8):
            if t==4: pks(range(4,8))
            o=vO(slot,t); d=G+(W*t)//8
            for i in range(2):
                s.add(f"v_cvt_pk_bf16_f32 v{o+i}, v{o+2*i}, v{o+2*i+1}",'valu',reads=[f"v{o+2*i}",f"v{o+2*i+1}"],writes=[f"v{o+i}"],deadline=d)
            s.add(f"ds_write_b64 v{vOw[t%4]}, v[{o}:{o+1}] offset:{buf*4096+(t//4)*1024}",'dsw',reads=[f"v{o}",f"v{o+1}",f"v{vOw[t%4]}"],writes=[f"L:stg{buf}{t//4}"],deadline=d+s.cfg.get('dswd',1))
        return G+W+1+s.cfg.get('dswd',1)
    def read_o(s,T,park,rel):
        buf=s.obuf[T]; s.park[T]=park
        if s.cfg.get('direct'):
            if park is None: return
            assert all(s.seen[x] in (0,16) and not (s.seen[x]==0 and x in s.qread) for x in range(12) if s.qbuf[x]==park), ("park busy",T,park)
            assert s.parkown.get(park) is None; s.parkown[park]=[T,4]
            W=s.cfg.get('epiw',12)
            for m in range(4):
                o=vO(s.slot[T],2*m)
                for i in range(4):
                    s.add(f"v_accvgpr_write_b32 a{aQ(park)+4*m+i}, v{o+i}",'valu',reads=[f"v{o+i}"],writes=[f"a{aQ(park)+4*m+i}"],deadline=rel+(W*m)//4+i//2+s.cfg.get('accslack',0))
            return
        assert all(s.seen[x] in (0,16) and not (s.seen[x]==0 and x in s.qread) for x in range(12) if s.qbuf[x]==park), ("park busy",T,park)
        assert s.stgown[buf]==('O',T); s.stgown[buf]=None
        assert s.parkown.get(park) is None, ("park has unstored data",T,park); s.parkown[park]=[T,4]
        for j in (0,2,1,3):
            kw=dict(release=rel,deadline=rel+4,hole=True)
            if j<2:
                s.add(f"ds_read_b128 {rng('a',aQ(park)+4*j,4)}, v{vOr} offset:{buf*4096+1024*j}",'dsr',
                      reads=[f"v{vOr}"],writes=R('a',aQ(park)+4*j,4)+[f"L:stg{buf}{j%2}"],**kw)
            else:
                for h in range(2):
                    s.add(f"ds_read_b64 {rng('a',aQ(park)+4*j+2*h,2)}, v{vOr} offset:{buf*4096+1024*j+8*(1-h)}",'dsr',
                          reads=[f"v{vOr}"],writes=R('a',aQ(park)+4*j+2*h,2)+[f"L:stg{buf}{j%2}"],**kw)
    def store_o(s,T,rel,step,js=(0,2,1,3)):
        it,j=divmod(T,6); park=s.park[T]
        if T>=6: rel=max(rel,s.laststore+step)
        s.laststore=rel+(len(js)-1)*step
        if s.curO!=T:
            if j>0 and s.curO==T-1: s.add(f"s_addk_i32 s{sOffO}, 4096",'salu',reads=[f"s{sOffO}"],writes=[f"s{sOffO}"],margin=1)
            else: s.add(f"s_mov_b32 s{sOffO}, {(it*768+16*j)*256}",'salu',writes=[f"s{sOffO}"],margin=1)
            s.curO=T
        s.nst+=len(js)
        if park is not None:
            s.parkown[park][1]-=len(js)
            if s.parkown[park][1]==0: s.parkown[park]=None
        if s.cfg.get('direct'):
            pol=s.stpol if isinstance(s.stpol,str) else s.stpol[T]
            for k,m in enumerate(js):
                p,r=('a',aQ(park)+4*m) if park is not None else ('v',vO(s.slot[T],2*m))
                s.add(f"buffer_store_dwordx4 {rng(p,r,4)}, v{vOst}, s[{sO}:{sO+3}], s{sOffO} offen offset:{64*m} {pol}",'gst',
                      reads=R(p,r,4)+[f"s{sOffO}",f"v{vOst}"],writes=['O:st'],release=rel+k*step,deadline=rel+k*step+2)
            return
        for k,j in enumerate(js):
            s.add(f"buffer_store_dwordx4 {rng('a',aQ(park)+4*j,4)}, v{vOst}, s[{sO}:{sO+3}], s{sOffO} offen offset:{(j//2)*2048+(j%2)*128} {s.stpol if isinstance(s.stpol,str) else s.stpol[T]}",'gst',
                  reads=R('a',aQ(park)+4*j,4)+[f"s{sOffO}",f"v{vOst}"],writes=['O:st'],release=rel+k*step,deadline=rel+k*step+2)
    def build(s):
        cfg=s.cfg; LAG=s.LAG
        visits=cfg['visits']
        s.slot={T:T%6 for T in range(12)}
        s.qbuf=cfg.get('qbuf',{**{T:T for T in range(10)},10:0,11:1})
        s.obuf={T:T%2 for T in range(12)}; s.park={}; s.curO=None
        s.pres=set(cfg.get('pres',())); s.imm=cfg.get('oimm',{}); s.zeroed=set(); s.pending_epi=None; s.owdone=False
        s.allread=defaultdict(int)
        for g,ts in visits:
            s.allread[('K',g)]+=1; s.allread[('V',g)]+=1
        ms=[]
        for vi,(g,ts) in enumerate(visits):
            for k,T in enumerate(ts): ms.append((vi,g,T,k==0,k==len(ts)-1))
        cnt=defaultdict(int)
        for m in ms: cnt[m[2]]+=1
        assert all(cnt[T]==16 for T in range(12)) and len({(m[1],m[2]) for m in ms})==192
        assert all(m[1]//16==m[2]//6 for m in ms)
        s.summode={}; s.pbuf={}; pb=0; n=0
        while n<len(ms):
            T=ms[n][2]
            if cfg.get('smf',True) and T%2==0 and n+1<len(ms)-(2 if cfg.get('lastsingle',True) else 0) and ms[n+1][2]==T+1:
                if pb%2: pb+=1
                s.summode[n]='first'; s.summode[n+1]='second'; s.pbuf[n]=pb%4; s.pbuf[n+1]=(pb+1)%4; pb+=2; n+=2
            else:
                s.summode[n]='single'; s.pbuf[n]=pb%4; pb+=1; n+=1
        plan=defaultdict(list)
        for n,u in cfg['plan']: plan[n].append(u)
        s.curoff=None
        def doplan(n):
            rel=s.now(); us=plan.get(n,[])
            nd=sum({'B':4,'K':2,'V':2,'Q':4}.get(u[0],0) for u in us)
            step = 0 if n<0 else max(1,cfg.get('span',16)//max(nd,1))
            for u in us:
                st = u[2] if len(u)>2 and u[0] in 'BKVQ' else step
                s.urgent = u[0] in 'BKVQ' and st<=1 and cfg.get('urgent',True)
                if s.urgent and rel<0: st=0
                if u[0]=='B':
                    s.dma_kv('K',u[1],rel,st); s.dma_kv('V',u[1],rel+2*st,st); rel+=4*st
                elif u[0] in 'KV':
                    s.dma_kv(u[0],u[1],rel,st); rel+=2*st
                elif u[0]=='Q':
                    s.dma_q(u[1],rel,st); rel+=4*st
                elif u[0]=='q': s.read_q(u[1],s.now()+(u[2] if len(u)>2 else 0)); rel=max(rel,s.now()+(u[2] if len(u)>2 else 0))
                elif u[0]=='p': s.prescale(u[1],s.now(),u[2] if len(u)>2 else 0)
                elif u[0]=='o': s.read_o(u[1],u[2],s.now())
                elif u[0]=='s': s.store_o(u[1],s.now(),u[2],*u[3:])
                elif u[0]=='bar': s.barrier()
                elif u[0]=='c': s.add(f"buffer_load_dword a252, v{vDMA}, s[36:39], s35 offen",'gld',writes=['O:vm'],release=s.now(),deadline=s.now()+12)
        s.msbb={}; seen=defaultdict(int); seenpv=defaultdict(int); s.seen=defaultdict(int); s.qread=set(); s.stgown=[None,None]; s.parkown={}; s.nst=0; s.laststore=-99; s.lastQ=None
        barset=cfg.get('barvisits')
        doplan(-1)
        s.barrier(); s.read_k(ms[0][1],s.KORD)
        N=len(ms)
        for n in range(N+LAG):
            if n<N:
                vi,g,T,fi,la=ms[n]
                if la and n+1<N and (barset is None or vi+1 in barset) and n not in cfg.get('nobar',()) and n<=cfg.get('lastbar',999): s.barrier()
                doplan(n)
                assert T in s.qread, ('Q not loaded',T)
                s.msbb[n]=s.nbb
                s.qk(n,T); s.seen[T]+=1
            m=n-LAG
            if m>=0:
                T1=ms[m][2]
                s.pv(m,T1,seenpv[T1]==0); seenpv[T1]+=1
                if seenpv[T1]==16:
                    if s.summode[m]=='first': s.pending_epi=T1
                    else: s.finish(T1,0)
            if n<N:
                s.sm(n,T,seen[T]==0); seen[T]+=1
                if la and n+1<N: s.read_k(ms[n+1][1],s.KORD)
            if m+1>=0 and m+1<N and ms[m+1][3]: s.read_v(ms[m+1][1])
        assert s.nst==48
        s.P.ops=[o for o in s.P.ops if not (o.kind=='bar' and not o.reads)]
        for i,o in enumerate(s.P.ops): o.idx=i
        out=s.P.schedule(ldsrate=cfg.get('ldsrate',1024),ldsburst=cfg.get('ldsburst',1024),dswd=cfg.get('dswd',1),dswsp=cfg.get('dswsp',1),holeburst=cfg.get('holeburst',12),wdma=cfg.get('wdma',-1),dmaw=cfg.get('dmaw',-1))
        out=insert_waits(out,cfg.get('merge',9))
        verify_waits(out)
        check_hazards(out)
        return out

def PRO(cfg):
  t=f"""
    s_cmp_ge_u32 s2, 256
    s_cbranch_scc1 L_end
    s_load_dwordx4 s[64:67], s[0:1], 0
    s_load_dwordx4 s[68:71], s[0:1], 16
    v_lshrrev_b32 v1, 6, v0
    s_lshr_b32 s73, s2, 3
    s_getpc_b64 s[86:87]
L_pc:
    v_and_b32 v2, 7, v0
    v_lshl_add_u32 v2, v2, 2, v1
    v_lshlrev_b32 v2, 12, v2
    s_lshl_b32 s88, s73, 7
    v_add_u32 v2, s88, v2
    v_min_u32 v2, L_end-L_main+4096, v2
    s_and_b32 s86, s86, 0xfffff000
    v_readfirstlane_b32 s{sW}, v1
    v_and_b32 v0, 63, v0
    global_load_dword v4, v2, s[86:87]
    s_and_b32 s72, s2, 7
    s_lshr_b32 s74, s73, 1
    s_and_b32 s75, s73, 1
    s_lshl_b32 s72, s72, 4
    s_add_u32 s72, s72, s74
    s_lshl_b32 s76, s72, 18
    s_mul_i32 s77, s72, {2*768*256}
    s_mul_i32 s78, s75, {384*256}
    s_add_u32 s77, s77, s78
    s_and_b32 s79, s{sW}, 1
    s_lshr_b32 s80, s{sW}, 1
    s_lshl_b32 s81, s79, 10
    s_lshl_b32 s82, s80, 12
    s_add_u32 s{sWL}, s81, s82       ; LDS: (w&1)*1024 + (w>>1)*4096
    s_lshl_b32 s81, s79, 7
    s_add_u32 s81, s81, s82          ; global: (w&1)*128 + (w>>1)*4096
    s_mul_i32 s83, s{sW}, 24576
    s_sub_u32 s{sWQ}, s83, s81
    s_lshl_b32 s{sWS}, s{sW}, 13
    ; DMA voffset: (i>>3)*256 + ((i&7)^((i>>3)&6))*16 + wave part
    v_lshrrev_b32 v1, 3, v0
    v_and_b32 v2, 6, v1
    v_and_b32 v3, 7, v0
    v_xor_b32 v2, v2, v3
    v_lshlrev_b32 v2, 4, v2
    v_lshl_add_u32 v2, v1, 8, v2
    v_add_u32 v{vDMA}, s81, v2
    s_mov_b32 s{sQ+2}, {1152*256}
    s_mov_b32 s{sQ+3}, 0x20000
    s_mov_b32 s{sK+2}, 0x40000
    s_mov_b32 s{sK+3}, 0x20000
    s_mov_b32 s{sV+2}, 0x40000
    s_mov_b32 s{sV+3}, 0x20000
    s_mov_b32 s{sO+2}, {1152*256}
    s_mov_b32 s{sO+3}, 0x20000
    s_waitcnt lgkmcnt(0)
    s_add_u32 s{sQ}, s64, s77
    s_addc_u32 s{sQ+1}, s65, 0
    s_add_u32 s{sK}, s66, s76
    s_addc_u32 s{sK+1}, s67, 0
    s_add_u32 s{sV}, s68, s76
    s_addc_u32 s{sV+1}, s69, 0
    s_add_u32 s{sO}, s70, s77
    s_addc_u32 s{sO+1}, s71, 0
"""
  if cfg.get('adj'):
    t=t.replace("    s_add_u32 s72, s72, s74          ; pair index 0..127\n","    s_lshr_b32 s72, s2, 1\n    s_and_b32 s75, s2, 1\n")
  return t
PRO2 = f"""
    s_mov_b32 s{sC}, 0x{f2u(CSC):08x}
    s_mov_b32 s{sTH}, 0x5f800000
    s_mov_b32 s{sMSK}, 0xffff0000
    s_add_u32 s84, s{sWS}, {STG}
    v_xor_b32 v2, v1, v3
    v_lshlrev_b32 v2, 4, v2
    v_lshl_add_u32 v2, v1, 8, v2
    v_add_u32 v{vOst}, s83, v2
    v_lshl_add_u32 v{vOr}, v0, 4, s84
    v_and_b32 v1, 15, v0
    v_lshrrev_b32 v2, 4, v0
    v_lshlrev_b32 v{vBp}, 2, v1
    v_and_b32 v5, 7, v1
    v_lshlrev_b32 v6, 7, v5
    v_lshrrev_b32 v7, 3, v1
    v_lshl_add_u32 v6, v7, 11, v6
    v_and_b32 v3, 6, v1
    v_xor_b32 v3, v3, v2
    v_lshl_add_u32 v{vKa[0]}, v3, 4, v6
    v_xor_b32 v{vKa[1]}, 64, v{vKa[0]}
    v_add_u32 v{vQa[0]}, s84, v{vKa[0]}
    v_add_u32 v{vQa[1]}, s84, v{vKa[1]}
    v_lshrrev_b32 v3, 1, v2
    v_xor_b32 v3, v3, v5
    v_lshl_add_u32 v3, v3, 4, v6
    v_and_b32 v2, 1, v2
    v_xor_b32 v2, v2, v7
    v_lshl_add_u32 v3, v2, 3, v3
    v_add_u32 v{vOw[0]}, s84, v3
    v_xor_b32 v{vOw[1]}, 32, v{vOw[0]}
    v_lshrrev_b32 v1, 2, v0
    v_and_b32 v2, 6, v1
    v_bfe_u32 v3, v0, 1, 1
    v_xor_b32 v2, v2, v3
    v_lshlrev_b32 v2, 4, v2
    v_and_b32 v3, 1, v0
    v_lshl_add_u32 v2, v3, 3, v2
    v_and_b32 v3, 7, v1
    v_lshl_add_u32 v2, v3, 7, v2
    v_lshrrev_b32 v3, 3, v1
    v_lshl_add_u32 v2, v3, 11, v2
    v_add_u32 v{vVa[0]}, {VRING}, v2
    v_xor_b32 v{vVa[1]}, 32, v{vVa[0]}
    v_xor_b32 v{vVa[2]}, 64, v{vVa[0]}
    v_xor_b32 v{vVa[3]}, 0x60, v{vVa[0]}
    ; row-sum operands: sparse pair pattern, index, and dense single-tile patterns
    v_mov_b32 v1, 0x3f803f80
    v_bfe_u32 v2, v0, 1, 1
    v_lshrrev_b32 v3, 5, v0
    v_cmp_eq_u32 vcc, v2, v3
    v_and_b32 v5, 3, v0
    v_mov_b32 v6, 0x4444
    v_cndmask_b32 v2, 0, v1, vcc
    v_cmp_eq_u32 vcc, 0, v5
    v_accvgpr_write_b32 a{aOneS}, v2
    v_accvgpr_write_b32 a{aOneS+1}, v2
    v_cndmask_b32 v3, 0, v1, vcc
    v_cmp_eq_u32 vcc, 2, v5
    v_accvgpr_write_b32 a{aOneS+2}, v2
    v_accvgpr_write_b32 a{aOneS+3}, v2
    v_cndmask_b32 v2, 0, v1, vcc
    v_and_b32 v5, 1, v0
    v_mul_u32_u24 v5, 0xaaaa, v5
    v_add_u32 v{vIdx}, v5, v6
    v_accvgpr_write_b32 a{aOneD[0]}, v3
    v_accvgpr_write_b32 a{aOneD[0]+1}, v3
    v_accvgpr_write_b32 a{aOneD[0]+2}, v3
    v_accvgpr_write_b32 a{aOneD[0]+3}, v3
    v_accvgpr_write_b32 a{aOneD[1]}, v2
    v_accvgpr_write_b32 a{aOneD[1]+1}, v2
    v_accvgpr_write_b32 a{aOneD[1]+2}, v2
    v_accvgpr_write_b32 a{aOneD[1]+3}, v2
"""

def slow_path():
    L=[]
    A=L.append
    A("    s_or_b64 s[64:65], s[40:41], s[42:43]")
    for T in range(2,12): A(f"    s_or_b64 s[64:65], s[64:65], s[{sFlag+2*T}:{sFlag+2*T+1}]")
    A("    s_cbranch_scc1 L_slow")
    A("    s_endpgm")
    A("L_slow:")
    A("    s_mov_b32 s66, 0")
    for T in range(12):
        A(f"    s_cmp_lg_u64 s[{sFlag+2*T}:{sFlag+2*T+1}], 0")
        A(f"    s_cselect_b32 s67, {1<<T}, 0")
        A("    s_or_b32 s66, s66, s67")
    A("    s_waitcnt vmcnt(0) lgkmcnt(0)")
    A("    v_mbcnt_lo_u32_b32 v8, -1, 0")
    A("    v_mbcnt_hi_u32_b32 v8, -1, v8")
    A("    v_and_b32 v9, 15, v8")
    A("    v_lshrrev_b32 v10, 4, v8")
    A("    v_lshlrev_b32 v11, 4, v10")
    A("    v_lshl_add_u32 v14, v9, 8, v11")
    A("    v_add_u32 v15, s83, v14")
    A("    v_and_b32 v11, 1, v10")
    A("    v_lshlrev_b32 v11, 1, v11")
    A("    v_lshrrev_b32 v12, 1, v10")
    A("    v_or_b32 v11, v11, v12")
    A("    v_lshlrev_b32 v11, 4, v11")
    A("    v_lshl_add_u32 v11, v9, 8, v11")
    A("    v_add_u32 v13, s83, v11")
    A(f"    v_subrev_u32 v16, s81, v{vDMA}")
    A(f"    s_add_u32 s68, s{sWS}, {STG-VRING}")
    for i in range(4): A(f"    v_add_u32 v{20+i}, s68, v{vVa[i]}")
    for i in range(4): A(f"    v_mov_b32 v{196+i}, 0x3f803f80")
    A("    s_mov_b32 s69, 0")
    A("L_slow_tile:")
    A("    s_bitcmp1_b32 s66, s69")
    A("    s_cbranch_scc0 L_slow_next")
    A("    s_cmp_ge_u32 s69, 6")
    A("    s_cselect_b32 s70, 0x20000, 0")
    A(f"    s_cselect_b32 s71, {(768-96)*256}, 0")
    A("    s_lshl_b32 s72, s69, 12")
    A("    s_add_u32 s71, s71, s72                ; q/o offset")
    for st in range(4): A(f"    buffer_load_dwordx4 v[{64+4*st}:{67+4*st}], v15, s[{sQ}:{sQ+3}], s71 offen offset:{64*st}")
    A("    v_mov_b32 v17, 0xff800000")
    A("    s_mov_b32 s72, s70")
    A("    s_add_u32 s73, s70, 0x20000")
    A("L_slow_max:")
    for st in range(4): A(f"    buffer_load_dwordx4 v[{80+4*st}:{83+4*st}], v14, s[{sK}:{sK+3}], s72 offen offset:{64*st}")
    A("    s_waitcnt vmcnt(0)")
    for st in range(4): A(f"    v_mfma_f32_16x16x32_bf16 v[0:3], v[{80+4*st}:{83+4*st}], v[{64+4*st}:{67+4*st}], {'0' if st==0 else 'v[0:3]'}")
    A("    s_nop 15")
    A("    v_max3_f32 v17, v17, v0, v1")
    A("    v_max3_f32 v17, v17, v2, v3")
    A("    s_add_u32 s72, s72, 4096")
    A("    s_cmp_lt_u32 s72, s73")
    A("    s_cbranch_scc1 L_slow_max")
    for sw in ("16","32"):
        A("    v_mov_b32 v18, v17"); A("    s_nop 1")
        A(f"    v_permlane{sw}_swap_b32 v17, v18"); A("    s_nop 1")
        A("    v_max_f32 v17, v17, v18")
    A(f"    v_mul_f32 v17, 0x{f2u(-CSC):08x}, v17")
    for r in range(160,196): A(f"    v_mov_b32 v{r}, 0")
    A("    s_mov_b32 s72, s70")
    A("L_slow_blk:")
    A("    s_add_u32 s74, s72, 4096")
    for f in range(8):
        kt,st=divmod(f,4)
        A(f"    buffer_load_dwordx4 v[{80+4*f}:{83+4*f}], v14, s[{sK}:{sK+3}], {'s72' if kt==0 else 's74'} offen offset:{64*st}")
    for kt in range(2):
        for half in range(2):
            A(f"    s_add_u32 m0, s{sWS}, {STG+kt*4096+half*896}")
            A("    s_nop 0")
            for oc in range(2):
                A(f"    buffer_load_dwordx4 v16, s[{sV}:{sV+3}], {'s72' if kt==0 else 's74'} offen offset:{2048*oc+128*half} lds")
    A("    s_waitcnt vmcnt(0)")
    for t in range(8):
        for kt in range(2):
            A(f"    ds_read_b64_tr_b16 v[{112+4*t+2*kt}:{113+4*t+2*kt}], v{20+t%4} offset:{kt*4096+(t//4)*1024}")
    for f in range(8):
        kt,st=divmod(f,4); d=4*kt
        A(f"    v_mfma_f32_16x16x32_bf16 v[{d}:{d+3}], v[{80+4*f}:{83+4*f}], v[{64+4*st}:{67+4*st}], {'0' if st==0 else f'v[{d}:{d+3}]'}")
    A("    s_nop 15")
    for i in range(8): A(f"    v_fma_f32 v{i}, v{i}, s{sC}, v17")
    for i in range(8): A(f"    v_exp_f32 v{i}, v{i}")
    A("    s_nop 1")
    for k in range(4): A(f"    v_cvt_pk_bf16_f32 v{24+k}, v{2*k}, v{1+2*k}")
    A("    s_waitcnt lgkmcnt(0)")
    A("    s_nop 1")
    for t in range(8): A(f"    v_mfma_f32_16x16x32_bf16 v[{160+4*t}:{163+4*t}], v[{112+4*t}:{115+4*t}], v[24:27], v[{160+4*t}:{163+4*t}]")
    A("    v_mfma_f32_16x16x32_bf16 v[192:195], v[196:199], v[24:27], v[192:195]")
    A("    s_add_u32 s72, s72, 8192")
    A("    s_cmp_lt_u32 s72, s73")
    A("    s_cbranch_scc1 L_slow_blk")
    A("    s_nop 15")
    A("    v_rcp_f32 v18, v192")
    A("    s_nop 1")
    for r in range(160,192): A(f"    v_mul_f32 v{r}, v{r}, v18")
    for m in range(4):
        o=160+8*m
        for i in range(4): A(f"    v_cvt_pk_bf16_f32 v{o+i}, v{o+2*i}, v{o+2*i+1}")
        A("    s_nop 1")
        for i in range(2): A(f"    v_permlane16_swap_b32 v{o+i}, v{o+i+2}")
        A(f"    buffer_store_dwordx4 v[{o}:{o+3}], v13, s[{sO}:{sO+3}], s71 offen offset:{64*m}")
    A("    s_waitcnt vmcnt(0)")
    A("L_slow_next:")
    A("    s_add_u32 s69, s69, 1")
    A("    s_cmp_lt_u32 s69, 12")
    A("    s_cbranch_scc1 L_slow_tile")
    return "\n".join(L)+"\n"

def isize(t):
    if 'L_thrw' in t: return 12
    if 'L_back' in t: return 4*(t.count('\n'))
    t=t.strip(); op=t.split()[0]
    if op.startswith(('v_mfma','v_smfmac','ds_','buffer_','global_','v_fma_f32','v_cvt_pk','v_max3','v_pk_','v_accvgpr','v_writelane','s_mem')) or op.endswith('_e64'): return 8
    if op in('s_waitcnt','s_barrier','s_nop','s_addk_i32') or op.startswith('s_cbranch'): return 4
    for a in t.split(None,1)[1].replace(',',' ').split():
        try: v=int(a,0)
        except ValueError: continue
        if not -16<=v<=64: return 8
    return 4

DOC = """;
; GQA attention, O = softmax(Q K^T / sqrt(128)) V.  Generated, fully unrolled, one persistent workgroup per CU.
;  - workgroup: 4 waves x 6 q-tiles of 16 rows, two KV heads one after the other (workgroups wg and wg+8 share both heads).
;  - softmax guard: every row subtracts a reference that is one of its own scores (max over the first keys it meets), so the
"""
HEAD = open('cdna_kernels/'+NAME+'.s.ref').read().split('; Override')[0]
def emit(cfg, path):
    g=Gen(cfg); out=g.build()
    abl=cfg.get('ablate')
    if abl:
        nb=0; o2=[]
        for o in out:
            if o.kind=='bar': nb+=1
            if nb>=3 and any((a==o.kind) or (a in o.text) for a in abl): continue
            o2.append(o)
        out=o2
    marks=[]; est=estimate(out,marks)
    stamp=cfg.get('stamp'); warm=cfg.get('warm',True)
    SST=[x for x in list(range(64,81))+list(range(85,90))+list(range(92,102))]
    ns=[0]
    def st2():
        i=ns[0]; ns[0]+=1
        return ["s_memtime s[90:91]","s_memrealtime s[2:3]","s_waitcnt lgkmcnt(0)",f"s_mov_b32 s{SST[2*i]}, s90",f"s_mov_b32 s{SST[2*i+1]}, s2"]
    if stamp: first_st=st2(); stbb={g.msbb[n] for n in stamp}
    k0=0
    while out[k0].kind in('dma','salu','nop'): k0+=1
    first=[o.text for o in out[:k0]]; nfirst=sum(1 for o in out[:k0] if o.kind=='dma')
    PH=cfg.get('warmph',[(0,99,None)]); phdone=set()
    def entry(k_):
        p0,p1,_=PH[k_]; t="s_mov_b64 vcc, -1\n"
        for w in range(4):
            if p0+w<p1: t+=f" s_cmp_eq_u32 s{sW}, {w}\n s_cbranch_scc1 L_stub{p0+w}\n"
        return t+f"L_back{k_}:\n s_mov_b64 vcc, 0"
    lgap={}; nvw=0; lines=[]; ndma=nfirst; nbar=0; nm=0; probe=cfg.get('probe')
    for k in range(k0,len(out)):
        o=out[k]
        if o.kind=='wait' and 'v' in o.tag: nvw+=1
        for k_,(p0,p1,wh) in enumerate(PH):
            if k_>0 and k_ not in phdone and ((wh[0]=='m' and o.kind=='mfma' and o.bb==g.msbb[wh[1]]) or (wh[0]=='w' and o.kind=='wait' and 'v' in o.tag and nvw==wh[1])):
                phdone.add(k_); lines.append((entry(k_),'salu'))
        if cfg.get('thr') and o.kind=='dma':
            if ndma<cfg['thr'][1] and ndma%2==0:
                lines+=[(f"s_cmp_eq_u32 s{sPar}, 0\n s_cbranch_scc0 L_thrw{ndma}\n s_waitcnt vmcnt({cfg['thr'][2]})\nL_thrw{ndma}:",'salu')]
            ndma+=1
        lines.append((o.text,o.kind)); lgap[len(lines)-1]=o.gap
        if o.kind=='bar': nbar+=1
        if probe and o.kind=='mfma' and o.bb in [g.msbb.get(x) for x in probe[:2] if x not in (0,99,100,-1)]:
            r = 92 if o.bb==g.msbb.get(probe[0]) else 94
            lines+=[(f"s_mem{'real' if probe[2]=='rt' else ''}time s[{r}:{r+1}]",'x'),("s_waitcnt lgkmcnt(0)",'x')]
        if stamp and o.kind=='mfma' and o.bb in stbb: lines+=[(x,'x') for x in st2()]
    body=[]; addr=0; page=0; stubs=0
    pm=cfg.get('premain',0); premain=[]
    if pm:
        acc=0; cutl=0
        for i,(t,kd) in enumerate(lines):
            if acc>pm: break
            if (kd=='wait' and 'vmcnt' in t) or (cfg.get('preany') and kd=='mfma'): cutl=i
            acc+=isize(t)
        premain=lines[:cutl]; lines=lines[cutl:]; lgap={k-cutl:v for k,v in lgap.items()}
    al=cfg.get('align')
    if al and al is not True: al=[((g.msbb[a] if a>=0 else -9),(g.msbb[b] if b<192 else 99999)) for a,b in al]
    WID=('v_exp_f32','v_rcp_f32','v_mov_b32','v_add_f32','v_max_f32','v_lshlrev_b32','v_and_b32','v_xor_b32','v_mul_f32')
    def inal(i):
        if not al: return False
        if al is True: return True
        gp=lgap.get(i); return gp is not None and any(a<=gp<b for a,b in al)
    tot=sum(isize(t) for t,_ in lines)+sum(4 for i,(t,_) in enumerate(lines) if inal(i) and t.split()[0] in WID and isize(t)==4); npages=(tot+72+60)//4096+1
    for i,(t,kd) in enumerate(lines):
        if warm and addr>=page*4096 and page<npages:
            prevm = i>0 and lines[i-1][1]=='mfma'
            if (prevm and kd not in SC_KINDS) or addr+isize(t)>page*4096+56 or page==0:
                nxt=page+4
                k_=[k for k,(p0,p1,_) in enumerate(PH) if p0<=page<p1]
                if not k_:
                    page+=1; body.append(" "+t+"\n"); addr+=isize(t); continue
                k_=k_[0]
                tgt = 'L_stub%d'%nxt if nxt<min(npages,PH[k_][1]) else f'L_back{k_}'
                body.append(f"L_stub{page}:\n s_cbranch_vccnz {tgt}\n")
                body.append(f".if ((L_stub{page}-L_main)>>6) != {page*64}\n.error \"stub misplaced\"\n.endif\n")
                addr+=4; page+=1
        if inal(i) and t.split()[0] in WID and isize(t)==4 and addr%8==0:
            nx=lines[i+1][0] if i+1<len(lines) else ''
            if not (nx and isize(nx)==4):
                op,rest=t.split(None,1); t=op+"_e64 "+rest
        body.append(" "+t+"\n"); addr+=isize(t)
    while warm and page<npages:
        k_=[k for k,(p0,p1,_) in enumerate(PH) if p0<=page<p1]
        if k_: body.append(f"L_stub{page}:\n s_cbranch_vccnz L_back{k_[0]}\n")
        page+=1
    txt=HEAD+"; @launch grid=(256,1,1) block=(256,1,1) lds=163840\n"
    txt+=DOC
    txt+=f'.amdgcn_target "amdgcn-amd-amdhsa--gfx950"\n.text\n.globl {NAME}_kernel\n.p2align 8\n.type {NAME}_kernel,@function\n{NAME}_kernel:\n'
    if probe:
        txt+=" s_memrealtime s[90:91]\n"
        if probe[0]==0: txt+=f" s_mem{'real' if probe[2]=='rt' else ''}time s[92:93]\n"
        txt+=" s_waitcnt lgkmcnt(0)\n"
        if cfg.get('gstart'):
            txt+=" s_load_dwordx2 s[34:35], s[0:1], 32\n s_not_b32 s36, s90\n v_mov_b32 v10, s36\n v_mov_b32 v11, 0\n s_waitcnt lgkmcnt(0)\n v_cmp_eq_u32 vcc, 0, v0\n s_and_saveexec_b64 s[36:37], vcc\n s_cbranch_execz L_gs\n global_atomic_umax v11, v10, s[34:35]\nL_gs:\n s_mov_b64 exec, s[36:37]\n"
    if stamp and cfg.get('stamp0'):
        txt+=" s_memtime s[90:91]\n s_memrealtime s[92:93]\n s_waitcnt lgkmcnt(0)\n s_mov_b32 s5, s90\n s_mov_b32 s6, s92\n"
    if cfg.get('pre_nop'):
        txt+=f" s_mov_b32 s64, {cfg['pre_nop']}\nL_pn:\n"+" s_nop 15\n"*16+" s_sub_u32 s64, s64, 1\n s_cmp_lg_u32 s64, 0\n s_cbranch_scc1 L_pn\n"
    PM=" s_memrealtime s[94:95]\n s_waitcnt lgkmcnt(0)\n"
    txt+=PRO(cfg)
    if probe and probe[1]==201: txt+=PM
    thr=cfg.get('thr')
    if thr:
        k1,KK,W=thr
        cut=[i for i,o in enumerate(out[:k0]) if o.kind=='dma'][k1-1]+1
        txt+=f"    s_getreg_b32 s{sPar}, hwreg(HW_REG_XCC_ID, 0, 1)\n"
        if cfg.get('thrinv'): txt+=f"    s_xor_b32 s{sPar}, s{sPar}, 1\n"
        txt+="".join(" "+t+"\n" for t in first[:cut])
        txt+=f"    s_cmp_eq_u32 s{sPar}, 0\n    s_cbranch_scc1 L_thr0\n"+"".join(" "+t+"\n" for t in first[cut:])+"L_thr0:\n"
    else:
        txt+="".join(" "+t+"\n" for t in first)
    if probe and probe[1]==202: txt+=PM
    if stamp: txt+=" s_mov_b32 s4, s2\n"+"".join(" "+x+"\n" for x in first_st)
    txt+=PRO2
    if cfg.get('direct'):
        txt+=f"""    ; O store offset after the row swaps: r*256 + 16*[0,2,1,3][g] + w*24576
    v_and_b32 v1, 15, v0
    v_bfe_u32 v2, v0, 4, 1
    v_lshrrev_b32 v3, 5, v0
    v_lshl_add_u32 v2, v2, 1, v3
    v_lshlrev_b32 v2, 4, v2
    v_lshl_add_u32 v2, v1, 8, v2
    v_add_u32 v{vOst}, s83, v2
"""
    if 0 in g.pres:
        for r in range(4): txt+=f"    v_accvgpr_write_b32 a{aSave+r}, v{vCI[0]+r}\n"
    txt+=f"    s_waitcnt vmcnt({nfirst})\n"
    if thr: txt+=f"    s_cmp_eq_u32 s{sPar}, 0\n    s_cbranch_scc0 L_thr1\n    s_waitcnt vmcnt({k1})\nL_thr1:\n"
    if probe and probe[1]==203: txt+=PM
    if warm:
        txt+="    ; touch the first line of 4 KB code pages (instruction-cache warm-up while the first loads are in flight)\n "+entry(0)+"\n"
        if probe and probe[1]==204: txt+=PM
    if thr:
        txt+=f"    s_cmp_eq_u32 s{sPar}, 0\n    s_cbranch_scc0 L_pre\n"
        nd=0
        for o in out[cut:k0]:
            if o.kind=='dma':
                if nd%2==0: txt+=f" s_waitcnt vmcnt({W})\n"
                nd+=1
            txt+=" "+o.text+"\n"
    txt+="L_pre:\n"+"".join(" "+t+"\n" for t,_ in premain)
    txt+="    s_branch L_main\n.p2align 12\nL_main:\n"
    txt+="".join(body)
    if stamp:
        txt+="".join(" "+x+"\n" for x in st2())
        txt+=" s_waitcnt vmcnt(0)\n"+"".join(" "+x+"\n" for x in st2())
        txt+=" v_mov_b32 v2, 0\n v_mov_b32 v3, 0\n"
        o_=1 if cfg.get('stamp0') else 0
        if o_: txt+=" v_writelane_b32 v2, s5, 0\n v_writelane_b32 v3, s6, 0\n"
        for i in range(ns[0]): txt+=f" v_writelane_b32 v2, s{SST[2*i]}, {i+o_}\n v_writelane_b32 v3, s{SST[2*i+1]}, {i+o_}\n"
        txt+=f""" s_load_dwordx2 s[92:93], s[0:1], 40
 s_lshl_b32 s90, s4, 2
 s_add_u32 s90, s90, s{sW}
 s_mul_i32 s90, s90, 768
 v_mbcnt_lo_u32_b32 v1, -1, 0
 v_mbcnt_hi_u32_b32 v1, -1, v1
 v_lshlrev_b32 v1, 2, v1
 v_add_u32 v1, s90, v1
 s_waitcnt lgkmcnt(0)
 global_store_dword v1, v2, s[92:93]
 global_store_dword v1, v3, s[92:93] offset:512
"""
    if probe:
        if probe[1]==99: txt+=f" s_mem{'real' if probe[2]=='rt' else ''}time s[94:95]\n s_waitcnt lgkmcnt(0)\n"
        if probe[1]==100: txt+=f" s_waitcnt vmcnt(0)\n s_mem{'real' if probe[2]=='rt' else ''}time s[94:95]\n s_waitcnt lgkmcnt(0)\n"
        if probe[1]<0: txt+=" s_mov_b32 s94, s92\n"
        if cfg.get('gstart'):
            txt+=" v_mov_b32 v11, 0\n global_load_dword v10, v11, s[34:35] sc0 sc1\n s_waitcnt vmcnt(0)\n v_readfirstlane_b32 s90, v10\n s_nop 3\n s_not_b32 s90, s90\n"
            if cfg['gstart']==2: txt+=" s_mov_b32 s92, s90\n"
        txt+=" s_sub_u32 s94, s94, s92\n"
        if probe[2]=='cyc': txt+=" s_lshr_b32 s94, s94, 4\n"
        else: txt+=f" s_lshl_b32 s94, s94, {cfg.get('amp',2)}\n"
        txt+=" s_add_u32 s94, s94, 10000\nL_spin:\n s_memrealtime s[92:93]\n s_waitcnt lgkmcnt(0)\n s_sub_u32 s92, s92, s90\n s_cmp_lt_u32 s92, s94\n s_cbranch_scc1 L_spin\n"
    if cfg.get('extra_mfma'):
        n,kind=cfg['extra_mfma']
        txt+=f" s_waitcnt vmcnt(0)\n s_mov_b32 s64, {n}\nL_xm:\n"
        L=[]
        if kind.startswith('m16'):
            for j in range(6):
                for i,f in enumerate(Gen.KORD):
                    kt,st=divmod(f,4); d=8*(j%2)+4*kt
                    L.append(f" v_mfma_f32_16x16x32_bf16 v[{d}:{d+3}], a[{160+4*f}:{163+4*f}], a[{192+16*(j%2)+4*st}:{195+16*(j%2)+4*st}], {'0' if i%4==0 else f'v[{d}:{d+3}]'}\n")
                for t in range(8):
                    d=64+32*j+4*t
                    L.append(f" v_mfma_f32_16x16x32_bf16 v[{d}:{d+3}], a[{192+4*t}:{195+4*t}], v[{24+4*(j%3)}:{27+4*(j%3)}], v[{d}:{d+3}]\n")
            if kind=='m16nop': L=[x+(" s_nop 0\n s_nop 0\n s_nop 0\n s_nop 0\n s_nop 0\n" if k%2 else "") for k,x in enumerate(L)]
            if kind=='m16v': L=[x+(f" v_exp_f32 v{40+k%8}, v{24+k%12}\n" if k%2 else f" v_fma_f32 v{48+k%8}, v{24+k%12}, s24, v{25+k%10}\n v_cvt_pk_bf16_f32 v{49+k%8}, v{24+k%12}, v{25+k%10}\n") for k,x in enumerate(L)]
        else:
            for j in range(3):
                for st in range(8):
                    L.append(f" v_mfma_f32_32x32x16_bf16 v[0:15], a[{160+4*st}:{163+4*st}], a[{192+4*((st+j)%8)}:{195+4*((st+j)%8)}], {'0' if st==0 else 'v[0:15]'}\n")
                for t in range(8):
                    d=64+64*j+16*(t%4)
                    L.append(f" v_mfma_f32_32x32x16_bf16 v[{d}:{d+15}], a[{192+4*t}:{195+4*t}], v[{24+4*((t//4+j)%3)}:{27+4*((t//4+j)%3)}], v[{d}:{d+15}]\n")
        txt+="".join(L)
        txt+=" s_sub_u32 s64, s64, 1\n s_cmp_lg_u32 s64, 0\n s_cbranch_scc1 L_xm\n s_nop 15\n"
    if cfg.get('extra_nop'):
        txt+=f" s_mov_b32 s64, {cfg['extra_nop']}\nL_xn:\n"+" s_nop 15\n"*16+" s_sub_u32 s64, s64, 1\n s_cmp_lg_u32 s64, 0\n s_cbranch_scc1 L_xn\n"
    txt+=" s_nop 1\n"+slow_path()
    txt+=f"""L_end:
    s_endpgm
.section .rodata,"a"
.p2align 6
.amdhsa_kernel {NAME}_kernel
  .amdhsa_next_free_vgpr 512
  .amdhsa_next_free_sgpr 102
  .amdhsa_accum_offset 256
  .amdhsa_group_segment_fixed_size 0
  .amdhsa_kernarg_size 48
  .amdhsa_user_sgpr_count 2
  .amdhsa_user_sgpr_kernarg_segment_ptr 1
  .amdhsa_system_sgpr_workgroup_id_x 1
.end_amdhsa_kernel
"""
    open(path,'w').write(txt)
    from collections import Counter
    print(path, "ops",len(out),"est",est, dict(Counter(o.kind for o in out)), "code",addr)
    if cfg.get('verbose'): print(' segs',[b-a for a,b in zip(marks,marks[1:]+[est])])
    if stamp and stamp is not True:
        mt=[]; estimate(out,None,mt); pts=[mt[g.msbb[n]] for n in stamp]+[est]
        print(' est stamp segs',[b-a for a,b in zip(pts,pts[1:])])
    from asm import asm
    asm(path)
    return out
```

```python
from cfgs import *
BEST=dict(verbose=False,pres=(0,1),snake=True,dswsp=2,holeburst=4,stpol='sc0 sc1 nt',tail=4,tailst=[12]*4+[3,3],thr=(6,12,4),minDlate=[(78,2)],
       premain=1900,preany=True,warmph=[(0,16,None)],smartal=2)
if __name__=="__main__":
    emit(mk('j4d',**BEST),'best.s')
    import shutil; shutil.copy('best.s','cdna_kernels/'+NAME+'.s')
```

```python
import sys, math, struct
from sched import *

NAME="standalone__gqa_softmax__near_ridge"
CSC = math.log2(math.e)/math.sqrt(128.0)
def f2u(x): return struct.unpack('<I',struct.pack('<f',x))[0]

vS=[0,8,16]; vP=[24,28,32,36]; vMCs=[63,41,42,43,44,45]; vBp=40
vKa=[46,47]; vVa=[48,49,50,51]; vQa=[52,53]; vDMA=54; vIdx=55
vOw=[56,57,52,53]; vOst=58; vOr=59
vL=[60,62]; vT0=61; vT1=None
vCI={0:56,1:60}; aSave=248
vO=lambda slot,t: 64+32*slot+4*t
aQ=lambda b: 16*b
aK=lambda f: 160+4*f
aV=lambda t: 192+4*t
aSum=lambda slot: 224+4*(slot//2)
aOneS=236; aOneD=[240,244]
sQ=8; sK=12; sV=16; sO=20
sC=24; sTH=25; sWL=26 ; sWQ=27; sWS=28; sOffKV=29; sOffQ=30; sOffO=31; sW=32; sMSK=7; sPar=33
sFlag=40
KRING=0; VRING=65536; STG=131072

class Gen:
    def __init__(s, cfg):
        s.cfg=cfg; s.P=Program(); s.nbb=0; s.bars=[]; s.vis=set()
        s.R=cfg.get('ring',8); s.LAG=cfg.get('lag',2); s.NB=s.LAG+1
        s.lastread={}; s.dmadone={}; s.occ={'K':[None]*s.R,'V':[None]*s.R}; s.slotof={}; s.dmarel={}
        s.ldpol=cfg.get('ldpol','nt'); s.stpol=cfg.get('stpol','nt')
        s.urgent=False; s.win=cfg.get('dmawin',12); s.np=0 if cfg.get('dmapair',True) else 1
    def add(s,*a,**k):
        o=Op(*a,**k); s.P.add(o)
        if o.kind=='mfma': s.nbb+=1
        return o
    def now(s): return s.nbb-1
    def barrier(s):
        g=s.now()
        b=s.add("s_barrier",'bar',reads=[],writes=['barorder'],release=g,deadline=g)
        s.bars.append(b); return b
    def visible(s,part,g):
        if (part,g) in s.vis: return
        b=s.bars[-1]
        for bb in reversed(s.bars):
            if bb.reads and bb.release>=s.dmarel[(part,g)]+s.cfg.get('vislat',200) and s.dmadone[(part,g)]<bb.idx: b=bb; break
        assert s.dmadone[(part,g)]<b.idx, ("dma after barrier",part,g)
        b.reads.append(f"L:{part}{g}"); b.writes.append(f"vis{part}{g}"); s.vis.add((part,g))
    def dl(s,rel): return (rel+(0 if s.urgent else s.win)) if rel>=0 else -1
    def dma_kv(s,part,g,rel,step):
        rd=[]
        occ=s.occ[part]
        free=[x for x in range(s.R) if occ[x] is None]
        if free: slot=free[0]
        else:
            b=s.bars[-1]
            c=[x for x in range(s.R) if s.allread[(part,occ[x])]==0 and s.lastread[(part,occ[x])]<b.idx]
            assert c, ("no free slot",part,g,occ)
            slot=min(c,key=lambda x:s.lastread[(part,occ[x])]); old=occ[slot]
            for bb in s.bars:
                if bb.idx>s.lastread[(part,old)]+s.cfg.get('freegap',60) and bb.reads: b=bb; break
            b.reads.append(f"L:rd{part}{old}"); b.writes.append(f"free{part}{old}"); rd=[f"free{part}{old}"]
        occ[slot]=g; s.slotof[(part,g)]=slot
        base=(KRING if part=='K' else VRING)+slot*8192
        s.add(f"s_add_u32 m0, s{sWL}, {base}",'salu',writes=['m0'],margin=1)
        if s.curoff!=g:
            if s.curoff is not None and s.nbb>20 and abs(g-s.curoff)<=3: s.add(f"s_addk_i32 s{sOffKV}, {(g-s.curoff)*8192}",'salu',reads=[f"s{sOffKV}"],writes=[f"s{sOffKV}"],margin=1)
            else: s.add(f"s_mov_b32 s{sOffKV}, {g*8192}",'salu',writes=[f"s{sOffKV}"],margin=1)
            s.curoff=g
        srd=sK if part=='K' else sV
        for i in range(2):
            o=s.add(f"buffer_load_dwordx4 v{vDMA}, s[{srd}:{srd+3}], s{sOffKV} offen offset:{2048*i} {s.ldpol} lds",'dma',
                  reads=['m0',f"s{sOffKV}"]+rd,writes=[f"L:{part}{g}",'O:vm'],release=rel+i*step*s.np,deadline=s.dl(rel+i*step*s.np),tag=('pair' if i and not s.np else None))
        s.dmadone[(part,g)]=o.idx; s.dmarel[(part,g)]=o.deadline
    def dma_q(s,T,rel,step):
        buf=T%2; it,j=divmod(T,6)
        assert s.stgown[buf] is None, ("stg busy",T,s.stgown); s.stgown[buf]=('Q',T)
        k=0
        for half in range(2):
            if half: s.add(f"s_addk_i32 m0, 896",'salu',reads=['m0'],writes=['m0'],margin=1)
            else: s.add(f"s_add_u32 m0, s{sWS}, {STG+buf*4096}",'salu',writes=['m0'],margin=1)
            if half==0:
                if j>0 and T>=3 and s.lastQ==T-1: s.add(f"s_addk_i32 s{sOffQ}, 4096",'salu',reads=[f"s{sOffQ}"],writes=[f"s{sOffQ}"],margin=1)
                else: s.add(f"s_add_u32 s{sOffQ}, s{sWQ}, {(it*768+16*j)*256}",'salu',writes=[f"s{sOffQ}"],margin=1)
                s.lastQ=T
            for oc in range(2):
                s.add(f"buffer_load_dwordx4 v{vDMA}, s[{sQ}:{sQ+3}], s{sOffQ} offen offset:{2048*oc+128*half} {s.ldpol} lds",'dma',
                      reads=['m0',f"s{sOffQ}",f"L:stg{buf}0",f"L:stg{buf}1"],writes=[f"L:Q{T}",'O:vm'],release=rel+(k if s.np else 2*half)*step,deadline=s.dl(rel+(k if s.np else 2*half)*step),tag=('pair' if oc and not s.np else None))
                k+=1
    def read_q(s,T,rel):
        buf=T%2; qb=s.qbuf[T]; s.qread.add(T)
        assert all(s.seen[x]==16 for x in range(T) if s.qbuf[x]==qb), ("qbuf busy",T)
        assert s.stgown[buf]==('Q',T); s.stgown[buf]=None
        if T in s.pres:
            raw=vO(5,0)+16*T; tmp=vO(4,0)
            for st in range(4):
                s.add(f"ds_read_b128 {rng('v',raw+4*st,4)}, v{vQa[st%2]} offset:{buf*4096+(st//2)*1024}",'dsr',
                      reads=[f"L:Q{T}",f"v{vQa[st%2]}"]+(['O:vm'] if st==0 else []),writes=R('v',raw+4*st,4)+[f"L:stg{buf}{st//2}",f"O:q{T}"],release=rel,deadline=rel)
            return
        s._read_q_plain(T,rel)
    def prescale(s,T,rel,off=0):
        if T not in s.pres: return
        qb=s.qbuf[T]
        if True:
            raw=vO(5,0)+16*T; tmp=vO(4,0)
            G = rel+off
            kw=dict(release=G,deadline=G)
            for r in range(16):
                x=raw+r; a=tmp+2*r
                s.add(f"v_lshlrev_b32 v{a}, 16, v{x}",'valu',reads=[f"v{x}"],writes=[f"v{a}"],**kw)
                s.add(f"v_and_b32 v{a+1}, s{sMSK}, v{x}",'valu',reads=[f"v{x}"],writes=[f"v{a+1}"],**kw)
            for r in range(16):
                x=raw+r; a=tmp+2*r
                s.add(f"v_pk_mul_f32 v[{a}:{a+1}], v[{a}:{a+1}], s[{sC}:{sC+1}] op_sel_hi:[1,0]",'pk',reads=[f"v{a}",f"v{a+1}"],writes=[f"v{a}",f"v{a+1}"],**kw)
                s.add(f"v_cvt_pk_bf16_f32 v{x}, v{a}, v{a+1}",'valu',reads=[f"v{a}",f"v{a+1}"],writes=[f"v{x}"],**kw)
                s.add(f"v_accvgpr_write_b32 a{aQ(qb)+r}, v{x}",'valu',reads=[f"v{x}"],writes=[f"a{aQ(qb)+r}"],**kw)
            return
    def _read_q_plain(s,T,rel):
        buf=T%2; qb=s.qbuf[T]
        for st in range(4):
            s.add(f"ds_read_b128 {rng('a',aQ(qb)+4*st,4)}, v{vQa[st%2]} offset:{buf*4096+(st//2)*1024}",'dsr',
                  reads=[f"L:Q{T}",f"v{vQa[st%2]}"]+(['O:vm'] if st==0 else []),writes=R('a',aQ(qb)+4*st,4)+[f"L:stg{buf}{st//2}",f"O:q{T}"],release=rel,margin=8,deadline=s.dl(rel),hole=True)
    def read_k(s,g,order):
        s.visible('K',g); slot=s.slotof[('K',g)]
        for f in order:
            kt,st=divmod(f,4)
            o=s.add(f"ds_read_b128 {rng('a',aK(f),4)}, v{vKa[st%2]} offset:{slot*8192+kt*4096+(st//2)*1024}",'dsr',
                  reads=[f"visK{g}"],writes=R('a',aK(f),4)+[f"L:rdK{g}"],margin=s.cfg.get('dsmargin',10))
        s.lastread[('K',g)]=o.idx; s.allread[('K',g)]-=1
    def read_v(s,g):
        s.visible('V',g); slot=s.slotof[('V',g)]
        for t in range(8):
            for kt in range(2):
                o=s.add(f"ds_read_b64_tr_b16 {rng('a',aV(t)+2*kt,2)}, v{vVa[t%4]} offset:{slot*8192+kt*4096+(t//4)*1024}",'dsr',
                      reads=[f"visV{g}"],writes=R('a',aV(t)+2*kt,2)+[f"L:rdV{g}"],margin=s.cfg.get('dsmargin',10))
        s.lastread[('V',g)]=o.idx; s.allread[('V',g)]-=1
    KORD=[0,1,2,3,7,6,5,4]
    def qk(s,n,T):
        b=n%s.NB; qb=s.qbuf[T]
        for i,f in enumerate(s.KORD):
            kt,st=divmod(f,4)
            d=vS[b]+4*kt; first=(i%4==0)
            cr = R('v',d,4); c=rng('v',d,4)
            if first:
                if T in s.pres and s.seen[T]>0: cr=R('v',vCI[T],4); c=rng('v',vCI[T],4)
                else: cr=[]; c="0"
            s.add(f"v_mfma_f32_16x16x32_bf16 {rng('v',d,4)}, {rng('a',aK(f),4)}, {rng('a',aQ(qb)+4*st,4)}, {c}",'mfma',
                  reads=R('a',aK(f),4)+R('a',aQ(qb)+4*st,4)+cr,writes=R('v',d,4),cread=cr)
        if T==0 and T in s.pres and s.seen[T]==15:
            for r in range(4): s.add(f"v_accvgpr_read_b32 v{vCI[0]+r}, a{aSave+r}",'valu',reads=[],writes=[f"v{vCI[0]+r}"])
    def pv(s,n,T,first):
        slot=s.slot[T]; p=vP[s.pbuf[n]]
        d=aSum(slot); mode=s.summode[n]
        if (T//2) not in s.zeroed:
            s.zeroed.add(T//2)
            for r in range(4): s.add(f"v_accvgpr_write_b32 a{d+r}, 0",'valu',writes=[f"a{d+r}"],margin=2)
        if mode=='single':
            a=aOneD[slot%2]
            s.add(f"v_mfma_f32_16x16x32_bf16 {rng('a',d,4)}, {rng('a',a,4)}, {rng('v',p,4)}, {rng('a',d,4)}",'mfma',
                  reads=R('a',a,4)+R('v',p,4)+R('a',d,4),writes=R('a',d,4),cread=R('a',d,4),tag='sum')
        elif mode=='second':
            s.add(f"v_smfmac_f32_16x16x64_bf16 {rng('a',d,4)}, {rng('a',aOneS,4)}, {rng('v',p-4,8)}, v{vIdx}",'mfma',
                  reads=R('a',aOneS,4)+R('v',p-4,8)+R('a',d,4),writes=R('a',d,4),cread=R('a',d,4),cost=12,tag='sum')
        if s.pending_epi is not None and mode=='second':
            X=s.pending_epi; s.pending_epi=None; s.finish(X,5)
        for t in range(8):
            d=vO(slot,t); c="0" if first else rng('v',d,4)
            s.add(f"v_mfma_f32_16x16x32_bf16 {rng('v',d,4)}, {rng('a',aV(t),4)}, {rng('v',p,4)}, {c}",'mfma',
                  reads=R('a',aV(t),4)+R('v',p,4)+([] if first else R('v',d,4)),writes=R('v',d,4),cread=([] if first else R('v',d,4)))
    def finish(s,T,off):
        e=s.epilogue(T,off)
        if T in s.imm:
            s.read_o(T,s.imm[T][0],e)
            if s.imm[T][1] is not None: s.store_o(T,e+s.cfg.get('stlag',10),s.imm[T][1])
    def sm(s,n,T,first):
        b=n%s.NB; S=vS[b]; p=vP[s.pbuf[n]]; mc=vMCs[s.slot[T]]; zero=s.cfg.get('zero'); pre=T in s.pres
        if pre: mc=vCI[T]
        if first and not zero:
            t0,t1=(mc,None) if s.cfg.get('bperm',True) else (vT0,vT1)
            V=lambda txt,rd,wr,k='valu': s.add(txt,k,reads=[f"v{x}" for x in rd],writes=[f"v{x}" for x in wr],margin=1)
            V(f"v_max3_f32 v{t0}, v{S}, v{S+1}, v{S+2}",[S,S+1,S+2],[t0])
            V(f"v_max_f32 v{t0}, v{t0}, v{S+3}",[t0,S+3],[t0])
            if s.cfg.get('bperm',True):
                s.add(f"ds_bpermute_b32 v{t0}, v{vBp}, v{t0}",'dsr',reads=[f"v{t0}"],writes=[f"v{t0}"],margin=6)
            else:
                V(f"v_mov_b32 v{t1}, v{t0}",[t0],[t1])
                V(f"v_permlane16_swap_b32 v{t0}, v{t1}",[t0,t1],[t0,t1],'perm')
                V(f"v_max_f32 v{t0}, v{t0}, v{t1}",[t0,t1],[t0])
                V(f"v_mov_b32 v{t1}, v{t0}",[t0],[t1])
                V(f"v_permlane32_swap_b32 v{t0}, v{t1}",[t0,t1],[t0,t1],'perm')
                V(f"v_max_f32 v{t0}, v{t0}, v{t1}",[t0,t1],[t0])
            if pre:
                V(f"v_xor_b32 v{mc}, 0x80000000, v{t0}",[t0],[mc])
                for r in range(1,4): V(f"v_mov_b32 v{mc+r}, v{mc}",[mc],[mc+r])
            else: V(f"v_mul_f32 v{mc}, 0x{f2u(-CSC):08x}, v{t0}",[t0],[mc])
        sp=s.cfg.get('smsp',3)
        for k in range(4):
            for i in (2*k,2*k+1):
                if pre:
                    if first: s.add(f"v_add_f32 v{S+i}, v{S+i}, v{mc}",'valu',reads=[f"v{S+i}",f"v{mc}"],writes=[f"v{S+i}"],margin=1)
                elif T in s.cfg.get('fake',()) and not first: pass
                elif zero: s.add(f"v_mul_f32 v{S+i}, s{sC}, v{S+i}",'valu',reads=[f"v{S+i}"],writes=[f"v{S+i}"],margin=1)
                else: s.add(f"v_fma_f32 v{S+i}, v{S+i}, s{sC}, v{mc}",'valu',reads=[f"v{S+i}",f"v{mc}"],writes=[f"v{S+i}"],margin=1)
            for i in (2*k,2*k+1):
                s.add(f"v_exp_f32 v{S+i}, v{S+i}",'trans',reads=[f"v{S+i}"],writes=[f"v{S+i}"],margin=1+(i%2==0))
            s.add(f"v_cvt_pk_bf16_f32 v{p+k}, v{S+2*k}, v{S+2*k+1}",'valu',reads=[f"v{S+2*k}",f"v{S+2*k+1}"],writes=[f"v{p+k}"],margin=1+sp*(3-k))
    def epilogue(s,T,off=0):
        slot=s.slot[T]; g0=s.now()+off; l=vL[T%2]; buf=s.obuf[T]; tmp=(vT0 if s.cfg.get('bperm',True) else l+1); a=aSum(slot)+2*(slot%2)
        direct=s.cfg.get('direct')
        if not direct:
            assert s.stgown[buf] is None, ("stg busy O",T,s.stgown); s.stgown[buf]=('O',T)
        if not s.owdone and not direct:
            assert len(s.qread)==12
            s.owdone=True
            s.add(f"v_xor_b32 v{vOw[2]}, 64, v{vOw[0]}",'valu',reads=[f"v{vOw[0]}"],writes=[f"v{vOw[2]}"])
            s.add(f"v_xor_b32 v{vOw[3]}, 64, v{vOw[1]}",'valu',reads=[f"v{vOw[1]}"],writes=[f"v{vOw[3]}"])
        s.add(f"v_accvgpr_read_b32 v{l}, a{a}",'valu',reads=[f"a{a}"],writes=[f"v{l}"],deadline=g0-1)
        s.add(f"v_accvgpr_read_b32 v{tmp}, a{a+1}",'valu',reads=[f"a{a+1}"],writes=[f"v{tmp}"],deadline=g0-1)
        s.add(f"v_add_f32 v{l}, v{l}, v{tmp}",'valu',reads=[f"v{l}",f"v{tmp}"],writes=[f"v{l}"],deadline=g0)
        s.add(f"v_cmp_ngt_f32_e64 s[{sFlag+2*T}:{sFlag+2*T+1}], s{sTH}, v{l}",'valu',reads=[f"v{l}"],writes=[f"s{sFlag+2*T}"],deadline=g0)
        s.add(f"v_rcp_f32 v{l}, v{l}",'trans',reads=[f"v{l}"],writes=[f"v{l}"],deadline=g0+1)
        G=g0+3
        def pks(ts):
          for t in ts:
            o=vO(slot,t)
            for i in (0,2):
                s.add(f"v_pk_mul_f32 v[{o+i}:{o+i+1}], v[{o+i}:{o+i+1}], v[{l}:{l+1}] op_sel_hi:[1,0]",'pk',reads=[f"v{o+i}",f"v{o+i+1}",f"v{l}"],writes=[f"v{o+i}",f"v{o+i+1}"],release=G,deadline=G)
        pks(range(8) if direct else range(4))
        W=s.cfg.get('epiw',12)
        if direct:
            for m in range(4):
                o=vO(slot,2*m); d=G+(W*m)//4
                for i in range(4):
                    s.add(f"v_cvt_pk_bf16_f32 v{o+i}, v{o+2*i}, v{o+2*i+1}",'valu',reads=[f"v{o+2*i}",f"v{o+2*i+1}"],writes=[f"v{o+i}"],deadline=d+i//2)
                for i in range(2):
                    s.add(f"v_permlane16_swap_b32 v{o+i}, v{o+i+2}",'perm',reads=[f"v{o+i}",f"v{o+i+2}"],writes=[f"v{o+i}",f"v{o+i+2}"],deadline=d+2+i)
            return G+4
        if s.cfg.get('w2',True) and T<s.cfg.get('w2last',11):
            pks(range(4,8))
            for t in range(4):
                d=G+(W*t)//4
                for u in (t,t+4):
                    o=vO(slot,u)
                    for i in range(2):
                        s.add(f"v_cvt_pk_bf16_f32 v{o+i}, v{o+2*i}, v{o+2*i+1}",'valu',reads=[f"v{o+2*i}",f"v{o+2*i+1}"],writes=[f"v{o+i}"],deadline=d+(u>=4))
                o=vO(slot,t); p=vO(slot,t+4)
                s.add(f"ds_write2st64_b64 v{vOw[t]}, v[{o}:{o+1}], v[{p}:{p+1}] offset0:{buf*8} offset1:{buf*8+2}",'dsw',reads=[f"v{o}",f"v{o+1}",f"v{p}",f"v{p+1}",f"v{vOw[t]}"],writes=[f"L:stg{buf}0",f"L:stg{buf}1"],deadline=d+2,cost=20)
            return G+W+1
        for t in range(8):
            if t==4: pks(range(4,8))
            o=vO(slot,t); d=G+(W*t)//8
            for i in range(2):
                s.add(f"v_cvt_pk_bf16_f32 v{o+i}, v{o+2*i}, v{o+2*i+1}",'valu',reads=[f"v{o+2*i}",f"v{o+2*i+1}"],writes=[f"v{o+i}"],deadline=d)
            s.add(f"ds_write_b64 v{vOw[t%4]}, v[{o}:{o+1}] offset:{buf*4096+(t//4)*1024}",'dsw',reads=[f"v{o}",f"v{o+1}",f"v{vOw[t%4]}"],writes=[f"L:stg{buf}{t//4}"],deadline=d+s.cfg.get('dswd',1))
        return G+W+1+s.cfg.get('dswd',1)
    def read_o(s,T,park,rel):
        buf=s.obuf[T]; s.park[T]=park
        if s.cfg.get('direct'):
            if park is None: return
            assert all(s.seen[x] in (0,16) and not (s.seen[x]==0 and x in s.qread) for x in range(12) if s.qbuf[x]==park), ("park busy",T,park)
            assert s.parkown.get(park) is None; s.parkown[park]=[T,4]
            W=s.cfg.get('epiw',12)
            for m in range(4):
                o=vO(s.slot[T],2*m)
                for i in range(4):
                    s.add(f"v_accvgpr_write_b32 a{aQ(park)+4*m+i}, v{o+i}",'valu',reads=[f"v{o+i}"],writes=[f"a{aQ(park)+4*m+i}"],deadline=rel+(W*m)//4+i//2+s.cfg.get('accslack',0))
            return
        assert all(s.seen[x] in (0,16) and not (s.seen[x]==0 and x in s.qread) for x in range(12) if s.qbuf[x]==park), ("park busy",T,park)
        assert s.stgown[buf]==('O',T); s.stgown[buf]=None
        assert s.parkown.get(park) is None, ("park has unstored data",T,park); s.parkown[park]=[T,4]
        for j in (0,2,1,3):
            kw=dict(release=rel,deadline=rel+4,hole=True)
            if j<2:
                s.add(f"ds_read_b128 {rng('a',aQ(park)+4*j,4)}, v{vOr} offset:{buf*4096+1024*j}",'dsr',
                      reads=[f"v{vOr}"],writes=R('a',aQ(park)+4*j,4)+[f"L:stg{buf}{j%2}"],**kw)
            else:
                for h in range(2):
                    s.add(f"ds_read_b64 {rng('a',aQ(park)+4*j+2*h,2)}, v{vOr} offset:{buf*4096+1024*j+8*(1-h)}",'dsr',
                          reads=[f"v{vOr}"],writes=R('a',aQ(park)+4*j+2*h,2)+[f"L:stg{buf}{j%2}"],**kw)
    def store_o(s,T,rel,step,js=(0,2,1,3)):
        it,j=divmod(T,6); park=s.park[T]
        if T>=6: rel=max(rel,s.laststore+step)
        s.laststore=rel+(len(js)-1)*step
        if s.curO!=T:
            if j>0 and s.curO==T-1: s.add(f"s_addk_i32 s{sOffO}, 4096",'salu',reads=[f"s{sOffO}"],writes=[f"s{sOffO}"],margin=1)
            else: s.add(f"s_mov_b32 s{sOffO}, {(it*768+16*j)*256}",'salu',writes=[f"s{sOffO}"],margin=1)
            s.curO=T
        s.nst+=len(js)
        if park is not None:
            s.parkown[park][1]-=len(js)
            if s.parkown[park][1]==0: s.parkown[park]=None
        if s.cfg.get('direct'):
            pol=s.stpol if isinstance(s.stpol,str) else s.stpol[T]
            for k,m in enumerate(js):
                p,r=('a',aQ(park)+4*m) if park is not None else ('v',vO(s.slot[T],2*m))
                s.add(f"buffer_store_dwordx4 {rng(p,r,4)}, v{vOst}, s[{sO}:{sO+3}], s{sOffO} offen offset:{64*m} {pol}",'gst',
                      reads=R(p,r,4)+[f"s{sOffO}",f"v{vOst}"],writes=['O:st'],release=rel+k*step,deadline=rel+k*step+2)
            return
        for k,j in enumerate(js):
            s.add(f"buffer_store_dwordx4 {rng('a',aQ(park)+4*j,4)}, v{vOst}, s[{sO}:{sO+3}], s{sOffO} offen offset:{(j//2)*2048+(j%2)*128} {s.stpol if isinstance(s.stpol,str) else s.stpol[T]}",'gst',
                  reads=R('a',aQ(park)+4*j,4)+[f"s{sOffO}",f"v{vOst}"],writes=['O:st'],release=rel+k*step,deadline=rel+k*step+2)
    def build(s):
        cfg=s.cfg; LAG=s.LAG
        visits=cfg['visits']
        s.slot={T:T%6 for T in range(12)}
        s.qbuf=cfg.get('qbuf',{**{T:T for T in range(10)},10:0,11:1})
        s.obuf={T:T%2 for T in range(12)}; s.park={}; s.curO=None
        s.pres=set(cfg.get('pres',())); s.imm=cfg.get('oimm',{}); s.zeroed=set(); s.pending_epi=None; s.owdone=False
        s.allread=defaultdict(int)
        for g,ts in visits:
            s.allread[('K',g)]+=1; s.allread[('V',g)]+=1
        ms=[]
        for vi,(g,ts) in enumerate(visits):
            for k,T in enumerate(ts): ms.append((vi,g,T,k==0,k==len(ts)-1))
        cnt=defaultdict(int)
        for m in ms: cnt[m[2]]+=1
        assert all(cnt[T]==16 for T in range(12)) and len({(m[1],m[2]) for m in ms})==192
        assert all(m[1]//16==m[2]//6 for m in ms)
        s.summode={}; s.pbuf={}; pb=0; n=0
        while n<len(ms):
            T=ms[n][2]
            if cfg.get('smf',True) and T%2==0 and n+1<len(ms)-(2 if cfg.get('lastsingle',True) else 0) and ms[n+1][2]==T+1:
                if pb%2: pb+=1
                s.summode[n]='first'; s.summode[n+1]='second'; s.pbuf[n]=pb%4; s.pbuf[n+1]=(pb+1)%4; pb+=2; n+=2
            else:
                s.summode[n]='single'; s.pbuf[n]=pb%4; pb+=1; n+=1
        plan=defaultdict(list)
        for n,u in cfg['plan']: plan[n].append(u)
        s.curoff=None
        def doplan(n):
            rel=s.now(); us=plan.get(n,[])
            nd=sum({'B':4,'K':2,'V':2,'Q':4}.get(u[0],0) for u in us)
            step = 0 if n<0 else max(1,cfg.get('span',16)//max(nd,1))
            for u in us:
                st = u[2] if len(u)>2 and u[0] in 'BKVQ' else step
                s.urgent = u[0] in 'BKVQ' and st<=1 and cfg.get('urgent',True)
                if s.urgent and rel<0: st=0
                if u[0]=='B':
                    s.dma_kv('K',u[1],rel,st); s.dma_kv('V',u[1],rel+2*st,st); rel+=4*st
                elif u[0] in 'KV':
                    s.dma_kv(u[0],u[1],rel,st); rel+=2*st
                elif u[0]=='Q':
                    s.dma_q(u[1],rel,st); rel+=4*st
                elif u[0]=='q': s.read_q(u[1],s.now()+(u[2] if len(u)>2 else 0)); rel=max(rel,s.now()+(u[2] if len(u)>2 else 0))
                elif u[0]=='p': s.prescale(u[1],s.now(),u[2] if len(u)>2 else 0)
                elif u[0]=='o': s.read_o(u[1],u[2],s.now())
                elif u[0]=='s': s.store_o(u[1],s.now(),u[2],*u[3:])
                elif u[0]=='bar': s.barrier()
                elif u[0]=='c': s.add(f"buffer_load_dword a252, v{vDMA}, s[36:39], s35 offen",'gld',writes=['O:vm'],release=s.now(),deadline=s.now()+12)
        s.msbb={}; seen=defaultdict(int); seenpv=defaultdict(int); s.seen=defaultdict(int); s.qread=set(); s.stgown=[None,None]; s.parkown={}; s.nst=0; s.laststore=-99; s.lastQ=None
        barset=cfg.get('barvisits')
        doplan(-1)
        s.barrier(); s.read_k(ms[0][1],s.KORD)
        N=len(ms)
        for n in range(N+LAG):
            if n<N:
                vi,g,T,fi,la=ms[n]
                if la and n+1<N and (barset is None or vi+1 in barset) and n not in cfg.get('nobar',()) and n<=cfg.get('lastbar',999): s.barrier()
                doplan(n)
                assert T in s.qread, ('Q not loaded',T)
                s.msbb[n]=s.nbb
                s.qk(n,T); s.seen[T]+=1
            m=n-LAG
            if m>=0:
                T1=ms[m][2]
                s.pv(m,T1,seenpv[T1]==0); seenpv[T1]+=1
                if seenpv[T1]==16:
                    if s.summode[m]=='first': s.pending_epi=T1
                    else: s.finish(T1,0)
            if n<N:
                s.sm(n,T,seen[T]==0); seen[T]+=1
                if la and n+1<N: s.read_k(ms[n+1][1],s.KORD)
            if m+1>=0 and m+1<N and ms[m+1][3]: s.read_v(ms[m+1][1])
        assert s.nst==48
        s.P.ops=[o for o in s.P.ops if not (o.kind=='bar' and not o.reads)]
        for i,o in enumerate(s.P.ops): o.idx=i
        out=s.P.schedule(ldsrate=cfg.get('ldsrate',1024),ldsburst=cfg.get('ldsburst',1024),dswd=cfg.get('dswd',1),dswsp=cfg.get('dswsp',1),holeburst=cfg.get('holeburst',12),wdma=cfg.get('wdma',-1),dmaw=cfg.get('dmaw',-1))
        out=insert_waits(out,cfg.get('merge',9))
        verify_waits(out)
        check_hazards(out)
        return out

def PRO(cfg):
  t=f"""
    s_cmp_ge_u32 s2, 256
    s_cbranch_scc1 L_end
    s_load_dwordx4 s[64:67], s[0:1], 0
    s_load_dwordx4 s[68:71], s[0:1], 16
    v_lshrrev_b32 v1, 6, v0
    s_lshr_b32 s73, s2, 3
    s_getpc_b64 s[86:87]
L_pc:
    v_and_b32 v2, 7, v0
    v_lshl_add_u32 v2, v2, 2, v1
    v_lshlrev_b32 v2, 12, v2
    s_lshl_b32 s88, s73, 7
    v_add_u32 v2, s88, v2
    v_min_u32 v2, L_end-L_main+4096, v2
    s_and_b32 s86, s86, 0xfffff000
    v_readfirstlane_b32 s{sW}, v1
    v_and_b32 v0, 63, v0
    global_load_dword v4, v2, s[86:87]
    s_and_b32 s72, s2, 7
    s_lshr_b32 s74, s73, 1
    s_and_b32 s75, s73, 1
    s_lshl_b32 s72, s72, 4
    s_add_u32 s72, s72, s74
    s_lshl_b32 s76, s72, 18
    s_mul_i32 s77, s72, {2*768*256}
    s_mul_i32 s78, s75, {384*256}
    s_add_u32 s77, s77, s78
    s_and_b32 s79, s{sW}, 1
    s_lshr_b32 s80, s{sW}, 1
    s_lshl_b32 s81, s79, 10
    s_lshl_b32 s82, s80, 12
    s_add_u32 s{sWL}, s81, s82       ; LDS: (w&1)*1024 + (w>>1)*4096
    s_lshl_b32 s81, s79, 7
    s_add_u32 s81, s81, s82          ; global: (w&1)*128 + (w>>1)*4096
    s_mul_i32 s83, s{sW}, 24576
    s_sub_u32 s{sWQ}, s83, s81
    s_lshl_b32 s{sWS}, s{sW}, 13
    ; DMA voffset: (i>>3)*256 + ((i&7)^((i>>3)&6))*16 + wave part
    v_lshrrev_b32 v1, 3, v0
    v_and_b32 v2, 6, v1
    v_and_b32 v3, 7, v0
    v_xor_b32 v2, v2, v3
    v_lshlrev_b32 v2, 4, v2
    v_lshl_add_u32 v2, v1, 8, v2
    v_add_u32 v{vDMA}, s81, v2
    s_mov_b32 s{sQ+2}, {1152*256}
    s_mov_b32 s{sQ+3}, 0x20000
    s_mov_b32 s{sK+2}, 0x40000
    s_mov_b32 s{sK+3}, 0x20000
    s_mov_b32 s{sV+2}, 0x40000
    s_mov_b32 s{sV+3}, 0x20000
    s_mov_b32 s{sO+2}, {1152*256}
    s_mov_b32 s{sO+3}, 0x20000
    s_waitcnt lgkmcnt(0)
    s_add_u32 s{sQ}, s64, s77
    s_addc_u32 s{sQ+1}, s65, 0
    s_add_u32 s{sK}, s66, s76
    s_addc_u32 s{sK+1}, s67, 0
    s_add_u32 s{sV}, s68, s76
    s_addc_u32 s{sV+1}, s69, 0
    s_add_u32 s{sO}, s70, s77
    s_addc_u32 s{sO+1}, s71, 0
"""
  if cfg.get('adj'):
    t=t.replace("    s_add_u32 s72, s72, s74          ; pair index 0..127\n","    s_lshr_b32 s72, s2, 1\n    s_and_b32 s75, s2, 1\n")
  return t
PRO2 = f"""
    s_mov_b32 s{sC}, 0x{f2u(CSC):08x}
    s_mov_b32 s{sTH}, 0x5f800000
    s_mov_b32 s{sMSK}, 0xffff0000
    s_add_u32 s84, s{sWS}, {STG}
    v_xor_b32 v2, v1, v3
    v_lshlrev_b32 v2, 4, v2
    v_lshl_add_u32 v2, v1, 8, v2
    v_add_u32 v{vOst}, s83, v2
    v_lshl_add_u32 v{vOr}, v0, 4, s84
    v_and_b32 v1, 15, v0
    v_lshrrev_b32 v2, 4, v0
    v_lshlrev_b32 v{vBp}, 2, v1
    v_and_b32 v5, 7, v1
    v_lshlrev_b32 v6, 7, v5
    v_lshrrev_b32 v7, 3, v1
    v_lshl_add_u32 v6, v7, 11, v6
    v_and_b32 v3, 6, v1
    v_xor_b32 v3, v3, v2
    v_lshl_add_u32 v{vKa[0]}, v3, 4, v6
    v_xor_b32 v{vKa[1]}, 64, v{vKa[0]}
    v_add_u32 v{vQa[0]}, s84, v{vKa[0]}
    v_add_u32 v{vQa[1]}, s84, v{vKa[1]}
    v_lshrrev_b32 v3, 1, v2
    v_xor_b32 v3, v3, v5
    v_lshl_add_u32 v3, v3, 4, v6
    v_and_b32 v2, 1, v2
    v_xor_b32 v2, v2, v7
    v_lshl_add_u32 v3, v2, 3, v3
    v_add_u32 v{vOw[0]}, s84, v3
    v_xor_b32 v{vOw[1]}, 32, v{vOw[0]}
    v_lshrrev_b32 v1, 2, v0
    v_and_b32 v2, 6, v1
    v_bfe_u32 v3, v0, 1, 1
    v_xor_b32 v2, v2, v3
    v_lshlrev_b32 v2, 4, v2
    v_and_b32 v3, 1, v0
    v_lshl_add_u32 v2, v3, 3, v2
    v_and_b32 v3, 7, v1
    v_lshl_add_u32 v2, v3, 7, v2
    v_lshrrev_b32 v3, 3, v1
    v_lshl_add_u32 v2, v3, 11, v2
    v_add_u32 v{vVa[0]}, {VRING}, v2
    v_xor_b32 v{vVa[1]}, 32, v{vVa[0]}
    v_xor_b32 v{vVa[2]}, 64, v{vVa[0]}
    v_xor_b32 v{vVa[3]}, 0x60, v{vVa[0]}
    ; row-sum operands: sparse pair pattern, index, and dense single-tile patterns
    v_mov_b32 v1, 0x3f803f80
    v_bfe_u32 v2, v0, 1, 1
    v_lshrrev_b32 v3, 5, v0
    v_cmp_eq_u32 vcc, v2, v3
    v_and_b32 v5, 3, v0
    v_mov_b32 v6, 0x4444
    v_cndmask_b32 v2, 0, v1, vcc
    v_cmp_eq_u32 vcc, 0, v5
    v_accvgpr_write_b32 a{aOneS}, v2
    v_accvgpr_write_b32 a{aOneS+1}, v2
    v_cndmask_b32 v3, 0, v1, vcc
    v_cmp_eq_u32 vcc, 2, v5
    v_accvgpr_write_b32 a{aOneS+2}, v2
    v_accvgpr_write_b32 a{aOneS+3}, v2
    v_cndmask_b32 v2, 0, v1, vcc
    v_and_b32 v5, 1, v0
    v_mul_u32_u24 v5, 0xaaaa, v5
    v_add_u32 v{vIdx}, v5, v6
    v_accvgpr_write_b32 a{aOneD[0]}, v3
    v_accvgpr_write_b32 a{aOneD[0]+1}, v3
    v_accvgpr_write_b32 a{aOneD[0]+2}, v3
    v_accvgpr_write_b32 a{aOneD[0]+3}, v3
    v_accvgpr_write_b32 a{aOneD[1]}, v2
    v_accvgpr_write_b32 a{aOneD[1]+1}, v2
    v_accvgpr_write_b32 a{aOneD[1]+2}, v2
    v_accvgpr_write_b32 a{aOneD[1]+3}, v2
"""

def slow_path():
    L=[]
    A=L.append
    A("    s_or_b64 s[64:65], s[40:41], s[42:43]")
    for T in range(2,12): A(f"    s_or_b64 s[64:65], s[64:65], s[{sFlag+2*T}:{sFlag+2*T+1}]")
    A("    s_cbranch_scc1 L_slow")
    A("    s_endpgm")
    A("L_slow:")
    A("    s_mov_b32 s66, 0")
    for T in range(12):
        A(f"    s_cmp_lg_u64 s[{sFlag+2*T}:{sFlag+2*T+1}], 0")
        A(f"    s_cselect_b32 s67, {1<<T}, 0")
        A("    s_or_b32 s66, s66, s67")
    A("    s_waitcnt vmcnt(0) lgkmcnt(0)")
    A("    v_mbcnt_lo_u32_b32 v8, -1, 0")
    A("    v_mbcnt_hi_u32_b32 v8, -1, v8")
    A("    v_and_b32 v9, 15, v8")
    A("    v_lshrrev_b32 v10, 4, v8")
    A("    v_lshlrev_b32 v11, 4, v10")
    A("    v_lshl_add_u32 v14, v9, 8, v11")
    A("    v_add_u32 v15, s83, v14")
    A("    v_and_b32 v11, 1, v10")
    A("    v_lshlrev_b32 v11, 1, v11")
    A("    v_lshrrev_b32 v12, 1, v10")
    A("    v_or_b32 v11, v11, v12")
    A("    v_lshlrev_b32 v11, 4, v11")
    A("    v_lshl_add_u32 v11, v9, 8, v11")
    A("    v_add_u32 v13, s83, v11")
    A(f"    v_subrev_u32 v16, s81, v{vDMA}")
    A(f"    s_add_u32 s68, s{sWS}, {STG-VRING}")
    for i in range(4): A(f"    v_add_u32 v{20+i}, s68, v{vVa[i]}")
    for i in range(4): A(f"    v_mov_b32 v{196+i}, 0x3f803f80")
    A("    s_mov_b32 s69, 0")
    A("L_slow_tile:")
    A("    s_bitcmp1_b32 s66, s69")
    A("    s_cbranch_scc0 L_slow_next")
    A("    s_cmp_ge_u32 s69, 6")
    A("    s_cselect_b32 s70, 0x20000, 0")
    A(f"    s_cselect_b32 s71, {(768-96)*256}, 0")
    A("    s_lshl_b32 s72, s69, 12")
    A("    s_add_u32 s71, s71, s72                ; q/o offset")
    for st in range(4): A(f"    buffer_load_dwordx4 v[{64+4*st}:{67+4*st}], v15, s[{sQ}:{sQ+3}], s71 offen offset:{64*st}")
    A("    v_mov_b32 v17, 0xff800000")
    A("    s_mov_b32 s72, s70")
    A("    s_add_u32 s73, s70, 0x20000")
    A("L_slow_max:")
    for st in range(4): A(f"    buffer_load_dwordx4 v[{80+4*st}:{83+4*st}], v14, s[{sK}:{sK+3}], s72 offen offset:{64*st}")
    A("    s_waitcnt vmcnt(0)")
    for st in range(4): A(f"    v_mfma_f32_16x16x32_bf16 v[0:3], v[{80+4*st}:{83+4*st}], v[{64+4*st}:{67+4*st}], {'0' if st==0 else 'v[0:3]'}")
    A("    s_nop 15")
    A("    v_max3_f32 v17, v17, v0, v1")
    A("    v_max3_f32 v17, v17, v2, v3")
    A("    s_add_u32 s72, s72, 4096")
    A("    s_cmp_lt_u32 s72, s73")
    A("    s_cbranch_scc1 L_slow_max")
    for sw in ("16","32"):
        A("    v_mov_b32 v18, v17"); A("    s_nop 1")
        A(f"    v_permlane{sw}_swap_b32 v17, v18"); A("    s_nop 1")
        A("    v_max_f32 v17, v17, v18")
    A(f"    v_mul_f32 v17, 0x{f2u(-CSC):08x}, v17")
    for r in range(160,196): A(f"    v_mov_b32 v{r}, 0")
    A("    s_mov_b32 s72, s70")
    A("L_slow_blk:")
    A("    s_add_u32 s74, s72, 4096")
    for f in range(8):
        kt,st=divmod(f,4)
        A(f"    buffer_load_dwordx4 v[{80+4*f}:{83+4*f}], v14, s[{sK}:{sK+3}], {'s72' if kt==0 else 's74'} offen offset:{64*st}")
    for kt in range(2):
        for half in range(2):
            A(f"    s_add_u32 m0, s{sWS}, {STG+kt*4096+half*896}")
            A("    s_nop 0")
            for oc in range(2):
                A(f"    buffer_load_dwordx4 v16, s[{sV}:{sV+3}], {'s72' if kt==0 else 's74'} offen offset:{2048*oc+128*half} lds")
    A("    s_waitcnt vmcnt(0)")
    for t in range(8):
        for kt in range(2):
            A(f"    ds_read_b64_tr_b16 v[{112+4*t+2*kt}:{113+4*t+2*kt}], v{20+t%4} offset:{kt*4096+(t//4)*1024}")
    for f in range(8):
        kt,st=divmod(f,4); d=4*kt
        A(f"    v_mfma_f32_16x16x32_bf16 v[{d}:{d+3}], v[{80+4*f}:{83+4*f}], v[{64+4*st}:{67+4*st}], {'0' if st==0 else f'v[{d}:{d+3}]'}")
    A("    s_nop 15")
    for i in range(8): A(f"    v_fma_f32 v{i}, v{i}, s{sC}, v17")
    for i in range(8): A(f"    v_exp_f32 v{i}, v{i}")
    A("    s_nop 1")
    for k in range(4): A(f"    v_cvt_pk_bf16_f32 v{24+k}, v{2*k}, v{1+2*k}")
    A("    s_waitcnt lgkmcnt(0)")
    A("    s_nop 1")
    for t in range(8): A(f"    v_mfma_f32_16x16x32_bf16 v[{160+4*t}:{163+4*t}], v[{112+4*t}:{115+4*t}], v[24:27], v[{160+4*t}:{163+4*t}]")
    A("    v_mfma_f32_16x16x32_bf16 v[192:195], v[196:199], v[24:27], v[192:195]")
    A("    s_add_u32 s72, s72, 8192")
    A("    s_cmp_lt_u32 s72, s73")
    A("    s_cbranch_scc1 L_slow_blk")
    A("    s_nop 15")
    A("    v_rcp_f32 v18, v192")
    A("    s_nop 1")
    for r in range(160,192): A(f"    v_mul_f32 v{r}, v{r}, v18")
    for m in range(4):
        o=160+8*m
        for i in range(4): A(f"    v_cvt_pk_bf16_f32 v{o+i}, v{o+2*i}, v{o+2*i+1}")
        A("    s_nop 1")
        for i in range(2): A(f"    v_permlane16_swap_b32 v{o+i}, v{o+i+2}")
        A(f"    buffer_store_dwordx4 v[{o}:{o+3}], v13, s[{sO}:{sO+3}], s71 offen offset:{64*m}")
    A("    s_waitcnt vmcnt(0)")
    A("L_slow_next:")
    A("    s_add_u32 s69, s69, 1")
    A("    s_cmp_lt_u32 s69, 12")
    A("    s_cbranch_scc1 L_slow_tile")
    return "\n".join(L)+"\n"

def isize(t):
    if 'L_thrw' in t: return 12
    if 'L_back' in t: return 4*(t.count('\n'))
    t=t.strip(); op=t.split()[0]
    if op.startswith(('v_mfma','v_smfmac','ds_','buffer_','global_','v_fma_f32','v_cvt_pk','v_max3','v_pk_','v_accvgpr','v_writelane','s_mem')) or op.endswith('_e64'): return 8
    if op in('s_waitcnt','s_barrier','s_nop','s_addk_i32') or op.startswith('s_cbranch'): return 4
    for a in t.split(None,1)[1].replace(',',' ').split():
        try: v=int(a,0)
        except ValueError: continue
        if not -16<=v<=64: return 8
    return 4

DOC = """;
; GQA attention, O = softmax(Q K^T / sqrt(128)) V.  Generated, fully unrolled, one persistent workgroup per CU.
;  - workgroup: 4 waves x 6 q-tiles of 16 rows, two KV heads one after the other (workgroups wg and wg+8 share both heads).
;  - softmax guard: every row subtracts a reference that is one of its own scores (max over the first keys it meets), so the
"""
HEAD = open('cdna_kernels/'+NAME+'.s.ref').read().split('; Override')[0]
def emit(cfg, path):
    g=Gen(cfg); out=g.build()
    abl=cfg.get('ablate')
    if abl:
        nb=0; o2=[]
        for o in out:
            if o.kind=='bar': nb+=1
            if nb>=3 and any((a==o.kind) or (a in o.text) for a in abl): continue
            o2.append(o)
        out=o2
    marks=[]; est=estimate(out,marks)
    stamp=cfg.get('stamp'); warm=cfg.get('warm',True)
    SST=[x for x in list(range(64,81))+list(range(85,90))+list(range(92,102))]
    ns=[0]
    def st2():
        i=ns[0]; ns[0]+=1
        return ["s_memtime s[90:91]","s_memrealtime s[2:3]","s_waitcnt lgkmcnt(0)",f"s_mov_b32 s{SST[2*i]}, s90",f"s_mov_b32 s{SST[2*i+1]}, s2"]
    if stamp: first_st=st2(); stbb={g.msbb[n] for n in stamp}
    k0=0
    while out[k0].kind in('dma','salu','nop'): k0+=1
    first=[o.text for o in out[:k0]]; nfirst=sum(1 for o in out[:k0] if o.kind=='dma')
    PH=cfg.get('warmph',[(0,99,None)]); phdone=set()
    def entry(k_):
        p0,p1,_=PH[k_]; t="s_mov_b64 vcc, -1\n"
        for w in range(4):
            if p0+w<p1: t+=f" s_cmp_eq_u32 s{sW}, {w}\n s_cbranch_scc1 L_stub{p0+w}\n"
        return t+f"L_back{k_}:\n s_mov_b64 vcc, 0"
    lgap={}; nvw=0; lines=[]; ndma=nfirst; nbar=0; nm=0; probe=cfg.get('probe')
    for k in range(k0,len(out)):
        o=out[k]
        if o.kind=='wait' and 'v' in o.tag: nvw+=1
        for k_,(p0,p1,wh) in enumerate(PH):
            if k_>0 and k_ not in phdone and ((wh[0]=='m' and o.kind=='mfma' and o.bb==g.msbb[wh[1]]) or (wh[0]=='w' and o.kind=='wait' and 'v' in o.tag and nvw==wh[1])):
                phdone.add(k_); lines.append((entry(k_),'salu'))
        if cfg.get('thr') and o.kind=='dma':
            if ndma<cfg['thr'][1] and ndma%2==0:
                lines+=[(f"s_cmp_eq_u32 s{sPar}, 0\n s_cbranch_scc0 L_thrw{ndma}\n s_waitcnt vmcnt({cfg['thr'][2]})\nL_thrw{ndma}:",'salu')]
            ndma+=1
        lines.append((o.text,o.kind)); lgap[len(lines)-1]=o.gap
        if o.kind=='bar': nbar+=1
        if probe and o.kind=='mfma' and o.bb in [g.msbb.get(x) for x in probe[:2] if x not in (0,99,100,-1)]:
            r = 92 if o.bb==g.msbb.get(probe[0]) else 94
            lines+=[(f"s_mem{'real' if probe[2]=='rt' else ''}time s[{r}:{r+1}]",'x'),("s_waitcnt lgkmcnt(0)",'x')]
        if stamp and o.kind=='mfma' and o.bb in stbb: lines+=[(x,'x') for x in st2()]
    body=[]; addr=0; page=0; stubs=0
    pm=cfg.get('premain',0); premain=[]
    if pm:
        acc=0; cutl=0
        for i,(t,kd) in enumerate(lines):
            if acc>pm: break
            if (kd=='wait' and 'vmcnt' in t) or (cfg.get('preany') and kd=='mfma'): cutl=i
            acc+=isize(t)
        premain=lines[:cutl]; lines=lines[cutl:]; lgap={k-cutl:v for k,v in lgap.items()}
    al=cfg.get('align')
    if al and al is not True: al=[((g.msbb[a] if a>=0 else -9),(g.msbb[b] if b<192 else 99999)) for a,b in al]
    WID=('v_exp_f32','v_rcp_f32','v_mov_b32','v_add_f32','v_max_f32','v_lshlrev_b32','v_and_b32','v_xor_b32','v_mul_f32')
    def inal(i):
        if not al: return False
        if al is True: return True
        gp=lgap.get(i); return gp is not None and any(a<=gp<b for a,b in al)
    tot=sum(isize(t) for t,_ in lines)+sum(4 for i,(t,_) in enumerate(lines) if inal(i) and t.split()[0] in WID and isize(t)==4); npages=(tot+72+60)//4096+1
    for i,(t,kd) in enumerate(lines):
        if warm and addr>=page*4096 and page<npages:
            prevm = i>0 and lines[i-1][1]=='mfma'
            if (prevm and kd not in SC_KINDS) or addr+isize(t)>page*4096+56 or page==0:
                nxt=page+4
                k_=[k for k,(p0,p1,_) in enumerate(PH) if p0<=page<p1]
                if not k_:
                    page+=1; body.append(" "+t+"\n"); addr+=isize(t); continue
                k_=k_[0]
                tgt = 'L_stub%d'%nxt if nxt<min(npages,PH[k_][1]) else f'L_back{k_}'
                body.append(f"L_stub{page}:\n s_cbranch_vccnz {tgt}\n")
                body.append(f".if ((L_stub{page}-L_main)>>6) != {page*64}\n.error \"stub misplaced\"\n.endif\n")
                addr+=4; page+=1
        if inal(i) and t.split()[0] in WID and isize(t)==4 and addr%8==0:
            nx=lines[i+1][0] if i+1<len(lines) else ''
            if not (nx and isize(nx)==4):
                op,rest=t.split(None,1); t=op+"_e64 "+rest
        if cfg.get('smartal') and t.split()[0] in WID and isize(t)==4:
            cnt=[0,0]; a=addr+4; run=0
            for j in range(i+1,min(i+80,len(lines))):
                tj,kj=lines[j]; z=isize(tj)
                if tj.split()[0] in WID and z==4: break
                if z==8 and kj!='mfma':
                    run+=1
                    if run>=3: cnt[0 if a%8 else 1]+=1
                else: run=0
                a+=z
            if cnt[0]-cnt[1]>=cfg['smartal']:
                op,rest=t.split(None,1); t=op+"_e64 "+rest
        body.append(" "+t+"\n"); addr+=isize(t)
    while warm and page<npages:
        k_=[k for k,(p0,p1,_) in enumerate(PH) if p0<=page<p1]
        if k_: body.append(f"L_stub{page}:\n s_cbranch_vccnz L_back{k_[0]}\n")
        page+=1
    txt=HEAD+"; @launch grid=(256,1,1) block=(256,1,1) lds=163840\n"
    txt+=DOC
    txt+=f'.amdgcn_target "amdgcn-amd-amdhsa--gfx950"\n.text\n.globl {NAME}_kernel\n.p2align 8\n.type {NAME}_kernel,@function\n{NAME}_kernel:\n'
    if probe:
        txt+=" s_memrealtime s[90:91]\n"
        if probe[0]==0: txt+=f" s_mem{'real' if probe[2]=='rt' else ''}time s[92:93]\n"
        txt+=" s_waitcnt lgkmcnt(0)\n"
        if cfg.get('gstart'):
            txt+=" s_load_dwordx2 s[34:35], s[0:1], 32\n s_not_b32 s36, s90\n v_mov_b32 v10, s36\n v_mov_b32 v11, 0\n s_waitcnt lgkmcnt(0)\n v_cmp_eq_u32 vcc, 0, v0\n s_and_saveexec_b64 s[36:37], vcc\n s_cbranch_execz L_gs\n global_atomic_umax v11, v10, s[34:35]\nL_gs:\n s_mov_b64 exec, s[36:37]\n"
    if stamp and cfg.get('stamp0'):
        txt+=" s_memtime s[90:91]\n s_memrealtime s[92:93]\n s_waitcnt lgkmcnt(0)\n s_mov_b32 s5, s90\n s_mov_b32 s6, s92\n"
    if cfg.get('pre_nop'):
        txt+=f" s_mov_b32 s64, {cfg['pre_nop']}\nL_pn:\n"+" s_nop 15\n"*16+" s_sub_u32 s64, s64, 1\n s_cmp_lg_u32 s64, 0\n s_cbranch_scc1 L_pn\n"
    PM=" s_memrealtime s[94:95]\n s_waitcnt lgkmcnt(0)\n"
    txt+=PRO(cfg)
    if probe and probe[1]==201: txt+=PM
    thr=cfg.get('thr')
    if thr:
        k1,KK,W=thr
        cut=[i for i,o in enumerate(out[:k0]) if o.kind=='dma'][k1-1]+1
        txt+=f"    s_getreg_b32 s{sPar}, hwreg(HW_REG_XCC_ID, 0, 1)\n"
        if cfg.get('thrinv'): txt+=f"    s_xor_b32 s{sPar}, s{sPar}, 1\n"
        txt+="".join(" "+t+"\n" for t in first[:cut])
        txt+=f"    s_cmp_eq_u32 s{sPar}, 0\n    s_cbranch_scc1 L_thr0\n"+"".join(" "+t+"\n" for t in first[cut:])+"L_thr0:\n"
    else:
        txt+="".join(" "+t+"\n" for t in first)
    if probe and probe[1]==202: txt+=PM
    if stamp: txt+=" s_mov_b32 s4, s2\n"+"".join(" "+x+"\n" for x in first_st)
    txt+=PRO2
    if cfg.get('direct'):
        txt+=f"""    ; O store offset after the row swaps: r*256 + 16*[0,2,1,3][g] + w*24576
    v_and_b32 v1, 15, v0
    v_bfe_u32 v2, v0, 4, 1
    v_lshrrev_b32 v3, 5, v0
    v_lshl_add_u32 v2, v2, 1, v3
    v_lshlrev_b32 v2, 4, v2
    v_lshl_add_u32 v2, v1, 8, v2
    v_add_u32 v{vOst}, s83, v2
"""
    if 0 in g.pres:
        for r in range(4): txt+=f"    v_accvgpr_write_b32 a{aSave+r}, v{vCI[0]+r}\n"
    txt+=f"    s_waitcnt vmcnt({nfirst})\n"
    if thr: txt+=f"    s_cmp_eq_u32 s{sPar}, 0\n    s_cbranch_scc0 L_thr1\n    s_waitcnt vmcnt({k1})\nL_thr1:\n"
    if probe and probe[1]==203: txt+=PM
    if warm:
        txt+="    ; touch the first line of 4 KB code pages (instruction-cache warm-up while the first loads are in flight)\n "+entry(0)+"\n"
        if probe and probe[1]==204: txt+=PM
    if thr:
        txt+=f"    s_cmp_eq_u32 s{sPar}, 0\n    s_cbranch_scc0 L_pre\n"
        nd=0
        for o in out[cut:k0]:
            if o.kind=='dma':
                if nd%2==0: txt+=f" s_waitcnt vmcnt({W})\n"
                nd+=1
            txt+=" "+o.text+"\n"
    txt+="L_pre:\n"+"".join(" "+t+"\n" for t,_ in premain)
    txt+="    s_branch L_main\n.p2align 12\nL_main:\n"
    txt+="".join(body)
    if stamp:
        txt+="".join(" "+x+"\n" for x in st2())
        txt+=" s_waitcnt vmcnt(0)\n"+"".join(" "+x+"\n" for x in st2())
        txt+=" v_mov_b32 v2, 0\n v_mov_b32 v3, 0\n"
        o_=1 if cfg.get('stamp0') else 0
        if o_: txt+=" v_writelane_b32 v2, s5, 0\n v_writelane_b32 v3, s6, 0\n"
        for i in range(ns[0]): txt+=f" v_writelane_b32 v2, s{SST[2*i]}, {i+o_}\n v_writelane_b32 v3, s{SST[2*i+1]}, {i+o_}\n"
        txt+=f""" s_load_dwordx2 s[92:93], s[0:1], 40
 s_lshl_b32 s90, s4, 2
 s_add_u32 s90, s90, s{sW}
 s_mul_i32 s90, s90, 768
 v_mbcnt_lo_u32_b32 v1, -1, 0
 v_mbcnt_hi_u32_b32 v1, -1, v1
 v_lshlrev_b32 v1, 2, v1
 v_add_u32 v1, s90, v1
 s_waitcnt lgkmcnt(0)
 global_store_dword v1, v2, s[92:93]
 global_store_dword v1, v3, s[92:93] offset:512
"""
    if probe:
        if probe[1]==99: txt+=f" s_mem{'real' if probe[2]=='rt' else ''}time s[94:95]\n s_waitcnt lgkmcnt(0)\n"
        if probe[1]==100: txt+=f" s_waitcnt vmcnt(0)\n s_mem{'real' if probe[2]=='rt' else ''}time s[94:95]\n s_waitcnt lgkmcnt(0)\n"
        if probe[1]<0: txt+=" s_mov_b32 s94, s92\n"
        if cfg.get('gstart'):
            txt+=" v_mov_b32 v11, 0\n global_load_dword v10, v11, s[34:35] sc0 sc1\n s_waitcnt vmcnt(0)\n v_readfirstlane_b32 s90, v10\n s_nop 3\n s_not_b32 s90, s90\n"
            if cfg['gstart']==2: txt+=" s_mov_b32 s92, s90\n"
        txt+=" s_sub_u32 s94, s94, s92\n"
        if probe[2]=='cyc': txt+=" s_lshr_b32 s94, s94, 4\n"
        else: txt+=f" s_lshl_b32 s94, s94, {cfg.get('amp',2)}\n"
        txt+=" s_add_u32 s94, s94, 10000\nL_spin:\n s_memrealtime s[92:93]\n s_waitcnt lgkmcnt(0)\n s_sub_u32 s92, s92, s90\n s_cmp_lt_u32 s92, s94\n s_cbranch_scc1 L_spin\n"
    if cfg.get('extra_mfma'):
        n,kind=cfg['extra_mfma']
        txt+=f" s_waitcnt vmcnt(0)\n s_mov_b32 s64, {n}\nL_xm:\n"
        L=[]
        if kind.startswith('m16'):
            for j in range(6):
                for i,f in enumerate(Gen.KORD):
                    kt,st=divmod(f,4); d=8*(j%2)+4*kt
                    L.append(f" v_mfma_f32_16x16x32_bf16 v[{d}:{d+3}], a[{160+4*f}:{163+4*f}], a[{192+16*(j%2)+4*st}:{195+16*(j%2)+4*st}], {'0' if i%4==0 else f'v[{d}:{d+3}]'}\n")
                for t in range(8):
                    d=64+32*j+4*t
                    L.append(f" v_mfma_f32_16x16x32_bf16 v[{d}:{d+3}], a[{192+4*t}:{195+4*t}], v[{24+4*(j%3)}:{27+4*(j%3)}], v[{d}:{d+3}]\n")
            if kind=='m16nop': L=[x+(" s_nop 0\n s_nop 0\n s_nop 0\n s_nop 0\n s_nop 0\n" if k%2 else "") for k,x in enumerate(L)]
            if kind=='m16v': L=[x+(f" v_exp_f32 v{40+k%8}, v{24+k%12}\n" if k%2 else f" v_fma_f32 v{48+k%8}, v{24+k%12}, s24, v{25+k%10}\n v_cvt_pk_bf16_f32 v{49+k%8}, v{24+k%12}, v{25+k%10}\n") for k,x in enumerate(L)]
        else:
            for j in range(3):
                for st in range(8):
                    L.append(f" v_mfma_f32_32x32x16_bf16 v[0:15], a[{160+4*st}:{163+4*st}], a[{192+4*((st+j)%8)}:{195+4*((st+j)%8)}], {'0' if st==0 else 'v[0:15]'}\n")
                for t in range(8):
                    d=64+64*j+16*(t%4)
                    L.append(f" v_mfma_f32_32x32x16_bf16 v[{d}:{d+15}], a[{192+4*t}:{195+4*t}], v[{24+4*((t//4+j)%3)}:{27+4*((t//4+j)%3)}], v[{d}:{d+15}]\n")
        txt+="".join(L)
        txt+=" s_sub_u32 s64, s64, 1\n s_cmp_lg_u32 s64, 0\n s_cbranch_scc1 L_xm\n s_nop 15\n"
    if cfg.get('extra_nop'):
        txt+=f" s_mov_b32 s64, {cfg['extra_nop']}\nL_xn:\n"+" s_nop 15\n"*16+" s_sub_u32 s64, s64, 1\n s_cmp_lg_u32 s64, 0\n s_cbranch_scc1 L_xn\n"
    txt+=" s_nop 1\n"+slow_path()
    txt+=f"""L_end:
    s_endpgm
.section .rodata,"a"
.p2align 6
.amdhsa_kernel {NAME}_kernel
  .amdhsa_next_free_vgpr 512
  .amdhsa_next_free_sgpr 102
  .amdhsa_accum_offset 256
  .amdhsa_group_segment_fixed_size 0
  .amdhsa_kernarg_size 48
  .amdhsa_user_sgpr_count 2
  .amdhsa_user_sgpr_kernarg_segment_ptr 1
  .amdhsa_system_sgpr_workgroup_id_x 1
.end_amdhsa_kernel
"""
    open(path,'w').write(txt)
    from collections import Counter
    print(path, "ops",len(out),"est",est, dict(Counter(o.kind for o in out)), "code",addr)
    if cfg.get('verbose'): print(' segs',[b-a for a,b in zip(marks,marks[1:]+[est])])
    if stamp and stamp is not True:
        mt=[]; estimate(out,None,mt); pts=[mt[g.msbb[n]] for n in stamp]+[est]
        print(' est stamp segs',[b-a for a,b in zip(pts,pts[1:])])
    from asm import asm
    asm(path)
    return out
```

```python
import sys
from gen import *
HEADS={
 'simple':dict(v=[(0,'012345')],
    plan=[(-1,('Q',0)),(-1,('K',0)),(-1,('Q',1)),(-1,('V',0)),(-1,('q',0)),(-1,('Q',2)),(-1,('q',1)),(-1,('Q',3)),(-1,('q',2)),(-1,('Q',4)),
          (-1,('q',3)),(-1,('Q',5)),(-1,('B',1)),(-1,('q',4)),(-1,('q',5))], nb=2, t=0, qfree=[0,0]),
 'h5':dict(v=[(0,'012'),(1,'012'),(2,'012'),(3,'0123'),(4,'01234'),(0,'345'),(1,'345'),(2,'345'),(3,'45'),(4,'5')],
    plan=[(-1,('Q',0)),(-1,('K',0)),(-1,('Q',1)),(-1,('V',0)),(-1,('q',0)),(-1,('Q',2)),
          (0,('q',1)),(0,('B',1,1)),(0,('B',2,1)),(1,('q',2)),(1,('B',3,1)),(2,('Q',3,1)),(5,('B',4,1)),(8,('Q',4,1)),(11,('q',3)),(11,('Q',5,1)),
          (16,('q',4)),(19,('q',5))], nb=5, t=13, qfree=[17,20]),
 'h6':dict(v=[(0,'01'),(1,'012'),(0,'2'),(2,'012'),(3,'012'),(4,'0123'),(5,'0123'),(0,'345'),(1,'345'),(2,'345'),(3,'345'),(4,'45'),(5,'45')],
    plan=[(-1,('Q',0)),(-1,('K',0)),(-1,('Q',1)),(-1,('V',0)),(-1,('q',0)),(-1,('B',1)),
          (0,('q',1)),(0,('Q',2,1)),(0,('B',2,1)),(1,('B',3,1)),(3,('q',2)),(3,('B',4,1)),(5,('Q',3,1)),(8,('B',5,1)),(11,('Q',4,1)),(14,('q',3)),(14,('Q',5,1)),
          (19,('q',4)),(21,('q',5))], nb=6, t=17, qfree=[20,22]),
}
def mk(head='h5', tail=4, D=5, ststep=40, TQ=5, TB=3, qlat=14, minD=3, groups=([6,7],[8,9],[10,11]), **kw):
    A=list(range(6)); B=list(range(6,12))
    H=HEADS[head]
    visits=[(g,[int(c) for c in t]) for g,t in H['v']]
    plan=list(H['plan'])
    g0=max(g for g,_ in visits)+1
    for g in range(g0,32-tail): visits.append((g,A if g<16 else B))
    if 'tailv' in kw:
        for g,t in kw['tailv']: visits.append((g,[6+int(c) for c in t]))
    elif tail:
        for k,grp in enumerate(groups):
            gs=list(range(32-tail,32))
            if kw.get('snake') and k%2: gs=gs[::-1]
            for g in gs:
                if visits[-1][0]==g: visits[-1]=(g,visits[-1][1]+list(grp))
                else: visits.append((g,list(grp)))
    first={}; last={}; n=0
    for g,ts in visits:
        first.setdefault(g,n); last[g]=n; n+=len(ts)
    t=H['t']; nb=H['nb']; nq=6; qfree=list(H['qfree'])
    n=int(t)
    while nb<32 or nq<12:
        if t>n or (kw.get('quiet') and kw['quiet'][0]<=n<kw['quiet'][1]): n+=1; continue
        if nq==12: TB=kw.get('TB2',TB)
        for n_,d_ in kw.get('minDlate',()):
            if n>=n_: minD=d_
        for n_,d_ in kw.get('Dlate',()):
            if n>=n_: D=d_
        if n>=96: TB=kw.get('TB3',TB)
        ahead=sum(1 for g in range(nb) if first[g]>n)
        resident=sum(1 for g in range(nb) if last[g]+9>n)
        canB = nb<32 and resident<8 and ahead<D
        canQ = nq<12 and qfree[nq%2]<=n
        if canB and (ahead<minD or not canQ):
            plan.append((n,('B',nb,int(TB*17/4)))); nb+=1; t=max(t,n)+TB
        elif canQ:
            plan.append((n,('Q',nq,int(TQ*17/4)))); t=max(t,n)+TQ
            if nq<10:
                plan.append((n+qlat,('q',nq))); qfree[nq%2]=n+qlat+1
            else: qfree[nq%2]=999
            nq+=1
        else: n+=1
    plan.append((6*15+1,('q',10))); plan.append((6*15+2,('q',11)))
    oimm={0:(2,None),1:(3,None),2:(4,None),3:(5,None)}
    ts=kw.get('tailst',[4]*6)
    for T in range(6,12): oimm[T]=({6:6,7:7,8:8,9:9,10:0,11:1}[T],ts[T-6])
    n=kw.get('st0',102)
    if kw.get('direct'):
        oimm={0:(None,kw.get('st01',8)),1:(None,kw.get('st01',8)),2:(2,None),3:(3,None),4:(4,None),5:(5,None)}
        for T in range(6,12): oimm[T]=(None,ts[T-6])
        n=6*18
        for T in range(2,6):
            plan.append((n,('s',T,ststep))); n+= (4*ststep+16)//17
    else:
      for T in range(6):
        if T>=4: plan.append((n-3,('o',T,T-2)))
        plan.append((n,('s',T,ststep)))
        n+= (4*ststep+16)//17
    for n in kw.get('cpf',()): plan.append((n,('c',0)))
    c=dict(visits=visits,plan=plan,oimm=oimm,verbose=True,ldsrate=512,dsmargin=8,merge=8,dmapair=False)
    c.update(kw)
    if c.get('showplan'): print(sorted([(n,u[0]+str(u[1])) for n,u in plan if n>=0]))
    return c
if False:
    for h in ('simple','h5','h6'):
        emit(mk(h,showplan=True),f'v4{h}.s')
HEADS['h7']=dict(v=[(0,'01'),(1,'012'),(0,'2'),(2,'012'),(3,'0123'),(4,'012345'),(3,'45'),(0,'345'),(1,'345'),(2,'345')],
    plan=[(-1,('Q',0)),(-1,('K',0)),(-1,('Q',1)),(-1,('K',1)),(-1,('q',0)),(-1,('V',0)),(-1,('V',1)),
          (0,('q',1)),(0,('Q',2,1)),(1,('B',2,1)),(3,('q',2)),(3,('B',3,1)),(4,('Q',3,1)),(6,('B',4,1)),(8,('Q',4,1)),(11,('q',3)),(11,('Q',5,1)),
          (15,('q',4)),(17,('q',5))], nb=5, t=14, qfree=[16,18])
HEADS['h8']=dict(v=[(0,'01'),(1,'01'),(2,'0123'),(1,'23'),(0,'23'),(3,'012345'),(2,'45'),(1,'45'),(0,'45')],
    plan=[(-1,('Q',0)),(-1,('K',0)),(-1,('Q',1)),(-1,('K',1)),(-1,('q',0)),(-1,('V',0)),(-1,('V',1)),
          (0,('q',1)),(0,('B',2,1)),(1,('Q',2,1)),(2,('Q',3,1)),(5,('q',2)),(5,('B',3,1)),(6,('q',3)),(6,('Q',4,1)),(8,('Q',5,1)),
          (14,('q',4)),(16,('q',5))], nb=4, t=11, qfree=[15,17])
HEADS['h7p']=dict(v=HEADS['h7']['v'],
    plan=[(-1,('Q',0)),(-1,('K',0)),(-1,('Q',1)),(-1,('K',1)),(-1,('q',0)),(-1,('V',0)),(-1,('V',1)),(-1,('p',0)),(-1,('Q',2)),
          (0,('q',1,6)),(0,('B',2,1)),(0,('p',1,8)),(2,('B',3,1)),(3,('q',2,6)),(3,('Q',3,1)),(6,('B',4,1)),(8,('Q',4,1)),(11,('q',3)),(11,('Q',5,1)),
          (15,('q',4)),(17,('q',5))], nb=5, t=14, qfree=[16,18])
HEADS['h5p']=dict(v=HEADS['h5']['v'],
    plan=[(-1,('Q',0)),(-1,('K',0)),(-1,('Q',1)),(-1,('V',0)),(-1,('q',0)),(-1,('Q',2)),(-1,('p',0)),
          (0,('q',1,6)),(0,('B',1,1)),(0,('p',1,8)),(1,('B',2,1)),(1,('q',2,6)),(2,('B',3,1)),(3,('Q',3,1)),(5,('B',4,1)),(8,('Q',4,1)),(11,('q',3)),(11,('Q',5,1)),
          (16,('q',4)),(19,('q',5))], nb=5, t=13, qfree=[17,20])
def hq(quiet_end=20, bsl=12, b3=6, b4=10, b5=14, b6=None):
    v=[(0,'01'),(1,'01'),(2,'0123'),(1,'23'),(0,'23'),(3,'0123'),(4,'0123'),(5,'0123'),(6,'012345'),(0,'45'),(1,'45'),(2,'45'),(3,'45'),(4,'45'),(5,'45')]
    e=quiet_end
    plan=[(-1,('Q',0)),(-1,('K',0)),(-1,('Q',1)),(-1,('K',1)),(-1,('q',0)),(-1,('V',0)),(-1,('V',1)),
          (0,('q',1)),(0,('B',2,1)),(1,('Q',2,1)),(2,('Q',3,1)),(5,('q',2)),(6,('q',3)),
          (b3,('B',3,bsl)),(b4,('B',4,bsl)),(b5,('B',5,bsl)),(e-2,('B',6,4)),(e,('Q',4,2)),(e+1,('Q',5,2)),(27,('q',4)),(28,('q',5))]
    return dict(v=v,plan=plan,nb=7,t=e+6,qfree=[28,29])
HEADS['q20']=hq(20); HEADS['q18']=hq(18,10,6,9,12); HEADS['q16']=hq(16,8,6,8,11)
def hr(e=20,bsl=12):
    v=[(0,'01'),(1,'01'),(2,'0123'),(1,'23'),(0,'23'),(3,'0123'),(4,'0123'),(5,'0123'),(6,'0123'),(7,'012345'),(0,'45'),(1,'45'),(2,'45'),(3,'45'),(4,'45'),(5,'45'),(6,'45')]
    plan=[(-1,('Q',0)),(-1,('K',0)),(-1,('Q',1)),(-1,('K',1)),(-1,('q',0)),(-1,('V',0)),(-1,('V',1)),
          (0,('q',1)),(0,('B',2,1)),(1,('Q',2,1)),(2,('Q',3,1)),(5,('q',2)),(6,('q',3)),
          (6,('B',3,bsl)),(10,('B',4,bsl)),(14,('B',5,bsl)),(18,('B',6,bsl)),(e,('B',7,4)),(e+1,('Q',4,4)),(e+3,('Q',5,4)),(31,('q',4)),(32,('q',5))]
    return dict(v=v,plan=plan,nb=8,t=e+8,qfree=[32,33])
HEADS['r22']=hr(22)
def hj(J, loads, t):
    v=[(0,'01'),(1,'01'),(2,'0123'),(1,'23'),(0,'23')]+[(g,'0123') for g in range(3,J)]+[(J,'012345')]+[(g,'45') for g in range(J)]
    n4=12+4*(J-3)+4
    plan=[(-1,('Q',0)),(-1,('K',0)),(-1,('Q',1)),(-1,('K',1)),(-1,('q',0)),(-1,('V',0)),(-1,('V',1)),(-1,('p',0)),
          (0,('q',1)),(0,('B',2,1)),(0,('p',1)),(1,('Q',2,1)),(2,('Q',3,1)),(5,('q',2)),(6,('q',3))]+loads+[(n4-1,('q',4)),(n4,('q',5))]
    return dict(v=v,plan=plan,nb=J+1,t=t,qfree=[n4,n4+1])
HEADS['j3a']=hj(3,[(6,('B',3,2)),(7,('Q',4,4)),(9,('Q',5,4))],13)
HEADS['j4a']=hj(4,[(6,('B',3,6)),(8,('B',4,6)),(10,('Q',4,8)),(13,('Q',5,8))],17)
HEADS['j4b']=hj(4,[(6,('B',3,6)),(9,('B',4,6)),(12,('Q',4,4)),(14,('Q',5,4))],18)
HEADS['j5a']=hj(5,[(6,('B',3,6)),(8,('B',4,6)),(10,('B',5,8)),(13,('Q',4,8)),(16,('Q',5,8))],20)
HEADS['j6a']=hj(6,[(6,('B',3,10)),(9,('B',4,10)),(12,('B',5,10)),(16,('B',6,4)),(18,('Q',4,3)),(20,('Q',5,3))],24)
HEADS['j5q']=hj(5,[(6,('B',3,10)),(9,('B',4,10)),(12,('B',5,8)),(15,('Q',4,4)),(17,('Q',5,4))],21)
def hx(J, loads, t):
    v=[(0,'01'),(1,'01'),(2,'01'),(3,'0123'),(2,'23'),(1,'23'),(0,'23')]+[(g,'0123') for g in range(4,J)]+[(J,'012345')]+[(g,'45') for g in range(J)]
    n4=16+4*(J-4)+4
    plan=[(-1,('Q',0)),(-1,('K',0)),(-1,('Q',1)),(-1,('K',1)),(-1,('q',0)),(-1,('V',0)),(-1,('V',1)),(-1,('p',0)),
          (0,('q',1)),(0,('B',2,1)),(0,('p',1)),(1,('B',3,1)),(2,('Q',2,1)),(3,('Q',3,1)),(7,('q',2)),(8,('q',3))]+loads+[(n4-1,('q',4)),(n4,('q',5))]
    return dict(v=v,plan=plan,nb=J+1,t=t,qfree=[n4,n4+1])
HEADS['x6']=hx(6,[(8,('B',4,8)),(12,('B',5,8)),(15,('B',6,6)),(17,('Q',4,6)),(19,('Q',5,6))],23)
HEADS['x5']=hx(5,[(8,('B',4,8)),(11,('B',5,8)),(14,('Q',4,6)),(16,('Q',5,6))],20)
HEADS['x4']=hx(4,[(8,('B',4,6)),(10,('Q',4,6)),(12,('Q',5,6))],16)
def hk(J, pre, loads, t):
    h=hj(J,loads,t); n4=12+4*(J-3)+4
    h['plan']=pre+[(5,('q',2)),(6,('q',3))]+loads+[(n4-1,('q',4)),(n4,('q',5))]
    return h
L4=[(6,('B',3,6)),(8,('B',4,6)),(10,('Q',4,8)),(13,('Q',5,8))]
P0=[(-1,('Q',0)),(-1,('K',0)),(-1,('Q',1)),(-1,('K',1)),(-1,('q',0)),(-1,('V',0)),(-1,('V',1)),(-1,('p',0))]
HEADS['k1']=hk(4,P0+[(0,('q',1)),(0,('B',2,1)),(0,('Q',2,1)),(0,('p',1)),(1,('Q',3,1))],L4,17)
HEADS['k2']=hk(4,P0+[(0,('q',1)),(0,('B',2,1)),(0,('p',1)),(0,('Q',2,1)),(1,('Q',3,1))],L4,17)
HEADS['k3']=hk(4,P0+[(-1,('K',2)),(0,('q',1)),(0,('V',2,1)),(0,('Q',2,1)),(0,('p',1)),(1,('Q',3,1))],L4,17)
HEADS['k4']=hk(4,P0+[(0,('q',1)),(0,('B',2,1)),(0,('Q',2,1)),(0,('p',1)),(1,('Q',3,1))],[(4,('B',3,4)),(8,('B',4,6)),(10,('Q',4,8)),(13,('Q',5,8))],17)
P1=[(-1,('Q',0)),(-1,('K',0)),(-1,('Q',1)),(-1,('q',0)),(-1,('K',1)),(-1,('V',0)),(-1,('V',1)),(-1,('p',0))]
HEADS['m1']=hk(4,P1+[(0,('q',1)),(0,('B',2,1)),(0,('p',1)),(1,('Q',2,1)),(2,('Q',3,1))],L4,17)
HEADS['j4c']=hj(4,[(6,('B',3,6)),(8,('B',4,12)),(11,('Q',4,10)),(14,('Q',5,8))],20)
HEADS['j4d']=hj(4,[(6,('B',3,6)),(8,('B',4,6)),(10,('Q',4,8)),(13,('Q',5,8))],21)
HEADS['j5b']=hj(5,[(6,('B',3,6)),(8,('B',4,12)),(11,('B',5,12)),(14,('Q',4,10)),(17,('Q',5,10))],22)
HEADS['j4e']=hj(4,[(6,('B',3,6)),(8,('B',4,6)),(10,('Q',4,8)),(13,('Q',5,8))],19)
HEADS['j4f']=hj(4,[(6,('B',3,6)),(8,('B',4,8)),(11,('Q',4,8)),(14,('Q',5,6))],21)
HEADS['j5c']=hj(5,[(6,('B',3,6)),(8,('B',4,10)),(11,('B',5,10)),(14,('Q',4,8)),(17,('Q',5,8))],25)
def hz(q2,q3,b3=6,t=21):
    h=hj(4,[],t)
    h['plan']=P0+[(0,('q',1)),(0,('B',2,1)),(0,('p',1)),(1,('Q',2,1)),(2,('Q',3,1)),q2,q3,(b3,('B',3,6)),(8,('B',4,6)),(10,('Q',4,8)),(13,('Q',5,8)),(19,('q',4)),(20,('q',5))]
    return h
HEADS['z1']=hz((6,('q',2)),(6,('q',3,4)))
HEADS['z2']=hz((6,('q',2)),(7,('q',3)),7)
HEADS['z3']=hz((5,('q',2,16)),(6,('q',3)))
```

```python
import sys, math, struct
from sched import *

NAME="standalone__gqa_softmax__near_ridge"
CSC = math.log2(math.e)/math.sqrt(128.0)
def f2u(x): return struct.unpack('<I',struct.pack('<f',x))[0]

vS=[0,8,16]; vP=[24,28,32,36]; vMCs=[63,41,42,43,44,45]; vBp=40
vKa=[46,47]; vVa=[48,49,50,51]; vQa=[52,53]; vDMA=54; vIdx=55
vOw=[56,57,52,53]; vOst=58; vOr=59
vL=[60,62]; vT0=61; vT1=None
vCI={0:56,1:60}; aSave=248
vO=lambda slot,t: 64+32*slot+4*t
aQ=lambda b: 16*b
aK=lambda f: 160+4*f
aV=lambda t: 192+4*t
aSum=lambda slot: 224+4*(slot//2)
aOneS=236; aOneD=[240,244]
sQ=8; sK=12; sV=16; sO=20
sC=24; sTH=25; sWL=26 ; sWQ=27; sWS=28; sOffKV=29; sOffQ=30; sOffO=31; sW=32; sMSK=7; sPar=33
sFlag=40
KRING=0; VRING=65536; STG=131072

class Gen:
    def __init__(s, cfg):
        s.cfg=cfg; s.P=Program(); s.nbb=0; s.bars=[]; s.vis=set()
        s.R=cfg.get('ring',8); s.LAG=cfg.get('lag',2); s.NB=s.LAG+1
        s.lastread={}; s.dmadone={}; s.occ={'K':[None]*s.R,'V':[None]*s.R}; s.slotof={}; s.dmarel={}
        s.ldpol=cfg.get('ldpol','nt'); s.stpol=cfg.get('stpol','nt')
        s.urgent=False; s.win=cfg.get('dmawin',12); s.np=0 if cfg.get('dmapair',True) else 1
    def add(s,*a,**k):
        o=Op(*a,**k); s.P.add(o)
        if o.kind=='mfma': s.nbb+=1
        return o
    def now(s): return s.nbb-1
    def barrier(s):
        g=s.now()
        b=s.add("s_barrier",'bar',reads=[],writes=['barorder'],release=g,deadline=g)
        s.bars.append(b); return b
    def visible(s,part,g):
        if (part,g) in s.vis: return
        b=s.bars[-1]
        for bb in reversed(s.bars):
            if bb.reads and bb.release>=s.dmarel[(part,g)]+s.cfg.get('vislat',200) and s.dmadone[(part,g)]<bb.idx: b=bb; break
        assert s.dmadone[(part,g)]<b.idx, ("dma after barrier",part,g)
        b.reads.append(f"L:{part}{g}"); b.writes.append(f"vis{part}{g}"); s.vis.add((part,g))
    def dl(s,rel): return (rel+(0 if s.urgent else s.win)) if rel>=0 else -1
    def dma_kv(s,part,g,rel,step):
        rd=[]
        occ=s.occ[part]
        free=[x for x in range(s.R) if occ[x] is None]
        if free: slot=free[0]
        else:
            b=s.bars[-1]
            c=[x for x in range(s.R) if s.allread[(part,occ[x])]==0 and s.lastread[(part,occ[x])]<b.idx]
            assert c, ("no free slot",part,g,occ)
            slot=min(c,key=lambda x:s.lastread[(part,occ[x])]); old=occ[slot]
            for bb in s.bars:
                if bb.idx>s.lastread[(part,old)]+s.cfg.get('freegap',60) and bb.reads: b=bb; break
            b.reads.append(f"L:rd{part}{old}"); b.writes.append(f"free{part}{old}"); rd=[f"free{part}{old}"]
        occ[slot]=g; s.slotof[(part,g)]=slot
        base=(KRING if part=='K' else VRING)+slot*8192
        s.add(f"s_add_u32 m0, s{sWL}, {base}",'salu',writes=['m0'],margin=1)
        if s.curoff!=g:
            if s.curoff is not None and s.nbb>20 and abs(g-s.curoff)<=3: s.add(f"s_addk_i32 s{sOffKV}, {(g-s.curoff)*8192}",'salu',reads=[f"s{sOffKV}"],writes=[f"s{sOffKV}"],margin=1)
            else: s.add(f"s_mov_b32 s{sOffKV}, {g*8192}",'salu',writes=[f"s{sOffKV}"],margin=1)
            s.curoff=g
        srd=sK if part=='K' else sV
        for i in range(2):
            o=s.add(f"buffer_load_dwordx4 v{vDMA}, s[{srd}:{srd+3}], s{sOffKV} offen offset:{2048*i} {s.ldpol} lds",'dma',
                  reads=['m0',f"s{sOffKV}"]+rd,writes=[f"L:{part}{g}",'O:vm'],release=rel+i*step*s.np,deadline=s.dl(rel+i*step*s.np),tag=('pair' if i and not s.np else None))
        s.dmadone[(part,g)]=o.idx; s.dmarel[(part,g)]=o.deadline
    def dma_q(s,T,rel,step):
        buf=T%2; it,j=divmod(T,6)
        assert s.stgown[buf] is None, ("stg busy",T,s.stgown); s.stgown[buf]=('Q',T)
        k=0
        for half in range(2):
            if half: s.add(f"s_addk_i32 m0, 896",'salu',reads=['m0'],writes=['m0'],margin=1)
            else: s.add(f"s_add_u32 m0, s{sWS}, {STG+buf*4096}",'salu',writes=['m0'],margin=1)
            if half==0:
                if j>0 and T>=3 and s.lastQ==T-1: s.add(f"s_addk_i32 s{sOffQ}, 4096",'salu',reads=[f"s{sOffQ}"],writes=[f"s{sOffQ}"],margin=1)
                else: s.add(f"s_add_u32 s{sOffQ}, s{sWQ}, {(it*768+16*j)*256}",'salu',writes=[f"s{sOffQ}"],margin=1)
                s.lastQ=T
            for oc in range(2):
                s.add(f"buffer_load_dwordx4 v{vDMA}, s[{sQ}:{sQ+3}], s{sOffQ} offen offset:{2048*oc+128*half} {s.ldpol} lds",'dma',
                      reads=['m0',f"s{sOffQ}",f"L:stg{buf}0",f"L:stg{buf}1"],writes=[f"L:Q{T}",'O:vm'],release=rel+(k if s.np else 2*half)*step,deadline=s.dl(rel+(k if s.np else 2*half)*step),tag=('pair' if oc and not s.np else None))
                k+=1
    def read_q(s,T,rel):
        buf=T%2; qb=s.qbuf[T]; s.qread.add(T)
        assert all(s.seen[x]==16 for x in range(T) if s.qbuf[x]==qb), ("qbuf busy",T)
        assert s.stgown[buf]==('Q',T); s.stgown[buf]=None
        if T in s.pres:
            raw=vO(5,0)+16*T; tmp=vO(4,0)
            for st in range(4):
                s.add(f"ds_read_b128 {rng('v',raw+4*st,4)}, v{vQa[st%2]} offset:{buf*4096+(st//2)*1024}",'dsr',
                      reads=[f"L:Q{T}",f"v{vQa[st%2]}"]+(['O:vm'] if st==0 else []),writes=R('v',raw+4*st,4)+[f"L:stg{buf}{st//2}",f"O:q{T}"],release=rel,deadline=rel)
            return
        s._read_q_plain(T,rel)
    def prescale(s,T,rel,off=0):
        if T not in s.pres: return
        qb=s.qbuf[T]
        if True:
            raw=vO(5,0)+16*T; tmp=vO(4,0)
            G = rel+off
            kw=dict(release=G,deadline=G)
            for r in range(16):
                x=raw+r; a=tmp+2*r
                s.add(f"v_lshlrev_b32 v{a}, 16, v{x}",'valu',reads=[f"v{x}"],writes=[f"v{a}"],**kw)
                s.add(f"v_and_b32 v{a+1}, s{sMSK}, v{x}",'valu',reads=[f"v{x}"],writes=[f"v{a+1}"],**kw)
            for r in range(16):
                x=raw+r; a=tmp+2*r
                s.add(f"v_pk_mul_f32 v[{a}:{a+1}], v[{a}:{a+1}], s[{sC}:{sC+1}] op_sel_hi:[1,0]",'pk',reads=[f"v{a}",f"v{a+1}"],writes=[f"v{a}",f"v{a+1}"],**kw)
                s.add(f"v_cvt_pk_bf16_f32 v{x}, v{a}, v{a+1}",'valu',reads=[f"v{a}",f"v{a+1}"],writes=[f"v{x}"],**kw)
                s.add(f"v_accvgpr_write_b32 a{aQ(qb)+r}, v{x}",'valu',reads=[f"v{x}"],writes=[f"a{aQ(qb)+r}"],**kw)
            return
    def _read_q_plain(s,T,rel):
        buf=T%2; qb=s.qbuf[T]
        for st in range(4):
            s.add(f"ds_read_b128 {rng('a',aQ(qb)+4*st,4)}, v{vQa[st%2]} offset:{buf*4096+(st//2)*1024}",'dsr',
                  reads=[f"L:Q{T}",f"v{vQa[st%2]}"]+(['O:vm'] if st==0 else []),writes=R('a',aQ(qb)+4*st,4)+[f"L:stg{buf}{st//2}",f"O:q{T}"],release=rel,margin=8,deadline=s.dl(rel),hole=True)
    def read_k(s,g,order):
        s.visible('K',g); slot=s.slotof[('K',g)]
        for f in order:
            kt,st=divmod(f,4)
            o=s.add(f"ds_read_b128 {rng('a',aK(f),4)}, v{vKa[st%2]} offset:{slot*8192+kt*4096+(st//2)*1024}",'dsr',
                  reads=[f"visK{g}"],writes=R('a',aK(f),4)+[f"L:rdK{g}"],margin=s.cfg.get('dsmargin',10))
        s.lastread[('K',g)]=o.idx; s.allread[('K',g)]-=1
    def read_v(s,g):
        s.visible('V',g); slot=s.slotof[('V',g)]
        for t in range(8):
            for kt in range(2):
                o=s.add(f"ds_read_b64_tr_b16 {rng('a',aV(t)+2*kt,2)}, v{vVa[t%4]} offset:{slot*8192+kt*4096+(t//4)*1024}",'dsr',
                      reads=[f"visV{g}"],writes=R('a',aV(t)+2*kt,2)+[f"L:rdV{g}"],margin=s.cfg.get('dsmargin',10))
        s.lastread[('V',g)]=o.idx; s.allread[('V',g)]-=1
    KORD=[0,1,2,3,7,6,5,4]
    def qk(s,n,T):
        b=n%s.NB; qb=s.qbuf[T]
        for i,f in enumerate(s.KORD):
            kt,st=divmod(f,4)
            d=vS[b]+4*kt; first=(i%4==0)
            cr = R('v',d,4); c=rng('v',d,4)
            if first:
                if T in s.pres and s.seen[T]>0: cr=R('v',vCI[T],4); c=rng('v',vCI[T],4)
                else: cr=[]; c="0"
            s.add(f"v_mfma_f32_16x16x32_bf16 {rng('v',d,4)}, {rng('a',aK(f),4)}, {rng('a',aQ(qb)+4*st,4)}, {c}",'mfma',
                  reads=R('a',aK(f),4)+R('a',aQ(qb)+4*st,4)+cr,writes=R('v',d,4),cread=cr)
        if T==0 and T in s.pres and s.seen[T]==15:
            for r in range(4): s.add(f"v_accvgpr_read_b32 v{vCI[0]+r}, a{aSave+r}",'valu',reads=[],writes=[f"v{vCI[0]+r}"])
    def pv(s,n,T,first):
        slot=s.slot[T]; p=vP[s.pbuf[n]]
        d=aSum(slot); mode=s.summode[n]
        if (T//2) not in s.zeroed:
            s.zeroed.add(T//2)
            for r in range(4): s.add(f"v_accvgpr_write_b32 a{d+r}, 0",'valu',writes=[f"a{d+r}"],margin=2)
        if mode=='single':
            a=aOneD[slot%2]
            s.add(f"v_mfma_f32_16x16x32_bf16 {rng('a',d,4)}, {rng('a',a,4)}, {rng('v',p,4)}, {rng('a',d,4)}",'mfma',
                  reads=R('a',a,4)+R('v',p,4)+R('a',d,4),writes=R('a',d,4),cread=R('a',d,4),tag='sum')
        elif mode=='second':
            s.add(f"v_smfmac_f32_16x16x64_bf16 {rng('a',d,4)}, {rng('a',aOneS,4)}, {rng('v',p-4,8)}, v{vIdx}",'mfma',
                  reads=R('a',aOneS,4)+R('v',p-4,8)+R('a',d,4),writes=R('a',d,4),cread=R('a',d,4),cost=12,tag='sum')
        if s.pending_epi is not None and mode=='second':
            X=s.pending_epi; s.pending_epi=None; s.finish(X,5)
        for t in range(8):
            d=vO(slot,t); c="0" if first else rng('v',d,4)
            s.add(f"v_mfma_f32_16x16x32_bf16 {rng('v',d,4)}, {rng('a',aV(t),4)}, {rng('v',p,4)}, {c}",'mfma',
                  reads=R('a',aV(t),4)+R('v',p,4)+([] if first else R('v',d,4)),writes=R('v',d,4),cread=([] if first else R('v',d,4)))
    def finish(s,T,off):
        e=s.epilogue(T,off)
        if T in s.imm:
            s.read_o(T,s.imm[T][0],e)
            if s.imm[T][1] is not None: s.store_o(T,e+s.cfg.get('stlag',10),s.imm[T][1])
    def sm(s,n,T,first):
        b=n%s.NB; S=vS[b]; p=vP[s.pbuf[n]]; mc=vMCs[s.slot[T]]; zero=s.cfg.get('zero'); pre=T in s.pres
        if pre: mc=vCI[T]
        if first and not zero:
            t0,t1=(mc,None) if s.cfg.get('bperm',True) else (vT0,vT1)
            V=lambda txt,rd,wr,k='valu': s.add(txt,k,reads=[f"v{x}" for x in rd],writes=[f"v{x}" for x in wr],margin=1)
            V(f"v_max3_f32 v{t0}, v{S}, v{S+1}, v{S+2}",[S,S+1,S+2],[t0])
            V(f"v_max_f32 v{t0}, v{t0}, v{S+3}",[t0,S+3],[t0])
            if s.cfg.get('bperm',True):
                s.add(f"ds_bpermute_b32 v{t0}, v{vBp}, v{t0}",'dsr',reads=[f"v{t0}"],writes=[f"v{t0}"],margin=6)
            else:
                V(f"v_mov_b32 v{t1}, v{t0}",[t0],[t1])
                V(f"v_permlane16_swap_b32 v{t0}, v{t1}",[t0,t1],[t0,t1],'perm')
                V(f"v_max_f32 v{t0}, v{t0}, v{t1}",[t0,t1],[t0])
                V(f"v_mov_b32 v{t1}, v{t0}",[t0],[t1])
                V(f"v_permlane32_swap_b32 v{t0}, v{t1}",[t0,t1],[t0,t1],'perm')
                V(f"v_max_f32 v{t0}, v{t0}, v{t1}",[t0,t1],[t0])
            if pre:
                V(f"v_xor_b32 v{mc}, 0x80000000, v{t0}",[t0],[mc])
                for r in range(1,4): V(f"v_mov_b32 v{mc+r}, v{mc}",[mc],[mc+r])
            else: V(f"v_mul_f32 v{mc}, 0x{f2u(-CSC):08x}, v{t0}",[t0],[mc])
        sp=s.cfg.get('smsp',3)
        for k in range(4):
            for i in (2*k,2*k+1):
                if pre:
                    if first: s.add(f"v_add_f32 v{S+i}, v{S+i}, v{mc}",'valu',reads=[f"v{S+i}",f"v{mc}"],writes=[f"v{S+i}"],margin=1)
                elif T in s.cfg.get('fake',()) and not first: pass
                elif zero: s.add(f"v_mul_f32 v{S+i}, s{sC}, v{S+i}",'valu',reads=[f"v{S+i}"],writes=[f"v{S+i}"],margin=1)
                else: s.add(f"v_fma_f32 v{S+i}, v{S+i}, s{sC}, v{mc}",'valu',reads=[f"v{S+i}",f"v{mc}"],writes=[f"v{S+i}"],margin=1)
            for i in (2*k,2*k+1):
                s.add(f"v_exp_f32 v{S+i}, v{S+i}",'trans',reads=[f"v{S+i}"],writes=[f"v{S+i}"],margin=1+(i%2==0))
            s.add(f"v_cvt_pk_bf16_f32 v{p+k}, v{S+2*k}, v{S+2*k+1}",'valu',reads=[f"v{S+2*k}",f"v{S+2*k+1}"],writes=[f"v{p+k}"],margin=1+sp*(3-k))
    def epilogue(s,T,off=0):
        slot=s.slot[T]; g0=s.now()+off; l=vL[T%2]; buf=s.obuf[T]; tmp=(vT0 if s.cfg.get('bperm',True) else l+1); a=aSum(slot)+2*(slot%2)
        direct=s.cfg.get('direct')
        if not direct:
            assert s.stgown[buf] is None, ("stg busy O",T,s.stgown); s.stgown[buf]=('O',T)
        if not s.owdone and not direct:
            assert len(s.qread)==12
            s.owdone=True
            s.add(f"v_xor_b32 v{vOw[2]}, 64, v{vOw[0]}",'valu',reads=[f"v{vOw[0]}"],writes=[f"v{vOw[2]}"])
            s.add(f"v_xor_b32 v{vOw[3]}, 64, v{vOw[1]}",'valu',reads=[f"v{vOw[1]}"],writes=[f"v{vOw[3]}"])
        s.add(f"v_accvgpr_read_b32 v{l}, a{a}",'valu',reads=[f"a{a}"],writes=[f"v{l}"],deadline=g0-1)
        s.add(f"v_accvgpr_read_b32 v{tmp}, a{a+1}",'valu',reads=[f"a{a+1}"],writes=[f"v{tmp}"],deadline=g0-1)
        s.add(f"v_add_f32 v{l}, v{l}, v{tmp}",'valu',reads=[f"v{l}",f"v{tmp}"],writes=[f"v{l}"],deadline=g0)
        s.add(f"v_cmp_ngt_f32_e64 s[{sFlag+2*T}:{sFlag+2*T+1}], s{sTH}, v{l}",'valu',reads=[f"v{l}"],writes=[f"s{sFlag+2*T}"],deadline=g0)
        s.add(f"v_rcp_f32 v{l}, v{l}",'trans',reads=[f"v{l}"],writes=[f"v{l}"],deadline=g0+1)
        G=g0+3
        def pks(ts):
          for t in ts:
            o=vO(slot,t)
            for i in (0,2):
                s.add(f"v_pk_mul_f32 v[{o+i}:{o+i+1}], v[{o+i}:{o+i+1}], v[{l}:{l+1}] op_sel_hi:[1,0]",'pk',reads=[f"v{o+i}",f"v{o+i+1}",f"v{l}"],writes=[f"v{o+i}",f"v{o+i+1}"],release=G,deadline=G)
        pks(range(8) if direct else range(4))
        W=s.cfg.get('epiw',12)
        if direct:
            for m in range(4):
                o=vO(slot,2*m); d=G+(W*m)//4
                for i in range(4):
                    s.add(f"v_cvt_pk_bf16_f32 v{o+i}, v{o+2*i}, v{o+2*i+1}",'valu',reads=[f"v{o+2*i}",f"v{o+2*i+1}"],writes=[f"v{o+i}"],deadline=d+i//2)
                for i in range(2):
                    s.add(f"v_permlane16_swap_b32 v{o+i}, v{o+i+2}",'perm',reads=[f"v{o+i}",f"v{o+i+2}"],writes=[f"v{o+i}",f"v{o+i+2}"],deadline=d+2+i)
            return G+4
        if s.cfg.get('w2',True) and T<s.cfg.get('w2last',11):
            pks(range(4,8))
            for t in range(4):
                d=G+(W*t)//4
                for u in (t,t+4):
                    o=vO(slot,u)
                    for i in range(2):
                        s.add(f"v_cvt_pk_bf16_f32 v{o+i}, v{o+2*i}, v{o+2*i+1}",'valu',reads=[f"v{o+2*i}",f"v{o+2*i+1}"],writes=[f"v{o+i}"],deadline=d+(u>=4))
                o=vO(slot,t); p=vO(slot,t+4)
                s.add(f"ds_write2st64_b64 v{vOw[t]}, v[{o}:{o+1}], v[{p}:{p+1}] offset0:{buf*8} offset1:{buf*8+2}",'dsw',reads=[f"v{o}",f"v{o+1}",f"v{p}",f"v{p+1}",f"v{vOw[t]}"],writes=[f"L:stg{buf}0",f"L:stg{buf}1"],deadline=d+2,cost=20)
            return G+W+1
        for t in range(8):
            if t==4: pks(range(4,8))
            o=vO(slot,t); d=G+(W*t)//8
            for i in range(2):
                s.add(f"v_cvt_pk_bf16_f32 v{o+i}, v{o+2*i}, v{o+2*i+1}",'valu',reads=[f"v{o+2*i}",f"v{o+2*i+1}"],writes=[f"v{o+i}"],deadline=d)
            s.add(f"ds_write_b64 v{vOw[t%4]}, v[{o}:{o+1}] offset:{buf*4096+(t//4)*1024}",'dsw',reads=[f"v{o}",f"v{o+1}",f"v{vOw[t%4]}"],writes=[f"L:stg{buf}{t//4}"],deadline=d+s.cfg.get('dswd',1))
        return G+W+1+s.cfg.get('dswd',1)
    def read_o(s,T,park,rel):
        buf=s.obuf[T]; s.park[T]=park
        if s.cfg.get('direct'):
            if park is None: return
            assert all(s.seen[x] in (0,16) and not (s.seen[x]==0 and x in s.qread) for x in range(12) if s.qbuf[x]==park), ("park busy",T,park)
            assert s.parkown.get(park) is None; s.parkown[park]=[T,4]
            W=s.cfg.get('epiw',12)
            for m in range(4):
                o=vO(s.slot[T],2*m)
                for i in range(4):
                    s.add(f"v_accvgpr_write_b32 a{aQ(park)+4*m+i}, v{o+i}",'valu',reads=[f"v{o+i}"],writes=[f"a{aQ(park)+4*m+i}"],deadline=rel+(W*m)//4+i//2+s.cfg.get('accslack',0))
            return
        assert all(s.seen[x] in (0,16) and not (s.seen[x]==0 and x in s.qread) for x in range(12) if s.qbuf[x]==park), ("park busy",T,park)
        assert s.stgown[buf]==('O',T); s.stgown[buf]=None
        assert s.parkown.get(park) is None, ("park has unstored data",T,park); s.parkown[park]=[T,4]
        for j in (0,2,1,3):
            kw=dict(release=rel,deadline=rel+4,hole=True)
            if j<2:
                s.add(f"ds_read_b128 {rng('a',aQ(park)+4*j,4)}, v{vOr} offset:{buf*4096+1024*j}",'dsr',
                      reads=[f"v{vOr}"],writes=R('a',aQ(park)+4*j,4)+[f"L:stg{buf}{j%2}"],**kw)
            else:
                for h in range(2):
                    s.add(f"ds_read_b64 {rng('a',aQ(park)+4*j+2*h,2)}, v{vOr} offset:{buf*4096+1024*j+8*(1-h)}",'dsr',
                          reads=[f"v{vOr}"],writes=R('a',aQ(park)+4*j+2*h,2)+[f"L:stg{buf}{j%2}"],**kw)
    def store_o(s,T,rel,step,js=(0,2,1,3)):
        it,j=divmod(T,6); park=s.park[T]
        if T>=6: rel=max(rel,s.laststore+step)
        s.laststore=rel+(len(js)-1)*step
        if s.curO!=T:
            if j>0 and s.curO==T-1: s.add(f"s_addk_i32 s{sOffO}, 4096",'salu',reads=[f"s{sOffO}"],writes=[f"s{sOffO}"],margin=1)
            else: s.add(f"s_mov_b32 s{sOffO}, {(it*768+16*j)*256}",'salu',writes=[f"s{sOffO}"],margin=1)
            s.curO=T
        s.nst+=len(js)
        if park is not None:
            s.parkown[park][1]-=len(js)
            if s.parkown[park][1]==0: s.parkown[park]=None
        if s.cfg.get('direct'):
            pol=s.stpol if isinstance(s.stpol,str) else s.stpol[T]
            for k,m in enumerate(js):
                p,r=('a',aQ(park)+4*m) if park is not None else ('v',vO(s.slot[T],2*m))
                s.add(f"buffer_store_dwordx4 {rng(p,r,4)}, v{vOst}, s[{sO}:{sO+3}], s{sOffO} offen offset:{64*m} {pol}",'gst',
                      reads=R(p,r,4)+[f"s{sOffO}",f"v{vOst}"],writes=['O:st'],release=rel+k*step,deadline=rel+k*step+2)
            return
        for k,j in enumerate(js):
            s.add(f"buffer_store_dwordx4 {rng('a',aQ(park)+4*j,4)}, v{vOst}, s[{sO}:{sO+3}], s{sOffO} offen offset:{(j//2)*2048+(j%2)*128} {s.stpol if isinstance(s.stpol,str) else s.stpol[T]}",'gst',
                  reads=R('a',aQ(park)+4*j,4)+[f"s{sOffO}",f"v{vOst}"],writes=['O:st'],release=rel+k*step,deadline=rel+k*step+2)
    def build(s):
        cfg=s.cfg; LAG=s.LAG
        visits=cfg['visits']
        s.slot={T:T%6 for T in range(12)}
        s.qbuf=cfg.get('qbuf',{**{T:T for T in range(10)},10:0,11:1})
        s.obuf={T:T%2 for T in range(12)}; s.park={}; s.curO=None
        s.pres=set(cfg.get('pres',())); s.imm=cfg.get('oimm',{}); s.zeroed=set(); s.pending_epi=None; s.owdone=False
        s.allread=defaultdict(int)
        for g,ts in visits:
            s.allread[('K',g)]+=1; s.allread[('V',g)]+=1
        ms=[]
        for vi,(g,ts) in enumerate(visits):
            for k,T in enumerate(ts): ms.append((vi,g,T,k==0,k==len(ts)-1))
        cnt=defaultdict(int)
        for m in ms: cnt[m[2]]+=1
        assert all(cnt[T]==16 for T in range(12)) and len({(m[1],m[2]) for m in ms})==192
        assert all(m[1]//16==m[2]//6 for m in ms)
        s.summode={}; s.pbuf={}; pb=0; n=0
        while n<len(ms):
            T=ms[n][2]
            if cfg.get('smf',True) and T%2==0 and n+1<len(ms)-(2 if cfg.get('lastsingle',True) else 0) and ms[n+1][2]==T+1:
                if pb%2: pb+=1
                s.summode[n]='first'; s.summode[n+1]='second'; s.pbuf[n]=pb%4; s.pbuf[n+1]=(pb+1)%4; pb+=2; n+=2
            else:
                s.summode[n]='single'; s.pbuf[n]=pb%4; pb+=1; n+=1
        plan=defaultdict(list)
        for n,u in cfg['plan']: plan[n].append(u)
        s.curoff=None
        def doplan(n):
            rel=s.now(); us=plan.get(n,[])
            nd=sum({'B':4,'K':2,'V':2,'Q':4}.get(u[0],0) for u in us)
            step = 0 if n<0 else max(1,cfg.get('span',16)//max(nd,1))
            for u in us:
                st = u[2] if len(u)>2 and u[0] in 'BKVQ' else step
                s.urgent = u[0] in 'BKVQ' and st<=1 and cfg.get('urgent',True)
                if s.urgent and rel<0: st=0
                if u[0]=='B':
                    s.dma_kv('K',u[1],rel,st); s.dma_kv('V',u[1],rel+2*st,st); rel+=4*st
                elif u[0] in 'KV':
                    s.dma_kv(u[0],u[1],rel,st); rel+=2*st
                elif u[0]=='Q':
                    s.dma_q(u[1],rel,st); rel+=4*st
                elif u[0]=='q': s.read_q(u[1],s.now()+(u[2] if len(u)>2 else 0)); rel=max(rel,s.now()+(u[2] if len(u)>2 else 0))
                elif u[0]=='p': s.prescale(u[1],s.now(),u[2] if len(u)>2 else 0)
                elif u[0]=='o': s.read_o(u[1],u[2],s.now())
                elif u[0]=='s': s.store_o(u[1],s.now(),u[2],*u[3:])
                elif u[0]=='bar': s.barrier()
                elif u[0]=='c': s.add(f"buffer_load_dword a252, v{vDMA}, s[36:39], s35 offen",'gld',writes=['O:vm'],release=s.now(),deadline=s.now()+12)
        s.msbb={}; seen=defaultdict(int); seenpv=defaultdict(int); s.seen=defaultdict(int); s.qread=set(); s.stgown=[None,None]; s.parkown={}; s.nst=0; s.laststore=-99; s.lastQ=None
        barset=cfg.get('barvisits')
        doplan(-1)
        s.barrier(); s.read_k(ms[0][1],s.KORD)
        N=len(ms)
        def lag(n):
            L=LAG
            for a,b,l in cfg.get('lags',()):
                if a<=n<b: L=l
            return L
        m=0; vread=set()
        def needv(x):
            if x<N and ms[x][0] not in vread:
                vread.add(ms[x][0]); s.read_v(ms[x][1])
        for n in range(N+1):
            if n<N:
                vi,g,T,fi,la=ms[n]
                if la and n+1<N and (barset is None or vi+1 in barset) and n not in cfg.get('nobar',()) and n<=cfg.get('lastbar',999): s.barrier()
                doplan(n)
                assert T in s.qread, ('Q not loaded',T)
                s.msbb[n]=s.nbb
                s.qk(n,T); s.seen[T]+=1
            def pvs(top):
                nonlocal m
                while m<=top:
                    needv(m)
                    T1=ms[m][2]
                    s.pv(m,T1,seenpv[T1]==0); seenpv[T1]+=1
                    if seenpv[T1]==16:
                        if s.summode[m]=='first': s.pending_epi=T1
                        else: s.finish(T1,0)
                    m+=1
            pvs(n-max(1,lag(n)) if n<N else N-1)
            if n<N:
                s.sm(n,T,seen[T]==0); seen[T]+=1
                if la and n+1<N: s.read_k(ms[n+1][1],s.KORD)
                if lag(n)==0: pvs(n)
                if (m>0 or n+1-lag(n+1)>=0) and (m<=n or not (n+1<N and ms[n+1][3])): needv(m)
        assert s.nst==48
        s.P.ops=[o for o in s.P.ops if not (o.kind=='bar' and not o.reads)]
        for i,o in enumerate(s.P.ops): o.idx=i
        out=s.P.schedule(ldsrate=cfg.get('ldsrate',1024),ldsburst=cfg.get('ldsburst',1024),dswd=cfg.get('dswd',1),dswsp=cfg.get('dswsp',1),holeburst=cfg.get('holeburst',12),wdma=cfg.get('wdma',-1),dmaw=cfg.get('dmaw',-1))
        out=insert_waits(out,cfg.get('merge',9))
        verify_waits(out)
        check_hazards(out)
        return out

def PRO(cfg):
  t=f"""
    s_cmp_ge_u32 s2, 256
    s_cbranch_scc1 L_end
    s_load_dwordx4 s[64:67], s[0:1], 0
    s_load_dwordx4 s[68:71], s[0:1], 16
    v_lshrrev_b32 v1, 6, v0
    s_lshr_b32 s73, s2, 3
    s_getpc_b64 s[86:87]
L_pc:
    v_and_b32 v2, 7, v0
    v_lshl_add_u32 v2, v2, 2, v1
    v_lshlrev_b32 v2, 12, v2
    s_lshl_b32 s88, s73, 7
    v_add_u32 v2, s88, v2
    v_min_u32 v2, L_end-L_main+4096, v2
    s_and_b32 s86, s86, 0xfffff000
    v_readfirstlane_b32 s{sW}, v1
    v_and_b32 v0, 63, v0
    global_load_dword v4, v2, s[86:87]
    s_and_b32 s72, s2, 7
    s_lshr_b32 s74, s73, 1
    s_and_b32 s75, s73, 1
    s_lshl_b32 s72, s72, 4
    s_add_u32 s72, s72, s74
    s_lshl_b32 s76, s72, 18
    s_mul_i32 s77, s72, {2*768*256}
    s_mul_i32 s78, s75, {384*256}
    s_add_u32 s77, s77, s78
    s_and_b32 s79, s{sW}, 1
    s_lshr_b32 s80, s{sW}, 1
    s_lshl_b32 s81, s79, 10
    s_lshl_b32 s82, s80, 12
    s_add_u32 s{sWL}, s81, s82       ; LDS: (w&1)*1024 + (w>>1)*4096
    s_lshl_b32 s81, s79, 7
    s_add_u32 s81, s81, s82          ; global: (w&1)*128 + (w>>1)*4096
    s_mul_i32 s83, s{sW}, 24576
    s_sub_u32 s{sWQ}, s83, s81
    s_lshl_b32 s{sWS}, s{sW}, 13
    ; DMA voffset: (i>>3)*256 + ((i&7)^((i>>3)&6))*16 + wave part
    v_lshrrev_b32 v1, 3, v0
    v_and_b32 v2, 6, v1
    v_and_b32 v3, 7, v0
    v_xor_b32 v2, v2, v3
    v_lshlrev_b32 v2, 4, v2
    v_lshl_add_u32 v2, v1, 8, v2
    v_add_u32 v{vDMA}, s81, v2
    s_mov_b32 s{sQ+2}, {1152*256}
    s_mov_b32 s{sQ+3}, 0x20000
    s_mov_b32 s{sK+2}, 0x40000
    s_mov_b32 s{sK+3}, 0x20000
    s_mov_b32 s{sV+2}, 0x40000
    s_mov_b32 s{sV+3}, 0x20000
    s_mov_b32 s{sO+2}, {1152*256}
    s_mov_b32 s{sO+3}, 0x20000
    s_getreg_b32 s{sPar}, hwreg(HW_REG_XCC_ID, 0, 1)   ; speed only: dies with an even id start with fewer loads in flight
    s_waitcnt lgkmcnt(0)
    s_add_u32 s{sQ}, s64, s77
    s_addc_u32 s{sQ+1}, s65, 0
    s_add_u32 s{sK}, s66, s76
    s_addc_u32 s{sK+1}, s67, 0
"""
  if cfg.get('adj'):
    t=t.replace("    s_add_u32 s72, s72, s74          ; pair index 0..127\n","    s_lshr_b32 s72, s2, 1\n    s_and_b32 s75, s2, 1\n")
  return t
PRO2 = f"""
    s_add_u32 s{sV}, s68, s76
    s_addc_u32 s{sV+1}, s69, 0
    s_add_u32 s{sO}, s70, s77
    s_addc_u32 s{sO+1}, s71, 0
    s_mov_b32 s{sC}, 0x{f2u(CSC):08x}
    s_mov_b32 s{sTH}, 0x5f800000
    s_mov_b32 s{sMSK}, 0xffff0000
    s_add_u32 s84, s{sWS}, {STG}
    v_xor_b32 v2, v1, v3
    v_lshlrev_b32 v2, 4, v2
    v_lshl_add_u32 v2, v1, 8, v2
    v_add_u32 v{vOst}, s83, v2
    v_lshl_add_u32 v{vOr}, v0, 4, s84
    v_and_b32 v1, 15, v0
    v_lshrrev_b32 v2, 4, v0
    v_lshlrev_b32 v{vBp}, 2, v1
    v_and_b32 v5, 7, v1
    v_lshlrev_b32 v6, 7, v5
    v_lshrrev_b32 v7, 3, v1
    v_lshl_add_u32 v6, v7, 11, v6
    v_and_b32 v3, 6, v1
    v_xor_b32 v3, v3, v2
    v_lshl_add_u32 v{vKa[0]}, v3, 4, v6
    v_xor_b32 v{vKa[1]}, 64, v{vKa[0]}
    v_add_u32 v{vQa[0]}, s84, v{vKa[0]}
    v_add_u32 v{vQa[1]}, s84, v{vKa[1]}
    v_lshrrev_b32 v3, 1, v2
    v_xor_b32 v3, v3, v5
    v_lshl_add_u32 v3, v3, 4, v6
    v_and_b32 v2, 1, v2
    v_xor_b32 v2, v2, v7
    v_lshl_add_u32 v3, v2, 3, v3
    v_add_u32 v{vOw[0]}, s84, v3
    v_xor_b32 v{vOw[1]}, 32, v{vOw[0]}
    v_lshrrev_b32 v1, 2, v0
    v_and_b32 v2, 6, v1
    v_bfe_u32 v3, v0, 1, 1
    v_xor_b32 v2, v2, v3
    v_lshlrev_b32 v2, 4, v2
    v_and_b32 v3, 1, v0
    v_lshl_add_u32 v2, v3, 3, v2
    v_and_b32 v3, 7, v1
    v_lshl_add_u32 v2, v3, 7, v2
    v_lshrrev_b32 v3, 3, v1
    v_lshl_add_u32 v2, v3, 11, v2
    v_add_u32 v{vVa[0]}, {VRING}, v2
    v_xor_b32 v{vVa[1]}, 32, v{vVa[0]}
    v_xor_b32 v{vVa[2]}, 64, v{vVa[0]}
    v_xor_b32 v{vVa[3]}, 0x60, v{vVa[0]}
    ; row-sum operands: sparse pair pattern, index, and dense single-tile patterns
    v_mov_b32 v1, 0x3f803f80
    v_bfe_u32 v2, v0, 1, 1
    v_lshrrev_b32 v3, 5, v0
    v_cmp_eq_u32 vcc, v2, v3
    v_and_b32 v5, 3, v0
    v_mov_b32 v6, 0x4444
    v_cndmask_b32 v2, 0, v1, vcc
    v_cmp_eq_u32 vcc, 0, v5
    v_accvgpr_write_b32 a{aOneS}, v2
    v_accvgpr_write_b32 a{aOneS+1}, v2
    v_cndmask_b32 v3, 0, v1, vcc
    v_cmp_eq_u32 vcc, 2, v5
    v_accvgpr_write_b32 a{aOneS+2}, v2
    v_accvgpr_write_b32 a{aOneS+3}, v2
    v_cndmask_b32 v2, 0, v1, vcc
    v_and_b32 v5, 1, v0
    v_mul_u32_u24 v5, 0xaaaa, v5
    v_add_u32 v{vIdx}, v5, v6
    v_accvgpr_write_b32 a{aOneD[0]}, v3
    v_accvgpr_write_b32 a{aOneD[0]+1}, v3
    v_accvgpr_write_b32 a{aOneD[0]+2}, v3
    v_accvgpr_write_b32 a{aOneD[0]+3}, v3
    v_accvgpr_write_b32 a{aOneD[1]}, v2
    v_accvgpr_write_b32 a{aOneD[1]+1}, v2
    v_accvgpr_write_b32 a{aOneD[1]+2}, v2
    v_accvgpr_write_b32 a{aOneD[1]+3}, v2
"""

def slow_path():
    L=[]
    A=L.append
    A("    s_or_b64 s[64:65], s[40:41], s[42:43]")
    for T in range(2,12): A(f"    s_or_b64 s[64:65], s[64:65], s[{sFlag+2*T}:{sFlag+2*T+1}]")
    A("    s_cbranch_scc1 L_slow")
    A("    s_endpgm")
    A("L_slow:")
    A("    s_mov_b32 s66, 0")
    for T in range(12):
        A(f"    s_cmp_lg_u64 s[{sFlag+2*T}:{sFlag+2*T+1}], 0")
        A(f"    s_cselect_b32 s67, {1<<T}, 0")
        A("    s_or_b32 s66, s66, s67")
    A("    s_waitcnt vmcnt(0) lgkmcnt(0)")
    A("    v_mbcnt_lo_u32_b32 v8, -1, 0")
    A("    v_mbcnt_hi_u32_b32 v8, -1, v8")
    A("    v_and_b32 v9, 15, v8")
    A("    v_lshrrev_b32 v10, 4, v8")
    A("    v_lshlrev_b32 v11, 4, v10")
    A("    v_lshl_add_u32 v14, v9, 8, v11")
    A("    v_add_u32 v15, s83, v14")
    A("    v_and_b32 v11, 1, v10")
    A("    v_lshlrev_b32 v11, 1, v11")
    A("    v_lshrrev_b32 v12, 1, v10")
    A("    v_or_b32 v11, v11, v12")
    A("    v_lshlrev_b32 v11, 4, v11")
    A("    v_lshl_add_u32 v11, v9, 8, v11")
    A("    v_add_u32 v13, s83, v11")
    A(f"    v_subrev_u32 v16, s81, v{vDMA}")
    A(f"    s_add_u32 s68, s{sWS}, {STG-VRING}")
    for i in range(4): A(f"    v_add_u32 v{20+i}, s68, v{vVa[i]}")
    for i in range(4): A(f"    v_mov_b32 v{196+i}, 0x3f803f80")
    A("    s_mov_b32 s69, 0")
    A("L_slow_tile:")
    A("    s_bitcmp1_b32 s66, s69")
    A("    s_cbranch_scc0 L_slow_next")
    A("    s_cmp_ge_u32 s69, 6")
    A("    s_cselect_b32 s70, 0x20000, 0")
    A(f"    s_cselect_b32 s71, {(768-96)*256}, 0")
    A("    s_lshl_b32 s72, s69, 12")
    A("    s_add_u32 s71, s71, s72                ; q/o offset")
    for st in range(4): A(f"    buffer_load_dwordx4 v[{64+4*st}:{67+4*st}], v15, s[{sQ}:{sQ+3}], s71 offen offset:{64*st}")
    A("    v_mov_b32 v17, 0xff800000")
    A("    s_mov_b32 s72, s70")
    A("    s_add_u32 s73, s70, 0x20000")
    A("L_slow_max:")
    for st in range(4): A(f"    buffer_load_dwordx4 v[{80+4*st}:{83+4*st}], v14, s[{sK}:{sK+3}], s72 offen offset:{64*st}")
    A("    s_waitcnt vmcnt(0)")
    for st in range(4): A(f"    v_mfma_f32_16x16x32_bf16 v[0:3], v[{80+4*st}:{83+4*st}], v[{64+4*st}:{67+4*st}], {'0' if st==0 else 'v[0:3]'}")
    A("    s_nop 15")
    A("    v_max3_f32 v17, v17, v0, v1")
    A("    v_max3_f32 v17, v17, v2, v3")
    A("    s_add_u32 s72, s72, 4096")
    A("    s_cmp_lt_u32 s72, s73")
    A("    s_cbranch_scc1 L_slow_max")
    for sw in ("16","32"):
        A("    v_mov_b32 v18, v17"); A("    s_nop 1")
        A(f"    v_permlane{sw}_swap_b32 v17, v18"); A("    s_nop 1")
        A("    v_max_f32 v17, v17, v18")
    A(f"    v_mul_f32 v17, 0x{f2u(-CSC):08x}, v17")
    for r in range(160,196): A(f"    v_mov_b32 v{r}, 0")
    A("    s_mov_b32 s72, s70")
    A("L_slow_blk:")
    A("    s_add_u32 s74, s72, 4096")
    for f in range(8):
        kt,st=divmod(f,4)
        A(f"    buffer_load_dwordx4 v[{80+4*f}:{83+4*f}], v14, s[{sK}:{sK+3}], {'s72' if kt==0 else 's74'} offen offset:{64*st}")
    for kt in range(2):
        for half in range(2):
            A(f"    s_add_u32 m0, s{sWS}, {STG+kt*4096+half*896}")
            A("    s_nop 0")
            for oc in range(2):
                A(f"    buffer_load_dwordx4 v16, s[{sV}:{sV+3}], {'s72' if kt==0 else 's74'} offen offset:{2048*oc+128*half} lds")
    A("    s_waitcnt vmcnt(0)")
    for t in range(8):
        for kt in range(2):
            A(f"    ds_read_b64_tr_b16 v[{112+4*t+2*kt}:{113+4*t+2*kt}], v{20+t%4} offset:{kt*4096+(t//4)*1024}")
    for f in range(8):
        kt,st=divmod(f,4); d=4*kt
        A(f"    v_mfma_f32_16x16x32_bf16 v[{d}:{d+3}], v[{80+4*f}:{83+4*f}], v[{64+4*st}:{67+4*st}], {'0' if st==0 else f'v[{d}:{d+3}]'}")
    A("    s_nop 15")
    for i in range(8): A(f"    v_fma_f32 v{i}, v{i}, s{sC}, v17")
    for i in range(8): A(f"    v_exp_f32 v{i}, v{i}")
    A("    s_nop 1")
    for k in range(4): A(f"    v_cvt_pk_bf16_f32 v{24+k}, v{2*k}, v{1+2*k}")
    A("    s_waitcnt lgkmcnt(0)")
    A("    s_nop 1")
    for t in range(8): A(f"    v_mfma_f32_16x16x32_bf16 v[{160+4*t}:{163+4*t}], v[{112+4*t}:{115+4*t}], v[24:27], v[{160+4*t}:{163+4*t}]")
    A("    v_mfma_f32_16x16x32_bf16 v[192:195], v[196:199], v[24:27], v[192:195]")
    A("    s_add_u32 s72, s72, 8192")
    A("    s_cmp_lt_u32 s72, s73")
    A("    s_cbranch_scc1 L_slow_blk")
    A("    s_nop 15")
    A("    v_rcp_f32 v18, v192")
    A("    s_nop 1")
    for r in range(160,192): A(f"    v_mul_f32 v{r}, v{r}, v18")
    for m in range(4):
        o=160+8*m
        for i in range(4): A(f"    v_cvt_pk_bf16_f32 v{o+i}, v{o+2*i}, v{o+2*i+1}")
        A("    s_nop 1")
        for i in range(2): A(f"    v_permlane16_swap_b32 v{o+i}, v{o+i+2}")
        A(f"    buffer_store_dwordx4 v[{o}:{o+3}], v13, s[{sO}:{sO+3}], s71 offen offset:{64*m}")
    A("    s_waitcnt vmcnt(0)")
    A("L_slow_next:")
    A("    s_add_u32 s69, s69, 1")
    A("    s_cmp_lt_u32 s69, 12")
    A("    s_cbranch_scc1 L_slow_tile")
    return "\n".join(L)+"\n"

def isize(t):
    if 'L_thrw' in t: return 12
    if 'L_back' in t: return 4*(t.count('\n'))
    t=t.strip(); op=t.split()[0]
    if op.startswith(('v_mfma','v_smfmac','ds_','buffer_','global_','v_fma_f32','v_cvt_pk','v_max3','v_pk_','v_accvgpr','v_writelane','s_mem')) or op.endswith('_e64'): return 8
    if op in('s_waitcnt','s_barrier','s_nop','s_addk_i32') or op.startswith('s_cbranch'): return 4
    for a in t.split(None,1)[1].replace(',',' ').split():
        try: v=int(a,0)
        except ValueError: continue
        if not -16<=v<=64: return 8
    return 4

DOC = """;
; GQA attention, O = softmax(Q K^T / sqrt(128)) V.  Generated, fully unrolled, one persistent workgroup per CU.
;  - workgroup: 4 waves x 6 q-tiles of 16 rows, two KV heads one after the other (workgroups wg and wg+8 share both heads).
;  - softmax guard: every row subtracts a reference that is one of its own scores (max over the first keys it meets), so the
"""
HEAD = open('cdna_kernels/'+NAME+'.s.ref').read().split('; Override')[0]
def emit(cfg, path):
    g=Gen(cfg); out=g.build()
    abl=cfg.get('ablate')
    if abl:
        nb=0; o2=[]
        for o in out:
            if o.kind=='bar': nb+=1
            if nb>=3 and (o.gap or 0)>=g.msbb[cfg.get('ablfrom',0)] and any((a==o.kind) or (a[0]=='#' and a[1:] in o.text) for a in abl): continue
            o2.append(o)
        out=o2
    marks=[]; est=estimate(out,marks)
    stamp=cfg.get('stamp'); warm=cfg.get('warm',True)
    SST=[x for x in [64,65,66,67]+list(range(68,81))+list(range(85,90))+list(range(92,102))]
    ns=[0]
    def st2():
        i=ns[0]; ns[0]+=1
        return ["s_memtime s[90:91]","s_memrealtime s[2:3]","s_waitcnt lgkmcnt(0)",f"s_mov_b32 s{SST[2*i]}, s90",f"s_mov_b32 s{SST[2*i+1]}, s2"]
    if stamp: first_st=st2(); stbb={g.msbb[n] for n in stamp}
    k0=0
    while out[k0].kind in('dma','salu','nop'): k0+=1
    assert not any(f's[{sV}:' in o.text for o in out[:k0])
    first=[o.text for o in out[:k0]]; nfirst=sum(1 for o in out[:k0] if o.kind=='dma')
    PH=cfg.get('warmph',[(0,99,None)]); phdone=set()
    def entry(k_):
        p0,p1,_=PH[k_]; t="s_mov_b64 vcc, -1\n"
        for w in range(4):
            if p0+w<p1: t+=f" s_cmp_eq_u32 s{sW}, {w}\n s_cbranch_scc1 L_stub{p0+w}\n"
        return t+f"L_back{k_}:\n s_mov_b64 vcc, 0"
    lgap={}; nvw=0; lines=[]; ndma=nfirst; nbar=0; nm=0; probe=cfg.get('probe')
    for k in range(k0,len(out)):
        o=out[k]
        if o.kind=='wait' and 'v' in o.tag: nvw+=1
        for k_,(p0,p1,wh) in enumerate(PH):
            if k_>0 and k_ not in phdone and ((wh[0]=='m' and o.kind=='mfma' and o.bb==g.msbb[wh[1]]) or (wh[0]=='w' and o.kind=='wait' and 'v' in o.tag and nvw==wh[1])):
                phdone.add(k_); lines.append((entry(k_),'salu'))
        if cfg.get('thr') and o.kind=='dma':
            if ndma<cfg['thr'][1] and ndma%2==0:
                lines+=[(f"s_cmp_eq_u32 s{sPar}, 0\n s_cbranch_scc0 L_thrw{ndma}\n s_waitcnt vmcnt({cfg['thr'][2]})\nL_thrw{ndma}:",'salu')]
            ndma+=1
        if cfg.get('evenskip') and o.kind=='mfma' and o.bb==g.msbb[170]:
            lines.append((f"s_mul_i32 s{sO+2}, s{sO+2}, s{sPar}",'salu'))
        lines.append((o.text,o.kind)); lgap[len(lines)-1]=o.gap
        if o.kind=='bar': nbar+=1
        if probe and o.kind=='mfma' and o.bb in [g.msbb.get(x) for x in probe[:2] if x not in (0,99,100,-1)]:
            r = 92 if o.bb==g.msbb.get(probe[0]) else 94
            lines+=[(f"s_mem{'real' if probe[2]=='rt' else ''}time s[{r}:{r+1}]",'x'),("s_waitcnt lgkmcnt(0)",'x')]
        if stamp and o.kind=='mfma' and o.bb in stbb: lines+=[(x,'x') for x in st2()]
    body=[]; addr=0; page=0; stubs=0
    pm=cfg.get('premain',0); premain=[]
    if pm:
        acc=0; cutl=0
        for i,(t,kd) in enumerate(lines):
            if acc>pm: break
            if (kd=='wait' and 'vmcnt' in t) or (cfg.get('preany') and kd=='mfma'): cutl=i
            acc+=isize(t)
        premain=lines[:cutl]; lines=lines[cutl:]; lgap={k-cutl:v for k,v in lgap.items()}
    al=cfg.get('align')
    if al and al is not True: al=[((g.msbb[a] if a>=0 else -9),(g.msbb[b] if b<192 else 99999)) for a,b in al]
    WID=('v_exp_f32','v_rcp_f32','v_mov_b32','v_add_f32','v_max_f32','v_lshlrev_b32','v_and_b32','v_xor_b32','v_mul_f32')
    def inal(i):
        if not al: return False
        if al is True: return True
        gp=lgap.get(i); return gp is not None and any(a<=gp<b for a,b in al)
    tot=sum(isize(t) for t,_ in lines)+sum(4 for i,(t,_) in enumerate(lines) if inal(i) and t.split()[0] in WID and isize(t)==4); npages=(tot+72+60)//4096+1
    for i,(t,kd) in enumerate(lines):
        if warm and addr>=page*4096 and page<npages:
            prevm = i>0 and lines[i-1][1]=='mfma'
            if (prevm and kd not in SC_KINDS) or addr+isize(t)>page*4096+56 or page==0:
                nxt=page+4
                k_=[k for k,(p0,p1,_) in enumerate(PH) if p0<=page<p1]
                if not k_:
                    page+=1; body.append(" "+t+"\n"); addr+=isize(t); continue
                k_=k_[0]
                tgt = 'L_stub%d'%nxt if nxt<min(npages,PH[k_][1]) else f'L_back{k_}'
                body.append(f"L_stub{page}:\n s_cbranch_vccnz {tgt}\n")
                body.append(f".if ((L_stub{page}-L_main)>>6) != {page*64}\n.error \"stub misplaced\"\n.endif\n")
                addr+=4; page+=1
        if inal(i) and t.split()[0] in WID and isize(t)==4 and addr%8==0:
            nx=lines[i+1][0] if i+1<len(lines) else ''
            if not (nx and isize(nx)==4):
                op,rest=t.split(None,1); t=op+"_e64 "+rest
        if cfg.get('smartal') and t.split()[0] in WID and isize(t)==4:
            cnt=[0,0]; a=addr+4; run=0
            for j in range(i+1,min(i+80,len(lines))):
                tj,kj=lines[j]; z=isize(tj)
                if tj.split()[0] in WID and z==4: break
                if z==8 and kj!='mfma':
                    run+=1
                    if run>=3: cnt[0 if a%8 else 1]+=1
                else: run=0
                a+=z
            if cnt[0]-cnt[1]>=cfg['smartal']:
                op,rest=t.split(None,1); t=op+"_e64 "+rest
        body.append(" "+t+"\n"); addr+=isize(t)
    while warm and page<npages:
        k_=[k for k,(p0,p1,_) in enumerate(PH) if p0<=page<p1]
        if k_: body.append(f"L_stub{page}:\n s_cbranch_vccnz L_back{k_[0]}\n")
        page+=1
    txt=HEAD+"; @launch grid=(256,1,1) block=(256,1,1) lds=163840\n"
    txt+=DOC
    txt+=f'.amdgcn_target "amdgcn-amd-amdhsa--gfx950"\n.text\n.globl {NAME}_kernel\n.p2align 8\n.type {NAME}_kernel,@function\n{NAME}_kernel:\n'
    if probe:
        txt+=" s_memrealtime s[90:91]\n"
        if probe[0]==0: txt+=f" s_mem{'real' if probe[2]=='rt' else ''}time s[92:93]\n"
        txt+=" s_waitcnt lgkmcnt(0)\n"
        if cfg.get('gstart'):
            txt+=" s_load_dwordx2 s[34:35], s[0:1], 32\n s_not_b32 s36, s90\n v_mov_b32 v10, s36\n v_mov_b32 v11, 0\n s_waitcnt lgkmcnt(0)\n v_cmp_eq_u32 vcc, 0, v0\n s_and_saveexec_b64 s[36:37], vcc\n s_cbranch_execz L_gs\n global_atomic_umax v11, v10, s[34:35]\nL_gs:\n s_mov_b64 exec, s[36:37]\n"
    if stamp and cfg.get('stamp0'):
        txt+=" s_memtime s[90:91]\n s_memrealtime s[92:93]\n s_waitcnt lgkmcnt(0)\n s_mov_b32 s5, s90\n s_mov_b32 s6, s92\n"
    if cfg.get('pre_nop'):
        txt+=f" s_mov_b32 s64, {cfg['pre_nop']}\nL_pn:\n"+" s_nop 15\n"*16+" s_sub_u32 s64, s64, 1\n s_cmp_lg_u32 s64, 0\n s_cbranch_scc1 L_pn\n"
    PM=" s_memrealtime s[94:95]\n s_waitcnt lgkmcnt(0)\n"
    txt+=PRO(cfg)
    if probe and probe[1]==201: txt+=PM
    thr=cfg.get('thr')
    if thr:
        k1,KK,W=thr
        cut=[i for i,o in enumerate(out[:k0]) if o.kind=='dma'][k1-1]+1
        if cfg.get('thrinv'): txt+=f"    s_xor_b32 s{sPar}, s{sPar}, 1\n"
        txt+="".join(" "+t+"\n" for t in first[:cut])
        txt+=f"    s_cmp_eq_u32 s{sPar}, 0\n    s_cbranch_scc1 L_thr0\n"+"".join(" "+t+"\n" for t in first[cut:])+"L_thr0:\n"
    else:
        txt+="".join(" "+t+"\n" for t in first)
    if probe and probe[1]==202: txt+=PM
    if stamp: txt+=" s_mov_b32 s4, s2\n"+"".join(" "+x+"\n" for x in first_st)
    txt+=PRO2
    if cfg.get('direct'):
        txt+=f"""    ; O store offset after the row swaps: r*256 + 16*[0,2,1,3][g] + w*24576
    v_and_b32 v1, 15, v0
    v_bfe_u32 v2, v0, 4, 1
    v_lshrrev_b32 v3, 5, v0
    v_lshl_add_u32 v2, v2, 1, v3
    v_lshlrev_b32 v2, 4, v2
    v_lshl_add_u32 v2, v1, 8, v2
    v_add_u32 v{vOst}, s83, v2
"""
    if 0 in g.pres:
        for r in range(4): txt+=f"    v_accvgpr_write_b32 a{aSave+r}, v{vCI[0]+r}\n"
    txt+=f"    s_waitcnt vmcnt({nfirst})\n"
    if thr: txt+=f"    s_cmp_eq_u32 s{sPar}, 0\n    s_cbranch_scc0 L_thr1\n    s_waitcnt vmcnt({k1})\nL_thr1:\n"
    if probe and probe[1]==203: txt+=PM
    if warm:
        txt+="    ; touch the first line of 4 KB code pages (instruction-cache warm-up while the first loads are in flight)\n "+entry(0)+"\n"
        if probe and probe[1]==204: txt+=PM
    if thr:
        txt+=f"    s_cmp_eq_u32 s{sPar}, 0\n    s_cbranch_scc0 L_pre\n"
        nd=0
        for o in out[cut:k0]:
            if o.kind=='dma':
                if nd%2==0: txt+=f" s_waitcnt vmcnt({W})\n"
                nd+=1
            txt+=" "+o.text+"\n"
    txt+="L_pre:\n"+"".join(" "+t+"\n" for t,_ in premain)
    txt+="    s_branch L_main\n.p2align 12\nL_main:\n"
    txt+="".join(body)
    if stamp:
        txt+="".join(" "+x+"\n" for x in st2())
        txt+=" s_waitcnt vmcnt(0)\n"+"".join(" "+x+"\n" for x in st2())
        txt+=" v_mov_b32 v2, 0\n v_mov_b32 v3, 0\n"
        o_=1 if cfg.get('stamp0') else 0
        if o_: txt+=" v_writelane_b32 v2, s5, 0\n v_writelane_b32 v3, s6, 0\n"
        for i in range(ns[0]): txt+=f" v_writelane_b32 v2, s{SST[2*i]}, {i+o_}\n v_writelane_b32 v3, s{SST[2*i+1]}, {i+o_}\n"
        txt+=f""" s_load_dwordx2 s[92:93], s[0:1], 40
 s_lshl_b32 s90, s4, 2
 s_add_u32 s90, s90, s{sW}
 s_mul_i32 s90, s90, 768
 v_mbcnt_lo_u32_b32 v1, -1, 0
 v_mbcnt_hi_u32_b32 v1, -1, v1
 v_lshlrev_b32 v1, 2, v1
 v_add_u32 v1, s90, v1
 s_waitcnt lgkmcnt(0)
 global_store_dword v1, v2, s[92:93]
 global_store_dword v1, v3, s[92:93] offset:512
"""
    if probe:
        if probe[1]==99: txt+=f" s_mem{'real' if probe[2]=='rt' else ''}time s[94:95]\n s_waitcnt lgkmcnt(0)\n"
        if probe[1]==100: txt+=f" s_waitcnt vmcnt(0)\n s_mem{'real' if probe[2]=='rt' else ''}time s[94:95]\n s_waitcnt lgkmcnt(0)\n"
        if probe[1]<0: txt+=" s_mov_b32 s94, s92\n"
        if cfg.get('gstart'):
            txt+=" v_mov_b32 v11, 0\n global_load_dword v10, v11, s[34:35] sc0 sc1\n s_waitcnt vmcnt(0)\n v_readfirstlane_b32 s90, v10\n s_nop 3\n s_not_b32 s90, s90\n"
            if cfg['gstart']==2: txt+=" s_mov_b32 s92, s90\n"
        txt+=" s_sub_u32 s94, s94, s92\n"
        if probe[2]=='cyc': txt+=" s_lshr_b32 s94, s94, 4\n"
        else: txt+=f" s_lshl_b32 s94, s94, {cfg.get('amp',2)}\n"
        txt+=" s_add_u32 s94, s94, 10000\nL_spin:\n s_memrealtime s[92:93]\n s_waitcnt lgkmcnt(0)\n s_sub_u32 s92, s92, s90\n s_cmp_lt_u32 s92, s94\n s_cbranch_scc1 L_spin\n"
    if cfg.get('extra_mfma'):
        n,kind=cfg['extra_mfma']
        txt+=f" s_waitcnt vmcnt(0)\n s_mov_b32 s64, {n}\nL_xm:\n"
        L=[]
        if kind.startswith('m16'):
            for j in range(6):
                for i,f in enumerate(Gen.KORD):
                    kt,st=divmod(f,4); d=8*(j%2)+4*kt
                    L.append(f" v_mfma_f32_16x16x32_bf16 v[{d}:{d+3}], a[{160+4*f}:{163+4*f}], a[{192+16*(j%2)+4*st}:{195+16*(j%2)+4*st}], {'0' if i%4==0 else f'v[{d}:{d+3}]'}\n")
                for t in range(8):
                    d=64+32*j+4*t
                    L.append(f" v_mfma_f32_16x16x32_bf16 v[{d}:{d+3}], a[{192+4*t}:{195+4*t}], v[{24+4*(j%3)}:{27+4*(j%3)}], v[{d}:{d+3}]\n")
            if kind=='m16nop': L=[x+(" s_nop 0\n s_nop 0\n s_nop 0\n s_nop 0\n s_nop 0\n" if k%2 else "") for k,x in enumerate(L)]
            if kind=='m16v': L=[x+(f" v_exp_f32 v{40+k%8}, v{24+k%12}\n" if k%2 else f" v_fma_f32 v{48+k%8}, v{24+k%12}, s24, v{25+k%10}\n v_cvt_pk_bf16_f32 v{49+k%8}, v{24+k%12}, v{25+k%10}\n") for k,x in enumerate(L)]
        else:
            for j in range(3):
                for st in range(8):
                    L.append(f" v_mfma_f32_32x32x16_bf16 v[0:15], a[{160+4*st}:{163+4*st}], a[{192+4*((st+j)%8)}:{195+4*((st+j)%8)}], {'0' if st==0 else 'v[0:15]'}\n")
                for t in range(8):
                    d=64+64*j+16*(t%4)
                    L.append(f" v_mfma_f32_32x32x16_bf16 v[{d}:{d+15}], a[{192+4*t}:{195+4*t}], v[{24+4*((t//4+j)%3)}:{27+4*((t//4+j)%3)}], v[{d}:{d+15}]\n")
        txt+="".join(L)
        txt+=" s_sub_u32 s64, s64, 1\n s_cmp_lg_u32 s64, 0\n s_cbranch_scc1 L_xm\n s_nop 15\n"
    if cfg.get('extra_nop'):
        txt+=f" s_mov_b32 s64, {cfg['extra_nop']}\nL_xn:\n"+" s_nop 15\n"*16+" s_sub_u32 s64, s64, 1\n s_cmp_lg_u32 s64, 0\n s_cbranch_scc1 L_xn\n"
    txt+=" s_nop 1\n"+slow_path()
    txt+=f"""L_end:
    s_endpgm
.section .rodata,"a"
.p2align 6
.amdhsa_kernel {NAME}_kernel
  .amdhsa_next_free_vgpr 512
  .amdhsa_next_free_sgpr 102
  .amdhsa_accum_offset 256
  .amdhsa_group_segment_fixed_size 0
  .amdhsa_kernarg_size 48
  .amdhsa_user_sgpr_count 2
  .amdhsa_user_sgpr_kernarg_segment_ptr 1
  .amdhsa_system_sgpr_workgroup_id_x 1
.end_amdhsa_kernel
"""
    open(path,'w').write(txt)
    from collections import Counter
    print(path, "ops",len(out),"est",est, dict(Counter(o.kind for o in out)), "code",addr)
    if cfg.get('verbose'): print(' segs',[b-a for a,b in zip(marks,marks[1:]+[est])])
    if stamp and stamp is not True:
        mt=[]; estimate(out,None,mt); pts=[mt[g.msbb[n]] for n in stamp]+[est]
        print(' est stamp segs',[b-a for a,b in zip(pts,pts[1:])])
    from asm import asm
    asm(path)
    return out
```

```python
from cfgs import *
from best import BEST
import shutil
for k,v in dict(a=200,b=130,c=100).items():
    emit(mk('j4d',probe=(0,100,'rt'),vislat=v,**BEST),f't_{k}.s')
    shutil.copy(f't_{k}.s',f't_{k}2.s')
```
